```python
import torch

def _softmax(x, axis=-1):
    return torch.softmax(x, dim=axis)
def _gelu(x):
    return torch.nn.functional.gelu(x, approximate="tanh")
def _silu(x):
    return torch.nn.functional.silu(x)
def _sigmoid(x):
    return torch.sigmoid(x)
def _layernorm(x, axis=-1, eps=1e-5):
    m = x.mean(dim=axis, keepdim=True)
    v = x.var(dim=axis, keepdim=True, unbiased=False)
    return (x - m) / torch.sqrt(v + eps)
def _scatter_add(tgt, idx, src, axis=0):
    return tgt.clone().index_add_(axis, idx, src)
def _segment_sum(src, seg, n):
    out = torch.zeros((n,) + src.shape[1:], dtype=src.dtype)
    return out.index_add_(0, seg, src)
def _pad(x, pw):
    flat = tuple(v for pair in reversed(pw) for v in pair)
    return torch.nn.functional.pad(x, flat)

kernel_name = 'sequential_preLN__linear_kernel_hedgehog__glu_gated_geglu__prompt'

def setup_inputs():

    _w = (lambda a: (lambda t: t.to(torch.bfloat16) if t.is_floating_point() else t)(torch.as_tensor(a)))
    def _A_setup():
        B, S, D, H = 1, 2048, 640, 32
        Dh = D // H
        return {
            "x": _w((lambda *s: torch.randn(*s, dtype=torch.bfloat16) * 0.05)(B, S, D)),
            "wqkv": _w((lambda *s: torch.randn(*s, dtype=torch.bfloat16) * 0.2)(D, 3 * D)),
            "w_phi": _w((lambda *s: torch.randn(*s, dtype=torch.bfloat16) * 0.2)(H, Dh, Dh) * (Dh ** -0.5)),
            "wo": _w((lambda *s: torch.randn(*s, dtype=torch.bfloat16) * 0.05)(D, D)),
        }
    _A_in = _A_setup()

    def _B_setup():
        B, S, Dm, Df = 1, 2048, 640, 1536
        return {
            "x": _w((lambda *s: torch.randn(*s, dtype=torch.bfloat16) * 0.05)(B, S, Dm)),
            "w_gate": _w((lambda *s: torch.randn(*s, dtype=torch.bfloat16) * 0.4)(Dm, Df) * (Dm ** -0.5)),
            "w_up": _w((lambda *s: torch.randn(*s, dtype=torch.bfloat16) * 0.4)(Dm, Df) * (Dm ** -0.5)),
            "w_down": _w((lambda *s: torch.randn(*s, dtype=torch.bfloat16) * 0.4)(Df, Dm) * (Df ** -0.5)),
        }
    _B_in = _B_setup()

    return {
        "A_x": _A_in["x"],
        "A_wqkv": _A_in["wqkv"],
        "A_w_phi": _A_in["w_phi"],
        "A_wo": _A_in["wo"],
        "B_x": _B_in["x"],
        "B_w_gate": _B_in["w_gate"],
        "B_w_up": _B_in["w_up"],
        "B_w_down": _B_in["w_down"],
    }

def reference(A_x, A_wqkv, A_w_phi, A_wo, B_x, B_w_gate, B_w_up, B_w_down):
    def _A_ref(x, wqkv, w_phi, wo):
        B, S, D = x.shape
        H = 32; Dh = D // H
        qkv = (lambda x, *d: x.permute(*d))((x @ wqkv).reshape(B, S, 3, H, Dh), 2, 0, 3, 1, 4)
        q, k, v = qkv[0], qkv[1], qkv[2]
        pq = torch.einsum("bhsd,hdf->bhsf", q, w_phi)
        pk = torch.einsum("bhsd,hdf->bhsf", k, w_phi)
        phi_q = torch.concatenate([_softmax(pq, axis=-1), _softmax(-pq, axis=-1)], axis=-1)
        phi_k = torch.concatenate([_softmax(pk, axis=-1), _softmax(-pk, axis=-1)], axis=-1)
        kv = torch.einsum("bhsf,bhsd->bhfd", phi_k, v)
        z  = torch.einsum("bhsf->bhf", phi_k)
        num = torch.einsum("bhqf,bhfd->bhqd", phi_q, kv)
        den = torch.einsum("bhqf,bhf->bhq", phi_q, z)[..., None] + 1e-6
        o = num / den
        return (lambda x, *d: x.permute(*d))(o, 0, 2, 1, 3).reshape(B, S, D) @ wo

    def _B_ref(x, w_gate, w_up, w_down):
        g = torch.einsum("bsd,df->bsf", x, w_gate)
        u = torch.einsum("bsd,df->bsf", x, w_up)
        h = _gelu(g) * u
        return torch.einsum("bsf,fd->bsd", h, w_down)

    x = A_x
    h = x + _A_ref(_layernorm(x, axis=-1), A_wqkv, A_w_phi, A_wo)
    h2 = h + _B_ref(_layernorm(h, axis=-1), B_w_gate, B_w_up, B_w_down)
    return h2
```

```python
import re

REG_RE = re.compile(r'^(-|abs\()?([vas])(\d+)\)?$')
RNG_RE = re.compile(r'^(-)?([vas])\[(\d+):(\d+)\]$')

def regs_of(op):
    op = op.strip()
    m = REG_RE.match(op)
    if m: return {(m.group(2), int(m.group(3)))}
    m = RNG_RE.match(op)
    if m: return {(m.group(2), i) for i in range(int(m.group(3)), int(m.group(4)) + 1)}
    if op == 'vcc': return {('s', 'vcc')}
    if op == 'exec': return {('s', 'exec')}
    if op == 'm0': return {('s', 'm0')}
    return set()

def R(kind, base, n=1):
    return "%s%d" % (kind, base) if n == 1 else "%s[%d:%d]" % (kind, base, base + n - 1)
def v(b, n=1): return R('v', b, n)
def a(b, n=1): return R('a', b, n)
def s(b, n=1): return R('s', b, n)

TRANS = ('v_exp_f32', 'v_log_f32', 'v_rcp_f32', 'v_rsq_f32', 'v_sqrt_f32', 'v_sin_f32', 'v_cos_f32', 'v_rcp_iflag_f32')

class Inst:
    __slots__ = ('mn', 'ops', 'mods', 'defs', 'uses', 'cls', 'tag', 'cmt', 'untracked', 'text')
    def __init__(self, mn, ops, mods='', tag=None, cmt=None, untracked=False):
        self.mn = mn; self.ops = [str(o) for o in ops]; self.mods = mods; self.tag = tag; self.cmt = cmt
        self.untracked = untracked; self.text = None
        self.classify()
    def classify(self):
        mn, ops = self.mn, self.ops
        D = lambda idx: set().union(*[regs_of(ops[i]) for i in idx]) if idx else set()
        n = len(ops); allx = list(range(n))
        if mn.startswith('v_mfma'):
            self.cls = 'mfma'; self.defs = D([0]); self.uses = D([1, 2, 3])
        elif mn.startswith('v_cmp'):
            self.cls = 'valu'; self.defs = D([0]); self.uses = D(allx[1:])
        elif mn.startswith('v_permlane') and 'swap' in mn:
            self.cls = 'valu'; self.defs = D([0, 1]); self.uses = D([0, 1])
        elif mn.startswith(('v_fmac', 'v_dot2c', 'v_pk_fmac')):
            self.cls = 'valu'; self.defs = D([0]); self.uses = D(allx)
        elif mn.startswith('v_'):
            self.cls = 'valu'; self.defs = D([0]); self.uses = D(allx[1:])
            if '_dpp' in mn: self.uses |= D([0])
            if mn == 'v_cndmask_b32' and n == 3: self.uses |= {('s', 'vcc')}
        elif mn.startswith(('ds_read', 'ds_bpermute', 'ds_swizzle', 'ds_permute')):
            self.cls = 'ldsr'; self.defs = D([0]); self.uses = D(allx[1:])
        elif mn.startswith('ds_write'):
            self.cls = 'ldsw'; self.defs = set(); self.uses = D(allx)
        elif mn.startswith(('buffer_load', 'global_load')):
            if ' lds' in ' ' + self.mods or '_lds_' in mn:
                self.cls = 'dma'; self.defs = set(); self.uses = D(allx) | {('s', 'm0')}
            else:
                self.cls = 'vload'; self.defs = D([0]); self.uses = D(allx[1:])
        elif mn.startswith(('buffer_store', 'global_store', 'buffer_atomic', 'global_atomic')):
            self.cls = 'vstore'; self.defs = set(); self.uses = D(allx)
        elif mn.startswith(('s_load', 's_memtime', 's_memrealtime')):
            self.cls = 'smem'; self.defs = D([0]); self.uses = D(allx[1:])
        elif mn in ('s_waitcnt', 's_nop', 's_barrier', 's_endpgm', 's_sleep', 's_setprio', 'label', 'raw', 'waitvm', 'waitlds', 'comment', 'cond_begin', 'cond_end') or mn.startswith(('s_cbranch', 's_branch')):
            self.cls = 'ctl'; self.defs = set(); self.uses = set()
        elif mn.startswith('s_cmp'):
            self.cls = 'salu'; self.defs = set(); self.uses = D(allx)
        elif mn.startswith('s_'):
            self.cls = 'salu'; self.defs = D([0]); self.uses = D(allx[1:])
            if 'saveexec' in mn: self.defs |= {('s', 'exec')}
        else:
            raise ValueError('unknown mnemonic ' + mn)
    def __str__(self):
        if self.mn == 'label': return self.ops[0] + ':'
        if self.mn == 'raw': return self.text
        if self.mn == 'comment': return '; ' + self.text
        t = self.mn + (' ' + ', '.join(self.ops) if self.ops else '') + (' ' + self.mods if self.mods else '')
        if self.cmt: t += '   ; ' + self.cmt
        return t

class Stream:
    def __init__(self): self.l = []
    def __getattr__(self, mn):
        if mn.startswith('__'): raise AttributeError(mn)
        def f(*ops, mods='', tag=None, cmt=None, untracked=False):
            i = Inst(mn, ops, mods, tag, cmt, untracked); self.l.append(i); return i
        return f
    def add(self, other):
        self.l.extend(other.l if isinstance(other, Stream) else other); return self
    def label(self, name): self.l.append(Inst('label', [name]))
    def comment(self, t):
        i = Inst('comment', []); i.text = t; self.l.append(i)
    def raw(self, text, uses=(), defs=(), drains_vm=False):
        i = Inst('raw', []); i.text = text
        i.uses = set().union(*[regs_of(o) for o in uses]) if uses else set()
        i.defs = set().union(*[regs_of(o) for o in defs]) if defs else set()
        self.l.append(i); return i
    def waitvm(self, tag=None):
        i = Inst('waitvm', []); i.tag = tag; self.l.append(i)
    def waitlds(self, tag=None):
        i = Inst('waitlds', []); i.tag = tag; self.l.append(i)
    def cond_begin(self): self.l.append(Inst('cond_begin', []))
    def cond_end(self): self.l.append(Inst('cond_end', []))
    def __len__(self): return len(self.l)

def merge(main, fill, start=0, per=None, end_pad=0):
    out = Stream()
    nm = sum(1 for i in main.l if i.cls == 'mfma')
    slots = max(1, nm - start - end_pad)
    f = list(fill.l); nf = len(f); k = 0; seen = 0
    for i in main.l:
        out.l.append(i)
        if i.cls == 'mfma':
            seen += 1
            if seen > start:
                want = min(nf, -(-(nf * (seen - start)) // slots)) if per is None else min(nf, per * (seen - start))
                while k < want:
                    out.l.append(f[k]); k += 1
    out.l.extend(f[k:])
    return out

MFMA_PASS = {'v_mfma_f32_16x16x32_bf16': 4, 'v_mfma_f32_32x32x16_bf16': 8}
def mfma_lat(p, kind):
    return {'c_part': {4: 6, 8: 10}, 'ab': {4: 8, 8: 12}, 'other': {4: 8, 8: 12}, 'war_c': {4: 3, 8: 7}}[kind][p]

def finalize(stream, verbose=False):
    out = []
    pos = 0
    last_valu_w = {}
    last_trans_w = {}
    last_mfma_w = {}
    last_mfma_c = {}
    last_store_data = {}
    last_dot_w = {}
    last_salu_m0 = -100
    vmq = []
    ldq = []
    stats = {'nop': 0, 'wait': 0}
    def emit(i):
        nonlocal pos
        out.append(i)
        if i.mn in ('label', 'comment'): return
        if i.mn == 's_nop': pos += int(i.ops[0]) + 1
        else: pos += 1
    def do_wait(vm=None, lg=None):
        nonlocal vmq, ldq
        parts = []
        if vm is not None:
            vm = min(vm, 63)
            if len(vmq) > vm:
                parts.append('vmcnt(%d)' % vm); vmq = vmq[len(vmq) - vm:] if vm else []
        if lg is not None:
            if any(x[2] for x in ldq): lg = 0
            lg = min(lg, 15)
            if len(ldq) > lg:
                parts.append('lgkmcnt(%d)' % lg); ldq = ldq[len(ldq) - lg:] if lg else []
        if parts:
            emit(Inst('s_waitcnt', [' '.join(parts)])); stats['wait'] += 1
    cond = None
    for i in stream.l:
        if i.mn == 'cond_begin':
            cond = (pos, list(vmq), list(ldq)); continue
        if i.mn == 'cond_end':
            p0, vq0, lq0 = cond; cond = None
            ids0 = set(id(x) for x in vq0) | set(id(x) for x in lq0)
            for x in vmq + ldq:
                assert id(x) in ids0 or not x[0], 'load issued inside a conditional block still outstanding at its end'
            vmq = vq0; ldq = lq0
            delta = pos - p0
            for d in (last_valu_w, last_trans_w, last_store_data):
                for r in d:
                    if d[r] < p0: d[r] += delta
            for d in (last_mfma_w, last_mfma_c, last_dot_w):
                for r in d:
                    if d[r][0] < p0: d[r] = (d[r][0] + delta,) + tuple(d[r][1:])
            if last_salu_m0 < p0: last_salu_m0 += delta
            continue
        if i.mn == 'waitvm':
            if i.tag is None: do_wait(vm=0)
            else:
                idx = [k for k, x in enumerate(vmq) if x[1] == i.tag]
                if idx: do_wait(vm=len(vmq) - 1 - idx[-1])
            continue
        if i.mn == 'waitlds':
            if i.tag is None: do_wait(lg=0)
            else:
                idx = [k for k, x in enumerate(ldq) if x[1] == i.tag]
                if idx: do_wait(lg=len(ldq) - 1 - idx[-1])
            continue
        if i.mn == 's_waitcnt':
            t = i.ops[0]
            m = re.search(r'vmcnt\((\d+)\)', t)
            if m:
                n = int(m.group(1)); vmq = vmq[len(vmq) - n:] if n and len(vmq) > n else ([] if n == 0 else vmq)
            m = re.search(r'lgkmcnt\((\d+)\)', t)
            if m:
                n = int(m.group(1)); ldq = ldq[len(ldq) - n:] if n and len(ldq) > n else ([] if n == 0 else ldq)
            emit(i); continue
        if i.mn in ('label', 'comment'):
            emit(i); continue
        touched = i.uses | i.defs
        vm = lg = None
        for k, x in enumerate(vmq):
            if x[0] & touched: vm = len(vmq) - 1 - k
        for k, x in enumerate(ldq):
            if x[0] & touched: lg = len(ldq) - 1 - k
        if vm is not None or lg is not None: do_wait(vm, lg)
        need = 0
        def req(p, n):
            nonlocal need
            need = max(need, p + n + 1 - pos)
        for r in touched:
            if r in last_dot_w:
                dp, dm = last_dot_w[r]
                if i.mn == dm and r not in (regs_of(i.ops[1]) | regs_of(i.ops[2])): pass
                else: req(dp, 3)
        is_valu = i.cls == 'valu'; is_mem = i.cls in ('ldsr', 'ldsw', 'vload', 'vstore', 'dma')
        raw_blk = i.mn == 'raw'
        if i.cls == 'mfma':
            cset = regs_of(i.ops[3]); ab = regs_of(i.ops[1]) | regs_of(i.ops[2]); p = MFMA_PASS[i.mn]
            for r in i.uses:
                if r in last_valu_w: req(last_valu_w[r], 2)
            for r in ab:
                if r in last_mfma_w: req(last_mfma_w[r][0], mfma_lat(last_mfma_w[r][1], 'ab'))
            for r in cset | i.defs:
                if r in last_mfma_w:
                    w = last_mfma_w[r]
                    if r in cset and w[2] == cset and w[1] == p: pass
                    elif r in cset: req(w[0], mfma_lat(w[1], 'c_part'))
                    else: req(w[0], mfma_lat(w[1], 'c_part'))
        else:
            for r in touched:
                if r in last_mfma_w and (is_valu or is_mem or raw_blk): req(last_mfma_w[r][0], mfma_lat(last_mfma_w[r][1], 'other'))
            if is_valu or raw_blk:
                for r in i.defs:
                    if r in last_mfma_c: req(last_mfma_c[r][0], mfma_lat(last_mfma_c[r][1], 'war_c'))
                    if r in last_store_data: req(last_store_data[r], 2)
                for r in i.uses:
                    if r in last_trans_w: req(last_trans_w[r], 1)
                    if r in last_valu_w:
                        if r[0] == 's': req(last_valu_w[r], 4 if 'lane' in i.mn else 2)
                        elif i.mn.startswith(('v_readfirstlane', 'v_readlane')): req(last_valu_w[r], 1)
                        elif i.mn.startswith('v_permlane') or '_dpp' in i.mn or raw_blk: req(last_valu_w[r], 2)
            if is_mem:
                for r in i.uses:
                    if r in last_trans_w: req(last_trans_w[r], 1)
                    if r[0] == 's' and r in last_valu_w: req(last_valu_w[r], 5)
                for r in i.defs:
                    if r in last_store_data: req(last_store_data[r], 1)
                if i.cls == 'dma': req(last_salu_m0, 1)
            if i.cls == 'salu':
                for r in i.uses:
                    if r in last_valu_w: req(last_valu_w[r], 1)
        while need > 0:
            n = min(need, 16); emit(Inst('s_nop', [n - 1])); need -= n; stats['nop'] += n
        p0 = pos
        emit(i)
        for r in i.defs: last_dot_w.pop(r, None)
        if i.mn.startswith('v_dot'):
            for r in i.defs: last_dot_w[r] = (p0, i.mn)
        if i.cls == 'mfma':
            p = MFMA_PASS[i.mn]
            for r in i.defs: last_mfma_w[r] = (p0, p, frozenset(i.defs)); last_valu_w.pop(r, None)
            for r in regs_of(i.ops[3]): last_mfma_c[r] = (p0, p)
        elif is_valu or raw_blk:
            for r in i.defs:
                last_valu_w[r] = p0; last_mfma_w.pop(r, None)
                if i.mn in TRANS: last_trans_w[r] = p0
                else: last_trans_w.pop(r, None)
        elif i.cls == 'salu':
            for r in i.defs:
                last_valu_w.pop(r, None)
                if r == ('s', 'm0'): last_salu_m0 = p0
        if i.cls in ('vstore', 'ldsw') and re.search(r'x3|x4|b96|b128', i.mn):
            dat = regs_of(i.ops[0]) if i.mn.startswith('buffer') else regs_of(i.ops[1])
            for r in dat: last_store_data[r] = p0
        if not i.untracked:
            if i.cls in ('vload', 'vstore', 'dma'): vmq.append((i.defs, i.tag))
            elif i.cls in ('ldsr', 'ldsw'): ldq.append((i.defs, i.tag, False))
            elif i.cls == 'smem': ldq.append((i.defs, i.tag, True))
        if i.cls in ('vload', 'ldsr'):
            for r in i.defs: last_valu_w.pop(r, None); last_mfma_w.pop(r, None); last_trans_w.pop(r, None)
    if verbose: print('finalize: %d insts, %d nop states, %d waits' % (len(out), stats['nop'], stats['wait']))
    return out

def render(insts):
    return '\n'.join(('' if i.mn == 'label' else '    ') + str(i) for i in insts) + '\n'

HEADER = '''; @launch grid=({grid},1,1) block=(256,1,1) lds={lds}
.amdgcn_target "amdgcn-amd-amdhsa--gfx950"
.text
.globl {k}
.p2align 8
.type {k},@function
{k}:
'''
FOOTER = '''.section .rodata,"a"
.p2align 6
.amdhsa_kernel {k}
  .amdhsa_next_free_vgpr {nv}
  .amdhsa_next_free_sgpr 102
  .amdhsa_accum_offset {ao}
  .amdhsa_group_segment_fixed_size 0
  .amdhsa_kernarg_size 88
  .amdhsa_user_sgpr_count 2
  .amdhsa_user_sgpr_kernarg_segment_ptr 1
  .amdhsa_system_sgpr_workgroup_id_x 1
.end_amdhsa_kernel
'''
KNAME = "sequential_preLN__linear_kernel_hedgehog__glu_gated_geglu__prompt_kernel"

def groups_of(st, mode='single'):
    out = []; cur = []
    for i in st.l:
        cur.append(i)
        if mode == 'single':
            if i.cls != 'salu' and i.mn not in ('comment', 'waitvm', 'waitlds'): out.append(cur); cur = []
        else:
            if i.cls in ('vload', 'vstore', 'dma'): out.append(cur); cur = []
    if cur:
        if out: out[-1].extend(cur)
        else: out.append(cur)
    return out

def weave(main, fills, anchor='mfma'):
    isanch = (lambda i: i.cls == 'mfma') if anchor == 'mfma' else (lambda i: i.cls in ('valu', 'mfma', 'ldsr', 'ldsw'))
    na = sum(1 for i in main.l if isanch(i))
    at = {}
    tail = []
    for f in fills:
        st, lo, hi = f[0], f[1], f[2]
        mode = f[3] if len(f) > 3 else 'single'
        gs = groups_of(st, mode)
        if hi is None or hi > na: hi = na
        if lo < 0: lo = na + lo
        n = len(gs)
        for q, g in enumerate(gs):
            if hi <= lo: tail.append(g); continue
            idx = lo + (q * (hi - lo)) // n
            at.setdefault(idx, []).append(g)
    out = Stream(); seen = 0
    for i in main.l:
        out.l.append(i)
        if isanch(i):
            for g in at.get(seen, []): out.l.extend(g)
            seen += 1
    for g in tail: out.l.extend(g)
    return out
```

```python
import sys, math, struct
from asmgen import *

OPT = dict(stop=99, stamps=0, cqx=0, spin=100000, rot=1, w2a=16, w3a=20, w3b=12)
for a_ in sys.argv[2:]:
    kk, vv = a_.split('='); OPT[kk] = int(vv)

def f32(x): return '0x%08x' % struct.unpack('<I', struct.pack('<f', x))[0]
LOG2E = 1.4426950408889634
OOB = 0x40000000

WS_FLAGS = 4096
F_PREP, F_KV, F_O, F_H, F_HH = 0, 1, 2, 3, 4
WS_STAMP = 0x1700000
WS_PART = 0x80000
WS_O = 0x200000
WS_H = 0x500000
WS_HST = 0x780000
WS_HH = 0x800000
WS_W2 = 0x1000000
WS_W3 = 0x1100000
WS_W4 = 0x1500000
WS_DBG = 0x1800000
WS_SIZE = 0x4000000

L_KV = 0; L_Q = 0; L_FV = 61440
L_PG = 102400; L_PU = 110592; L_P4 = 118784; L_P2 = 126976
L_PHI = 135168; L_XS = 145408; L_FV2 = 145408
L_KVR = 0; L_ZERO = 4096
L_W2 = 61440; L_RING = 0; L_W4 = 61440; L_ST = 159744; L_RED = 0

S_X, S_W1, S_WS, S_WG, S_WU, S_WD, S_WO, S_OUT, S_PHI = 28, 32, 36, 40, 44, 48, 52, 56, 60
sR, sC, sCQ, sW, sM, sP = 64, 65, 66, 67, 68, 69
sN = 70
sT = 72
sXO = 80
sA, sB, sCc, sD = 88, 89, 90, 91
sONE_LO, sONE_HI, sONES = 92, 93, 94
sCNT = 95
sTM = 96
sXR = 98
sE, sF = 99, 100
sK = 4
sCH = 12
sV = 17
def srd(b): return s(b, 4)

vTID, vL16, vG, vJ, vSTAMP, vPOST, vFR, vFC, vNON, vXRO = 0, 1, 2, 3, 4, 5, 6, 7, 8, 10
t0, t1, t2 = 11, 12, 13
vR4, vCC, vLANE = 14, 15, 16

k = Stream()
STAMPS = []
def stamp(st, name):
    if not OPT['stamps']: return
    i = len(STAMPS); STAMPS.append(name)
    st.comment('stamp %d %s' % (i, name))
    st.s_memtime(s(sTM, 2))
    st.s_waitcnt('lgkmcnt(0)')
    st.v_writelane_b32(v(vSTAMP), s(sTM), i)

def post(st, kind):
    st.s_lshl_b32(s(sT), s(sR), 11)
    st.s_lshl_b32(s(sT + 1), s(sC), 7)
    st.s_add_u32(s(sT), s(sT), s(sT + 1))
    st.s_add_u32(s(sT), s(sT), WS_FLAGS + kind * 32768)
    st.buffer_store_dwordx2(v(vNON, 2), v(vPOST), srd(S_WS), s(sT), mods='offen sc1')

npoll = [0]
def poll(st, voff, ssoff, tmp):
    n = npoll[0]; npoll[0] += 1
    t = '''s_cmp_lg_u32 s{w}, 0
    s_cbranch_scc1 L_pd{n}
    s_mov_b32 s{c}, {lim}
L_pl{n}:
    buffer_load_dwordx2 v[{t}:{t1}], v{vo}, s[{ws}:{ws3}], s{so} offen sc1
    s_waitcnt vmcnt(0)
    v_cmp_ne_u64 vcc, s[{n0}:{n1}], v[{t}:{t1}]
    s_cbranch_vccz L_pd{n}
    s_sub_u32 s{c}, s{c}, 1
    s_cbranch_scc0 L_pl{n}
L_pd{n}:'''.format(w=sW, n=n, c=sCNT, lim=OPT['spin'], t=tmp, t1=tmp + 1, vo=voff, ws=S_WS, ws3=S_WS + 3, so=ssoff, n0=sN, n1=sN + 1)
    st.raw(t, uses=[v(voff)], defs=[v(tmp, 2)])
def poll_row(st, kind, tmp):
    st.s_lshl_b32(s(sT), s(sR), 11); st.s_add_u32(s(sT), s(sT), WS_FLAGS + kind * 32768)
    poll(st, vFR, sT, tmp)

def allreduce_groups(st, x, t, op):
    st.v_mov_b32(v(t), v(x))
    st.v_permlane32_swap_b32(v(x), v(t))
    getattr(st, op)(v(x), v(x), v(t))
    st.v_mov_b32(v(t), v(x))
    st.v_permlane16_swap_b32(v(x), v(t))
    getattr(st, op)(v(x), v(x), v(t))

MF = 'v_mfma_f32_16x16x32_bf16'
def mfma(st, d, A, B, first=False):
    getattr(st, MF)(d, A, B, '0' if first else d)

def wg_slot(st, mul, base):
    st.s_lshl_b32(s(sT), s(sR), 4); st.s_add_u32(s(sT), s(sT), s(sC))
    st.s_lshl_b32(s(sT), s(sT), 2); st.s_add_u32(s(sT), s(sT), s(sW))
    st.s_mul_i32(s(sT), s(sT), mul)
    st.s_add_u32(s(sT), s(sT), base)

def dump(st, regs):
    st.waitvm(); st.waitlds()
    wg_slot(st, 32768, WS_DBG)
    for q, r in enumerate(regs):
        st.buffer_store_dwordx4(r, v(vL16), srd(S_WS), s(sT), mods='offen')
        st.s_add_u32(s(sT), s(sT), 1024)

def finish(st):
    if OPT['stamps']:
        st.waitvm()
        stamp(st, 'end')
        wg_slot(st, 256, WS_STAMP)
        st.v_lshlrev_b32(v(t1), 2, v(vLANE))
        st.buffer_store_dword(v(vSTAMP), v(t1), srd(S_WS), s(sT), mods='offen')
    st.s_or_b32(s(sT), s(sR), s(sC))
    st.s_cmp_lg_u32(s(sT), 0)
    st.s_cbranch_scc1('L_end')
    st.buffer_store_dwordx2(v(vNON, 2), v(vPOST), srd(S_WS), 0, mods='offen')
    st.label('L_end')
    st.s_endpgm()
    ins = finalize(st, True)
    hdr = open('sequential_preLN__linear_kernel_hedgehog__glu_gated_geglu__prompt.s.ref').read().split('\n')
    hdr = [l for l in hdr if l.startswith(';') and '@launch' not in l]
    txt = '\n'.join(hdr) + '\n' + HEADER.format(grid=256, lds=163840, k=KNAME) + render(ins) + FOOTER.format(k=KNAME, nv=512, ao=256)
    open(sys.argv[1], 'w').write(txt)
    open(sys.argv[1] + '.stamps', 'w').write('\n'.join(STAMPS))
    sys.exit(0)

def div_small(st, q, x, d):
    mul, sh = {10: (205, 11), 80: (205, 14), 5: (205, 10), 6: (171, 10), 12: (171, 11), 48: (171, 13), 3: (171, 9)}[d]
    st.v_mul_u32_u24(v(q), mul, v(x)); st.v_lshrrev_b32(v(q), sh, v(q))
for d_, lim in ((10, 512), (80, 320), (5, 256), (6, 192), (12, 512), (48, 192), (3, 8)):
    mul, sh = {10: (205, 11), 80: (205, 14), 5: (205, 10), 6: (171, 10), 12: (171, 11), 48: (171, 13), 3: (171, 9)}[d_]
    assert all((x * mul) >> sh == x // d_ for x in range(lim)), d_

vXO = 17; vKD = 18; vQD = 23; vP3D = 26; vP4D = 28; vXW = 30; vXRd = 34; vKT = 38; vQT = 48
vWQ = 54; vWP = 56; vWA = 58; vXO2 = 59; vONE = 60; vAF = 64; vACC = 104; vGR = 164
vST = 180
vE = 184
vEA = 248
aPHI = 160
sRHO = 3

k.s_load_dwordx16(s(4, 16), s(0, 2), 0)
k.s_load_dwordx4(s(20, 4), s(0, 2), 64)
k.s_load_dwordx2(s(24, 2), s(0, 2), 80)
k.s_cmp_ge_u32(s(2), 256)
k.s_cbranch_scc1('L_end')
if OPT['stamps']: k.v_mov_b32(v(vSTAMP), 0)
k.s_bfe_u32(s(sT), s(2), 0x20001)
k.s_lshl_b32(s(sT), s(sT), 2)
k.s_bfe_u32(s(sT + 1), s(2), 0x20003)
k.s_add_u32(s(sR), s(sT), s(sT + 1))
k.s_and_b32(s(sT), s(2), 1)
k.s_lshl_b32(s(sT), s(sT), 3)
k.s_lshr_b32(s(sT + 2), s(2), 5)
k.s_add_u32(s(sC), s(sT), s(sT + 2))
k.s_xor_b32(s(sCQ), s(sC), OPT['cqx'])
k.s_lshr_b32(s(sM), s(sC), 1)
k.s_and_b32(s(sP), s(sC), 1)
if OPT['rot']:
    k.s_add_u32(s(sRHO), s(sT + 1), s(sT + 2))
    for _ in range(2):
        k.s_sub_u32(s(sT), s(sRHO), 5)
        k.s_cselect_b32(s(sRHO), s(sRHO), s(sT))
else:
    k.s_mov_b32(s(sRHO), 0)
def chunk(st, slot, dst, tmp):
    st.s_add_u32(s(dst), s(sRHO), slot)
    st.s_sub_u32(s(tmp), s(dst), 5)
    st.s_cselect_b32(s(dst), s(dst), s(tmp))
k.v_lshrrev_b32(v(t0), 6, v(vTID))
k.v_readfirstlane_b32(s(sW), v(t0))
k.v_and_b32(v(vLANE), 63, v(vTID))
k.v_lshlrev_b32(v(vL16), 4, v(vLANE))
k.v_lshrrev_b32(v(vG), 4, v(vLANE))
k.v_and_b32(v(vJ), 15, v(vLANE))
k.v_mul_u32_u24(v(vXO), 1280, v(vG))
k.v_lshl_add_u32(v(vXO), v(vJ), 4, v(vXO))
k.s_lshl_b32(s(sT), s(sR), 7)
k.s_lshl_b32(s(sT + 1), s(sW), 5)
k.s_add_u32(s(sT), s(sT), s(sT + 1))
k.s_mul_i32(s(sXO), s(sT), 1280)
for i in range(1, 8): k.s_add_u32(s(sXO + i), s(sXO), i * 4 * 1280)
for n in range(5):
    k.v_add_u32(v(t0), 64 * n, v(vLANE))
    div_small(k, t1, t0, 80)
    k.v_and_b32(v(t1), 1, v(t1)); k.v_lshlrev_b32(v(t1), 3, v(t1))
    k.v_xor_b32(v(t0), v(t0), v(t1))
    div_small(k, t1, t0, 10)
    k.v_mul_u32_u24(v(t2), 10, v(t1)); k.v_sub_u32(v(t0), v(t0), v(t2))
    k.v_mul_u32_u24(v(vKD + n), 3840, v(t1))
    k.v_lshl_add_u32(v(vKD + n), v(t0), 4, v(vKD + n))
    k.v_cmp_lt_u32('vcc', 4, v(t0))
    k.v_add_u32(v(t1), 1280 - 80, v(vKD + n))
    k.v_cndmask_b32(v(vKD + n), v(vKD + n), v(t1), 'vcc')
k.v_lshlrev_b32(v(vWA), 3, v(vTID))
k.v_cmp_gt_u32('vcc', 200, v(vTID))
k.v_mov_b32(v(t1), OOB)
k.v_cndmask_b32(v(vWA), v(t1), v(vWA), 'vcc')
k.s_mul_i32(s(sA), s(sW), 32 * 3840)
k.s_mul_i32(s(sT), s(sC), 80)
k.s_add_u32(s(sA), s(sA), s(sT)); k.s_add_u32(s(sA), s(sA), 1280)
k.s_mul_i32(s(sB), s(sW), 5120)
k.s_mul_i32(s(sT + 2), s(sC), 1600)
k.s_mul_i32(s(sT + 3), s(sCQ), 1600)
k.s_waitcnt('lgkmcnt(0)')
def mksrd(st, b, p, size):
    st.s_mov_b32(s(b), s(p)); st.s_mov_b32(s(b + 1), s(p + 1)); st.s_mov_b32(s(b + 2), size); st.s_mov_b32(s(b + 3), 0x20000)
mksrd(k, S_X, 4, 2621440); mksrd(k, S_W1, 6, 2457600); mksrd(k, S_PHI, 8, 25600)
k.s_load_dwordx2(s(sN, 2), s(24, 2), 0)
stamp(k, 'start')
def issue_x(st, sg):
    chunk(st, sg, sE, sF)
    st.s_lshl_b32(s(sE), s(sE), 8)
    st.v_add_u32(v(vXO2), s(sE), v(vXO))
    for tt in range(2):
        for n in range(4):
            st.buffer_load_dwordx4(a(32 * sg + 16 * tt + 4 * n, 4), v(vXO2), srd(S_X), s(sXO + 4 * tt + n), mods='offen')
def issue_w(st, sg):
    chunk(st, sg, sCc, sD)
    st.s_mul_i32(s(sCc), s(sCc), 128 * 3840)
    st.s_add_u32(s(sCc), s(sCc), s(sA))
    for n in range(5):
        st.s_add_u32('m0', s(sB), L_KV + sg * 20480 + n * 1024)
        st.buffer_load_dwordx4(v(vKD + n), srd(S_W1), s(sCc), mods='offen lds', tag='W%d' % sg)
issue_x(k, 0); issue_w(k, 0)
k.buffer_load_dwordx2(v(vWP, 2), v(vWA), srd(S_PHI), s(sT + 2), mods='offen')
if OPT['cqx']: k.buffer_load_dwordx2(v(vWQ, 2), v(vWA), srd(S_PHI), s(sT + 3), mods='offen')
u = Stream()
mksrd(u, S_WS, 24, WS_SIZE)
mksrd(u, S_WG, 14, 1966080); mksrd(u, S_WU, 16, 1966080); mksrd(u, S_WD, 18, 1966080); mksrd(u, S_WO, 10, 819200); mksrd(u, S_OUT, 20, 2621440)
for i in range(4): u.v_mov_b32(v(vAF + i), 0)
u.v_lshlrev_b32(v(t0), 4, v(vTID))
u.v_add_u32(v(t0), L_PHI, v(t0))
for i in range(2): u.ds_write_b128(v(t0), v(vAF, 4), mods='offset:%d' % (i * 4096))
u.v_cmp_gt_u32('vcc', 128, v(vTID))
u.s_and_saveexec_b64(s(sT, 2), 'vcc')
u.ds_write_b128(v(t0), v(vAF, 4), mods='offset:8192')
u.s_mov_b64('exec', s(sT, 2))
k.add(u)
u = Stream()
u.s_mov_b32(s(sONE_LO), 0x00003f80); u.s_mov_b32(s(sONE_HI), 0x3f800000); u.s_mov_b32(s(sONES), 0x3f803f80)
for i in range(4): u.v_mov_b32(v(vONE + i), 0x3f803f80)
u.v_cmp_ne_u32('vcc', 0, v(vTID))
u.v_mov_b32(v(t1), OOB)
u.v_cndmask_b32(v(vPOST), 0, v(t1), 'vcc')
u.v_lshlrev_b32(v(vFR), 7, v(vJ))
u.v_lshlrev_b32(v(vFC), 11, v(vJ))
u.v_mul_u32_u24(v(vXRO), 1280, v(vJ))
u.v_mul_u32_u24(v(t0), 40, v(vG))
u.v_add_u32(v(vXRO), v(vXRO), v(t0))
u.s_lshl_b32(s(sT), s(sW), 12)
u.s_add_u32(s(sT), s(sT), L_XS)
u.v_xor_b32(v(t0), v(vJ), v(vG))
u.v_lshlrev_b32(v(t0), 4, v(t0))
u.v_lshl_add_u32(v(t1), v(vG), 8, v(t0))
u.v_lshl_add_u32(v(t2), v(vJ), 8, v(t0))
for n in range(4):
    u.v_xor_b32(v(vXW + n), 64 * n, v(t1))
    u.v_add_u32(v(vXW + n), s(sT), v(vXW + n))
    u.v_xor_b32(v(vXRd + n), 64 * n, v(t2))
    u.v_add_u32(v(vXRd + n), s(sT), v(vXRd + n))
u.v_bfe_u32(v(vR4), v(vLANE), 2, 2)
u.v_and_b32(v(vCC), 3, v(vLANE))
u.v_lshl_add_u32(v(t0), v(vG), 3, v(vR4))
u.v_and_b32(v(t2), 1, v(vG)); u.v_lshlrev_b32(v(t2), 7, v(t2))
KV_TILES = [(0, 8), (32, 40), (40, 8), (80, 8), (120, 8)]
for X, (off, st_) in enumerate(KV_TILES):
    for i in range(2):
        d = vKT + 2 * X + i
        u.v_mul_u32_u24(v(d), 160, v(t0))
        u.v_mul_u32_u24(v(t1), st_, v(vCC))
        u.v_add_u32(v(d), v(d), v(t1))
        u.v_add_u32(v(d), L_KV + off + 640 * i, v(d))
        u.v_xor_b32(v(d), v(d), v(t2))
Q_TILES = [(0, 8, False), (32, 40, True), (40, 8, False)]
for X, (off, st_, clamp) in enumerate(Q_TILES):
    for i in range(2):
        d = vQT + 2 * X + i
        u.v_mul_u32_u24(v(d), 96, v(t0))
        if clamp:
            u.v_and_b32(v(t1), 1, v(vCC)); u.v_mul_u32_u24(v(t1), st_, v(t1))
        else:
            u.v_mul_u32_u24(v(t1), st_, v(vCC))
        u.v_add_u32(v(d), v(d), v(t1))
        u.v_add_u32(v(d), L_Q + off + 384 * i, v(d))
        u.v_xor_b32(v(d), v(d), v(t2))
x0, x1 = vAF + 4, vAF + 5
div_small(u, t0, vTID, 5)
u.v_mul_u32_u24(v(t1), 5, v(t0)); u.v_sub_u32(v(t1), v(vTID), v(t1))
u.v_lshlrev_b32(v(vWA), 11, v(t1))
u.v_cmp_lt_u32('vcc', 19, v(t0))
u.v_cndmask_b32(v(t1), 0, 1, 'vcc')
u.v_mul_u32_u24(v(t2), 20, v(t1)); u.v_sub_u32(v(t0), v(t0), v(t2))
u.v_lshl_add_u32(v(vWA), v(t1), 6, v(vWA))
u.v_lshrrev_b32(v(x0), 2, v(t0)); u.v_lshlrev_b32(v(x0), 8, v(x0))
u.v_and_b32(v(x1), 3, v(t0)); u.v_lshl_add_u32(v(x0), v(x1), 1, v(x0))
u.v_mul_u32_u24(v(t2), 1032, v(t1)); u.v_add_u32(v(x0), v(x0), v(t2))
u.v_lshlrev_b32(v(x1), 1, v(x1)); u.v_lshl_add_u32(v(x1), v(t1), 8, v(x1)); u.v_add_u32(v(x1), 8, v(x1))
u.v_cmp_lt_u32('vcc', 15, v(t0))
u.v_cndmask_b32(v(x0), v(x0), v(x1), 'vcc')
u.v_add_u32(v(vWA), v(vWA), v(x0))
u.v_add_u32(v(vWA), L_PHI, v(vWA))
f_ = Stream(); issue_x(f_, 1)
k.add(weave(u, [(f_, 40, None, 'vmem')], anchor='any'))
def wphi_scatter(st, d):
    st.v_cmp_gt_u32('vcc', 200, v(vTID))
    st.s_and_saveexec_b64(s(sT, 2), 'vcc')
    st.ds_write_b16(v(vWA), v(d))
    st.ds_write_b16_d16_hi(v(vWA), v(d), mods='offset:16')
    st.ds_write_b16(v(vWA), v(d + 1), mods='offset:32')
    st.ds_write_b16_d16_hi(v(vWA), v(d + 1), mods='offset:48')
    st.s_mov_b64('exec', s(sT, 2))
def wphi_read(st):
    st.v_add_u32(v(t0), L_PHI, v(vL16))
    st.v_xor_b32(v(t1), 128, v(t0))
    for p in range(2):
        for i in range(10):
            st.ds_read_b128(a(aPHI + (p * 10 + i) * 4, 4), v(t0 + p), mods='offset:%d' % (i * 1024))
k.waitlds()
k.s_add_u32(s(sN), s(sN), 1); k.s_addc_u32(s(sN + 1), s(sN + 1), 0)
k.v_mov_b32(v(vNON), s(sN)); k.v_mov_b32(v(vNON + 1), s(sN + 1))
sL2E, sINV640, sEPS, sK1, sK3, sEPS6 = sK, sK + 1, sK + 2, sK + 3, sK + 4, sK + 5
sL2Ep = 10
k.s_mov_b32(s(sL2E), f32(LOG2E)); k.s_mov_b32(s(sINV640), f32(1.0 / 640)); k.s_mov_b32(s(sEPS), f32(1e-5))
GK1 = -2.0 * math.sqrt(2.0 / math.pi) * LOG2E
k.s_mov_b32(s(sK1), f32(GK1)); k.s_mov_b32(s(sK3), f32(GK1 * 0.044715)); k.s_mov_b32(s(sEPS6), f32(1e-6))
k.s_mov_b32(s(sL2Ep), f32(LOG2E)); k.s_mov_b32(s(sL2Ep + 1), f32(-LOG2E))
k.s_barrier()
stamp(k, 'setup')

def acc(X, col): return vACC + (X * 3 + col) * 4
def xf(ks, tt): return a(32 * (ks >> 2) + 16 * tt + 4 * (ks & 3), 4)

def dma_offsets(st):
    for n in range(3):
        st.v_add_u32(v(t0), 64 * n, v(vLANE))
        div_small(st, t1, t0, 48)
        st.v_and_b32(v(t1), 1, v(t1)); st.v_lshlrev_b32(v(t1), 3, v(t1))
        st.v_xor_b32(v(t0), v(t0), v(t1))
        div_small(st, t1, t0, 6)
        st.v_mul_u32_u24(v(t2), 6, v(t1)); st.v_sub_u32(v(t0), v(t0), v(t2))
        st.v_min_u32(v(t0), 4, v(t0))
        st.v_mul_u32_u24(v(vQD + n), 3840, v(t1))
        st.v_lshl_add_u32(v(vQD + n), v(t0), 4, v(vQD + n))
    for e in range(2):
        st.s_lshl_b32(s(sT), s(sW), 7)
        st.v_add_u32(v(t0), s(sT), v(vLANE))
        if e: st.v_add_u32(v(t0), 64, v(t0))
        div_small(st, t1, t0, 12)
        st.v_mul_u32_u24(v(t2), 12, v(t1)); st.v_sub_u32(v(t2), v(t0), v(t2))
        st.v_mul_u32_u24(v(vP3D + e), 3072, v(t1))
        st.v_lshl_add_u32(v(vP3D + e), v(t2), 4, v(vP3D + e))
        div_small(st, t1, t0, 10)
        st.v_mul_u32_u24(v(t2), 10, v(t1)); st.v_sub_u32(v(t2), v(t0), v(t2))
        st.v_mul_u32_u24(v(vP4D + e), 1280, v(t1))
        st.v_lshl_add_u32(v(vP4D + e), v(t2), 4, v(vP4D + e))
def issue_prep(st):
    a0, a1, a2 = sV, sV + 1, sV + 2
    st.s_mul_i32(s(a0), s(sR), 40 * 3072); st.s_mul_i32(s(a1), s(sC), 192); st.s_add_u32(s(a0), s(a0), s(a1))
    st.s_lshl_b32(s(a2), s(sW), 11)
    for (S_, L_) in ((S_WG, L_PG), (S_WU, L_PU)):
        for e in range(2):
            st.s_add_u32('m0', s(a2), L_ + e * 1024)
            st.buffer_load_dwordx4(v(vP3D + e), srd(S_), s(a0), mods='offen lds', tag='prep')
    st.s_lshl_b32(s(a0), s(sR), 1); st.s_add_u32(s(a0), s(a0), s(sP)); st.s_mul_i32(s(a0), s(a0), 48 * 1280)
    st.s_mul_i32(s(a1), s(sM), 160); st.s_add_u32(s(a0), s(a0), s(a1))
    for e in range(2):
        st.s_add_u32('m0', s(a2), L_P4 + e * 1024)
        st.buffer_load_dwordx4(v(vP4D + e), srd(S_WD), s(a0), mods='offen lds', tag='prep')
    st.s_mul_i32(s(a0), s(sR), 40 * 1280); st.s_add_u32(s(a0), s(a0), s(a1))
    for e in range(2):
        st.s_add_u32('m0', s(a2), L_P2 + e * 1024)
        st.buffer_load_dwordx4(v(vP4D + e), srd(S_WO), s(a0), mods='offen lds', tag='prep')
def issue_q(st, lo, hi):
    a0, a1, a2, a3 = sV + 3, sV + 4, sV + 5, sV + 6
    if lo == 0:
        st.s_mul_i32(s(a0), s(sW), 32 * 3840); st.s_mul_i32(s(a1), s(sCQ), 80); st.s_add_u32(s(a0), s(a0), s(a1))
        st.s_mul_i32(s(a2), s(sW), 3072)
    for ch in range(lo, hi):
        chunk(st, ch, a1, a3)
        st.s_mul_i32(s(a1), s(a1), 128 * 3840); st.s_add_u32(s(a1), s(a1), s(a0))
        for n in range(3):
            st.s_add_u32('m0', s(a2), L_Q + ch * 12288 + n * 1024)
            st.buffer_load_dwordx4(v(vQD + n), srd(S_W1), s(a1), mods='offen lds', tag='Q%d' % ch)
def tr_reads(st, ks, buf, ntile, vaddr, pitch, rebase):
    for X in range(ntile):
        for i in range(2):
            st.ds_read_b64_tr_b16(v(vAF + buf * 20 + X * 4 + 2 * i, 2), v(vaddr + 2 * X + i), mods='offset:%d' % (ks * pitch - rebase))
def x_shuffle(st, sg):
    for tt in range(2):
        for n in range(4): st.ds_write_b128(v(vXW + n), a(32 * sg + 16 * tt + 4 * n, 4), mods='offset:%d' % (n * 1024))
        for n in range(4): st.ds_read_b128(a(32 * sg + 16 * tt + 4 * n, 4), v(vXRd + n))
def gram(st, sg):
    for q in range(4):
        ks = 4 * sg + q
        for tt in range(2):
            mfma(st, v(vGR + 4 * tt, 4), xf(ks, tt), xf(ks, tt), ks == 0)
            mfma(st, v(vGR + 8 + 4 * tt, 4), v(vONE, 4), xf(ks, tt), ks == 0)
def ln_stats(st):
    for tt in range(2):
        q_, m_, u_ = vE, vE + 1, vE + 2
        G = vGR + 4 * tt
        st.v_cmp_eq_u32('vcc', 1, v(vCC)); st.v_cndmask_b32(v(q_), v(G), v(G + 1), 'vcc')
        st.v_cmp_eq_u32('vcc', 2, v(vCC)); st.v_cndmask_b32(v(q_), v(q_), v(G + 2), 'vcc')
        st.v_cmp_eq_u32('vcc', 3, v(vCC)); st.v_cndmask_b32(v(q_), v(q_), v(G + 3), 'vcc')
        st.v_cmp_eq_u32('vcc', v(vR4), v(vG)); st.v_cndmask_b32(v(q_), 0, v(q_), 'vcc')
        allreduce_groups(st, q_, u_, 'v_add_f32')
        st.v_mul_f32(v(m_), s(sINV640), v(vGR + 8 + 4 * tt))
        st.v_mul_f32(v(q_), s(sINV640), v(q_))
        st.v_fma_f32(v(q_), '-' + v(m_), v(m_), v(q_))
        st.v_max_f32(v(q_), 0, v(q_))
        st.v_add_f32(v(q_), s(sEPS), v(q_))
        st.v_rsq_f32(v(vST + 2 * tt + 1), v(q_))
        st.v_sub_f32(v(vST + 2 * tt), 0, v(m_))
vVA, vK1A, vFA, vKA, vKB, vPS = vEA, vEA + 1, vEA + 2, vEA + 3, vEA + 4, vEA + 6
vKA2, vKB2 = 246, 247
def epi_addrs(st):
    b0, b1, b2, b3, b4, b5 = sV + 7, sV + 8, sV + 9, sV + 10, sT + 6, sT + 7
    st.s_mul_i32(s(b0), s(sW), 9216)
    st.s_cmp_lt_u32(s(sW), 2)
    st.s_cselect_b32(s(b1), L_FV, 0)
    st.s_cselect_b32(s(b2), 0, L_FV2 - 2 * 9216)
    st.s_add_u32(s(b0), s(b0), s(b1)); st.s_add_u32(s(b0), s(b0), s(b2))
    st.v_mul_u32_u24(v(t0), 288, v(vJ))
    st.v_add_u32(v(t0), s(b0), v(t0))
    st.v_lshl_add_u32(v(vVA), v(vG), 3, v(t0))
    st.v_and_b32(v(t1), 1, v(vG)); st.v_mul_u32_u24(v(t1), 48, v(t1))
    st.v_lshrrev_b32(v(t2), 1, v(vG)); st.v_lshlrev_b32(v(t2), 3, v(t2))
    st.v_sub_u32(v(t1), v(t1), v(t2))
    st.v_add_u32(v(vK1A), v(t0), v(t1))
    st.v_lshrrev_b32(v(t1), 1, v(vG)); st.v_mul_u32_u24(v(t1), 16 * 288, v(t1))
    st.v_and_b32(v(t2), 1, v(vG)); st.v_mul_u32_u24(v(t2), 80, v(t2))
    st.v_add3_u32(v(vFA), v(t0), v(t1), v(t2))
    st.s_lshr_b32(s(b0), s(sW), 1)
    st.s_and_b32(s(b1), s(sW), 1)
    st.v_lshl_add_u32(v(t0), v(vG), 2, v(vR4))
    st.v_mul_u32_u24(v(t0), 288, v(t0))
    st.s_mul_i32(s(b2), s(b0), 80); st.s_add_u32(s(b2), s(b2), L_FV)
    st.v_lshl_add_u32(v(vKA), v(vCC), 3, v(t0))
    st.v_add_u32(v(vKA), s(b2), v(vKA))
    st.v_add_u32(v(vKA2), L_FV2 - L_FV, v(vKA))
    st.s_mul_i32(s(b2), s(b0), 48); st.s_lshl_b32(s(b3), s(b1), 5)
    st.s_add_u32(s(b2), s(b2), s(b3)); st.s_add_u32(s(b2), s(b2), L_FV + 160)
    st.s_mul_i32(s(b3), s(b1), -2); st.s_add_u32(s(b3), s(b3), 3)
    st.v_min_u32(v(t1), s(b3), v(vCC))
    st.v_lshl_add_u32(v(vKB), v(t1), 3, v(t0))
    st.v_add_u32(v(vKB), s(b2), v(vKB))
    st.v_add_u32(v(vKB2), L_FV2 - L_FV, v(vKB))
    st.s_mul_i32(s(b2), s(b1), -176); st.s_add_u32(s(b2), s(b2), 256)
    st.s_mul_i32(s(b3), s(b1), -11); st.s_add_u32(s(b3), s(b3), 16)
    st.s_mul_i32(s(b4), s(b1), 1280)
    st.s_mul_i32(s(b5), s(b0), 1792)
    st.s_add_u32(s(b4), s(b4), s(b5))
    st.v_mul_u32_u24(v(t0), s(b2), v(vG))
    st.v_lshlrev_b32(v(t1), 4, v(vJ))
    st.v_add3_u32(v(vPS), v(t0), v(t1), s(b4))
    st.s_lshl_b32(s(b2), s(b2), 2); st.s_add_u32(s(b4), s(b4), s(b2))
    st.v_lshl_add_u32(v(t0), v(vG), 3, v(t1))
    st.v_add_u32(v(vPS + 1), s(b4), v(t0))
    st.v_mov_b32(v(t2), OOB)
    st.v_cmp_gt_u32('vcc', s(b3), v(vJ))
    st.v_cndmask_b32(v(vPS), v(t2), v(vPS), 'vcc')
    st.v_cndmask_b32(v(vPS + 1), v(t2), v(vPS + 1), 'vcc')
    st.v_cmp_gt_u32('vcc', 2, v(vG))
    st.v_cndmask_b32(v(vPS + 1), v(t2), v(vPS + 1), 'vcc')

x_shuffle(k, 0)
wphi_scatter(k, vWP)
rebase = 0
for sg in range(5):
    if sg == 3:
        rebase = 61440
        for i in range(10): k.v_add_u32(v(vKT + i), rebase, v(vKT + i))
    if sg == 4: gram(k, 4)
    k.waitvm('W%d' % sg)
    k.waitlds()
    k.s_barrier()
    stamp(k, 'kv%d' % sg)
    m_ = Stream()
    tr_reads(m_, 4 * sg, 0, 5, vKT, 5120, rebase)
    if sg < 4: gram(m_, sg)
    for q in range(4):
        ks = 4 * sg + q
        mm = Stream()
        for X in range(5):
            A = v(vAF + (q & 1) * 20 + X * 4, 4)
            mfma(mm, v(acc(X, 0), 4), A, xf(ks, 0), ks == 0)
            mfma(mm, v(acc(X, 1), 4), A, xf(ks, 1), ks == 0)
            mfma(mm, v(acc(X, 2), 4), A, v(vONE, 4), ks == 0)
        ff = Stream()
        if q < 3: tr_reads(ff, ks + 1, (q + 1) & 1, 5, vKT, 5120, rebase)
        m_.add(merge(mm, ff, per=1))
    fills = []
    if sg < 4:
        f1 = Stream(); issue_w(f1, sg + 1); fills.append((f1, 0, 34, 'vmem'))
        f3 = Stream(); x_shuffle(f3, sg + 1); fills.append((f3, 40, 72))
    f2 = Stream()
    if sg < 3: issue_x(f2, sg + 2); fills.append((f2, 36, 76, 'vmem'))
    if sg == 3: issue_prep(f2); fills.append((f2, 36, 76, 'vmem'))
    if sg == 4: issue_q(f2, 0, 3); fills.append((f2, 0, 60, 'vmem'))
    f4 = Stream()
    if sg == 0: dma_offsets(f4); fills.append((f4, 2, 70))
    if sg == 1: wphi_read(f4); fills.append((f4, 0, 36))
    if sg == 2: epi_addrs(f4); fills.append((f4, 2, 70))
    if sg == 4: ln_stats(f4); fills.append((f4, 2, 56))
    k.add(weave(m_, fills))
stamp(k, 'kvgemm')

def ln_pack(st, X, tt, dst, pk=True):
    A = acc(X, tt); C = acc(X, 2); S = v(vST + 2 * tt, 2)
    if pk:
        for h in range(2):
            st.v_pk_fma_f32(v(A + 2 * h, 2), v(C + 2 * h, 2), S, v(A + 2 * h, 2), mods='op_sel_hi:[1,0,1]')
        for h in range(2):
            st.v_pk_mul_f32(v(A + 2 * h, 2), v(A + 2 * h, 2), S, mods='op_sel:[0,1] op_sel_hi:[1,1]')
    else:
        for i in range(4): st.v_fmac_f32(v(A + i), v(C + i), v(vST + 2 * tt))
        for i in range(4): st.v_mul_f32(v(A + i), v(A + i), v(vST + 2 * tt + 1))
    for h in range(2):
        st.v_cvt_pk_bf16_f32(v(dst + h), v(A + 2 * h), v(A + 2 * h + 1))

vBK = vE + 4
vP = vE + 16
vEP = vE + 36
vMX = vE + 56
vPK = vAF
def feature_map(st):
    for tt in range(2):
        for ks in range(2):
            for ft in range(5):
                mfma(st, v(vP + 4 * ft, 4), a(aPHI + (tt * 10 + ft * 2 + ks) * 4, 4), v(vBK + 6 * tt + 2 * ks, 4), tt == 0 and ks == 0)
def softmax2(st, order):
    mx, mn, sp, sn = vMX, vMX + 1, vMX + 2, vMX + 4
    st.v_max3_f32(v(mx), v(vP), v(vP + 1), v(vP + 2))
    st.v_min3_f32(v(mn), v(vP), v(vP + 1), v(vP + 2))
    for i in range(3, 19, 2):
        st.v_max3_f32(v(mx), v(mx), v(vP + i), v(vP + i + 1))
        st.v_min3_f32(v(mn), v(mn), v(vP + i), v(vP + i + 1))
    st.v_max_f32(v(mx), v(mx), v(vP + 19))
    st.v_min_f32(v(mn), v(mn), v(vP + 19))
    st.v_mul_f32(v(mx), s(sL2Ep + 1), v(mx))
    st.v_mul_f32(v(mn), s(sL2Ep), v(mn))
    for i in range(0, 20, 2):
        st.v_pk_fma_f32(v(vEP + i, 2), v(vP + i, 2), s(sL2Ep, 2), v(mx, 2), mods='op_sel_hi:[1,0,0]')
        st.v_pk_fma_f32(v(vP + i, 2), v(vP + i, 2), s(sL2Ep, 2), v(mx, 2), mods='op_sel:[0,1,1] op_sel_hi:[1,1,1]')
    for i in range(20):
        st.v_exp_f32(v(vEP + i), v(vEP + i))
        st.v_exp_f32(v(vP + i), v(vP + i))
    st.v_pk_add_f32(v(sp, 2), v(vEP, 2), v(vEP + 2, 2))
    st.v_pk_add_f32(v(sn, 2), v(vP, 2), v(vP + 2, 2))
    for i in range(4, 20, 2):
        st.v_pk_add_f32(v(sp, 2), v(sp, 2), v(vEP + i, 2))
        st.v_pk_add_f32(v(sn, 2), v(sn, 2), v(vP + i, 2))
    st.v_add_f32(v(sp), v(sp), v(sp + 1))
    st.v_add_f32(v(sn), v(sn), v(sn + 1))
    st.v_rcp_f32(v(sp), v(sp))
    st.v_rcp_f32(v(sn), v(sn))
    for i in range(0, 20, 2):
        st.v_pk_mul_f32(v(vEP + i, 2), v(vEP + i, 2), v(sp, 2), mods='op_sel_hi:[1,0]')
        st.v_pk_mul_f32(v(vP + i, 2), v(vP + i, 2), v(sn, 2), mods='op_sel_hi:[1,0]')
    for i in range(10):
        st.v_cvt_pk_bf16_f32(v(vPK + order[i]), v(vEP + 2 * i), v(vEP + 2 * i + 1))
    for i in range(10):
        st.v_cvt_pk_bf16_f32(v(vPK + order[10 + i]), v(vP + 2 * i), v(vP + 2 * i + 1))

for tt in range(2):
    for X in range(3): ln_pack(k, X, tt, vBK + 6 * tt + 2 * X)
vVP = vAF + 20; vK1 = vAF + 30
m_ = Stream(); feature_map(m_)
f_ = Stream()
f_.v_cmp_lt_u32('vcc', 1, v(vG))
f_.v_mov_b32(v(t1), 0x3f80)
for tt in range(2):
    f_.v_cndmask_b32(v(vK1 + 2 * tt), v(t1), v(vBK + 6 * tt + 2), 'vcc')
    f_.v_cndmask_b32(v(vK1 + 2 * tt + 1), 0, v(vBK + 6 * tt + 3), 'vcc')
    f_.ds_write_b64(v(vK1A), v(vK1 + 2 * tt, 2), mods='offset:%d' % (200 + tt * 16 * 288))
for tt in range(2):
    for h in range(2):
        ln_pack(f_, 3 + h, tt, vVP + 4 * tt + 2 * h, pk=False)
        f_.ds_write_b64(v(vVA), v(vVP + 4 * tt + 2 * h, 2), mods='offset:%d' % (160 + 48 * h + tt * 16 * 288))
k.add(weave(m_, [(f_, 0, None)]))
m_ = Stream(); softmax2(m_, list(range(20)))
f_ = Stream(); issue_q(f_, 3, 5)
k.add(weave(m_, [(f_, 0, 150, 'vmem')], anchor='any'))
for i in range(5): k.ds_write_b128(v(vFA), v(vPK + 4 * i, 4), mods='offset:%d' % (16 * i))
if OPT['stop'] == 1:
    dump(k, [v(vBK, 4), v(vBK + 4, 4), v(vBK + 8, 4), v(vVP, 4), v(vVP + 4, 4), v(vST, 4)] + [v(vPK + 4 * i, 4) for i in range(5)])
    finish(k)
k.waitvm('prep')
k.waitlds()
k.s_barrier()
stamp(k, 'phik')
vKVA = vACC; vKVB = vACC + 48; vKVD = vE + 4
for ks in range(4):
    off = (32 * (ks & 1)) * 288
    for i in range(2):
        k.ds_read_b64_tr_b16(v(vKVB + 4 * ks + 2 * i, 2), v(vKB if ks < 2 else vKB2), mods='offset:%d' % (off + 16 * i * 288))
    for ft in range(3):
        for i in range(2):
            k.ds_read_b64_tr_b16(v(vKVA + (ks * 3 + ft) * 4 + 2 * i, 2), v(vKA if ks < 2 else vKA2), mods='offset:%d' % (off + 16 * i * 288 + 32 * ft))
k.s_lshl_b32(s(sT), s(sC), 4); k.s_add_u32(s(sT), s(sT), s(sR)); k.s_mul_i32(s(sT), s(sT), 3584)
k.s_add_u32(s(sT), s(sT), WS_PART)
for ks in range(4):
    for ft in range(3):
        mfma(k, v(vKVD + 4 * ft, 4), v(vKVA + (ks * 3 + ft) * 4, 4), v(vKVB + 4 * ks, 4), ks == 0)
vKVP = vE + 16
for i in range(6): k.v_cvt_pk_bf16_f32(v(vKVP + i), v(vKVD + 2 * i), v(vKVD + 2 * i + 1))
k.buffer_store_dwordx4(v(vKVP, 4), v(vPS), srd(S_WS), s(sT), mods='offen sc1')
k.buffer_store_dwordx2(v(vKVP + 4, 2), v(vPS + 1), srd(S_WS), s(sT), mods='offen sc1', tag='part')
stamp(k, 'kvst')
if OPT['cqx']: wphi_scatter(k, vWQ)

vPD = vACC
vPA = vE + 24
pr = Stream()
pr.v_and_b32(v(t0), 1, v(vCC)); pr.v_lshlrev_b32(v(t0), 13, v(t0))
pr.v_lshrrev_b32(v(t1), 1, v(vCC)); pr.v_lshl_add_u32(v(t0), v(t1), 3, v(t0))
pr.s_mul_i32(s(sT), s(sW), 48); pr.s_add_u32(s(sT), s(sT), L_PG)
pr.v_add_u32(v(t0), s(sT), v(t0))
pr.v_lshrrev_b32(v(t1), 1, v(vG)); pr.v_mul_u32_u24(v(t1), 20, v(t1))
pr.v_and_b32(v(t2), 1, v(vG)); pr.v_lshl_add_u32(v(t1), v(t2), 3, v(t1))
pr.v_add_u32(v(t1), v(t1), v(vR4))
pr.v_mul_u32_u24(v(t1), 192, v(t1))
pr.v_add_u32(v(vPA), v(t0), v(t1))
pr.v_mul_u32_u24(v(t1), 192, v(vR4))
pr.v_min_u32(v(t2), 2, v(vG))
pr.v_lshl_add_u32(v(t1), v(t2), 4, v(t1))
pr.v_add_u32(v(vPA + 1), v(t0), v(t1))
for t in range(3):
    for i in range(2): pr.ds_read_b64_tr_b16(v(vPD + 4 * t + 2 * i, 2), v(vPA), mods='offset:%d' % (768 * i + 16 * t))
for i in range(2): pr.ds_read_b64_tr_b16(v(vPD + 12 + 2 * i, 2), v(vPA + 1), mods='offset:%d' % (16 * 192 + 3840 * i))
pr.v_lshrrev_b32(v(t0), 1, v(vR4)); pr.v_lshlrev_b32(v(t0), 3, v(t0))
pr.v_lshrrev_b32(v(t1), 1, v(vCC)); pr.v_lshl_add_u32(v(t0), v(t1), 2, v(t0))
pr.v_and_b32(v(t1), 1, v(vR4)); pr.v_lshl_add_u32(v(t0), v(t1), 1, v(t0))
pr.v_and_b32(v(t1), 1, v(vCC)); pr.v_add_u32(v(t0), v(t0), v(t1))
pr.v_lshlrev_b32(v(t0), 4, v(t0))
pr.v_lshl_add_u32(v(vPA + 2), v(vG), 8, v(t0))
pr.v_mul_u32_u24(v(t1), 20480, v(vG))
pr.v_add_u32(v(t1), v(t1), v(t0))
pr.v_mov_b32(v(t2), OOB)
pr.v_cmp_gt_u32('vcc', 3, v(vG))
pr.v_cndmask_b32(v(vPA + 3), v(t2), v(t1), 'vcc')
pr.s_mul_i32(s(sT), s(sC), 245760); pr.s_mul_i32(s(sT + 1), s(sW), 61440); pr.s_add_u32(s(sT), s(sT), s(sT + 1))
pr.s_mul_i32(s(sT + 1), s(sR), 1280); pr.s_add_u32(s(sT), s(sT), s(sT + 1)); pr.s_add_u32(s(sT), s(sT), WS_W3)
pr.buffer_store_dwordx4(v(vPD + 12, 4), v(vPA + 3), srd(S_WS), s(sT), mods='offen offset:1024 sc1')
for t in range(3):
    pr.buffer_store_dwordx4(v(vPD + 4 * t, 4), v(vPA + 2), srd(S_WS), s(sT), mods='offen sc1')
    if t < 2: pr.s_add_u32(s(sT), s(sT), 20480)
y0, y1, y2, y3 = vPA + 4, vPA + 5, vPA + 6, vPA + 7
def piece(pr, which, e, dq):
    if which == 4:
        pr.s_lshl_b32(s(sT), s(sW), 3); pr.s_add_u32(s(sT), s(sT), 4 * e); lim = 30
    else:
        pr.s_lshl_b32(s(sT), s(sW), 2); pr.s_lshl_b32(s(sT + 1), s(sP), 4); pr.s_add_u32(s(sT), s(sT), s(sT + 1)); lim = 25
    pr.v_add_u32(v(t0), s(sT), v(vG))
    pr.v_cmp_gt_u32('vcc', lim, v(t0))
    pr.v_min_u32(v(t0), lim - 1, v(t0))
    div_small(pr, t1, t0, 5)
    pr.v_mul_u32_u24(v(t2), 5, v(t1)); pr.v_sub_u32(v(t2), v(t0), v(t2))
    pr.v_mul_u32_u24(v(y2), 40, v(vCC)); pr.v_lshl_add_u32(v(y2), v(t2), 3, v(y2))
    if which == 4:
        div_small(pr, y0, t1, 3)
        pr.v_mul_u32_u24(v(y1), 3, v(y0)); pr.v_sub_u32(v(y1), v(t1), v(y1))
        pr.v_mul_u32_u24(v(y0), 24, v(y0))
        pr.v_and_b32(v(y3), 1, v(vR4)); pr.v_add_u32(v(y0), v(y0), v(y3))
        pr.v_lshrrev_b32(v(y3), 1, v(vR4))
        pr.v_lshl_add_u32(v(y0), v(y1), 1, v(y0))
        pr.v_mul_u32_u24(v(y1), 6, v(y1)); pr.v_subrev_u32(v(y1), 10, v(y1))
        pr.v_mul_i32_i24(v(y1), v(y1), v(y3))
        pr.v_add3_u32(v(y1), v(y1), v(y0), 16)
        pr.v_lshl_add_u32(v(y0), v(y3), 3, v(y0))
        L_ = L_P4
    else:
        pr.v_lshrrev_b32(v(y0), 1, v(t1)); pr.v_mul_u32_u24(v(y0), 20, v(y0))
        pr.v_and_b32(v(y1), 1, v(t1)); pr.v_lshl_add_u32(v(y0), v(y1), 3, v(y0))
        pr.v_cmp_eq_u32(s(sT + 2, 2), 4, v(t1))
        pr.v_cndmask_b32(v(y0), v(y0), 16, s(sT + 2, 2))
        pr.v_cndmask_b32(v(y1), 4, 20, s(sT + 2, 2))
        pr.v_add_u32(v(y0), v(y0), v(vR4))
        pr.v_add_u32(v(y1), v(y1), v(y0))
        L_ = L_P2
    pr.v_add_u32(v(y2), L_, v(y2))
    pr.s_movk_i32(s(sT + 4), 160)
    pr.v_mad_u32_u24(v(y0), v(y0), s(sT + 4), v(y2))
    pr.v_mad_u32_u24(v(y1), v(y1), s(sT + 4), v(y2))
    pr.ds_read_b64_tr_b16(v(dq, 2), v(y0))
    pr.ds_read_b64_tr_b16(v(dq + 2, 2), v(y1))
    if which == 4:
        pr.s_lshl_b32(s(sT), s(sR), 1); pr.s_add_u32(s(sT), s(sT), s(sP)); pr.s_mul_i32(s(sT), s(sT), 6)
        pr.s_mul_i32(s(sT + 1), s(sM), 245760); pr.s_add_u32(s(sT + 1), s(sT + 1), WS_W4)
    else:
        pr.s_mul_i32(s(sT), s(sR), 5)
        pr.s_mul_i32(s(sT + 1), s(sM), 102400); pr.s_add_u32(s(sT + 1), s(sT + 1), WS_W2)
    pr.v_add_u32(v(t1), s(sT), v(t1))
    pr.v_lshrrev_b32(v(y2), 2, v(t1)); pr.v_mul_u32_u24(v(y2), 5120, v(y2))
    pr.v_and_b32(v(t1), 3, v(t1)); pr.v_lshl_add_u32(v(y2), v(t1), 8, v(y2))
    pr.v_lshl_add_u32(v(y2), v(t2), 10, v(y2))
    pr.v_lshl_add_u32(v(y2), v(vJ), 4, v(y2))
    pr.v_mov_b32(v(t0), OOB)
    pr.v_cndmask_b32(v(y2), v(t0), v(y2), 'vcc')
    pr.buffer_store_dwordx4(v(dq, 4), v(y2), srd(S_WS), s(sT + 1), mods='offen sc1', tag='prepst')
piece(pr, 4, 0, vPD + 16); piece(pr, 4, 1, vPD + 20); piece(pr, 2, 0, vPD + 24)
k.add(pr)
k.waitvm('part')
k.waitlds()
k.s_barrier()
post(k, F_KV)
stamp(k, 'kvpost')
if OPT['cqx']: wphi_read(k)

tr_reads(k, 0, 0, 3, vQT, 3072, 0)
for ks in range(20):
    m_ = Stream()
    for X in range(3):
        A = v(vAF + (ks & 1) * 20 + X * 4, 4)
        mfma(m_, v(acc(X, 0), 4), A, xf(ks, 0), ks == 0)
        mfma(m_, v(acc(X, 1), 4), A, xf(ks, 1), ks == 0)
        mfma(m_, v(acc(X, 2), 4), A, v(vONE, 4), ks == 0)
    f_ = Stream()
    if ks < 19: tr_reads(f_, ks + 1, (ks + 1) & 1, 3, vQT, 3072, 0)
    k.add(merge(m_, f_, per=1))
    if ks == 3:
        k.waitvm('prepst')
        k.s_barrier()
        post(k, F_PREP)
stamp(k, 'qgemm')
for tt in range(2):
    for X in range(3): ln_pack(k, X, tt, vBK + 6 * tt + 2 * X)
feature_map(k)
order = [0] * 20
for s_ in range(4):
    order[2 * s_] = 4 * s_; order[2 * s_ + 1] = 4 * s_ + 1; order[8 + 2 * s_] = 4 * s_ + 2; order[9 + 2 * s_] = 4 * s_ + 3
for i in range(16, 20): order[i] = i
softmax2(k, order)
stamp(k, 'phiq')
if OPT['stop'] == 2:
    k.waitvm(); k.s_barrier()
    dump(k, [v(vPK + 4 * i, 4) for i in range(5)])
    finish(k)

k.s_lshl_b32(s(sT), s(sCQ), 7); k.s_add_u32(s(sT), s(sT), F_KV * 32768)
k.s_lshl_b32(s(sT + 1), s(sM), 8); k.s_add_u32(s(sT + 1), s(sT + 1), F_PREP * 32768)
k.v_lshrrev_b32(v(t0), 1, v(vG)); k.v_lshlrev_b32(v(t0), 7, v(t0))
k.v_add_u32(v(t0), s(sT + 1), v(t0))
k.v_mov_b32(v(t1), s(sT))
k.v_cmp_eq_u32('vcc', 0, v(vG))
k.v_cndmask_b32(v(t0), v(t0), v(t1), 'vcc')
k.v_add_u32(v(t0), v(t0), v(vFC))
k.s_movk_i32(s(sT), WS_FLAGS)
poll(k, t0, sT, vE)
k.waitlds()
k.s_barrier()
stamp(k, 'kvflag')
vPL = vACC
vSUM = vE
k.v_lshlrev_b32(v(t0), 4, v(vTID))
k.v_mov_b32(v(t1), OOB)
k.v_cmp_gt_u32('vcc', 224, v(vTID))
k.v_cndmask_b32(v(t1), v(t1), v(t0), 'vcc')
k.s_mul_i32(s(sT), s(sCQ), 16 * 3584); k.s_add_u32(s(sT), s(sT), WS_PART)
for r_ in range(16):
    k.buffer_load_dwordx4(v(vPL + 4 * r_, 4), v(t1), srd(S_WS), s(sT), mods='offen sc1')
    if r_ < 15: k.s_add_u32(s(sT), s(sT), 3584)
for i in range(4): k.v_mov_b32(v(vSUM + 12 + i), 0)
k.ds_write_b128(v(t0), v(vSUM + 12, 4), mods='offset:%d' % L_ZERO)
k.s_mul_i32(s(sV), s(sM), 102400); k.s_mul_i32(s(sV + 1), s(sW), 25600)
k.s_add_u32(s(sV), s(sV), s(sV + 1)); k.s_add_u32(s(sV), s(sV), WS_W2)
def issue_w2(st, lo, hi):
    for i in range(lo, hi):
        b = i & ~3
        if i % 4 == 0 or i == lo:
            st.s_add_u32('m0', s(sV + 1), L_W2 + b * 1024)
            st.s_add_u32(s(sV + 2), s(sV), b * 1024)
        st.buffer_load_dwordx4(v(vL16), srd(S_WS), s(sV + 2), mods='offen offset:%d sc1 lds' % ((i - b) * 1024), tag='W2')
m_ = Stream()
for r_ in range(16):
    for i in range(4):
        if r_ == 0:
            m_.v_lshlrev_b32(v(vSUM + 2 * i), 16, v(vPL + i))
            m_.v_and_b32(v(vSUM + 2 * i + 1), 0xffff0000, v(vPL + i))
        else:
            m_.v_dot2_f32_bf16(v(vSUM + 2 * i), v(vPL + 4 * r_ + i), s(sONE_LO), v(vSUM + 2 * i))
            m_.v_dot2_f32_bf16(v(vSUM + 2 * i + 1), v(vPL + 4 * r_ + i), s(sONE_HI), v(vSUM + 2 * i + 1))
for i in range(4): m_.v_cvt_pk_bf16_f32(v(vSUM + 8 + i), v(vSUM + 2 * i), v(vSUM + 2 * i + 1))
m_.ds_write_b128(v(t0), v(vSUM + 8, 4), mods='offset:%d' % L_KVR)
vOA = 104
m_.v_and_b32(v(t0), 1, v(vG)); m_.v_mul_u32_u24(v(t0), 1792, v(t0))
m_.v_lshl_add_u32(v(t0), v(vCC), 4, v(t0))
m_.v_mov_b32(v(t1), L_ZERO - L_KVR)
m_.v_cmp_eq_u32('vcc', v(vR4), v(vG))
m_.v_cndmask_b32(v(t0), v(t1), v(t0), 'vcc')
m_.waitlds()
m_.s_barrier()
for s_ in range(5):
    for t in range(6):
        off = 256 * s_ + 64 * t if t < 4 else 1280 + 64 * (t - 4) + 80 * s_
        m_.ds_read_b128(v(vOA + (s_ * 6 + t) * 4, 4), v(t0), mods='offset:%d' % (L_KVR + off))
vOD = 224
vOP = 84
m_.v_lshrrev_b32(v(t0), 1, v(vG)); m_.v_mul_u32_u24(v(t0), 20480, v(t0))
m_.v_lshl_add_u32(v(t0), v(vJ), 4, v(t0))
m_.v_and_b32(v(t1), 1, v(vG))
m_.v_lshl_add_u32(v(t2), v(t1), 3, v(t0))
m_.v_lshl_add_u32(v(t0), v(t1), 9, v(t0))
m_.s_mul_i32(s(sT), s(sR), 163840); m_.s_mul_i32(s(sT + 1), s(sW), 40960); m_.s_add_u32(s(sT), s(sT), s(sT + 1))
m_.s_mul_i32(s(sT + 1), s(sCQ), 1280); m_.s_add_u32(s(sT), s(sT), s(sT + 1)); m_.s_add_u32(s(sT), s(sT), WS_O)
for s_ in range(5):
    for t in range(6):
        mfma(m_, v(vOD + 4 * t, 4), v(vOA + (s_ * 6 + t) * 4, 4), v(vPK + 4 * s_, 4), s_ == 0)
f_ = Stream(); issue_w2(f_, 0, OPT['w2a'])
k.add(weave(m_, [(f_, 24, 190, 'vmem')], anchor='any'))
k.v_add_f32(v(vOD + 20), s(sEPS6), v(vOD + 20))
k.v_rcp_f32(v(vOD + 20), v(vOD + 20))
for i in range(10): k.v_pk_mul_f32(v(vOD + 2 * i, 2), v(vOD + 2 * i, 2), v(vOD + 20, 2), mods='op_sel_hi:[1,0]')
for i in range(10): k.v_cvt_pk_bf16_f32(v(vOP + i), v(vOD + 2 * i), v(vOD + 2 * i + 1))
k.buffer_store_dwordx4(v(vOP, 4), v(t0), srd(S_WS), s(sT), mods='offen sc1')
k.buffer_store_dwordx4(v(vOP + 4, 4), v(t0), srd(S_WS), s(sT), mods='offen offset:256 sc1')
k.buffer_store_dwordx2(v(vOP + 8, 2), v(t2), srd(S_WS), s(sT), mods='offen offset:1024 sc1', tag='ost')
stamp(k, 'ost')
issue_w2(k, OPT['w2a'], 25)
k.waitvm('ost')
k.s_barrier()
post(k, F_O)
stamp(k, 'opost')
if OPT['stop'] == 3: finish(k)

vH = 18
vXRES = 28
vOF = 40
vA2 = 120
vD2 = 152
vA2P = 172
k.s_lshl_b32(s(sE), s(sW), 1); k.s_add_u32(s(sE), s(sE), s(sP))
k.s_lshl_b32(s(sT), s(sR), 3); k.s_add_u32(s(sF), s(sT), s(sE))
k.s_mul_i32(s(sXR), s(sF), 16 * 1280)
k.s_mul_i32(s(sT), s(sM), 160); k.s_add_u32(s(sXR), s(sXR), s(sT))
k.buffer_load_dwordx4(v(vXRES, 4), v(vXRO), srd(S_X), s(sXR), mods='offen')
k.buffer_load_dwordx4(v(vXRES + 4, 4), v(vXRO), srd(S_X), s(sXR), mods='offen offset:16')
k.buffer_load_dwordx2(v(vXRES + 8, 2), v(vXRO), srd(S_X), s(sXR), mods='offen offset:32')
k.s_mul_i32(s(sA), s(sC), 245760); k.s_mul_i32(s(sT + 1), s(sW), 61440); k.s_add_u32(s(sA), s(sA), s(sT + 1))
k.s_add_u32(s(sA), s(sA), WS_W3)
def issue_w3(st, lo, hi):
    for i in range(lo, hi):
        if i % 4 == 0 and i: st.s_add_u32(s(sA), s(sA), 4096)
        st.buffer_load_dwordx4(a(4 * i, 4), v(vL16), srd(S_WS), s(sA), mods='offen offset:%d sc1' % ((i % 4) * 1024))
W3A = OPT['w3a']; W3B = W3A + OPT['w3b']
issue_w3(k, 0, 4)
k.waitvm('W2')
k.s_barrier()
k.v_add_u32(v(t0), L_W2, v(vL16))
k.v_add_u32(v(t1), L_W2 + 61440, v(vL16))
m_ = Stream()
for i in range(20): m_.ds_read_b128(v(vA2P + 4 * i, 4), v(t0), mods='offset:%d' % (i * 1024))
def a2read(st, i):
    st.ds_read_b128(v(vA2 + 4 * (i % 8), 4), v(t0 if i < 60 else t1), mods='offset:%d' % ((i if i < 60 else i - 60) * 1024))
for i in range(20, 26): a2read(m_, i)
k.add(m_)
issue_w3(k, 4, W3A)
poll_row(k, F_O, vD2)
k.s_barrier()
stamp(k, 'oflag')
k.s_mul_i32(s(sV), s(sF), 20480); k.s_add_u32(s(sV), s(sV), WS_O)
def issue_o(st, lo, hi):
    for i in range(lo, hi):
        if i % 4 == 0 and i: st.s_add_u32(s(sV), s(sV), 4096)
        st.buffer_load_dwordx4(v(vOF + 4 * i, 4), v(vL16), srd(S_WS), s(sV), mods='offen offset:%d sc1' % ((i % 4) * 1024))
issue_o(k, 0, 12)
m_ = Stream()
for i in range(100):
    ks, t = divmod(i, 5)
    mfma(m_, v(vD2 + 4 * t, 4), v(vA2P + 4 * i, 4) if i < 20 else v(vA2 + 4 * (i % 8), 4), v(vOF + 4 * ks, 4), ks == 0)
    if 20 <= i and i + 6 < 100: a2read(m_, i + 6)
f1 = Stream(); issue_o(f1, 12, 20)
f2 = Stream(); issue_w3(f2, W3A, W3B)
k.add(weave(m_, [(f1, 0, 32, 'vmem'), (f2, 36, 100, 'vmem')]))
stamp(k, 'gemm2')
k.v_lshrrev_b32(v(t0), 1, v(vG)); k.v_mul_u32_u24(v(t0), 1280, v(t0))
k.v_lshl_add_u32(v(t0), v(vJ), 4, v(t0))
k.v_and_b32(v(t1), 1, v(vG))
k.v_lshl_add_u32(v(t2), v(t1), 3, v(t0))
k.v_lshl_add_u32(v(t0), v(t1), 9, v(t0))
k.s_mul_i32(s(sT), s(sF), 20480); k.s_mul_i32(s(sT + 1), s(sM), 2560); k.s_add_u32(s(sT), s(sT), s(sT + 1))
k.s_add_u32(s(sT), s(sT), WS_H)
for i in range(10):
    k.v_dot2_f32_bf16(v(vD2 + 2 * i), v(vXRES + i), s(sONE_LO), v(vD2 + 2 * i))
    k.v_dot2_f32_bf16(v(vD2 + 2 * i + 1), v(vXRES + i), s(sONE_HI), v(vD2 + 2 * i + 1))
for i in range(10): k.v_cvt_pk_bf16_f32(v(vH + i), v(vD2 + 2 * i), v(vD2 + 2 * i + 1))
k.buffer_store_dwordx4(v(vH, 4), v(t0), srd(S_WS), s(sT), mods='offen sc1')
k.buffer_store_dwordx4(v(vH + 4, 4), v(t0), srd(S_WS), s(sT), mods='offen offset:256 sc1')
k.buffer_store_dwordx2(v(vH + 8, 2), v(t2), srd(S_WS), s(sT), mods='offen offset:1024 sc1')
sS, sQ, sY = vD2, vD2 + 1, vD2 + 2
k.v_mov_b32(v(sS), 0); k.v_mov_b32(v(sQ), 0)
for i in range(10):
    k.v_dot2_f32_bf16(v(sS), v(vH + i), s(sONES), v(sS))
    k.v_dot2_f32_bf16(v(sQ), v(vH + i), v(vH + i), v(sQ))
k.v_lshrrev_b32(v(t0), 1, v(vG)); k.v_lshlrev_b32(v(t0), 2, v(t0))
k.v_lshl_add_u32(v(t0), v(vJ), 3, v(t0))
k.v_mov_b32(v(t2), OOB)
k.v_cmp_eq_u32('vcc', 0, v(t1))
k.v_permlane32_swap_b32(v(sS), v(sQ))
k.v_add_f32(v(sS), v(sS), v(sQ))
k.v_cndmask_b32(v(t0), v(t2), v(t0), 'vcc')
k.v_mov_b32(v(sY), v(sS))
k.s_lshl_b32(s(sT), s(sF), 10); k.s_lshl_b32(s(sT + 1), s(sM), 7); k.s_add_u32(s(sT), s(sT), s(sT + 1))
k.s_add_u32(s(sT), s(sT), WS_HST)
k.v_permlane16_swap_b32(v(sS), v(sY))
k.v_add_f32(v(sS), v(sS), v(sY))
k.buffer_store_dword(v(sS), v(t0), srd(S_WS), s(sT), mods='offen sc1', tag='hst')
stamp(k, 'hst')
issue_w3(k, W3B, min(60, W3B + 8))
k.waitvm('hst')
k.waitlds()
k.s_barrier()
post(k, F_H)
stamp(k, 'hpost')
if OPT['stop'] == 4: finish(k)

vCS = 28
vD3 = 40
vB3 = 64
vS3 = 80
vG3 = 84
vFL = 100
vRA = 108
vW4 = 112
for i in range(4): k.v_mov_b32(v(vB3 + i), 0x3f803f80)
m_ = Stream()
for t in range(3):
    for ks in range(20): mfma(m_, v(vCS + 4 * t, 4), a((t * 20 + ks) * 4, 4), v(vB3, 4), ks == 0)
f_ = Stream(); issue_w3(f_, min(60, W3B + 8), 60)
k.add(weave(m_, [(f_, 0, 30, 'vmem')]))
k.s_mul_i32(s(sB), s(sR), 163840); k.s_mul_i32(s(sCc), s(sW), 5120); k.s_add_u32(s(sB), s(sB), s(sCc))
k.s_add_u32(s(sB), s(sB), WS_H)
k.v_lshlrev_b32(v(t0), 9, v(vG))
k.v_lshl_add_u32(v(t0), v(vJ), 3, v(t0))
k.s_lshl_b32(s(sV), s(sR), 13); k.s_lshl_b32(s(sT + 1), s(sW), 11); k.s_add_u32(s(sV), s(sV), s(sT + 1))
k.s_add_u32(s(sV), s(sV), WS_HST)
k.v_add_u32(v(vRA), L_RING, v(vL16))
k.v_lshlrev_b32(v(vRA + 1), 4, v(vJ)); k.v_add_u32(v(vRA + 1), L_ST, v(vRA + 1))
k.v_mov_b32(v(t2), OOB)
k.v_cmp_gt_u32('vcc', 3, v(vG))
k.v_cndmask_b32(v(vRA + 2), v(t2), v(vL16), 'vcc')
k.s_mul_i32(s(sD), s(sR), 8 * 49152); k.s_mul_i32(s(sT), s(sC), 3072); k.s_add_u32(s(sD), s(sD), s(sT))
k.s_mul_i32(s(sT), s(sW), 768); k.s_add_u32(s(sD), s(sD), s(sT)); k.s_add_u32(s(sD), s(sD), WS_HH)
k.s_mul_i32(s(sA), s(sM), 245760); k.s_mul_i32(s(sT + 1), s(sW), 61440); k.s_add_u32(s(sA), s(sA), s(sT + 1))
k.s_add_u32(s(sA), s(sA), WS_W4)
k.s_mul_i32(s(sXO), s(sW), 24576)
k.s_lshl_b32(s(sT), s(sR), 3); k.s_add_u32(s(sT), s(sT), s(sP)); k.s_mul_i32(s(sXO + 1), s(sT), 49152)
k.s_mul_i32(s(sT), s(sW), 12288); k.s_add_u32(s(sXO + 1), s(sXO + 1), s(sT)); k.s_add_u32(s(sXO + 1), s(sXO + 1), WS_HH)
k.s_lshl_b32(s(sXO + 2), s(sR), 11); k.s_add_u32(s(sXO + 2), s(sXO + 2), WS_FLAGS + F_HH * 32768)
poll_row(k, F_H, vG3)
k.s_barrier()
stamp(k, 'hflag')
def issue_h(st, T):
    for i in range(5):
        st.s_add_u32('m0', s(sCc), L_RING + (T % 3) * 20480 + (i & 4) * 1024)
        if i % 4 == 0: st.s_add_u32(s(sV + 1), s(sB), T * 20480 + i * 1024)
        st.buffer_load_dwordx4(v(vL16), srd(S_WS), s(sV + 1), mods='offen offset:%d sc1 lds' % ((i & 3) * 1024), tag='h%d' % T)
issue_h(k, 0)
for i in range(4): k.buffer_load_dwordx2(v(vG3 + 2 * i, 2), v(t0), srd(S_WS), s(sV), mods='offen offset:%d sc1' % (128 * i))
issue_h(k, 1)
def stats3(st):
    st.v_add_f32(v(vG3), v(vG3), v(vG3 + 2)); st.v_add_f32(v(vG3 + 1), v(vG3 + 1), v(vG3 + 3))
    st.v_add_f32(v(vG3 + 4), v(vG3 + 4), v(vG3 + 6)); st.v_add_f32(v(vG3 + 5), v(vG3 + 5), v(vG3 + 7))
    st.v_add_f32(v(vG3), v(vG3), v(vG3 + 4)); st.v_add_f32(v(vG3 + 1), v(vG3 + 1), v(vG3 + 5))
    st.v_mov_b32(v(vG3 + 2), v(vG3)); st.v_mov_b32(v(vG3 + 3), v(vG3 + 1))
    st.v_lshrrev_b32(v(t0), 1, v(vG)); st.v_lshlrev_b32(v(t0), 8, v(t0))
    for i in range(2): st.v_permlane16_swap_b32(v(vG3 + i), v(vG3 + 2 + i))
    for i in range(2): st.v_add_f32(v(vG3 + i), v(vG3 + i), v(vG3 + 2 + i))
    st.v_mul_f32(v(vG3), s(sINV640), v(vG3))
    st.v_mul_f32(v(vG3 + 1), s(sINV640), v(vG3 + 1))
    st.v_fma_f32(v(vG3 + 1), '-' + v(vG3), v(vG3), v(vG3 + 1))
    st.v_max_f32(v(vG3 + 1), 0, v(vG3 + 1))
    st.v_add_f32(v(vG3 + 1), s(sEPS), v(vG3 + 1))
    st.v_sub_f32(v(vG3 + 4), 0, v(vG3))
    st.v_rsq_f32(v(vG3 + 5), v(vG3 + 1))
    st.v_sqrt_f32(v(vG3 + 6), v(vG3 + 1))
    st.v_mov_b32(v(vG3 + 7), 0)
    st.v_lshl_add_u32(v(t0), v(vJ), 4, v(t0))
    st.s_lshl_b32(s(sT), s(sW), 9); st.s_add_u32(s(sT), s(sT), L_ST)
    st.v_add_u32(v(t0), s(sT), v(t0))
    st.ds_write_b128(v(t0), v(vG3 + 4, 4))
    st.v_mov_b32(v(vG3 + 8), s(sK3)); st.v_mov_b32(v(vG3 + 9), s(sK1))
def issue_w4(st, lo, hi):
    for i in range(lo, hi):
        if i % 4 == 0 or i == lo: st.s_add_u32(s(sV + 2), s(sA), (i & ~3) * 1024)
        if i < 36:
            st.buffer_load_dwordx4(v(vW4 + 4 * i, 4), v(vL16), srd(S_WS), s(sV + 2), mods='offen offset:%d sc1' % ((i & 3) * 1024))
        else:
            st.s_add_u32('m0', s(sXO), L_W4 + ((i - 36) & ~3) * 1024)
            st.buffer_load_dwordx4(v(vL16), srd(S_WS), s(sV + 2), mods='offen offset:%d sc1 lds' % ((i & 3) * 1024), tag='W4')
def epi3(st, T):
    D = vD3 + 12 * (T & 1)
    nm, rs, irs = v(vS3), v(vS3 + 1), v(vS3 + 2)
    for t in range(3):
        for e in range(2):
            g_, u_ = D + 4 * t + e, D + 4 * t + 2 + e
            x = vG3 + 4 + 2 * e
            st.v_fmac_f32(v(g_), nm, v(vCS + 4 * t + e))
            st.v_fmac_f32(v(u_), nm, v(vCS + 4 * t + 2 + e))
            st.v_mul_f32(v(g_), v(g_), rs)
            st.v_mul_f32(v(x), v(g_), v(g_))
            st.v_mul_f32(v(u_), v(g_), v(u_))
            st.v_fma_f32(v(x), v(x), v(vG3 + 8), v(vG3 + 9))
            st.v_mul_f32(v(x), v(x), v(g_))
            st.v_exp_f32(v(x), v(x))
        for e in range(2):
            x = vG3 + 4 + 2 * e
            st.v_fma_f32(v(x), v(x), irs, irs)
            st.v_rcp_f32(v(x), v(x))
        for e in range(2):
            u_ = D + 4 * t + 2 + e
            st.v_mul_f32(v(u_), v(u_), v(vG3 + 4 + 2 * e))
        st.v_cvt_pk_bf16_f32(v(vG3 + t), v(D + 4 * t + 2), v(D + 4 * t + 3))
        st.v_mov_b32(v(vG3 + 10 + t), v(vG3 + t))
    ta, tb, tc = vG3 + 10, vG3 + 11, vG3 + 12
    st.v_permlane16_swap_b32(v(ta), v(tb))
    st.v_permlane16_swap_b32(v(tc), v(vG3 + 3))
    st.s_add_u32(s(sV + 3), s(sD), T * 49152)
    st.v_permlane32_swap_b32(v(tb), v(vG3 + 3))
    st.buffer_store_dwordx4(v(vG3, 4), v(vRA + 2), srd(S_WS), s(sV + 3), mods='offen sc1', tag='hh%d' % T)
def hhbuf(i, q): return a(80 * (i % 3) + 4 * q, 4)
def issue_hh(st, i, lo=0, hi=12):
    for q in range(lo, hi):
        if q % 4 == 0 or q == lo: st.s_add_u32(s(sV + 4), s(sXO + 1), i * 2 * 49152 + (q & ~3) * 1024)
        st.buffer_load_dwordx4(hhbuf(i, q), v(vL16), srd(S_WS), s(sV + 4), mods='offen offset:%d sc1' % ((q & 3) * 1024))
def flag_issue(st, n):
    st.s_add_u32(s(sV + 5), s(sXO + 2), n * 32768)
    st.buffer_load_dwordx2(v(vFL + 2 * n, 2), v(vFR), srd(S_WS), s(sV + 5), mods='offen sc1')
def flag_check(st, n):
    q = npoll[0]; npoll[0] += 1
    st.s_add_u32(s(sV + 5), s(sXO + 2), n * 32768)
    t = '''v_cmp_ne_u64 vcc, s[{n0}:{n1}], v[{t}:{t1}]
    s_cbranch_vccz L_pd{n}
    s_mov_b32 s{c}, {lim}
L_pl{n}:
    buffer_load_dwordx2 v[{t}:{t1}], v{vo}, s[{ws}:{ws3}], s{so} offen sc1
    s_waitcnt vmcnt(0)
    v_cmp_ne_u64 vcc, s[{n0}:{n1}], v[{t}:{t1}]
    s_cbranch_vccz L_pd{n}
    s_sub_u32 s{c}, s{c}, 1
    s_cbranch_scc0 L_pl{n}
L_pd{n}:'''.format(n=q, c=sCNT, lim=OPT['spin'], t=vFL + 2 * n, t1=vFL + 2 * n + 1, vo=vFR, ws=S_WS, ws3=S_WS + 3, so=sV + 5, n0=sN, n1=sN + 1)
    st.raw(t, uses=[v(vFR), v(vFL + 2 * n, 2)], defs=[v(vFL + 2 * n, 2)])

w4sched = [0, 10, 18, 26, 34, 42, 50, 60, 60]
for T in range(8):
    k.waitvm('h%d' % T)
    if T in (5, 7): k.waitvm('hh%d' % (T - 2))
    k.waitlds()
    k.s_barrier()
    if T == 5: post(k, F_HH)
    if T == 7: post(k, F_HH + 1)
    stamp(k, 'g3t%d' % T)
    m_ = Stream()
    def b3read(st, ks): st.ds_read_b128(v(vB3 + 4 * (ks % 4), 4), v(vRA), mods='offset:%d' % ((T % 3) * 20480 + ks * 1024))
    for ks in range(3): b3read(m_, ks)
    if T > 0: m_.ds_read_b128(v(vS3, 4), v(vRA + 1), mods='offset:%d' % ((T - 1) * 256))
    for ks in range(20):
        for t in range(3):
            mfma(m_, v(vD3 + 12 * (T & 1) + 4 * t, 4), a((t * 20 + ks) * 4, 4), v(vB3 + 4 * (ks % 4), 4), ks == 0)
            if t == 0 and ks + 3 < 20: b3read(m_, ks + 3)
    fv = Stream()
    if T <= 5: issue_h(fv, T + 2)
    issue_w4(fv, w4sched[T], w4sched[T + 1])
    fe = Stream()
    if T > 0: epi3(fe, T - 1)
    else: stats3(fe)
    if T == 6: flag_issue(fv, 0)
    fills = [(fv, 0, 58, 'vmem'), (fe, 2 if T else 24, 58)]
    if T == 7:
        fh = Stream(); flag_check(fh, 0); issue_hh(fh, 0)
        fills.append((fh, 5, 60, 'vmem'))
    k.add(weave(m_, fills))
stamp(k, 'g3end')
m_ = Stream()
m_.ds_read_b128(v(vS3, 4), v(vRA + 1), mods='offset:%d' % (7 * 256))
epi3(m_, 7)
f_ = Stream(); issue_hh(f_, 1, 0, 4)
k.add(weave(m_, [(f_, 4, 70, 'vmem')], anchor='any'))
def w4a(i): return a(80 * ((i - 36) // 8) + 48 + 4 * ((i - 36) % 8), 4)
k.v_add_u32(v(t0), s(sXO), v(vL16))
k.v_add_u32(v(t0), L_W4, v(t0))
k.waitvm('W4')
for i in range(36, 60): k.ds_read_b128(w4a(i), v(t0), mods='offset:%d' % ((i - 36) * 1024))
if OPT['stop'] == 5:
    k.waitvm('hh7'); k.waitlds(); k.s_barrier(); post(k, F_HH + 2); finish(k)

vD4 = 40
vRD = 40
def w4frag(i): return v(vW4 + 4 * i, 4) if i < 36 else w4a(i)
vRW = 109; vRR = 110
k.s_mul_i32(s(sT), s(sW), 5120)
k.v_add_u32(v(vRW), s(sT), v(vL16))
k.s_mul_i32(s(sT), s(sW), 20480)
k.v_add_u32(v(vRR), s(sT), v(vL16))
for i in range(4):
    D = vD4 + 20 * (i & 1)
    m_ = Stream()
    for q in range(12):
        for t in range(5): mfma(m_, v(D + 4 * t, 4), w4frag(q * 5 + t), hhbuf(i, q), q == 0)
    fills = []
    if i == 0:
        fp = Stream(); fp.waitvm('hh7'); fp.waitlds(); fp.s_barrier(); post(fp, F_HH + 2)
        fills.append((fp, 12, 13, 'vmem'))
        fv = Stream(); issue_hh(fv, 1, 4, 12); flag_issue(fv, 1); fills.append((fv, 14, 56, 'vmem'))
    if i == 1:
        fv = Stream(); flag_check(fv, 1); issue_hh(fv, 2); fills.append((fv, 0, 56, 'vmem'))
        ff = Stream(); flag_issue(ff, 2); fills.append((ff, 58, 59, 'vmem'))
    if i == 2:
        fv = Stream(); flag_check(fv, 2); issue_hh(fv, 3); fills.append((fv, 20, 60, 'vmem'))
    if i > 0:
        fw = Stream()
        Dp = vD4 + 20 * ((i - 1) & 1)
        for t in range(5): fw.ds_write_b128(v(vRW), v(Dp + 4 * t, 4), mods='offset:%d' % (L_RED + (i - 1) * 20480 + t * 1024))
        fills.append((fw, 3, 23))
    stamp(k, 'g4t%d' % i)
    k.add(weave(m_, fills))
k.v_add_u32(v(vRW), 3 * 20480, v(vRW))
for t in range(5): k.ds_write_b128(v(vRW), v(vD4 + 20 + 4 * t, 4), mods='offset:%d' % (L_RED + t * 1024))
k.waitlds()
k.s_barrier()
stamp(k, 'g4end')
vR2 = 112
for sl in range(4):
    for t in range(5): k.ds_read_b128(v(vR2 + 20 * sl + 4 * t, 4), v(vRR), mods='offset:%d' % (L_RED + sl * 5120 + t * 1024))
for q in range(10):
    k.v_pk_add_f32(v(vR2 + 2 * q, 2), v(vR2 + 2 * q, 2), v(vR2 + 20 + 2 * q, 2))
for q in range(10):
    k.v_dot2_f32_bf16(v(vR2 + 2 * q), v(vH + q), s(sONE_LO), v(vR2 + 2 * q))
    k.v_dot2_f32_bf16(v(vR2 + 2 * q + 1), v(vH + q), s(sONE_HI), v(vR2 + 2 * q + 1))
for q in range(10):
    k.v_pk_add_f32(v(vR2 + 40 + 2 * q, 2), v(vR2 + 40 + 2 * q, 2), v(vR2 + 60 + 2 * q, 2))
for q in range(10):
    k.v_pk_add_f32(v(vR2 + 2 * q, 2), v(vR2 + 2 * q, 2), v(vR2 + 40 + 2 * q, 2))
for q in range(10): k.v_cvt_pk_bf16_f32(v(40 + q), v(vR2 + 2 * q), v(vR2 + 2 * q + 1))
k.buffer_store_dwordx4(v(40, 4), v(vXRO), srd(S_OUT), s(sXR), mods='offen')
k.buffer_store_dwordx4(v(44, 4), v(vXRO), srd(S_OUT), s(sXR), mods='offen offset:16')
k.buffer_store_dwordx2(v(48, 2), v(vXRO), srd(S_OUT), s(sXR), mods='offen offset:32')
finish(k)
```

```python
import re

REG_RE = re.compile(r'^(-|abs\()?([vas])(\d+)\)?$')
RNG_RE = re.compile(r'^(-)?([vas])\[(\d+):(\d+)\]$')

def regs_of(op):
    op = op.strip()
    m = REG_RE.match(op)
    if m: return {(m.group(2), int(m.group(3)))}
    m = RNG_RE.match(op)
    if m: return {(m.group(2), i) for i in range(int(m.group(3)), int(m.group(4)) + 1)}
    if op == 'vcc': return {('s', 'vcc')}
    if op == 'exec': return {('s', 'exec')}
    if op == 'm0': return {('s', 'm0')}
    return set()

def R(kind, base, n=1):
    return "%s%d" % (kind, base) if n == 1 else "%s[%d:%d]" % (kind, base, base + n - 1)
def v(b, n=1): return R('v', b, n)
def a(b, n=1): return R('a', b, n)
def s(b, n=1): return R('s', b, n)

TRANS = ('v_exp_f32', 'v_log_f32', 'v_rcp_f32', 'v_rsq_f32', 'v_sqrt_f32', 'v_sin_f32', 'v_cos_f32', 'v_rcp_iflag_f32')

class Inst:
    __slots__ = ('mn', 'ops', 'mods', 'defs', 'uses', 'cls', 'tag', 'cmt', 'untracked', 'text')
    def __init__(self, mn, ops, mods='', tag=None, cmt=None, untracked=False):
        self.mn = mn; self.ops = [str(o) for o in ops]; self.mods = mods; self.tag = tag; self.cmt = cmt
        self.untracked = untracked; self.text = None
        self.classify()
    def classify(self):
        mn, ops = self.mn, self.ops
        D = lambda idx: set().union(*[regs_of(ops[i]) for i in idx]) if idx else set()
        n = len(ops); allx = list(range(n))
        if mn.startswith('v_mfma'):
            self.cls = 'mfma'; self.defs = D([0]); self.uses = D([1, 2, 3])
        elif mn.startswith('v_cmp'):
            self.cls = 'valu'; self.defs = D([0]); self.uses = D(allx[1:])
        elif mn.startswith('v_permlane') and 'swap' in mn:
            self.cls = 'valu'; self.defs = D([0, 1]); self.uses = D([0, 1])
        elif mn.startswith(('v_add_co', 'v_addc_co')):
            self.cls = 'valu'; self.defs = D([0, 1]); self.uses = D(allx[2:])
        elif mn.startswith(('v_fmac', 'v_dot2c', 'v_pk_fmac')):
            self.cls = 'valu'; self.defs = D([0]); self.uses = D(allx)
        elif mn.startswith('v_'):
            self.cls = 'valu'; self.defs = D([0]); self.uses = D(allx[1:])
            if '_dpp' in mn: self.uses |= D([0])
            if mn == 'v_cndmask_b32' and n == 3: self.uses |= {('s', 'vcc')}
        elif mn.startswith(('ds_read', 'ds_bpermute', 'ds_swizzle', 'ds_permute')):
            self.cls = 'ldsr'; self.defs = D([0]); self.uses = D(allx[1:])
        elif mn.startswith('ds_write'):
            self.cls = 'ldsw'; self.defs = set(); self.uses = D(allx)
        elif mn.startswith(('buffer_load', 'global_load')):
            if ' lds' in ' ' + self.mods or '_lds_' in mn:
                self.cls = 'dma'; self.defs = set(); self.uses = D(allx) | {('s', 'm0')}
            else:
                self.cls = 'vload'; self.defs = D([0]); self.uses = D(allx[1:])
        elif mn.startswith(('buffer_store', 'global_store', 'buffer_atomic', 'global_atomic')):
            self.cls = 'vstore'; self.defs = set(); self.uses = D(allx)
        elif mn.startswith(('s_load', 's_memtime', 's_memrealtime')):
            self.cls = 'smem'; self.defs = D([0]); self.uses = D(allx[1:])
        elif mn in ('s_waitcnt', 's_nop', 's_barrier', 's_endpgm', 's_sleep', 's_setprio', 'label', 'raw', 'waitvm', 'waitlds', 'comment', 'cond_begin', 'cond_end') or mn.startswith(('s_cbranch', 's_branch')):
            self.cls = 'ctl'; self.defs = set(); self.uses = set()
        elif mn.startswith('s_cmp'):
            self.cls = 'salu'; self.defs = set(); self.uses = D(allx)
        elif mn.startswith('s_'):
            self.cls = 'salu'; self.defs = D([0]); self.uses = D(allx[1:])
            if 'saveexec' in mn: self.defs |= {('s', 'exec')}
        else:
            raise ValueError('unknown mnemonic ' + mn)
    def __str__(self):
        if self.mn == 'label': return self.ops[0] + ':'
        if self.mn == 'raw': return self.text
        if self.mn == 'comment': return '; ' + self.text
        t = self.mn + (' ' + ', '.join(self.ops) if self.ops else '') + (' ' + self.mods if self.mods else '')
        if self.cmt: t += '   ; ' + self.cmt
        return t

class Stream:
    def __init__(self): self.l = []
    def __getattr__(self, mn):
        if mn.startswith('__'): raise AttributeError(mn)
        def f(*ops, mods='', tag=None, cmt=None, untracked=False):
            i = Inst(mn, ops, mods, tag, cmt, untracked); self.l.append(i); return i
        return f
    def add(self, other):
        self.l.extend(other.l if isinstance(other, Stream) else other); return self
    def label(self, name): self.l.append(Inst('label', [name]))
    def comment(self, t):
        i = Inst('comment', []); i.text = t; self.l.append(i)
    def raw(self, text, uses=(), defs=(), drains_vm=False):
        i = Inst('raw', []); i.text = text
        i.uses = set().union(*[regs_of(o) for o in uses]) if uses else set()
        i.defs = set().union(*[regs_of(o) for o in defs]) if defs else set()
        self.l.append(i); return i
    def waitvm(self, tag=None):
        i = Inst('waitvm', []); i.tag = tag; self.l.append(i)
    def waitlds(self, tag=None):
        i = Inst('waitlds', []); i.tag = tag; self.l.append(i)
    def cond_begin(self): self.l.append(Inst('cond_begin', []))
    def cond_end(self): self.l.append(Inst('cond_end', []))
    def __len__(self): return len(self.l)

def merge(main, fill, start=0, per=None, end_pad=0):
    out = Stream()
    nm = sum(1 for i in main.l if i.cls == 'mfma')
    slots = max(1, nm - start - end_pad)
    f = list(fill.l); nf = len(f); k = 0; seen = 0
    for i in main.l:
        out.l.append(i)
        if i.cls == 'mfma':
            seen += 1
            if seen > start:
                want = min(nf, -(-(nf * (seen - start)) // slots)) if per is None else min(nf, per * (seen - start))
                while k < want:
                    out.l.append(f[k]); k += 1
    out.l.extend(f[k:])
    return out

MFMA_PASS = {'v_mfma_f32_16x16x32_bf16': 4, 'v_mfma_f32_32x32x16_bf16': 8}
def mfma_lat(p, kind):
    return {'c_part': {4: 6, 8: 10}, 'ab': {4: 8, 8: 12}, 'other': {4: 8, 8: 12}, 'war_c': {4: 3, 8: 7}}[kind][p]

def insert_waits(lst):
    out = []; vmq = []; ldq = []; cond = None
    def do_wait(vm=None, lg=None):
        nonlocal vmq, ldq
        parts = []
        if vm is not None:
            vm = min(vm, 63)
            if len(vmq) > vm:
                parts.append('vmcnt(%d)' % vm); vmq = vmq[len(vmq) - vm:] if vm else []
        if lg is not None:
            if any(x[2] for x in ldq): lg = 0
            lg = min(lg, 15)
            if len(ldq) > lg:
                parts.append('lgkmcnt(%d)' % lg); ldq = ldq[len(ldq) - lg:] if lg else []
        if parts:
            w = Inst('s_waitcnt', [' '.join(parts)]); w.tag = 'auto'; out.append(w)
    for i in lst:
        if i.mn == 'cond_begin':
            cond = (list(vmq), list(ldq)); out.append(i); continue
        if i.mn == 'cond_end':
            vq0, lq0 = cond; cond = None
            ids0 = set(id(x) for x in vq0) | set(id(x) for x in lq0)
            for x in vmq + ldq:
                assert id(x) in ids0 or not x[0], 'load issued inside a conditional block still outstanding at its end'
            vmq = vq0; ldq = lq0; out.append(i); continue
        if i.mn == 'waitvm':
            if i.tag is None: do_wait(vm=0)
            else:
                idx = [k for k, x in enumerate(vmq) if x[1] == i.tag]
                if idx: do_wait(vm=len(vmq) - 1 - idx[-1])
            continue
        if i.mn == 'waitlds':
            if i.tag is None: do_wait(lg=0)
            else:
                idx = [k for k, x in enumerate(ldq) if x[1] == i.tag]
                if idx: do_wait(lg=len(ldq) - 1 - idx[-1])
            continue
        if i.mn == 's_waitcnt':
            t = i.ops[0]
            m = re.search(r'vmcnt\((\d+)\)', t)
            if m:
                n = int(m.group(1)); vmq = vmq[len(vmq) - n:] if n and len(vmq) > n else ([] if n == 0 else vmq)
            m = re.search(r'lgkmcnt\((\d+)\)', t)
            if m:
                n = int(m.group(1)); ldq = ldq[len(ldq) - n:] if n and len(ldq) > n else ([] if n == 0 else ldq)
            out.append(i); continue
        touched = i.uses | i.defs
        vm = lg = None
        for k, x in enumerate(vmq):
            if x[0] & touched: vm = len(vmq) - 1 - k
        for k, x in enumerate(ldq):
            if x[0] & touched: lg = len(ldq) - 1 - k
        if vm is not None or lg is not None: do_wait(vm, lg)
        out.append(i)
        if not i.untracked:
            if i.cls in ('vload', 'vstore', 'dma'): vmq.append((i.defs, i.tag))
            elif i.cls in ('ldsr', 'ldsw'): ldq.append((i.defs, i.tag, False))
            elif i.cls == 'smem': ldq.append((i.defs, i.tag, True))
    return out

def hoist_waits(lst):
    out = list(lst)
    k = 1
    while k < len(out) - 1:
        w = out[k]
        if w.mn == 's_waitcnt' and w.tag == 'auto' and out[k + 1].cls == 'mfma' and 'vmcnt' not in w.ops[0]:
            n = int(re.search(r'lgkmcnt\((\d+)\)', w.ops[0]).group(1))
            j = k - 1; skipped = 0; ok = True; nvalu = 0
            while j >= 0 and out[j].cls != 'mfma':
                c = out[j].cls
                if c in ('ldsr', 'ldsw'): skipped += 1
                elif c == 'valu': nvalu += 1
                elif c in ('salu', 'vload', 'vstore', 'dma'): pass
                else: ok = False; break
                j -= 1
            if ok and j >= 0 and j < k - 1 and nvalu and n - skipped >= 0 and out[j + 1].cls == 'valu':
                del out[k]
                w2 = Inst('s_waitcnt', ['lgkmcnt(%d)' % (n - skipped)]); w2.tag = 'hoisted'
                out.insert(j + 1, w2)
        k += 1
    return out

def insert_nops(lst):
    out = []
    pos = 0
    last_valu_w = {}; last_trans_w = {}; last_mfma_w = {}; last_mfma_c = {}; last_store_data = {}; last_dot_w = {}
    last_salu_m0 = -100
    nnop = 0
    def emit(i):
        nonlocal pos
        out.append(i)
        if i.mn in ('label', 'comment'): return
        if i.mn == 's_nop': pos += int(i.ops[0]) + 1
        else: pos += 1
    cond = None
    for i in lst:
        if i.mn == 'cond_begin':
            cond = pos; continue
        if i.mn == 'cond_end':
            p0 = cond; cond = None
            delta = pos - p0
            for d in (last_valu_w, last_trans_w, last_store_data):
                for r in d:
                    if d[r] < p0: d[r] += delta
            for d in (last_mfma_w, last_mfma_c, last_dot_w):
                for r in d:
                    if d[r][0] < p0: d[r] = (d[r][0] + delta,) + tuple(d[r][1:])
            if last_salu_m0 < p0: last_salu_m0 += delta
            continue
        if i.mn in ('label', 'comment', 's_waitcnt'):
            emit(i); continue
        touched = i.uses | i.defs
        need = 0
        def req(p, n):
            nonlocal need
            need = max(need, p + n + 1 - pos)
        for r in touched:
            if r in last_dot_w:
                dp, dm = last_dot_w[r]
                if i.mn == dm and r not in (regs_of(i.ops[1]) | regs_of(i.ops[2])): pass
                else: req(dp, 3)
        is_valu = i.cls == 'valu'; is_mem = i.cls in ('ldsr', 'ldsw', 'vload', 'vstore', 'dma')
        raw_blk = i.mn == 'raw'
        if i.cls == 'mfma':
            cset = regs_of(i.ops[3]); ab = regs_of(i.ops[1]) | regs_of(i.ops[2]); p = MFMA_PASS[i.mn]
            for r in i.uses:
                if r in last_valu_w: req(last_valu_w[r], 2)
            for r in ab:
                if r in last_mfma_w: req(last_mfma_w[r][0], mfma_lat(last_mfma_w[r][1], 'ab'))
            for r in cset | i.defs:
                if r in last_mfma_w:
                    w = last_mfma_w[r]
                    if r in cset and w[2] == cset and w[1] == p: pass
                    else: req(w[0], mfma_lat(w[1], 'c_part'))
        else:
            for r in touched:
                if r in last_mfma_w and (is_valu or is_mem or raw_blk): req(last_mfma_w[r][0], mfma_lat(last_mfma_w[r][1], 'other'))
            if is_valu or raw_blk:
                for r in i.defs:
                    if r in last_mfma_c: req(last_mfma_c[r][0], mfma_lat(last_mfma_c[r][1], 'war_c'))
                    if r in last_store_data: req(last_store_data[r], 2)
                for r in i.uses:
                    if r in last_trans_w: req(last_trans_w[r], 1)
                    if r in last_valu_w:
                        if r[0] == 's': req(last_valu_w[r], 4 if 'lane' in i.mn else 2)
                        elif i.mn.startswith(('v_readfirstlane', 'v_readlane')): req(last_valu_w[r], 1)
                        elif i.mn.startswith('v_permlane') or '_dpp' in i.mn or raw_blk: req(last_valu_w[r], 2)
            if is_mem:
                for r in i.uses:
                    if r in last_trans_w: req(last_trans_w[r], 1)
                    if r[0] == 's' and r in last_valu_w: req(last_valu_w[r], 5)
                for r in i.defs:
                    if r in last_store_data: req(last_store_data[r], 1)
                if i.cls == 'dma': req(last_salu_m0, 1)
            if i.cls == 'salu':
                for r in i.uses:
                    if r in last_valu_w: req(last_valu_w[r], 1)
        while need > 0:
            n = min(need, 16); emit(Inst('s_nop', [n - 1])); need -= n; nnop += n
        p0 = pos
        emit(i)
        for r in i.defs: last_dot_w.pop(r, None)
        if i.mn.startswith('v_dot'):
            for r in i.defs: last_dot_w[r] = (p0, i.mn)
        if i.cls == 'mfma':
            p = MFMA_PASS[i.mn]
            for r in i.defs: last_mfma_w[r] = (p0, p, frozenset(i.defs)); last_valu_w.pop(r, None)
            for r in regs_of(i.ops[3]): last_mfma_c[r] = (p0, p)
        elif is_valu or raw_blk:
            for r in i.defs:
                last_valu_w[r] = p0; last_mfma_w.pop(r, None)
                if i.mn in TRANS: last_trans_w[r] = p0
                else: last_trans_w.pop(r, None)
        elif i.cls == 'salu':
            for r in i.defs:
                last_valu_w.pop(r, None)
                if r == ('s', 'm0'): last_salu_m0 = p0
        if i.cls in ('vstore', 'ldsw') and re.search(r'x3|x4|b96|b128', i.mn):
            dat = regs_of(i.ops[0]) if i.mn.startswith('buffer') else regs_of(i.ops[1])
            for r in dat: last_store_data[r] = p0
        if i.cls in ('vload', 'ldsr'):
            for r in i.defs: last_valu_w.pop(r, None); last_mfma_w.pop(r, None); last_trans_w.pop(r, None)
    return out, nnop

def finalize(stream, verbose=False):
    l = insert_waits(stream.l)
    l = hoist_waits(l)
    l, nnop = insert_nops(l)
    if verbose: print('finalize: %d insts, %d nop states, %d waits' % (len(l), nnop, sum(1 for i in l if i.mn == 's_waitcnt')))
    return l

def render(insts):
    return '\n'.join(('' if i.mn == 'label' else '    ') + str(i) for i in insts) + '\n'

HEADER = '''; @launch grid=({grid},1,1) block=(256,1,1) lds={lds}
.amdgcn_target "amdgcn-amd-amdhsa--gfx950"
.text
.globl {k}
.p2align 8
.type {k},@function
{k}:
'''
FOOTER = '''.section .rodata,"a"
.p2align 6
.amdhsa_kernel {k}
  .amdhsa_next_free_vgpr {nv}
  .amdhsa_next_free_sgpr 102
  .amdhsa_accum_offset {ao}
  .amdhsa_group_segment_fixed_size 0
  .amdhsa_kernarg_size 88
  .amdhsa_user_sgpr_count 2
  .amdhsa_user_sgpr_kernarg_segment_ptr 1
  .amdhsa_system_sgpr_workgroup_id_x 1
.end_amdhsa_kernel
'''
KNAME = "sequential_preLN__linear_kernel_hedgehog__glu_gated_geglu__prompt_kernel"

def groups_of(st, mode='single'):
    out = []; cur = []
    for i in st.l:
        cur.append(i)
        if mode == 'single':
            if i.cls != 'salu' and i.mn not in ('comment', 'waitvm', 'waitlds'): out.append(cur); cur = []
        else:
            if i.cls in ('vload', 'vstore', 'dma'): out.append(cur); cur = []
    if cur:
        if out: out[-1].extend(cur)
        else: out.append(cur)
    return out

def weave(main, fills, anchor='mfma'):
    isanch = (lambda i: i.cls == 'mfma') if anchor == 'mfma' else (lambda i: i.cls in ('valu', 'mfma', 'ldsr', 'ldsw'))
    na = sum(1 for i in main.l if isanch(i))
    at = {}
    tail = []
    for f in fills:
        st, lo, hi = f[0], f[1], f[2]
        mode = f[3] if len(f) > 3 else 'single'
        gs = groups_of(st, mode)
        if hi is None or hi > na: hi = na
        if lo < 0: lo = na + lo
        n = len(gs)
        for q, g in enumerate(gs):
            if hi <= lo: tail.append(g); continue
            idx = lo + (q * (hi - lo)) // n
            at.setdefault(idx, []).append(g)
    out = Stream(); seen = 0
    for i in main.l:
        out.l.append(i)
        if isanch(i):
            for g in at.get(seen, []): out.l.extend(g)
            seen += 1
    for g in tail: out.l.extend(g)
    return out


def icost(i):
    if i.mn in ('comment', 'label', 'cond_begin', 'cond_end'): return 0
    if i.cls == 'valu':
        if i.mn in TRANS or i.mn.startswith('v_permlane'): return 8
        return 4
    if i.cls == 'ldsr': return 8
    if i.cls == 'ldsw': return 52 if '128' in i.mn else 24
    if i.cls in ('vload', 'vstore', 'dma'): return 14
    if i.mn in ('raw', 's_barrier'): return 12
    return 4
def gap_time(insts):
    t = 4
    for i in insts:
        if i.cls == 'valu': t = max(t, 8)
        t += icost(i)
    return t

def pack(main, fills, early=2.0, late=3.0):
    marks = insert_waits(main.l)
    needw = []; prevw = False
    for i in marks:
        if i.cls == 'mfma': needw.append(prevw); prevw = False
        elif i.mn == 's_waitcnt': prevw = True
    pre = []; gaps = []
    for i in main.l:
        if i.cls == 'mfma': gaps.append([i, []])
        elif gaps: gaps[-1][1].append(i)
        else: pre.append(i)
    na = len(gaps)
    sts = []
    for f in fills:
        st, lo, hi = f[0], f[1], f[2]
        mode = f[3] if len(f) > 3 else 'single'
        gs = groups_of(st, mode)
        if hi is None or hi > na: hi = na
        n = len(gs)
        sts.append(dict(gs=gs, pos=[lo + q * (hi - lo) / max(n, 1) for q in range(n)], k=0, strict=(mode == 'vmem'), lo=lo, hi=hi))
    out = Stream(); out.l.extend(pre)
    W = Inst('s_waitcnt', ['lgkmcnt(0)'])
    over = 0
    for g, (mf, pinned) in enumerate(gaps):
        budget = 16 if MFMA_PASS[mf.mn] == 4 else 32
        head = []; tail = []
        resv = [W] if (g + 1 < na and needw[g + 1] and not any(x.mn in ('waitlds', 'waitvm') for x in pinned)) else []
        valu_from = set()
        def total(h, t): return gap_time(resv + pinned + h + t)
        progress = True
        while progress:
            progress = False
            cands = sorted((st['pos'][st['k']], n_) for n_, st in enumerate(sts) if st['k'] < len(st['gs']))
            for p, n_ in cands:
                st = sts[n_]; grp = st['gs'][st['k']]
                if g < st['lo']: continue
                if st['strict']:
                    if p > g: continue
                    force = True
                else:
                    if p > g + early: continue
                    force = p <= g - late or g >= st['hi'] - 1 and p <= g
                isv = any(x.cls == 'valu' for x in grp)
                h2, t2 = (head, tail + grp) if (isv or n_ in valu_from) else (head + grp, tail)
                if force or total(h2, t2) <= budget:
                    head, tail = h2, t2
                    if isv: valu_from.add(n_)
                    st['k'] += 1; progress = True
                    break
        over += max(0, total(head, tail) - budget)
        out.l.append(mf); out.l.extend(pinned); out.l.extend(head); out.l.extend(tail)
    for st in sts:
        for grp in st['gs'][st['k']:]:
            out.l.extend(grp); over += sum(icost(x) for x in grp)
    out.est = na * (16 if MFMA_PASS[gaps[0][0].mn] == 4 else 32) + over
    return out
```

```python
import sys, math, struct
from asmgen import *

OPT = dict(stop=99, stamps=0, cqx=0, spin=100000, rot=1, ipf=3, ord=9123, x0e=0, w1fl=3, qpost=36, qpost2=104, qfl=112, w2q=10, w2s=8, qpl=30, w3s=4, w3at=60, w3o=4, w3d=0, w3a=20, w3b=10, w4a=4, hpost=24, p4post=16)
for a_ in sys.argv[2:]:
    kk, vv = a_.split('='); OPT[kk] = int(vv)

def f32(x): return '0x%08x' % struct.unpack('<I', struct.pack('<f', x))[0]
LOG2E = 1.4426950408889634
OOB = 0x40000000

WS_FLAGS = 4096
F_PREP, F_KV, F_O, F_H, F_HH, F_W1, F_PREP2 = 0, 1, 2, 3, 4, 7, 8
WS_STAMP = 0x1700000
WS_PART = 0x80000
WS_O = 0x200000
WS_H = 0x500000
WS_HST = 0x780000
WS_HH = 0x800000
WS_W2 = 0x1000000
WS_W3 = 0x1100000
WS_W4 = 0x1500000
WS_W1K = 0x1800000
WS_W1Q = 0x1A00000
WS_CS = 0x1B00000
WS_DBG = 0x2000000
WS_SIZE = 0x4000000

L_XST = 0; L_W1S = 118784
L_PG = 0; L_PU = 8192; L_P4 = 16384; L_P2 = 135168; L_PHI = 143360
L_KV = 0; L_Q = 102400; L_CSF = 155648; L_FV = 40960
L_KVR = 102400; L_ZERO = 106496
L_W2 = 0; L_RING = 102400; L_W4 = 0; L_ST = 98304; L_RED = 0

S_X, S_W1, S_WS, S_WG, S_WU, S_WD, S_WO, S_OUT, S_PHI = 28, 32, 36, 40, 44, 48, 52, 56, 60
sR, sC, sCQ, sW, sM, sP = 64, 65, 66, 67, 68, 69
sN = 70
sT = 72
sXO = 80
sA, sB, sCc, sD = 88, 89, 90, 91
sONE_LO, sONE_HI, sONES = 92, 93, 94
sCNT = 95
sTM = 96
sXR = 98
sE, sF = 99, 100
sK = 4
sCH = 12
sV = 17
def srd(b): return s(b, 4)

vTID, vL16, vG, vJ, vSTAMP, vPOST, vFR, vFC, vNON, vXRO = 0, 1, 2, 3, 4, 5, 6, 7, 8, 10
t0, t1, t2 = 11, 12, 13
vR4, vCC, vLANE = 14, 15, 16

k = Stream()
STAMPS = []
OPT_DBG = ['setup', 'xs0', 'xs4', 'kvgemm', 'kvst', 'qgemm', 'ost', 'oflag', 'hst', 'hflag', 'g3t1', 'g3end', 'g4t2', 'g4end', 'end']
def stamp(st, name):
    if not OPT['stamps']: return
    if OPT['stamps'] == 3 and name not in ('start', 'kvst', 'opost', 'hst', 'g3end', 'end'): return
    i = len(STAMPS); STAMPS.append(name)
    st.comment('stamp %d %s' % (i, name))
    (st.s_memrealtime if OPT['stamps'] >= 2 else st.s_memtime)(s(sTM, 2))
    st.s_waitcnt('lgkmcnt(0)')
    st.v_writelane_b32(v(vSTAMP), s(sTM), i)

def post(st, kind):
    st.s_lshl_b32(s(sT), s(sR), 11)
    st.s_lshl_b32(s(sT + 1), s(sC), 7)
    st.s_add_u32(s(sT), s(sT), s(sT + 1))
    st.s_add_u32(s(sT), s(sT), WS_FLAGS + kind * 32768)
    st.buffer_store_dwordx2(v(vNON, 2), v(vPOST), srd(S_WS), s(sT), mods='offen sc1')

npoll = [0]
def poll(st, voff, ssoff, tmp):
    n = npoll[0]; npoll[0] += 1
    t = '''s_cmp_lg_u32 s{w}, 0
    s_cbranch_scc1 L_pd{n}
    s_mov_b32 s{c}, {lim}
L_pl{n}:
    buffer_load_dwordx2 v[{t}:{t1}], v{vo}, s[{ws}:{ws3}], s{so} offen sc1
    s_waitcnt vmcnt(0)
    v_cmp_ne_u64 vcc, s[{n0}:{n1}], v[{t}:{t1}]
    s_cbranch_vccz L_pd{n}
    s_sub_u32 s{c}, s{c}, 1
    s_cbranch_scc0 L_pl{n}
L_pd{n}:'''.format(w=sW, n=n, c=sCNT, lim=OPT['spin'], t=tmp, t1=tmp + 1, vo=voff, ws=S_WS, ws3=S_WS + 3, so=ssoff, n0=sN, n1=sN + 1)
    st.raw(t, uses=[v(voff)], defs=[v(tmp, 2)])
def poll_row(st, kind, tmp):
    st.s_lshl_b32(s(sT), s(sR), 11); st.s_add_u32(s(sT), s(sT), WS_FLAGS + kind * 32768)
    poll(st, vFR, sT, tmp)

def allreduce_groups(st, x, t, op):
    st.v_mov_b32(v(t), v(x))
    st.v_permlane32_swap_b32(v(x), v(t))
    getattr(st, op)(v(x), v(x), v(t))
    st.v_mov_b32(v(t), v(x))
    st.v_permlane16_swap_b32(v(x), v(t))
    getattr(st, op)(v(x), v(x), v(t))

MF = 'v_mfma_f32_16x16x32_bf16'
def mfma(st, d, A, B, first=False):
    getattr(st, MF)(d, A, B, '0' if first else d)

def wg_slot(st, mul, base):
    st.s_lshl_b32(s(sT), s(sR), 4); st.s_add_u32(s(sT), s(sT), s(sC))
    st.s_lshl_b32(s(sT), s(sT), 2); st.s_add_u32(s(sT), s(sT), s(sW))
    st.s_mul_i32(s(sT), s(sT), mul)
    st.s_add_u32(s(sT), s(sT), base)

def dump(st, regs):
    st.waitvm(); st.waitlds()
    wg_slot(st, 32768, WS_DBG)
    for q, r in enumerate(regs):
        st.buffer_store_dwordx4(r, v(vL16), srd(S_WS), s(sT), mods='offen')
        st.s_add_u32(s(sT), s(sT), 1024)

def finish(st):
    if OPT['stamps']:
        st.waitvm()
        stamp(st, 'end')
        wg_slot(st, 256, WS_STAMP)
        st.v_lshlrev_b32(v(t1), 2, v(vLANE))
        st.buffer_store_dword(v(vSTAMP), v(t1), srd(S_WS), s(sT), mods='offen')
    if OPT.get('dbg'):
        st.s_load_dwordx2(s(sT + 2, 2), s(0, 2), 72)
        st.s_memrealtime(s(sTM, 2))
        st.s_waitcnt('lgkmcnt(0)')
        st.s_sub_u32(s(sTM), s(sTM), s(101))
        st.v_writelane_b32(v(vSTAMP), s(sTM), 63)
        st.v_readlane_b32(s(sT), v(vSTAMP), 0)
        st.s_nop(1)
        st.v_subrev_u32(v(t0), s(sT), v(vSTAMP))
        st.v_writelane_b32(v(t0), s(sTM), 0)
        sel = [0] + [STAMPS.index(n) for n in OPT_DBG]
        st.v_mov_b32(v(t1), OOB)
        for q, i in enumerate(sel): st.v_writelane_b32(v(t1), 4 * q, i)
        st.s_lshl_b32(s(sT), s(sR), 4); st.s_add_u32(s(sT), s(sT), s(sC)); st.s_lshl_b32(s(sT), s(sT), 2); st.s_add_u32(s(sT), s(sT), s(sW))
        st.s_mov_b32(s(S_PHI), s(sT + 2)); st.s_mov_b32(s(S_PHI + 1), s(sT + 3)); st.s_mov_b32(s(S_PHI + 2), 64); st.s_mov_b32(s(S_PHI + 3), 0x20000)
        st.s_cmp_lg_u32(s(sT), (5 * 16 + 3) * 4)
        st.s_cbranch_scc1('L_nodbg')
        st.buffer_store_dword(v(t0), v(t1), srd(S_PHI), 0, mods='offen')
        st.label('L_nodbg')
    st.s_or_b32(s(sT), s(sR), s(sC))
    st.s_cmp_lg_u32(s(sT), 0)
    st.s_cbranch_scc1('L_end')
    st.buffer_store_dwordx2(v(vNON, 2), v(vPOST), srd(S_WS), 0, mods='offen')
    st.label('L_end')
    st.s_endpgm()
    ins = finalize(st, True)
    hdr = open('sequential_preLN__linear_kernel_hedgehog__glu_gated_geglu__prompt.s.ref').read().split('\n')
    hdr = [l for l in hdr if l.startswith(';') and '@launch' not in l]
    txt = '\n'.join(hdr) + '\n' + HEADER.format(grid=256, lds=163840, k=KNAME) + render(ins) + FOOTER.format(k=KNAME, nv=512, ao=256)
    open(sys.argv[1], 'w').write(txt)
    open(sys.argv[1] + '.stamps', 'w').write('\n'.join(STAMPS))
    sys.exit(0)

def div_small(st, q, x, d):
    mul, sh = {10: (205, 11), 80: (205, 14), 5: (205, 10), 6: (171, 10), 12: (171, 11), 48: (171, 13), 3: (171, 9)}[d]
    st.v_mul_u32_u24(v(q), mul, v(x)); st.v_lshrrev_b32(v(q), sh, v(q))
for d_, lim in ((10, 512), (80, 320), (5, 256), (6, 192), (12, 512), (48, 192), (3, 8)):
    mul, sh = {10: (205, 11), 80: (205, 14), 5: (205, 10), 6: (171, 10), 12: (171, 11), 48: (171, 13), 3: (171, 9)}[d_]
    assert all((x * mul) >> sh == x // d_ for x in range(lim)), d_

vW1D = 18; vW1A = 21; vP3D = 26; vP4D = 28; vXW = 30; vXRd = 34; vKV2 = 38; vL16b = 17
vWP = 56; vWA = 58; vONE = 60; vAF = 64; vACC = 104; vGR = 164
vST = 180
vE = 184
vEA = 248
aPHI = 160; aCSQ = 240
sRHO = 3
def acc(X, col): return vACC + (X * 3 + col) * 4
def xf(ks, tt): return a(32 * (ks >> 2) + 16 * tt + 4 * (ks & 3), 4)

k.s_load_dwordx16(s(4, 16), s(0, 2), 0)
k.s_load_dwordx4(s(20, 4), s(0, 2), 64)
k.s_load_dwordx2(s(24, 2), s(0, 2), 80)
k.s_cmp_ge_u32(s(2), 256)
k.s_cbranch_scc1('L_end')
if OPT['stamps']: k.v_mov_b32(v(vSTAMP), 0)
k.s_bfe_u32(s(sT), s(2), 0x20001)
k.s_lshl_b32(s(sT), s(sT), 2)
k.s_bfe_u32(s(sT + 1), s(2), 0x20003)
k.s_add_u32(s(sR), s(sT), s(sT + 1))
k.s_and_b32(s(sT), s(2), 1)
k.s_lshl_b32(s(sT), s(sT), 3)
k.s_lshr_b32(s(sT + 2), s(2), 5)
k.s_add_u32(s(sC), s(sT), s(sT + 2))
k.s_mov_b32(s(sCQ), s(sC))
k.s_lshr_b32(s(sM), s(sC), 1)
k.s_and_b32(s(sP), s(sC), 1)
if OPT['rot']:
    k.s_sub_u32(s(sT), s(sT + 2), 5)
    k.s_cselect_b32(s(sRHO), s(sT + 2), s(sT))
else:
    k.s_mov_b32(s(sRHO), 0)
def chunk(st, slot, dst, tmp):
    st.s_add_u32(s(dst), s(sRHO), slot)
    st.s_sub_u32(s(tmp), s(dst), 5)
    st.s_cselect_b32(s(dst), s(dst), s(tmp))
k.v_lshrrev_b32(v(t0), 6, v(vTID))
k.v_readfirstlane_b32(s(sW), v(t0))
k.v_and_b32(v(vLANE), 63, v(vTID))
k.v_lshlrev_b32(v(vL16), 4, v(vLANE))
k.v_lshrrev_b32(v(vG), 4, v(vLANE))
k.v_and_b32(v(vJ), 15, v(vLANE))
k.s_mul_i32(s(sT), s(sW), 192)
k.s_movk_i32(s(sT + 1), 3840); k.s_movk_i32(s(sT + 4), 1200)
for e in range(3):
    k.v_add_u32(v(t0), s(sT), v(vLANE))
    if e: k.v_add_u32(v(t0), 64 * e, v(t0))
    k.v_mul_u32_u24(v(t1), 4370, v(t0)); k.v_lshrrev_b32(v(t1), 16, v(t1))
    k.v_mul_u32_u24(v(t2), 15, v(t1)); k.v_sub_u32(v(t0), v(t0), v(t2))
    k.v_lshlrev_b32(v(t2), 4, v(t0))
    k.v_mad_u32_u24(v(vW1D + e), v(t1), s(sT + 1), v(t2))
    k.v_mul_u32_u24(v(t0), 52, v(t0)); k.v_lshrrev_b32(v(t0), 8, v(t0))
    k.v_mad_u32_u24(v(vW1D + e), v(t0), s(sT + 4), v(vW1D + e))
    if e: k.v_subrev_u32(v(vW1D + e), 1024 * e, v(vW1D + e))
assert all((x * 4370) >> 16 == x // 15 for x in range(768)) and all((x * 52) >> 8 == x // 5 for x in range(15))
k.v_xor_b32(v(t0), v(vJ), v(vG))
k.v_lshlrev_b32(v(t0), 4, v(t0))
k.v_mul_u32_u24(v(t1), 1280, v(vG))
for n in range(4):
    k.v_xor_b32(v(vXW + n), 64 * n, v(t0))
    k.v_add_u32(v(vXW + n), v(vXW + n), v(t1))
    if n: k.v_add_u32(v(vXW + n), n * 4096, v(vXW + n))
k.s_lshl_b32(s(sT), s(sR), 7)
k.s_lshl_b32(s(sT + 1), s(sW), 5)
k.s_add_u32(s(sT), s(sT), s(sT + 1))
k.s_mul_i32(s(sXO), s(sT), 1280)
k.s_lshl_b32(s(sXO + 1), s(sW), 13)
k.s_mul_i32(s(sA), s(sR), 40 * 3840)
k.s_mul_i32(s(sT), s(sC), 80)
k.s_add_u32(s(sA), s(sA), s(sT))
k.s_mul_i32(s(sB), s(sW), 3072)
k.s_add_u32('m0', s(sB), L_W1S)
k.s_mul_i32(s(sT + 2), s(sC), 1600)
k.s_waitcnt('lgkmcnt(0)')
def mksrd(st, b, p, size):
    st.s_mov_b32(s(b), s(p)); st.s_mov_b32(s(b + 1), s(p + 1)); st.s_mov_b32(s(b + 2), size); st.s_mov_b32(s(b + 3), 0x20000)
mksrd(k, S_W1, 6, 2457600)
if OPT.get('dbg'):
    k.s_memrealtime(s(sTM, 2)); k.s_waitcnt('lgkmcnt(0)'); k.s_mov_b32(s(101), s(sTM))
stamp(k, 'start')
for e in range(3): k.buffer_load_dwordx4(v(vW1D + e), srd(S_W1), s(sA), mods='offen offset:%d lds' % (e * 1024), tag='W1S')
if OPT['ipf']:
    k.raw('''s_getpc_b64 s[%d:%d]
L_pc:
    s_sub_u32 s%d, s%d, L_pc-%s
    s_subb_u32 s%d, s%d, 0''' % (sT + 4, sT + 5, sT + 4, sT + 4, KNAME, sT + 5, sT + 5))
    k.s_lshr_b32(s(sT + 6), s(2), 3)
    k.s_lshl_b32(s(sT + 6), s(sT + 6), 2); k.s_add_u32(s(sT + 6), s(sT + 6), s(sW)); k.s_mul_i32(s(sT + 6), s(sT + 6), OPT['ipf'] * 128)
    k.v_min_u32(v(t0), OPT['ipf'] - 1, v(vLANE))
    k.v_lshlrev_b32(v(t0), 7, v(t0))
    k.v_add_u32(v(t0), s(sT + 6), v(t0))
    k.v_min_u32(v(t0), 'L_end-%s' % KNAME, v(t0))
    k.v_mov_b32(v(vAF + 31), s(sT + 5))
    k.v_add_co_u32(v(vAF + 30), 'vcc', s(sT + 4), v(t0))
    k.v_addc_co_u32(v(vAF + 31), 'vcc', 0, v(vAF + 31), 'vcc')
    k.global_load_dword(v(vAF + 29), v(vAF + 30, 2), 'off')
mksrd(k, S_X, 4, 2621440)
def issue_x(st, sg):
    chunk(st, sg, sE, sF)
    st.s_lshl_b32(s(sE), s(sE), 8)
    st.s_add_u32(s(sE), s(sE), s(sXO))
    for tt in range(2):
        if tt: st.s_add_u32(s(sE), s(sE), 16 * 1280)
        st.s_add_u32('m0', s(sXO + 1), L_XST + (sg % 4) * 32768 + tt * 4096)
        for n in range(4):
            st.buffer_load_dwordx4(v(vXW + n), srd(S_X), s(sE), mods='offen offset:%d lds' % (n * 1024), tag='x%d' % sg)
k.s_load_dwordx2(s(sN, 2), s(24, 2), 0)
mksrd(k, S_PHI, 8, 25600)
k.v_lshlrev_b32(v(vWA), 3, v(vTID))
k.v_cmp_gt_u32('vcc', 200, v(vTID))
k.v_mov_b32(v(t1), OOB)
k.v_cndmask_b32(v(vWA), v(t1), v(vWA), 'vcc')
k.buffer_load_dwordx2(v(vWP, 2), v(vWA), srd(S_PHI), s(sT + 2), mods='offen')
mksrd(k, S_WS, 24, WS_SIZE)
mksrd(k, S_WG, 14, 1966080); mksrd(k, S_WU, 16, 1966080); mksrd(k, S_WD, 18, 1966080); mksrd(k, S_WO, 10, 819200); mksrd(k, S_OUT, 20, 2621440)
for i in range(4): k.v_mov_b32(v(vAF + i), 0)
k.v_lshlrev_b32(v(t0), 4, v(vTID))
k.v_add_u32(v(t0), L_PHI, v(t0))
for i in range(2): k.ds_write_b128(v(t0), v(vAF, 4), mods='offset:%d' % (i * 4096))
k.v_cmp_gt_u32('vcc', 128, v(vTID))
k.s_and_saveexec_b64(s(sT, 2), 'vcc')
k.ds_write_b128(v(t0), v(vAF, 4), mods='offset:8192')
k.s_mov_b64('exec', s(sT, 2))
k.v_bfe_u32(v(vR4), v(vLANE), 2, 2)
k.v_and_b32(v(vCC), 3, v(vLANE))
k.s_mov_b32(s(sONE_LO), 0x00003f80); k.s_mov_b32(s(sONE_HI), 0x3f800000); k.s_mov_b32(s(sONES), 0x3f803f80)
oE, oO, sE_, sO_, mE, bE, bO, pE, pO = [sV + i for i in range(9)]
k.s_lshl_b32(s(sT), s(sW), 3)
k.s_lshr_b32(s(oE), 0x20C87850, s(sT)); k.s_and_b32(s(oE), s(oE), 0xff)
k.s_lshr_b32(s(oO), 0x2800A070, s(sT)); k.s_and_b32(s(oO), s(oO), 0xff)
k.s_lshr_b32(s(sE_), 0x28080808, s(sT)); k.s_and_b32(s(sE_), s(sE_), 0xff)
k.s_lshr_b32(s(sO_), 0x08080828, s(sT)); k.s_and_b32(s(sO_), s(sO_), 0xff)
k.s_lshr_b32(s(mE), 0x01030303, s(sT)); k.s_and_b32(s(mE), s(mE), 0xff)
k.s_mul_i32(s(sT + 1), s(sC), 102400); k.s_add_u32(s(sT + 1), s(sT + 1), WS_W1K)
k.s_mul_i32(s(sT + 2), s(sC), 61440); k.s_add_u32(s(sT + 2), s(sT + 2), WS_W1Q - 5120)
k.s_lshl_b32(s(sT + 3), s(sW), 11)
k.s_movk_i32(s(sT + 4), 3072)
k.s_cmp_lt_u32(s(sW), 3)
k.s_cselect_b32(s(bE), s(sT + 1), s(sT + 2)); k.s_cselect_b32(s(pE), 5120, s(sT + 4))
k.s_cmp_lt_u32(s(sW), 2)
k.s_cselect_b32(s(bO), s(sT + 1), s(sT + 2)); k.s_cselect_b32(s(pO), 5120, s(sT + 4))
k.s_add_u32(s(bE), s(bE), s(sT + 3)); k.s_add_u32(s(bO), s(bO), s(sT + 3)); k.s_add_u32(s(bO), s(bO), 1024)
y0, y1, y2 = vAF + 4, vAF + 5, vAF + 6
k.v_and_b32(v(y0), s(mE), v(vCC)); k.v_mul_u32_u24(v(y0), s(sE_), v(y0)); k.v_add_u32(v(y0), s(oE), v(y0))
k.v_mul_u32_u24(v(y1), s(sO_), v(vCC)); k.v_add_u32(v(y1), s(oO), v(y1))
k.v_lshl_add_u32(v(t0), v(vG), 3, v(vR4)); k.v_mul_u32_u24(v(t0), 240, v(t0)); k.v_add_u32(v(t0), L_W1S, v(t0))
k.v_add_u32(v(vW1A), v(t0), v(y0)); k.v_add_u32(v(vW1A + 1), v(t0), v(y1))
k.v_and_b32(v(t1), 1, v(vG))
k.v_cmp_eq_u32('vcc', 1, v(t1))
k.v_mul_u32_u24(v(t0), 240, v(vR4)); k.v_add_u32(v(t0), L_W1S + 32 * 240, v(t0))
k.v_cndmask_b32(v(y0), v(y0), v(y1), 'vcc')
k.v_add_u32(v(vW1A + 2), v(t0), v(y0))
vW1O = 40
k.s_mul_i32(s(sT), s(sR), 5)
k.v_add_u32(v(t0), s(sT), v(vG))
k.v_lshrrev_b32(v(t2), 2, v(t0)); k.v_and_b32(v(t0), 3, v(t0)); k.v_lshlrev_b32(v(t0), 8, v(t0)); k.v_lshl_add_u32(v(t0), v(vJ), 4, v(t0))
k.v_mad_u32_u24(v(vW1O), v(t2), s(pE), v(t0)); k.v_mad_u32_u24(v(vW1O + 1), v(t2), s(pO), v(t0))
k.s_add_u32(s(sT), s(sT), 4); k.s_lshr_b32(s(sT + 1), s(sT), 2); k.s_and_b32(s(sT), s(sT), 3); k.s_lshl_b32(s(sT), s(sT), 8)
k.s_mul_i32(s(sT + 2), s(sT + 1), s(pE)); k.s_add_u32(s(sT + 2), s(sT + 2), s(bE)); k.s_add_u32(s(sT + 2), s(sT + 2), s(sT))
k.s_mul_i32(s(sT + 3), s(sT + 1), s(pO)); k.s_add_u32(s(sT + 3), s(sT + 3), s(bO)); k.s_add_u32(s(sT + 3), s(sT + 3), s(sT))
k.v_mov_b32(v(t0), s(sT + 2)); k.v_mov_b32(v(t2), s(sT + 3))
k.v_cndmask_b32(v(t0), v(t0), v(t2), 'vcc')
k.v_lshl_add_u32(v(t0), v(vJ), 4, v(t0))
k.v_mov_b32(v(t2), OOB)
k.v_cmp_gt_u32('vcc', 2, v(vG))
k.v_cndmask_b32(v(vW1O + 2), v(t2), v(t0), 'vcc')
k.v_lshrrev_b32(v(t0), 1, v(vG)); k.v_lshlrev_b32(v(t0), 10, v(t0)); k.v_lshl_add_u32(v(t0), v(vJ), 4, v(t0))
k.v_cmp_eq_u32('vcc', 0, v(t1))
k.v_cndmask_b32(v(vW1O + 3), v(t2), v(t0), 'vcc')
k.s_lshl_b32(s(sD), s(sC), 13); k.s_lshl_b32(s(sT), s(sW), 11); k.s_add_u32(s(sD), s(sD), s(sT))
k.s_lshr_b32(s(sT), s(sR), 2); k.s_lshl_b32(s(sT), s(sT), 8); k.s_add_u32(s(sD), s(sD), s(sT))
k.s_and_b32(s(sT), s(sR), 3); k.s_lshl_b32(s(sT), s(sT), 2); k.s_add_u32(s(sD), s(sD), s(sT)); k.s_add_u32(s(sD), s(sD), WS_CS)
x0, x1 = vAF + 4, vAF + 5
div_small(k, t0, vTID, 5)
k.v_mul_u32_u24(v(t1), 5, v(t0)); k.v_sub_u32(v(t1), v(vTID), v(t1))
k.v_lshlrev_b32(v(vWA), 11, v(t1))
k.v_cmp_lt_u32('vcc', 19, v(t0))
k.v_cndmask_b32(v(t1), 0, 1, 'vcc')
k.v_mul_u32_u24(v(t2), 20, v(t1)); k.v_sub_u32(v(t0), v(t0), v(t2))
k.v_lshl_add_u32(v(vWA), v(t1), 6, v(vWA))
k.v_lshrrev_b32(v(x0), 2, v(t0)); k.v_lshlrev_b32(v(x0), 8, v(x0))
k.v_and_b32(v(x1), 3, v(t0)); k.v_lshl_add_u32(v(x0), v(x1), 1, v(x0))
k.v_mul_u32_u24(v(t2), 1032, v(t1)); k.v_add_u32(v(x0), v(x0), v(t2))
k.v_lshlrev_b32(v(x1), 1, v(x1)); k.v_lshl_add_u32(v(x1), v(t1), 8, v(x1)); k.v_add_u32(v(x1), 8, v(x1))
k.v_cmp_lt_u32('vcc', 15, v(t0))
k.v_cndmask_b32(v(x0), v(x0), v(x1), 'vcc')
k.v_add_u32(v(vWA), v(vWA), v(x0))
k.v_add_u32(v(vWA), L_PHI, v(vWA))

k.v_cmp_ne_u32('vcc', 0, v(vTID))
k.v_mov_b32(v(t1), OOB)
k.v_cndmask_b32(v(vPOST), 0, v(t1), 'vcc')
def wphi_scatter(st, d):
    st.v_cmp_gt_u32('vcc', 200, v(vTID))
    st.s_and_saveexec_b64(s(sT, 2), 'vcc')
    st.ds_write_b16(v(vWA), v(d))
    st.ds_write_b16_d16_hi(v(vWA), v(d), mods='offset:16')
    st.ds_write_b16(v(vWA), v(d + 1), mods='offset:32')
    st.ds_write_b16_d16_hi(v(vWA), v(d + 1), mods='offset:48')
    st.s_mov_b64('exec', s(sT, 2))
def wphi_read(st):
    st.v_add_u32(v(t0), L_PHI, v(vL16))
    st.v_xor_b32(v(t1), 128, v(t0))
    for p in range(2):
        for i in range(10):
            st.ds_read_b128(a(aPHI + (p * 10 + i) * 4, 4), v(t0 + p), mods='offset:%d' % (i * 1024))
def prep_offsets(st):
    for e in range(2):
        st.s_lshl_b32(s(sT), s(sW), 7)
        st.v_add_u32(v(t0), s(sT), v(vLANE))
        if e: st.v_add_u32(v(t0), 64, v(t0))
        div_small(st, t1, t0, 12)
        st.v_mul_u32_u24(v(t2), 12, v(t1)); st.v_sub_u32(v(t2), v(t0), v(t2))
        st.v_mul_u32_u24(v(vP3D + e), 3072, v(t1))
        st.v_lshl_add_u32(v(vP3D + e), v(t2), 4, v(vP3D + e))
        div_small(st, t1, t0, 10)
        st.v_mul_u32_u24(v(t2), 10, v(t1)); st.v_sub_u32(v(t2), v(t0), v(t2))
        st.v_mul_u32_u24(v(vP4D + e), 1280, v(t1))
        st.v_lshl_add_u32(v(vP4D + e), v(t2), 4, v(vP4D + e))
def issue_prep(st, i, es=(0, 1)):
    a0, a1, a2 = sE, sF, sCc
    st.s_lshl_b32(s(a2), s(sW), 11)
    if i < 2:
        st.s_mul_i32(s(a0), s(sR), 40 * 3072); st.s_mul_i32(s(a1), s(sC), 192)
    else:
        if i == 2: st.s_mul_i32(s(a0), s(sR), 40 * 1280)
        else: st.s_lshl_b32(s(a0), s(sR), 1); st.s_add_u32(s(a0), s(a0), s(sP)); st.s_mul_i32(s(a0), s(a0), 48 * 1280)
        st.s_mul_i32(s(a1), s(sM), 160)
    st.s_add_u32(s(a0), s(a0), s(a1))
    S_, L_, vo = [(S_WG, L_PG, vP3D), (S_WU, L_PU, vP3D), (S_WO, L_P2, vP4D), (S_WD, L_P4, vP4D)][i]
    for e in es:
        st.s_add_u32('m0', s(a2), L_ + e * 1024)
        st.buffer_load_dwordx4(v(vo + e), srd(S_), s(a0), mods='offen lds', tag='prep%d' % i)
def gram(st, sg):
    for tt in range(2):
        for q in range(4):
            ks = 4 * sg + q
            mfma(st, v(vGR + 4 * tt, 4), xf(ks, tt), xf(ks, tt), ks == 0)
            mfma(st, v(vGR + 8 + 4 * tt, 4), v(vONE, 4), xf(ks, tt), ks == 0)
def ln_stats(st):
    for tt in range(2):
        q_, m_, u_ = vE, vE + 1, vE + 2
        G = vGR + 4 * tt
        st.v_cmp_eq_u32('vcc', 1, v(vCC)); st.v_mul_f32(v(m_), s(sINV640), v(vGR + 8 + 4 * tt)); st.v_cndmask_b32(v(q_), v(G), v(G + 1), 'vcc')
        st.v_cmp_eq_u32('vcc', 2, v(vCC)); st.v_sub_f32(v(vST + 2 * tt), 0, v(m_)); st.v_cndmask_b32(v(q_), v(q_), v(G + 2), 'vcc')
        st.v_cmp_eq_u32('vcc', 3, v(vCC)); st.v_cndmask_b32(v(q_), v(q_), v(G + 3), 'vcc')
        st.v_cmp_eq_u32('vcc', v(vR4), v(vG)); st.v_cndmask_b32(v(q_), 0, v(q_), 'vcc')
        allreduce_groups(st, q_, u_, 'v_add_f32')
        st.v_mul_f32(v(q_), s(sINV640), v(q_))
        st.v_fma_f32(v(q_), '-' + v(m_), v(m_), v(q_))
        st.v_max_f32(v(q_), 0, v(q_))
        st.v_add_f32(v(q_), s(sEPS), v(q_))
        st.v_rsq_f32(v(vST + 2 * tt + 1), v(q_))

vVA, vK1A, vFA, vKA, vKB, vPS = vEA, vEA + 1, vEA + 2, vEA + 3, vEA + 4, vEA + 6
def epi_addrs(st):
    b0, b1, b2, b3, b4, b5 = sT + 2, sT + 3, sT + 4, sT + 5, sT + 6, sT + 7
    st.s_mul_i32(s(b0), s(sW), 9216)
    st.s_add_u32(s(b0), s(b0), L_FV)
    st.v_mul_u32_u24(v(t0), 288, v(vJ))
    st.v_add_u32(v(t0), s(b0), v(t0))
    st.v_lshl_add_u32(v(vVA), v(vG), 3, v(t0))
    st.v_and_b32(v(t1), 1, v(vG)); st.v_mul_u32_u24(v(t1), 48, v(t1))
    st.v_lshrrev_b32(v(t2), 1, v(vG)); st.v_lshlrev_b32(v(t2), 3, v(t2))
    st.v_sub_u32(v(t1), v(t1), v(t2))
    st.v_add_u32(v(vK1A), v(t0), v(t1))
    st.v_lshrrev_b32(v(t1), 1, v(vG)); st.v_mul_u32_u24(v(t1), 16 * 288, v(t1))
    st.v_and_b32(v(t2), 1, v(vG)); st.v_mul_u32_u24(v(t2), 80, v(t2))
    st.v_add3_u32(v(vFA), v(t0), v(t1), v(t2))
    st.s_lshr_b32(s(b0), s(sW), 1)
    st.s_and_b32(s(b1), s(sW), 1)
    st.v_lshl_add_u32(v(t0), v(vG), 2, v(vR4))
    st.v_mul_u32_u24(v(t0), 288, v(t0))
    st.s_mul_i32(s(b2), s(b0), 80); st.s_add_u32(s(b2), s(b2), L_FV)
    st.v_lshl_add_u32(v(vKA), v(vCC), 3, v(t0))
    st.v_add_u32(v(vKA), s(b2), v(vKA))
    st.s_mul_i32(s(b2), s(b0), 48); st.s_lshl_b32(s(b3), s(b1), 5)
    st.s_add_u32(s(b2), s(b2), s(b3)); st.s_add_u32(s(b2), s(b2), L_FV + 160)
    st.s_mul_i32(s(b3), s(b1), -2); st.s_add_u32(s(b3), s(b3), 3)
    st.v_min_u32(v(t1), s(b3), v(vCC))
    st.v_lshl_add_u32(v(vKB), v(t1), 3, v(t0))
    st.v_add_u32(v(vKB), s(b2), v(vKB))
    st.s_mul_i32(s(b2), s(b1), -176); st.s_add_u32(s(b2), s(b2), 256)
    st.s_mul_i32(s(b3), s(b1), -11); st.s_add_u32(s(b3), s(b3), 16)
    st.s_mul_i32(s(b4), s(b1), 1280)
    st.s_mul_i32(s(b5), s(b0), 1792)
    st.s_add_u32(s(b4), s(b4), s(b5))
    st.v_mul_u32_u24(v(t0), s(b2), v(vG))
    st.v_lshlrev_b32(v(t1), 4, v(vJ))
    st.v_add3_u32(v(vPS), v(t0), v(t1), s(b4))
    st.s_lshl_b32(s(b2), s(b2), 2); st.s_add_u32(s(b4), s(b4), s(b2))
    st.v_lshl_add_u32(v(t0), v(vG), 3, v(t1))
    st.v_add_u32(v(vPS + 1), s(b4), v(t0))
    st.v_mov_b32(v(t2), OOB)
    st.v_cmp_gt_u32('vcc', s(b3), v(vJ))
    st.v_cndmask_b32(v(vPS), v(t2), v(vPS), 'vcc')
    st.v_cndmask_b32(v(vPS + 1), v(t2), v(vPS + 1), 'vcc')
    st.v_cmp_gt_u32('vcc', 2, v(vG))
    st.v_cndmask_b32(v(vPS + 1), v(t2), v(vPS + 1), 'vcc')

vPD = 124
PA = list(range(vE + 36, vE + 50))
def prep_addrs3(pr):
    pr.v_and_b32(v(t0), 1, v(vCC)); pr.v_lshlrev_b32(v(t0), 13, v(t0))
    pr.v_lshrrev_b32(v(t1), 1, v(vCC)); pr.v_lshl_add_u32(v(t0), v(t1), 3, v(t0))
    pr.s_mul_i32(s(sT), s(sW), 48); pr.s_add_u32(s(sT), s(sT), L_PG)
    pr.v_add_u32(v(t0), s(sT), v(t0))
    pr.v_lshrrev_b32(v(t1), 1, v(vG)); pr.v_mul_u32_u24(v(t1), 20, v(t1))
    pr.v_and_b32(v(t2), 1, v(vG)); pr.v_lshl_add_u32(v(t1), v(t2), 3, v(t1))
    pr.v_add_u32(v(t1), v(t1), v(vR4))
    pr.v_mul_u32_u24(v(t1), 192, v(t1))
    pr.v_add_u32(v(PA[0]), v(t0), v(t1))
    pr.v_mul_u32_u24(v(t1), 192, v(vR4))
    pr.v_min_u32(v(t2), 2, v(vG))
    pr.v_lshl_add_u32(v(t1), v(t2), 4, v(t1))
    pr.v_add_u32(v(PA[1]), v(t0), v(t1))
    pr.v_lshrrev_b32(v(t0), 1, v(vR4)); pr.v_lshlrev_b32(v(t0), 3, v(t0))
    pr.v_lshrrev_b32(v(t1), 1, v(vCC)); pr.v_lshl_add_u32(v(t0), v(t1), 2, v(t0))
    pr.v_and_b32(v(t1), 1, v(vR4)); pr.v_lshl_add_u32(v(t0), v(t1), 1, v(t0))
    pr.v_and_b32(v(t1), 1, v(vCC)); pr.v_add_u32(v(t0), v(t0), v(t1))
    pr.v_lshlrev_b32(v(t0), 4, v(t0))
    pr.v_lshl_add_u32(v(PA[2]), v(vG), 8, v(t0))
    pr.v_mul_u32_u24(v(t1), 20480, v(vG))
    pr.v_add_u32(v(t1), v(t1), v(t0))
    pr.v_mov_b32(v(t2), OOB)
    pr.v_cmp_gt_u32('vcc', 3, v(vG))
    pr.v_cndmask_b32(v(PA[3]), v(t2), v(t1), 'vcc')
def piece_addrs(pr, which, e, base):
    y0, y1, y2, y3 = PA[base], PA[base + 1], PA[base + 2], PA[13]
    if which == 4:
        pr.s_lshl_b32(s(sT), s(sW), 3); pr.s_add_u32(s(sT), s(sT), 4 * e); lim = 30
    else:
        pr.s_lshl_b32(s(sT), s(sW), 2); pr.s_lshl_b32(s(sT + 1), s(sP), 4); pr.s_add_u32(s(sT), s(sT), s(sT + 1)); lim = 25
    pr.v_add_u32(v(t0), s(sT), v(vG))
    pr.v_cmp_gt_u32('vcc', lim, v(t0))
    pr.v_min_u32(v(t0), lim - 1, v(t0))
    div_small(pr, t1, t0, 5)
    pr.v_mul_u32_u24(v(t2), 5, v(t1)); pr.v_sub_u32(v(t2), v(t0), v(t2))
    pr.v_mul_u32_u24(v(y2), 40, v(vCC)); pr.v_lshl_add_u32(v(y2), v(t2), 3, v(y2))
    if which == 4:
        div_small(pr, y0, t1, 3)
        pr.v_mul_u32_u24(v(y1), 3, v(y0)); pr.v_sub_u32(v(y1), v(t1), v(y1))
        pr.v_mul_u32_u24(v(y0), 24, v(y0))
        pr.v_and_b32(v(y3), 1, v(vR4)); pr.v_add_u32(v(y0), v(y0), v(y3))
        pr.v_lshrrev_b32(v(y3), 1, v(vR4))
        pr.v_lshl_add_u32(v(y0), v(y1), 1, v(y0))
        pr.v_mul_u32_u24(v(y1), 6, v(y1)); pr.v_subrev_u32(v(y1), 10, v(y1))
        pr.v_mul_i32_i24(v(y1), v(y1), v(y3))
        pr.v_add3_u32(v(y1), v(y1), v(y0), 16)
        pr.v_lshl_add_u32(v(y0), v(y3), 3, v(y0))
        L_ = L_P4
    else:
        pr.v_lshrrev_b32(v(y0), 1, v(t1)); pr.v_mul_u32_u24(v(y0), 20, v(y0))
        pr.v_and_b32(v(y1), 1, v(t1)); pr.v_lshl_add_u32(v(y0), v(y1), 3, v(y0))
        pr.v_cmp_eq_u32(s(sT + 2, 2), 4, v(t1))
        pr.v_cndmask_b32(v(y0), v(y0), 16, s(sT + 2, 2))
        pr.v_cndmask_b32(v(y1), 4, 20, s(sT + 2, 2))
        pr.v_add_u32(v(y0), v(y0), v(vR4))
        pr.v_add_u32(v(y1), v(y1), v(y0))
        L_ = L_P2
    pr.v_add_u32(v(y2), L_, v(y2))
    pr.s_movk_i32(s(sT + 4), 160)
    pr.v_mad_u32_u24(v(y0), v(y0), s(sT + 4), v(y2))
    pr.v_mad_u32_u24(v(y1), v(y1), s(sT + 4), v(y2))
    if which == 4:
        pr.s_lshl_b32(s(sT), s(sR), 1); pr.s_add_u32(s(sT), s(sT), s(sP)); pr.s_mul_i32(s(sT), s(sT), 6)
    else:
        pr.s_mul_i32(s(sT), s(sR), 5)
    pr.v_add_u32(v(t1), s(sT), v(t1))
    pr.v_lshrrev_b32(v(y2), 2, v(t1)); pr.v_mul_u32_u24(v(y2), 5120, v(y2))
    pr.v_and_b32(v(t1), 3, v(t1)); pr.v_lshl_add_u32(v(y2), v(t1), 8, v(y2))
    pr.v_lshl_add_u32(v(y2), v(t2), 10, v(y2))
    pr.v_lshl_add_u32(v(y2), v(vJ), 4, v(y2))
    pr.v_mov_b32(v(t0), OOB)
    pr.v_cndmask_b32(v(y2), v(t0), v(y2), 'vcc')
def prep_reads(pr, part, D):
    if part == 0:
        for t in range(3):
            for i in range(2): pr.ds_read_b64_tr_b16(v(D + 4 * t + 2 * i, 2), v(PA[0]), mods='offset:%d' % (768 * i + 16 * t))
        for i in range(2): pr.ds_read_b64_tr_b16(v(D + 12 + 2 * i, 2), v(PA[1]), mods='offset:%d' % (16 * 192 + 3840 * i))
    elif part == 2:
        for i in range(2): pr.ds_read_b64_tr_b16(v(D + 2 * i, 2), v(PA[10 + i]))
    else:
        for p in range(2):
            for i in range(2): pr.ds_read_b64_tr_b16(v(D + 4 * p + 2 * i, 2), v(PA[4 + 3 * p + i]))
def prep_stores(pr, part, D):
    b0, b1 = sE, sF
    if part == 0:
        pr.s_mul_i32(s(b0), s(sC), 245760); pr.s_mul_i32(s(b1), s(sW), 61440); pr.s_add_u32(s(b0), s(b0), s(b1))
        pr.s_mul_i32(s(b1), s(sR), 1280); pr.s_add_u32(s(b0), s(b0), s(b1)); pr.s_add_u32(s(b0), s(b0), WS_W3)
        pr.buffer_store_dwordx4(v(D + 12, 4), v(PA[3]), srd(S_WS), s(b0), mods='offen offset:1024 sc1')
        for t in range(3):
            if t: pr.s_add_u32(s(b0), s(b0), 20480)
            pr.buffer_store_dwordx4(v(D + 4 * t, 4), v(PA[2]), srd(S_WS), s(b0), mods='offen sc1')
    elif part == 2:
        pr.s_mul_i32(s(b1), s(sM), 102400); pr.s_add_u32(s(b1), s(b1), WS_W2)
        pr.buffer_store_dwordx4(v(D, 4), v(PA[12]), srd(S_WS), s(b1), mods='offen sc1', tag='prepstW2')
    else:
        pr.s_mul_i32(s(b1), s(sM), 245760); pr.s_add_u32(s(b1), s(b1), WS_W4)
        for p in range(2): pr.buffer_store_dwordx4(v(D + 4 * p, 4), v(PA[6 + 3 * p]), srd(S_WS), s(b1), mods='offen sc1', tag='prepst2')


def flag_issue(st, dst, voff, ssoff):
    st.buffer_load_dwordx2(v(dst, 2), v(voff), srd(S_WS), s(ssoff), mods='offen sc1')
def flag_check(st, dst, voff, ssoff):
    q = npoll[0]; npoll[0] += 1
    t = '''v_cmp_ne_u64 vcc, s[{n0}:{n1}], v[{t}:{t1}]
    s_cbranch_vccz L_pd{n}
    s_mov_b32 s{c}, {lim}
L_pl{n}:
    buffer_load_dwordx2 v[{t}:{t1}], v{vo}, s[{ws}:{ws3}], s{so} offen sc1
    s_waitcnt vmcnt(0)
    v_cmp_ne_u64 vcc, s[{n0}:{n1}], v[{t}:{t1}]
    s_cbranch_vccz L_pd{n}
    s_sub_u32 s{c}, s{c}, 1
    s_cbranch_scc0 L_pl{n}
L_pd{n}:'''.format(n=q, c=sCNT, lim=OPT['spin'], t=dst, t1=dst + 1, vo=voff, ws=S_WS, ws3=S_WS + 3, so=ssoff, n0=sN, n1=sN + 1)
    st.raw(t, uses=[v(voff), v(dst, 2)], defs=[v(dst, 2)])
def x_read(st, sg):
    for tt in range(2):
        for n in range(4):
            off = (sg % 4) * 32768 + tt * 4096
            ad = vXRd + n
            if off > 65535: st.v_add_u32(v(vE + n), 65536, v(ad)); ad = vE + n; off -= 65536
            st.ds_read_b128(a(32 * sg + 16 * tt + 4 * n, 4), v(ad), mods='offset:%d' % off, tag='xr%d' % sg)
prep_offsets(k)
stamp(k, 'pre')
if OPT['x0e']: issue_x(k, 0)
k.waitvm('W1S')
k.waitlds()
k.s_add_u32(s(sN), s(sN), 1); k.s_addc_u32(s(sN + 1), s(sN + 1), 0)
k.v_mov_b32(v(vNON), s(sN)); k.v_mov_b32(v(vNON + 1), s(sN + 1))
k.s_barrier()
stamp(k, 'w1s')
vW1V = vAF + 8
for p in range(3):
    for i in range(2): k.ds_read_b64_tr_b16(v(vW1V + 4 * p + 2 * i, 2), v(vW1A + p), mods='offset:%d' % (960 * i))
k.buffer_store_dwordx4(v(vW1V, 4), v(vW1O), srd(S_WS), s(bE), mods='offen sc1')
k.buffer_store_dwordx4(v(vW1V + 4, 4), v(vW1O + 1), srd(S_WS), s(bO), mods='offen sc1')
k.buffer_store_dwordx4(v(vW1V + 8, 4), v(vW1O + 2), srd(S_WS), 0, mods='offen sc1')
cE, cO, c2 = vAF + 20, vAF + 21, vAF + 22
for p, d in enumerate((cE, cO, c2)): k.v_mov_b32(v(d), 0)
for i in range(4):
    for p, d in enumerate((cE, cO, c2)): k.v_dot2_f32_bf16(v(d), v(vW1V + 4 * p + i), s(sONES), v(d))
k.v_cmp_eq_u32('vcc', 0, v(vG)); k.v_cmp_eq_u32(s(sT, 2), 1, v(vG))
k.v_cndmask_b32(v(t0), 0, v(c2), 'vcc'); k.v_cndmask_b32(v(t1), 0, v(c2), s(sT, 2))
k.v_add_f32(v(cE), v(cE), v(t0)); k.v_add_f32(v(cO), v(cO), v(t1))
k.v_permlane32_swap_b32(v(cE), v(cO))
k.v_add_f32(v(cE), v(cE), v(cO))
k.v_mov_b32(v(cO), v(cE))
k.v_permlane16_swap_b32(v(cE), v(cO))
k.v_add_f32(v(cE), v(cE), v(cO))
k.v_cvt_pk_bf16_f32(v(cO), v(cE), v(cE))
k.v_lshlrev_b32(v(cO), 16, v(cO))
k.v_sub_f32(v(cO), v(cE), v(cO))
k.v_cvt_pk_bf16_f32(v(cO), v(cE), v(cO))
k.buffer_store_dword(v(cO), v(vW1O + 3), srd(S_WS), s(sD), mods='offen sc1', tag='w1st')
wphi_scatter(k, vWP)
u = Stream()
for i in range(4): u.v_mov_b32(v(vONE + i), 0x3f803f80)
u.v_lshlrev_b32(v(vFR), 7, v(vJ))
u.v_lshlrev_b32(v(vFC), 11, v(vJ))
u.v_mul_u32_u24(v(vXRO), 1280, v(vJ))
u.v_mul_u32_u24(v(t0), 40, v(vG))
u.v_add_u32(v(vXRO), v(vXRO), v(t0))
u.s_add_u32(s(sT), s(sXO + 1), L_XST)
u.v_xor_b32(v(t0), v(vJ), v(vG))
u.v_lshlrev_b32(v(t0), 4, v(t0))
u.v_lshl_add_u32(v(t2), v(vJ), 8, v(t0))
for n in range(4):
    u.v_xor_b32(v(vXRd + n), 64 * n, v(t2))
    u.v_add_u32(v(vXRd + n), s(sT), v(vXRd + n))
u.v_add_u32(v(vL16b), 4096, v(vL16))
u.v_add_u32(v(vKV2), 61440, v(vL16))
u.v_add_u32(v(vKV2 + 1), L_Q, v(vL16))
sL2E, sINV640, sEPS, sK1, sK3, sEPS6 = sK, sK + 1, sK + 2, sK + 3, sK + 4, sK + 5
sL2Ep = 10
u.s_mov_b32(s(sL2E), f32(LOG2E)); u.s_mov_b32(s(sINV640), f32(1.0 / 640)); u.s_mov_b32(s(sEPS), f32(1e-5))
GK1 = -2.0 * math.sqrt(2.0 / math.pi) * LOG2E
u.s_mov_b32(s(sK1), f32(GK1)); u.s_mov_b32(s(sK3), f32(GK1 * 0.044715)); u.s_mov_b32(s(sEPS6), f32(1e-6))
u.s_mov_b32(s(sL2Ep), f32(LOG2E)); u.s_mov_b32(s(sL2Ep + 1), f32(-LOG2E))
f_ = Stream(); issue_x(f_, 1 if OPT['x0e'] else 0)
k.add(weave(u, [(f_, 0, None, 'vmem')], anchor='any'))
k.waitvm('w1st')
k.waitlds()
k.s_barrier()
post(k, F_W1)
stamp(k, 'w1post')

u = Stream()
prep_addrs3(u); piece_addrs(u, 2, 0, 10); piece_addrs(u, 4, 0, 4); piece_addrs(u, 4, 1, 7); epi_addrs(u)
f_ = Stream()
for ch in str(OPT['ord']):
    if ch == '1' and not OPT['x0e']: issue_x(f_, 1)
    if ch == '2': issue_x(f_, 2)
    if ch == '3': issue_x(f_, 3)
    if ch == '4': f_.waitvm('x0'); x_read(f_, 0); f_.waitlds('xr0'); issue_x(f_, 4)
    if ch == '9': issue_prep(f_, 2)
k.add(weave(u, [(f_, 0, None, 'vmem')], anchor='any'))
stamp(k, 'prepiss')
sKV, sKVt, sQs, sQt, sFW = sV, sV + 1, sV + 2, sV + 3, sV + 8
k.s_mul_i32(s(sB), s(sW), 5120); k.s_mul_i32(s(sA), s(sW), 3072)
k.s_mul_i32(s(sKV), s(sC), 102400); k.s_add_u32(s(sKV), s(sKV), s(sB)); k.s_add_u32(s(sKV), s(sKV), WS_W1K)
k.s_mul_i32(s(sQs), s(sC), 61440); k.s_add_u32(s(sQs), s(sQs), s(sA)); k.s_add_u32(s(sQs), s(sQs), WS_W1Q)
k.s_lshl_b32(s(sD), s(sC), 13); k.s_lshl_b32(s(sCc), s(sW), 11); k.s_add_u32(s(sD), s(sD), s(sCc)); k.s_add_u32(s(sD), s(sD), WS_CS)
k.s_lshl_b32(s(sFW), s(sC), 7); k.s_add_u32(s(sFW), s(sFW), WS_FLAGS + F_W1 * 32768)
vF0 = 18
k.waitvm('x0')
x_read(k, 0)
for sg in range(5):
    f1 = Stream(); f2 = Stream(); f3 = Stream()
    if sg == 0: f1.waitlds('xr0'); issue_x(f1, 4)
    if sg < 4: f3.waitvm('x%d' % (sg + 1)); x_read(f3, sg + 1)
    if sg == 0: wphi_read(f2)
    if sg == OPT['w1fl']: flag_issue(f1, vF0, vFC, sFW)
    m_ = Stream(); gram(m_, sg)
    k.add(pack(m_, [(f1, 1, None, 'vmem'), (f3, 2, 12), (f2, 0, None)]))
k.waitlds()
k.s_barrier()
stamp(k, 'xs4')
flag_check(k, vF0, vFC, sFW)
stamp(k, 'w1flag')
def issue_kv(st, sg, lo=0, hi=5):
    if lo == 0:
        chunk(st, sg, sKVt, sT + 7)
        st.s_mul_i32(s(sKVt), s(sKVt), 20480); st.s_add_u32(s(sKVt), s(sKVt), s(sKV))
    for n in range(lo, hi):
        if n % 4 == 0: st.s_add_u32('m0', s(sB), L_KV + sg * 20480 + n * 1024)
        st.buffer_load_dwordx4(v(vL16 if n < 4 else vL16b), srd(S_WS), s(sKVt), mods='offen offset:%d sc1 lds' % ((n & 3) * 1024), tag='W%d' % sg)
def issue_q(st, lo, hi):
    for ch in range(lo, hi):
        chunk(st, ch, sQt, sT + 7)
        st.s_mul_i32(s(sQt), s(sQt), 12288); st.s_add_u32(s(sQt), s(sQt), s(sQs))
        st.s_add_u32('m0', s(sA), L_Q + ch * 12288)
        for n in range(3):
            st.buffer_load_dwordx4(v(vL16), srd(S_WS), s(sQt), mods='offen offset:%d sc1 lds' % (n * 1024), tag='Q%d' % ch)
issue_kv(k, 0)
k.s_add_u32('m0', s(sCc), L_CSF)
for n in range(2): k.buffer_load_dwordx4(v(vL16), srd(S_WS), s(sD), mods='offen offset:%d sc1 lds' % (n * 1024), tag='CSF')
issue_kv(k, 1)
prep_reads(k, 2, vE + 20)
ln_stats(k)
prep_stores(k, 2, vE + 20)
k.waitvm('W0')
k.s_barrier()
stamp(k, 'kvgo')

vF1, vF2, vFA1, vF3, vPLO, vT16, vKR = 18, 20, 22, 24, 30, 31, 32
sW2s, sW2l, sW2t, sW3, sW3t, sPL, sFP, sFK = sV + 4, sV + 5, sV + 6, sV + 7, sXO + 3, sXO + 4, sV + 9, sV + 10
def q_setup(st):
    st.v_bfe_u32(v(vFA1), v(vLANE), 4, 1)
    st.v_lshl_add_u32(v(vFA1), v(vFA1), 7, v(vFC))
    st.s_lshl_b32(s(sFP), s(sM), 8); st.s_add_u32(s(sFP), s(sFP), WS_FLAGS + F_PREP * 32768)
    st.s_lshl_b32(s(sFK), s(sCQ), 7); st.s_add_u32(s(sFK), s(sFK), WS_FLAGS + F_KV * 32768)
    st.v_and_b32(v(vKR), 1, v(vG)); st.v_mul_u32_u24(v(vKR), 1792, v(vKR))
    st.s_lshl_b32(s(sW2l), s(sW), 12)
    st.s_mul_i32(s(sW2s), s(sM), 102400); st.s_add_u32(s(sW2s), s(sW2s), WS_W2)
    st.v_lshl_add_u32(v(vKR), v(vCC), 4, v(vKR))
    st.s_mul_i32(s(sW3), s(sC), 245760); st.s_mul_i32(s(sW3t), s(sW), 61440); st.s_add_u32(s(sW3), s(sW3), s(sW3t))
    st.v_mov_b32(v(t1), L_ZERO - L_KVR)
    st.s_add_u32(s(sW3), s(sW3), WS_W3)
    st.v_cmp_eq_u32('vcc', v(vR4), v(vG))
    st.s_mul_i32(s(sPL), s(sCQ), 16 * 3584); st.s_add_u32(s(sPL), s(sPL), WS_PART)
    st.v_lshlrev_b32(v(vT16), 4, v(vTID))
    st.v_cndmask_b32(v(vKR), v(t1), v(vKR), 'vcc')
    st.v_mov_b32(v(t1), OOB)
    st.v_cmp_gt_u32('vcc', 224, v(vTID))
    st.v_add_u32(v(vKR), L_KVR, v(vKR))
    st.v_cndmask_b32(v(vPLO), v(t1), v(vT16), 'vcc')
    st.v_add_u32(v(vT16), L_KVR, v(vT16))
W2ORD = list(range(8, 25)) + list(range(8))
def issue_w2(st, lo, hi):
    last = None
    for i in W2ORD[lo:hi]:
        if (i >> 2) != last:
            last = i >> 2
            if i < 24: st.s_add_u32(s(sW2t), s(sW2l), last * 16384)
            else: st.s_lshl_b32(s(sW2t), s(sW), 10); st.s_add_u32(s(sW2t), s(sW2t), 98304)
            st.s_add_u32('m0', s(sW2t), L_W2)
            st.s_add_u32(s(sW2t), s(sW2t), s(sW2s))
        st.buffer_load_dwordx4(v(vL16), srd(S_WS), s(sW2t), mods='offen offset:%d sc1 lds' % ((i & 3) * 1024), tag='W2')
def issue_w3(st, lst):
    last = None
    for i in lst:
        if (i >> 2) != last:
            last = i >> 2; st.s_add_u32(s(sW3t), s(sW3), last * 4096)
        st.buffer_load_dwordx4(a(4 * i, 4), v(vL16), srd(S_WS), s(sW3t), mods='offen offset:%d sc1' % ((i & 3) * 1024))
def kv_reads(st, ks):
    for X in range(5):
        off = ks * 5120 + X * 1024
        st.ds_read_b128(v(vAF + (ks & 1) * 20 + X * 4, 4), v(vL16 if off < 61440 else vKV2), mods='offset:%d' % (L_KV + (off if off < 61440 else off - 61440)))
kv_reads(k, 0)
for sg in range(5):
    m_ = Stream()
    for q in range(4):
        ks = 4 * sg + q
        mm = Stream()
        for X in range(5):
            A = v(vAF + (q & 1) * 20 + X * 4, 4)
            mfma(mm, v(acc(X, 0), 4), A, xf(ks, 0), ks == 0)
            mfma(mm, v(acc(X, 1), 4), A, xf(ks, 1), ks == 0)
        ff = Stream()
        if ks < 19: kv_reads(ff, ks + 1)
        mm = weave(mm, [(ff, 0, 10)])
        if q == 2 and sg < 4:
            mm.waitvm('W%d' % (sg + 1))
            if sg == 1: mm.waitvm('prepstW2')
            if sg >= 2: mm.waitlds()
            mm.s_barrier()
            if sg == 1: post(mm, F_PREP2)
        m_.add(mm)
    fills = []
    f1 = Stream()
    if sg == 0: issue_kv(f1, 2); issue_kv(f1, 3, 0, 2)
    if sg == 1: issue_kv(f1, 3, 2, 5); issue_kv(f1, 4)
    if sg == 2: issue_q(f1, 0, 3)
    if sg == 3: issue_q(f1, 3, 5); issue_prep(f1, 0)
    if sg == 4: issue_prep(f1, 1); issue_prep(f1, 3)
    fills.append((f1, 0, None, 'vmem'))
    if sg == 1:
        f4 = Stream()
        f4.v_add_u32(v(t0), L_CSF, v(vL16))
        for X in range(5): f4.ds_read_b128(v(vE + 4 + 4 * X, 4), v(t0), mods='offset:%d' % (X * 1024))
        for X in range(3): f4.ds_read_b128(a(aCSQ + 4 * X, 4), v(t0), mods='offset:%d' % ((5 + X) * 1024))
        fills.append((f4, 0, 28))
    if sg == 0:
        f4 = Stream(); q_setup(f4); fills.append((f4, 0, None))
    if sg == 4:
        pass
    if sg == 3:
        f4 = Stream(); f4.s_add_u32(s(sD), s(sFP), (F_PREP2 - F_PREP) * 32768); flag_issue(f4, vF3, vFA1, sD); fills.append((f4, 24, 25, 'vmem'))
    if sg == 2:
        for X in range(5): mfma(m_, v(acc(X, 2), 4), v(vE + 4 + 4 * X, 4), v(vONE, 4), True)
    m_ = pack(m_, fills); print('kv stage', sg, 'est', m_.est)
    k.add(m_)
    if sg < 4: stamp(k, 'kv%d' % sg)
stamp(k, 'kvgemm')

def ln_pack(st, X, tt, dst, pk=True):
    A = acc(X, tt); C = acc(X, 2); S = v(vST + 2 * tt, 2)
    if pk:
        for h in range(2):
            st.v_pk_fma_f32(v(A + 2 * h, 2), v(C + 2 * h, 2), S, v(A + 2 * h, 2), mods='op_sel_hi:[1,0,1]')
        for h in range(2):
            st.v_pk_mul_f32(v(A + 2 * h, 2), v(A + 2 * h, 2), S, mods='op_sel:[0,1] op_sel_hi:[1,1]')
    else:
        for i in range(4): st.v_fmac_f32(v(A + i), v(C + i), v(vST + 2 * tt))
        for i in range(4): st.v_mul_f32(v(A + i), v(A + i), v(vST + 2 * tt + 1))
    for h in range(2):
        st.v_cvt_pk_bf16_f32(v(dst + h), v(A + 2 * h), v(A + 2 * h + 1))

vBK = vE + 4
vP = vE + 16
vEP = vACC
vMX = vE + 56
vPK = vAF
def feature_map(st):
    for tt in range(2):
        for ks in range(2):
            for ft in range(5):
                mfma(st, v(vP + 4 * ft, 4), a(aPHI + (tt * 10 + ft * 2 + ks) * 4, 4), v(vBK + 6 * tt + 2 * ks, 4), tt == 0 and ks == 0)
def softmax2(st, order):
    mx, mn, sp, sn = vMX, vMX + 1, vMX + 2, vMX + 4
    st.v_max3_f32(v(mx), v(vP), v(vP + 1), v(vP + 2))
    st.v_min3_f32(v(mn), v(vP), v(vP + 1), v(vP + 2))
    for i in range(3, 19, 2):
        st.v_max3_f32(v(mx), v(mx), v(vP + i), v(vP + i + 1))
        st.v_min3_f32(v(mn), v(mn), v(vP + i), v(vP + i + 1))
    st.v_max_f32(v(mx), v(mx), v(vP + 19))
    st.v_min_f32(v(mn), v(mn), v(vP + 19))
    st.v_mul_f32(v(mx), s(sL2Ep + 1), v(mx))
    st.v_mul_f32(v(mn), s(sL2Ep), v(mn))
    for i in range(0, 20, 2):
        st.v_pk_fma_f32(v(vEP + i, 2), v(vP + i, 2), s(sL2Ep, 2), v(mx, 2), mods='op_sel_hi:[1,0,0]')
        st.v_pk_fma_f32(v(vP + i, 2), v(vP + i, 2), s(sL2Ep, 2), v(mx, 2), mods='op_sel:[0,1,1] op_sel_hi:[1,1,1]')
    for i in range(20):
        st.v_exp_f32(v(vEP + i), v(vEP + i))
        st.v_exp_f32(v(vP + i), v(vP + i))
    st.v_pk_add_f32(v(sp, 2), v(vEP, 2), v(vEP + 2, 2))
    st.v_pk_add_f32(v(sn, 2), v(vP, 2), v(vP + 2, 2))
    for i in range(4, 20, 2):
        st.v_pk_add_f32(v(sp, 2), v(sp, 2), v(vEP + i, 2))
        st.v_pk_add_f32(v(sn, 2), v(sn, 2), v(vP + i, 2))
    st.v_add_f32(v(sp), v(sp), v(sp + 1))
    st.v_add_f32(v(sn), v(sn), v(sn + 1))
    st.v_rcp_f32(v(sp), v(sp))
    st.v_rcp_f32(v(sn), v(sn))
    for i in range(0, 20, 2):
        st.v_pk_mul_f32(v(vEP + i, 2), v(vEP + i, 2), v(sp, 2), mods='op_sel_hi:[1,0]')
        st.v_pk_mul_f32(v(vP + i, 2), v(vP + i, 2), v(sn, 2), mods='op_sel_hi:[1,0]')
    for i in range(10):
        st.v_cvt_pk_bf16_f32(v(vPK + order[i]), v(vEP + 2 * i), v(vEP + 2 * i + 1))
    for i in range(10):
        st.v_cvt_pk_bf16_f32(v(vPK + order[10 + i]), v(vP + 2 * i), v(vP + 2 * i + 1))

m_ = Stream()
for tt in range(2):
    for X in range(3): ln_pack(m_, X, tt, vBK + 6 * tt + 2 * X)
k.add(m_)
vVP = vAF + 20; vK1 = vAF + 30
m_ = Stream(); feature_map(m_)
f_ = Stream()
f_.v_cmp_lt_u32('vcc', 1, v(vG))
f_.v_mov_b32(v(t1), 0x3f80)
for tt in range(2):
    f_.v_cndmask_b32(v(vK1 + 2 * tt), v(t1), v(vBK + 6 * tt + 2), 'vcc')
    f_.v_cndmask_b32(v(vK1 + 2 * tt + 1), 0, v(vBK + 6 * tt + 3), 'vcc')
    f_.ds_write_b64(v(vK1A), v(vK1 + 2 * tt, 2), mods='offset:%d' % (200 + tt * 16 * 288))
for tt in range(2):
    for h in range(2):
        ln_pack(f_, 3 + h, tt, vVP + 4 * tt + 2 * h, pk=False)
        f_.ds_write_b64(v(vVA), v(vVP + 4 * tt + 2 * h, 2), mods='offset:%d' % (160 + 48 * h + tt * 16 * 288))
k.add(pack(m_, [(f_, 0, None)]))
m_ = Stream(); softmax2(m_, list(range(20)))
k.add(m_)
for i in range(5): k.ds_write_b128(v(vFA), v(vPK + 4 * i, 4), mods='offset:%d' % (16 * i))
if OPT['stop'] == 1:
    dump(k, [v(vBK, 4), v(vBK + 4, 4), v(vBK + 8, 4), v(vVP, 4), v(vVP + 4, 4), v(vST, 4)] + [v(vPK + 4 * i, 4) for i in range(5)])
    finish(k)
k.waitvm('Q4')
k.waitlds()
k.s_barrier()
stamp(k, 'phik')
vKVA = vACC; vKVB = vACC + 48; vKVD = vE + 4
for ks in range(4):
    off = 32 * ks * 288
    for i in range(2):
        k.ds_read_b64_tr_b16(v(vKVB + 4 * ks + 2 * i, 2), v(vKB), mods='offset:%d' % (off + 16 * i * 288))
    for ft in range(3):
        for i in range(2):
            k.ds_read_b64_tr_b16(v(vKVA + (ks * 3 + ft) * 4 + 2 * i, 2), v(vKA), mods='offset:%d' % (off + 16 * i * 288 + 32 * ft))
k.s_lshl_b32(s(sT), s(sC), 4); k.s_add_u32(s(sT), s(sT), s(sR)); k.s_mul_i32(s(sT), s(sT), 3584)
k.s_add_u32(s(sT), s(sT), WS_PART)
for ks in range(4):
    for ft in range(3):
        mfma(k, v(vKVD + 4 * ft, 4), v(vKVA + (ks * 3 + ft) * 4, 4), v(vKVB + 4 * ks, 4), ks == 0)
vKVP = vE + 16
for i in range(6): k.v_cvt_pk_bf16_f32(v(vKVP + i), v(vKVD + 2 * i), v(vKVD + 2 * i + 1))
k.buffer_store_dwordx4(v(vKVP, 4), v(vPS), srd(S_WS), s(sT), mods='offen sc1')
k.buffer_store_dwordx2(v(vKVP + 4, 2), v(vPS + 1), srd(S_WS), s(sT), mods='offen sc1', tag='part')
stamp(k, 'kvst')

def qbuf(b, X): return vAF + b * 12 + X * 4
def q_reads(st, ks):
    for X in range(3): st.ds_read_b128(v(qbuf(ks & 1, X), 4), v(vKV2 + 1), mods='offset:%d' % (ks * 3072 + X * 1024))
PLQ = [88 + 4 * i for i in range(4)] + [140 + 4 * i for i in range(10)] + [248, 252]
def issue_part(st):
    for r_ in range(16):
        if r_: st.s_add_u32(s(sPL), s(sPL), 3584)
        st.buffer_load_dwordx4(v(PLQ[r_], 4), v(vPLO), srd(S_WS), s(sPL), mods='offen sc1')
q_reads(k, 0)
m_ = Stream()
for X in range(3): mfma(m_, v(acc(X, 2), 4), a(aCSQ + 4 * X, 4), v(vONE, 4), True)
for ks in range(20):
    mm = Stream()
    for X in range(3):
        A = v(qbuf(ks & 1, X), 4)
        mfma(mm, v(acc(X, 0), 4), A, xf(ks, 0), ks == 0)
        mfma(mm, v(acc(X, 1), 4), A, xf(ks, 1), ks == 0)
    ff = Stream()
    if ks < 19: q_reads(ff, ks + 1)
    m_.add(weave(mm, [(ff, 0, 6)]))
QP = OPT['qpost']
assert QP >= 3 + 6 * 4
fp = Stream(); stamp(fp, 'q_a'); fp.waitvm('part'); stamp(fp, 'q_b'); fp.s_barrier(); post(fp, F_KV)
NW3 = 0
W3ORD = list(range(60))
QP2 = OPT['qpost2']
fr = Stream(); prep_reads(fr, 0, vE + 4); prep_reads(fr, 1, vE + 24)
fs = Stream(); prep_stores(fs, 0, vE + 4); prep_stores(fs, 1, vE + 24)
fq = Stream(); fq.waitvm('prepst2'); fq.s_barrier(); post(fq, F_PREP)
f2 = Stream(); flag_check(f2, vF3, vFA1, sD); issue_w2(f2, 0, OPT['w2q'])
f4 = Stream(); flag_issue(f4, vF2, vFC, sFK)
m_ = pack(m_, [(fp, QP, QP + 1, 'vmem'), (fr, QP + 1, QP + 10), (fs, QP + 11, QP + 26, 'vmem'), (f2, QP + 28, 122, 'vmem'), (fq, QP2, QP2 + 1, 'vmem'),
               (f4, OPT['qfl'], OPT['qfl'] + 1, 'vmem')])
print('q gemm est', m_.est)
k.add(m_)
stamp(k, 'qgemm')
m_ = Stream()
for tt in range(2):
    for X in range(3): ln_pack(m_, X, tt, vBK + 6 * tt + 2 * X)
feature_map(m_)
order = [0] * 20
for s_ in range(4):
    order[2 * s_] = 4 * s_; order[2 * s_ + 1] = 4 * s_ + 1; order[8 + 2 * s_] = 4 * s_ + 2; order[9 + 2 * s_] = 4 * s_ + 3
for i in range(16, 20): order[i] = i
softmax2(m_, order)
f5 = Stream(); stamp(f5, 'q_e'); flag_check(f5, vF2, vFC, sFK); stamp(f5, 'q_f'); issue_part(f5)
N2 = min(25, OPT['w2q'] + OPT['w2s'])
f6 = Stream(); issue_w2(f6, OPT['w2q'], N2); flag_issue(f6, vF1, vFA1, sFP)
k.add(weave(m_, [(f5, OPT['qpl'], OPT['qpl'] + 130, 'vmem'), (f6, OPT['qpl'] + 132, None, 'vmem')], anchor='any'))
stamp(k, 'phiq')
if OPT['stop'] == 2:
    k.waitvm(); k.s_barrier()
    dump(k, [v(vPK + 4 * i, 4) for i in range(5)])
    finish(k)

vSUM = vE
for i in range(4): k.v_mov_b32(v(vSUM + 12 + i), 0)
k.ds_write_b128(v(vT16), v(vSUM + 12, 4), mods='offset:%d' % (L_ZERO - L_KVR))
m_ = Stream()
for r_ in range(16):
    for i in range(4):
        if r_ == 0:
            m_.v_lshlrev_b32(v(vSUM + 2 * i), 16, v(PLQ[0] + i))
            m_.v_and_b32(v(vSUM + 2 * i + 1), 0xffff0000, v(PLQ[0] + i))
        else:
            m_.v_dot2_f32_bf16(v(vSUM + 2 * i), v(PLQ[r_] + i), s(sONE_LO), v(vSUM + 2 * i))
            m_.v_dot2_f32_bf16(v(vSUM + 2 * i + 1), v(PLQ[r_] + i), s(sONE_HI), v(vSUM + 2 * i + 1))
f_ = Stream(); flag_check(f_, vF1, vFA1, sFP); issue_w3(f_, W3ORD[:OPT['w3s']]); NW3 = OPT['w3s']
k.add(weave(m_, [(f_, OPT['w3at'], None, 'vmem')], anchor='any'))
vOA = 104
for i in range(4): k.v_cvt_pk_bf16_f32(v(vSUM + 8 + i), v(vSUM + 2 * i), v(vSUM + 2 * i + 1))
k.ds_write_b128(v(vT16), v(vSUM + 8, 4))
k.v_lshrrev_b32(v(t0), 1, v(vG)); k.v_mul_u32_u24(v(t0), 20480, v(t0))
k.v_lshl_add_u32(v(t0), v(vJ), 4, v(t0))
k.v_and_b32(v(t1), 1, v(vG))
k.v_lshl_add_u32(v(t2), v(t1), 3, v(t0))
k.v_lshl_add_u32(v(t0), v(t1), 9, v(t0))
k.s_mul_i32(s(sT), s(sR), 163840); k.s_mul_i32(s(sT + 1), s(sW), 40960); k.s_add_u32(s(sT), s(sT), s(sT + 1))
k.s_mul_i32(s(sT + 1), s(sCQ), 1280); k.s_add_u32(s(sT), s(sT), s(sT + 1)); k.s_add_u32(s(sT), s(sT), WS_O)
k.waitlds()
k.s_barrier()
stamp(k, 'kvsum')
vOD = 224
vOP = 84
TORD = (5, 0, 1, 2, 3, 4)
def oread(st, n):
    s_, t = n // 6, TORD[n % 6]
    off = 256 * s_ + 64 * t if t < 4 else 1280 + 64 * (t - 4) + 80 * s_
    st.ds_read_b128(v(vOA + n * 4, 4), v(vKR), mods='offset:%d' % off)
for n in range(8): oread(k, n)
m_ = Stream()
for n in range(30):
    mfma(m_, v(vOD + 4 * TORD[n % 6], 4), v(vOA + n * 4, 4), v(vPK + 4 * (n // 6), 4), n < 6)
    if n + 8 < 30: oread(m_, n + 8)
f_ = Stream(); issue_w3(f_, W3ORD[NW3:NW3 + OPT['w3o']]); NW3 += OPT['w3o']
k.add(pack(m_, [(f_, 0, 24, 'vmem')]))
k.v_add_f32(v(vOD + 20), s(sEPS6), v(vOD + 20))
k.v_rcp_f32(v(vOD + 20), v(vOD + 20))
for i in range(10): k.v_pk_mul_f32(v(vOD + 2 * i, 2), v(vOD + 2 * i, 2), v(vOD + 20, 2), mods='op_sel_hi:[1,0]')
for i in range(10): k.v_cvt_pk_bf16_f32(v(vOP + i), v(vOD + 2 * i), v(vOD + 2 * i + 1))
k.buffer_store_dwordx4(v(vOP, 4), v(t0), srd(S_WS), s(sT), mods='offen sc1')
k.buffer_store_dwordx4(v(vOP + 4, 4), v(t0), srd(S_WS), s(sT), mods='offen offset:256 sc1')
k.buffer_store_dwordx2(v(vOP + 8, 2), v(t2), srd(S_WS), s(sT), mods='offen offset:1024 sc1', tag='ost')
stamp(k, 'ost')
vH = 18
vXRES = 28
vOF = 40
vA2 = 120
vD2 = 152
vA2P = 172
issue_w2(k, N2, 25)
issue_w3(k, W3ORD[NW3:NW3 + OPT['w3d']]); NW3 += OPT['w3d']
k.s_lshl_b32(s(sE), s(sW), 1); k.s_add_u32(s(sE), s(sE), s(sP))
k.s_lshl_b32(s(sT), s(sR), 3); k.s_add_u32(s(sF), s(sT), s(sE))
k.s_mul_i32(s(sXR), s(sF), 16 * 1280)
k.s_mul_i32(s(sT), s(sM), 160); k.s_add_u32(s(sXR), s(sXR), s(sT))
k.waitvm('ost')
k.s_barrier()
post(k, F_O)
k.buffer_load_dwordx4(v(vXRES, 4), v(vXRO), srd(S_X), s(sXR), mods='offen')
k.buffer_load_dwordx4(v(vXRES + 4, 4), v(vXRO), srd(S_X), s(sXR), mods='offen offset:16')
k.buffer_load_dwordx2(v(vXRES + 8, 2), v(vXRO), srd(S_X), s(sXR), mods='offen offset:32')
stamp(k, 'opost')
if OPT['stop'] == 3: finish(k)

W3A = min(60, NW3 + OPT['w3a']); W3B = min(60, W3A + OPT['w3b'])
if N2 < 25:
    k.waitvm('W2'); k.s_barrier()
k.v_add_u32(v(t0), L_W2, v(vL16))
k.v_add_u32(v(t1), L_W2 + 61440, v(vL16))
for i in range(20): k.ds_read_b128(v(vA2P + 4 * i, 4), v(t0), mods='offset:%d' % (i * 1024))
def a2read(st, i):
    st.ds_read_b128(v(vA2 + 4 * (i % 8), 4), v(t0 if i < 60 else t1), mods='offset:%d' % ((i if i < 60 else i - 60) * 1024))
for i in range(20, 26): a2read(k, i)
issue_w3(k, W3ORD[NW3:W3A])
k.s_mul_i32(s(sV), s(sF), 20480); k.s_add_u32(s(sV), s(sV), WS_O)
poll_row(k, F_O, vD2)
k.s_barrier()
stamp(k, 'oflag')
def issue_o(st, lo, hi):
    for i in range(lo, hi):
        if i % 4 == 0 and i: st.s_add_u32(s(sV), s(sV), 4096)
        st.buffer_load_dwordx4(v(vOF + 4 * i, 4), v(vL16), srd(S_WS), s(sV), mods='offen offset:%d sc1' % ((i % 4) * 1024))
issue_o(k, 0, 10)
m_ = Stream()
for i in range(100):
    ks, t = divmod(i, 5)
    mfma(m_, v(vD2 + 4 * t, 4), v(vA2P + 4 * i, 4) if i < 20 else v(vA2 + 4 * (i % 8), 4), v(vOF + 4 * ks, 4), ks == 0)
    if 20 <= i and i + 6 < 100: a2read(m_, i + 6)
f1 = Stream(); issue_o(f1, 10, 20)
f2 = Stream(); issue_w3(f2, W3ORD[W3A:W3B])
k.add(pack(m_, [(f1, 0, 40, 'vmem'), (f2, 44, 100, 'vmem')]))
stamp(k, 'gemm2')
k.v_lshrrev_b32(v(t0), 1, v(vG)); k.v_mul_u32_u24(v(t0), 1280, v(t0))
k.v_lshl_add_u32(v(t0), v(vJ), 4, v(t0))
k.v_and_b32(v(t1), 1, v(vG))
k.v_lshl_add_u32(v(t2), v(t1), 3, v(t0))
k.v_lshl_add_u32(v(t0), v(t1), 9, v(t0))
k.s_mul_i32(s(sT), s(sF), 20480); k.s_mul_i32(s(sT + 1), s(sM), 2560); k.s_add_u32(s(sT), s(sT), s(sT + 1))
k.s_add_u32(s(sT), s(sT), WS_H)
for i in range(10):
    k.v_dot2_f32_bf16(v(vD2 + 2 * i), v(vXRES + i), s(sONE_LO), v(vD2 + 2 * i))
    k.v_dot2_f32_bf16(v(vD2 + 2 * i + 1), v(vXRES + i), s(sONE_HI), v(vD2 + 2 * i + 1))
for i in range(10): k.v_cvt_pk_bf16_f32(v(vH + i), v(vD2 + 2 * i), v(vD2 + 2 * i + 1))
k.buffer_store_dwordx4(v(vH, 4), v(t0), srd(S_WS), s(sT), mods='offen sc1')
k.buffer_store_dwordx4(v(vH + 4, 4), v(t0), srd(S_WS), s(sT), mods='offen offset:256 sc1')
k.buffer_store_dwordx2(v(vH + 8, 2), v(t2), srd(S_WS), s(sT), mods='offen offset:1024 sc1')
sS, sQ, sY = vD2, vD2 + 1, vD2 + 2
k.v_mov_b32(v(sS), 0); k.v_mov_b32(v(sQ), 0)
for i in range(10):
    k.v_dot2_f32_bf16(v(sS), v(vH + i), s(sONES), v(sS))
    k.v_dot2_f32_bf16(v(sQ), v(vH + i), v(vH + i), v(sQ))
k.v_lshrrev_b32(v(t0), 1, v(vG)); k.v_lshlrev_b32(v(t0), 2, v(t0))
k.v_lshl_add_u32(v(t0), v(vJ), 3, v(t0))
k.v_mov_b32(v(t2), OOB)
k.v_cmp_eq_u32('vcc', 0, v(t1))
k.v_permlane32_swap_b32(v(sS), v(sQ))
k.v_add_f32(v(sS), v(sS), v(sQ))
k.v_cndmask_b32(v(t0), v(t2), v(t0), 'vcc')
k.v_mov_b32(v(sY), v(sS))
k.s_lshl_b32(s(sT), s(sF), 10); k.s_lshl_b32(s(sT + 1), s(sM), 7); k.s_add_u32(s(sT), s(sT), s(sT + 1))
k.s_add_u32(s(sT), s(sT), WS_HST)
k.v_permlane16_swap_b32(v(sS), v(sY))
k.v_add_f32(v(sS), v(sS), v(sY))
k.buffer_store_dword(v(sS), v(t0), srd(S_WS), s(sT), mods='offen sc1', tag='hst')
stamp(k, 'hst')

vCS = 28
vD3 = 40
vB3 = 64
vS3 = 88
vG3 = 92
vFL = 104
vRA = 108
vW4 = 112
sW4, sW4t, sW4l, sHs, sHl, sHt, sHS, sHH, sHHt, sHL, sHLt, sFH, sFHt = sB, sV, sXO, sXO + 1, sXO + 2, sV + 1, sV + 2, sD, sV + 4, sXO + 3, sV + 5, sXO + 4, sV + 6
k.s_mul_i32(s(sW4), s(sM), 245760); k.s_mul_i32(s(sT + 1), s(sW), 61440); k.s_add_u32(s(sW4), s(sW4), s(sT + 1))
k.s_add_u32(s(sW4), s(sW4), WS_W4)
k.s_mul_i32(s(sW4l), s(sW), 24576)
def issue_w4(st, lo, hi):
    for i in range(lo, hi):
        if i % 4 == 0 or i == lo: st.s_add_u32(s(sW4t), s(sW4), (i & ~3) * 1024)
        if i < 36:
            st.buffer_load_dwordx4(v(vW4 + 4 * i, 4), v(vL16), srd(S_WS), s(sW4t), mods='offen offset:%d sc1' % ((i & 3) * 1024))
        else:
            if i % 4 == 0 or i == lo: st.s_add_u32('m0', s(sW4l), L_W4 + ((i - 36) & ~3) * 1024)
            st.buffer_load_dwordx4(v(vL16), srd(S_WS), s(sW4t), mods='offen offset:%d sc1 lds' % ((i & 3) * 1024), tag='W4')
issue_w3(k, W3ORD[W3B:60])
for i in range(4): k.v_mov_b32(v(vB3 + i), 0x3f803f80)
m_ = Stream()
for t in range(3):
    for ks in range(20): mfma(m_, v(vCS + 4 * t, 4), a((t * 20 + ks) * 4, 4), v(vB3, 4), ks == 0)
fp = Stream(); fp.waitvm('hst'); fp.waitlds(); fp.s_barrier(); post(fp, F_H)
W4A = OPT['w4a']
f_ = Stream(); issue_w4(f_, 0, min(W4A, 12))
k.add(pack(m_, [(fp, OPT['hpost'], OPT['hpost'] + 1, 'vmem'), (f_, 10, 60, 'vmem')]))
stamp(k, 'colsum')
if OPT['stop'] == 4: finish(k)
k.s_mul_i32(s(sHl), s(sW), 5120)
k.s_mul_i32(s(sHs), s(sR), 163840); k.s_add_u32(s(sHs), s(sHs), s(sHl))
k.s_add_u32(s(sHs), s(sHs), WS_H)
k.v_lshlrev_b32(v(t0), 9, v(vG))
k.v_lshl_add_u32(v(t0), v(vJ), 3, v(t0))
k.s_lshl_b32(s(sHS), s(sR), 13); k.s_lshl_b32(s(sT + 1), s(sW), 11); k.s_add_u32(s(sHS), s(sHS), s(sT + 1))
k.s_add_u32(s(sHS), s(sHS), WS_HST)
k.v_add_u32(v(vRA), L_RING, v(vL16))
k.v_lshlrev_b32(v(vRA + 1), 4, v(vJ)); k.v_add_u32(v(vRA + 1), L_ST, v(vRA + 1))
k.v_mov_b32(v(t2), OOB)
k.v_cmp_gt_u32('vcc', 3, v(vG))
k.v_cndmask_b32(v(vRA + 2), v(t2), v(vL16), 'vcc')
k.s_mul_i32(s(sHH), s(sR), 8 * 49152); k.s_mul_i32(s(sT), s(sC), 3072); k.s_add_u32(s(sHH), s(sHH), s(sT))
k.s_mul_i32(s(sT), s(sW), 768); k.s_add_u32(s(sHH), s(sHH), s(sT)); k.s_add_u32(s(sHH), s(sHH), WS_HH)
k.s_lshl_b32(s(sT), s(sR), 3); k.s_add_u32(s(sT), s(sT), s(sP)); k.s_mul_i32(s(sHL), s(sT), 49152)
k.s_mul_i32(s(sT), s(sW), 12288); k.s_add_u32(s(sHL), s(sHL), s(sT)); k.s_add_u32(s(sHL), s(sHL), WS_HH)
k.s_lshl_b32(s(sFH), s(sR), 11); k.s_add_u32(s(sFH), s(sFH), WS_FLAGS + F_HH * 32768)
issue_w4(k, min(W4A, 12), W4A)
poll_row(k, F_H, vG3)
k.s_barrier()
stamp(k, 'hflag')
def issue_h(st, T):
    for i in range(5):
        if i % 4 == 0: st.s_add_u32('m0', s(sHl), L_RING + (T % 3) * 20480 + (i & 4) * 1024)
        if i % 4 == 0: st.s_add_u32(s(sHt), s(sHs), T * 20480 + i * 1024)
        st.buffer_load_dwordx4(v(vL16), srd(S_WS), s(sHt), mods='offen offset:%d sc1 lds' % ((i & 3) * 1024), tag='h%d' % T)
issue_h(k, 0)
issue_h(k, 1)
for i in range(4): k.buffer_load_dwordx2(v(vG3 + 2 * i, 2), v(t0), srd(S_WS), s(sHS), mods='offen offset:%d sc1' % (128 * i))
def stats3(st):
    st.v_add_f32(v(vG3), v(vG3), v(vG3 + 2)); st.v_add_f32(v(vG3 + 1), v(vG3 + 1), v(vG3 + 3))
    st.v_add_f32(v(vG3 + 4), v(vG3 + 4), v(vG3 + 6)); st.v_add_f32(v(vG3 + 5), v(vG3 + 5), v(vG3 + 7))
    st.v_add_f32(v(vG3), v(vG3), v(vG3 + 4)); st.v_add_f32(v(vG3 + 1), v(vG3 + 1), v(vG3 + 5))
    st.v_mov_b32(v(vG3 + 2), v(vG3)); st.v_mov_b32(v(vG3 + 3), v(vG3 + 1))
    st.v_lshrrev_b32(v(t0), 1, v(vG)); st.v_lshlrev_b32(v(t0), 8, v(t0))
    for i in range(2): st.v_permlane16_swap_b32(v(vG3 + i), v(vG3 + 2 + i))
    for i in range(2): st.v_add_f32(v(vG3 + i), v(vG3 + i), v(vG3 + 2 + i))
    st.v_mul_f32(v(vG3), s(sINV640), v(vG3))
    st.v_mul_f32(v(vG3 + 1), s(sINV640), v(vG3 + 1))
    st.v_fma_f32(v(vG3 + 1), '-' + v(vG3), v(vG3), v(vG3 + 1))
    st.v_max_f32(v(vG3 + 1), 0, v(vG3 + 1))
    st.v_add_f32(v(vG3 + 7), s(sEPS), v(vG3 + 1))
    st.v_sub_f32(v(vG3 + 4), 0, v(vG3))
    st.v_rsq_f32(v(vG3 + 2), v(vG3 + 7))
    st.v_lshl_add_u32(v(t0), v(vJ), 4, v(t0))
    st.v_mul_f32(v(vG3 + 5), s(sK1), v(vG3 + 2))
    st.v_mul_f32(v(vG3 + 3), v(vG3 + 2), v(vG3 + 2))
    st.v_mul_f32(v(vG3 + 6), s(sK3), v(vG3 + 2))
    st.v_mul_f32(v(vG3 + 6), v(vG3 + 6), v(vG3 + 3))
    st.s_lshl_b32(s(sT), s(sW), 9); st.s_add_u32(s(sT), s(sT), L_ST)
    st.v_add_u32(v(t0), s(sT), v(t0))
    st.ds_write_b128(v(t0), v(vG3 + 4, 4))
def epi3(st, T):
    D = vD3 + 12 * (T & 1)
    nm, c1, c3, vr = v(vS3), v(vS3 + 1), v(vS3 + 2), v(vS3 + 3)
    for t in range(3):
        for e in range(2):
            g_, u_ = D + 4 * t + e, D + 4 * t + 2 + e
            x = vG3 + 4 + e
            st.v_fmac_f32(v(g_), nm, v(vCS + 4 * t + e))
            st.v_fmac_f32(v(u_), nm, v(vCS + 4 * t + 2 + e))
            st.v_mul_f32(v(x), v(g_), v(g_))
            st.v_mul_f32(v(u_), v(g_), v(u_))
            st.v_fma_f32(v(x), v(x), c3, c1)
            st.v_mul_f32(v(x), v(x), v(g_))
            st.v_exp_f32(v(x), v(x))
        for e in range(2):
            x = vG3 + 4 + e
            st.v_fma_f32(v(x), v(x), vr, vr)
            st.v_rcp_f32(v(x), v(x))
        for e in range(2):
            u_ = D + 4 * t + 2 + e
            st.v_mul_f32(v(u_), v(u_), v(vG3 + 4 + e))
        st.v_cvt_pk_bf16_f32(v(vG3 + t), v(D + 4 * t + 2), v(D + 4 * t + 3))
        st.v_mov_b32(v(vG3 + 6 + t), v(vG3 + t))
    ta, tb, tc = vG3 + 6, vG3 + 7, vG3 + 8
    st.v_permlane16_swap_b32(v(ta), v(tb))
    st.v_permlane16_swap_b32(v(tc), v(vG3 + 3))
    st.s_add_u32(s(sHHt), s(sHH), T * 49152)
    st.v_permlane32_swap_b32(v(tb), v(vG3 + 3))
    st.buffer_store_dwordx4(v(vG3, 4), v(vRA + 2), srd(S_WS), s(sHHt), mods='offen sc1', tag='hh%d' % T)
def hhbuf(i, q): return a(80 * (i % 3) + 4 * q, 4)
def issue_hh(st, i, lo=0, hi=12):
    for q in range(lo, hi):
        if q % 4 == 0 or q == lo: st.s_add_u32(s(sHLt), s(sHL), i * 2 * 49152 + (q & ~3) * 1024)
        st.buffer_load_dwordx4(hhbuf(i, q), v(vL16), srd(S_WS), s(sHLt), mods='offen offset:%d sc1' % ((q & 3) * 1024))
def hflag_issue(st, n):
    st.s_add_u32(s(sFHt), s(sFH), n * 32768); flag_issue(st, vFL + 2 * (n & 1), vFR, sFHt)
def hflag_check(st, n):
    st.s_add_u32(s(sFHt), s(sFH), n * 32768); flag_check(st, vFL + 2 * (n & 1), vFR, sFHt)

rem = 60 - W4A
w4sched = [W4A + (rem * i) // 7 for i in range(8)] + [60]
NB = 6
def b3read(st, T, ks):
    n = T * 20 + ks
    st.ds_read_b128(v(vB3 + 4 * (n % NB), 4), v(vRA), mods='offset:%d' % ((T % 3) * 20480 + ks * 1024), tag='b%d' % n)
k.waitvm('h0')
k.s_barrier()
for ks in range(4): b3read(k, 0, ks)
for T in range(8):
    stamp(k, 'g3t%d' % T)
    m_ = Stream()
    if T > 0: m_.ds_read_b128(v(vS3, 4), v(vRA + 1), mods='offset:%d' % ((T - 1) * 256))
    for ks in range(20):
        n = T * 20 + ks
        if ks == 14 and T < 7:
            m_.waitvm('h%d' % (T + 1))
            if T == 5: m_.waitvm('hh3')
            if T == 0: m_.waitlds()
            m_.s_barrier()
            if T == 5: post(m_, F_HH)
        for t in range(3):
            mfma(m_, v(vD3 + 12 * (T & 1) + 4 * t, 4), a((t * 20 + ks) * 4, 4), v(vB3 + 4 * (n % NB), 4), ks == 0)
            if t == 0 and n + 4 < 160: b3read(m_, (n + 4) // 20, (n + 4) % 20)
            if t == 2 and ks % 2 == 1 and n + 2 < 160: m_.waitlds('b%d' % (n + 2))
        if ks == 8 and T == 7:
            m_.waitvm('hh5'); m_.s_barrier(); post(m_, F_HH + 1)
    fh = Stream()
    if T <= 5: issue_h(fh, T + 2)
    fv = Stream()
    issue_w4(fv, w4sched[T], w4sched[T + 1])
    fe = Stream()
    if T > 0: epi3(fe, T - 1)
    else: stats3(fe)
    fills = [(fv, 0, 40, 'vmem'), (fh, 43, 60, 'vmem'), (fe, 2 if T else 12, 56 if T else 40)]
    if T == 7:
        f1 = Stream(); hflag_issue(f1, 0); fills.append((f1, 0, 1, 'vmem'))
        f2 = Stream(); hflag_check(f2, 0); issue_hh(f2, 0, 0, 9); fills.append((f2, 28, 60, 'vmem'))
    m_ = pack(m_, fills); print('g3 tile', T, 'est', m_.est)
    k.add(m_)
stamp(k, 'g3end')
m_ = Stream()
m_.ds_read_b128(v(vS3, 4), v(vRA + 1), mods='offset:%d' % (7 * 256))
epi3(m_, 7)
f_ = Stream(); issue_hh(f_, 0, 9, 12)
k.add(weave(m_, [(f_, 2, 40, 'vmem')], anchor='any'))
def w4a(i): return a(80 * ((i - 36) // 8) + 48 + 4 * ((i - 36) % 8), 4)
k.v_add_u32(v(t0), s(sW4l), v(vL16))
k.v_add_u32(v(t0), L_W4, v(t0))
k.waitvm('W4')
for i in range(36, 60): k.ds_read_b128(w4a(i), v(t0), mods='offset:%d' % ((i - 36) * 1024))
if OPT['stop'] == 5:
    k.waitvm('hh7'); k.waitlds(); k.s_barrier(); post(k, F_HH + 2); finish(k)

vD4 = 40
def w4frag(i): return v(vW4 + 4 * i, 4) if i < 36 else w4a(i)
vRW = 109; vRR = 110
k.s_mul_i32(s(sT), s(sW), 5120)
k.v_add_u32(v(vRW), s(sT), v(vL16))
k.s_mul_i32(s(sT), s(sW), 20480)
k.v_add_u32(v(vRR), s(sT), v(vL16))
for i in range(4):
    D = vD4 + 20 * (i & 1)
    m_ = Stream()
    for q in range(12):
        for t in range(5): mfma(m_, v(D + 4 * t, 4), w4frag(q * 5 + t), hhbuf(i, q), q == 0)
    fills = []
    if i == 0:
        fp = Stream(); fp.waitvm('hh7'); fp.waitlds(); fp.s_barrier(); post(fp, F_HH + 2)
        fills.append((fp, OPT['p4post'], OPT['p4post'] + 1, 'vmem'))
        fv = Stream(); issue_hh(fv, 1); hflag_issue(fv, 1); fills.append((fv, 0, 56, 'vmem'))
    if i == 1:
        fv = Stream(); hflag_check(fv, 1); issue_hh(fv, 2); fills.append((fv, 4, 56, 'vmem'))
    if i == 2:
        ff = Stream(); hflag_issue(ff, 2); fills.append((ff, 0, 1, 'vmem'))
        fv = Stream(); hflag_check(fv, 2); issue_hh(fv, 3); fills.append((fv, 40, 60, 'vmem'))
    if i > 0:
        fw = Stream()
        Dp = vD4 + 20 * ((i - 1) & 1)
        for t in range(5): fw.ds_write_b128(v(vRW), v(Dp + 4 * t, 4), mods='offset:%d' % (L_RED + (i - 1) * 20480 + t * 1024))
        fills.append((fw, 3, 23))
    stamp(k, 'g4t%d' % i)
    k.add(pack(m_, fills))
k.v_add_u32(v(vRW), 3 * 20480, v(vRW))
for t in range(5): k.ds_write_b128(v(vRW), v(vD4 + 20 + 4 * t, 4), mods='offset:%d' % (L_RED + t * 1024))
k.waitlds()
k.s_barrier()
stamp(k, 'g4end')
vR2 = 112
for sl in range(4):
    for t in range(5): k.ds_read_b128(v(vR2 + 20 * sl + 4 * t, 4), v(vRR), mods='offset:%d' % (L_RED + sl * 5120 + t * 1024))
for q in range(10):
    k.v_pk_add_f32(v(vR2 + 2 * q, 2), v(vR2 + 2 * q, 2), v(vR2 + 20 + 2 * q, 2))
for q in range(10):
    k.v_dot2_f32_bf16(v(vR2 + 2 * q), v(vH + q), s(sONE_LO), v(vR2 + 2 * q))
    k.v_dot2_f32_bf16(v(vR2 + 2 * q + 1), v(vH + q), s(sONE_HI), v(vR2 + 2 * q + 1))
for q in range(10):
    k.v_pk_add_f32(v(vR2 + 40 + 2 * q, 2), v(vR2 + 40 + 2 * q, 2), v(vR2 + 60 + 2 * q, 2))
for q in range(10):
    k.v_pk_add_f32(v(vR2 + 2 * q, 2), v(vR2 + 2 * q, 2), v(vR2 + 40 + 2 * q, 2))
for q in range(10): k.v_cvt_pk_bf16_f32(v(40 + q), v(vR2 + 2 * q), v(vR2 + 2 * q + 1))
k.buffer_store_dwordx4(v(40, 4), v(vXRO), srd(S_OUT), s(sXR), mods='offen')
k.buffer_store_dwordx4(v(44, 4), v(vXRO), srd(S_OUT), s(sXR), mods='offen offset:16')
k.buffer_store_dwordx2(v(48, 2), v(vXRO), srd(S_OUT), s(sXR), mods='offen offset:32')
finish(k)
```

```python
import re

REG_RE = re.compile(r'^(-|abs\()?([vas])(\d+)\)?$')
RNG_RE = re.compile(r'^(-)?([vas])\[(\d+):(\d+)\]$')

def regs_of(op):
    op = op.strip()
    m = REG_RE.match(op)
    if m: return {(m.group(2), int(m.group(3)))}
    m = RNG_RE.match(op)
    if m: return {(m.group(2), i) for i in range(int(m.group(3)), int(m.group(4)) + 1)}
    if op == 'vcc': return {('s', 'vcc')}
    if op == 'exec': return {('s', 'exec')}
    if op == 'm0': return {('s', 'm0')}
    return set()

def R(kind, base, n=1):
    return "%s%d" % (kind, base) if n == 1 else "%s[%d:%d]" % (kind, base, base + n - 1)
def v(b, n=1): return R('v', b, n)
def a(b, n=1): return R('a', b, n)
def s(b, n=1): return R('s', b, n)

TRANS = ('v_exp_f32', 'v_log_f32', 'v_rcp_f32', 'v_rsq_f32', 'v_sqrt_f32', 'v_sin_f32', 'v_cos_f32', 'v_rcp_iflag_f32')

class Inst:
    __slots__ = ('mn', 'ops', 'mods', 'defs', 'uses', 'cls', 'tag', 'cmt', 'untracked', 'text')
    def __init__(self, mn, ops, mods='', tag=None, cmt=None, untracked=False):
        self.mn = mn; self.ops = [str(o) for o in ops]; self.mods = mods; self.tag = tag; self.cmt = cmt
        self.untracked = untracked; self.text = None
        self.classify()
    def classify(self):
        mn, ops = self.mn, self.ops
        D = lambda idx: set().union(*[regs_of(ops[i]) for i in idx]) if idx else set()
        n = len(ops); allx = list(range(n))
        if mn.startswith('v_mfma'):
            self.cls = 'mfma'; self.defs = D([0]); self.uses = D([1, 2, 3])
        elif mn.startswith('v_cmp'):
            self.cls = 'valu'; self.defs = D([0]); self.uses = D(allx[1:])
        elif mn.startswith('v_permlane') and 'swap' in mn:
            self.cls = 'valu'; self.defs = D([0, 1]); self.uses = D([0, 1])
        elif mn.startswith(('v_add_co', 'v_addc_co')):
            self.cls = 'valu'; self.defs = D([0, 1]); self.uses = D(allx[2:])
        elif mn.startswith(('v_fmac', 'v_dot2c', 'v_pk_fmac')):
            self.cls = 'valu'; self.defs = D([0]); self.uses = D(allx)
        elif mn.startswith('v_'):
            self.cls = 'valu'; self.defs = D([0]); self.uses = D(allx[1:])
            if '_dpp' in mn: self.uses |= D([0])
            if mn == 'v_cndmask_b32' and n == 3: self.uses |= {('s', 'vcc')}
        elif mn.startswith(('ds_read', 'ds_bpermute', 'ds_swizzle', 'ds_permute')):
            self.cls = 'ldsr'; self.defs = D([0]); self.uses = D(allx[1:])
        elif mn.startswith('ds_write'):
            self.cls = 'ldsw'; self.defs = set(); self.uses = D(allx)
        elif mn.startswith(('buffer_load', 'global_load')):
            if ' lds' in ' ' + self.mods or '_lds_' in mn:
                self.cls = 'dma'; self.defs = set(); self.uses = D(allx) | {('s', 'm0')}
            else:
                self.cls = 'vload'; self.defs = D([0]); self.uses = D(allx[1:])
        elif mn.startswith(('buffer_store', 'global_store', 'buffer_atomic', 'global_atomic')):
            self.cls = 'vstore'; self.defs = set(); self.uses = D(allx)
        elif mn.startswith(('s_load', 's_memtime', 's_memrealtime')):
            self.cls = 'smem'; self.defs = D([0]); self.uses = D(allx[1:])
        elif mn in ('s_waitcnt', 's_nop', 's_barrier', 's_endpgm', 's_sleep', 's_setprio', 'label', 'raw', 'waitvm', 'waitlds', 'comment', 'cond_begin', 'cond_end') or mn.startswith(('s_cbranch', 's_branch')):
            self.cls = 'ctl'; self.defs = set(); self.uses = set()
        elif mn.startswith('s_cmp'):
            self.cls = 'salu'; self.defs = set(); self.uses = D(allx)
        elif mn.startswith('s_'):
            self.cls = 'salu'; self.defs = D([0]); self.uses = D(allx[1:])
            if 'saveexec' in mn: self.defs |= {('s', 'exec')}
        else:
            raise ValueError('unknown mnemonic ' + mn)
    def __str__(self):
        if self.mn == 'label': return self.ops[0] + ':'
        if self.mn == 'raw': return self.text
        if self.mn == 'comment': return '; ' + self.text
        t = self.mn + (' ' + ', '.join(self.ops) if self.ops else '') + (' ' + self.mods if self.mods else '')
        if self.cmt: t += '   ; ' + self.cmt
        return t

class Stream:
    def __init__(self): self.l = []
    def __getattr__(self, mn):
        if mn.startswith('__'): raise AttributeError(mn)
        def f(*ops, mods='', tag=None, cmt=None, untracked=False):
            i = Inst(mn, ops, mods, tag, cmt, untracked); self.l.append(i); return i
        return f
    def add(self, other):
        self.l.extend(other.l if isinstance(other, Stream) else other); return self
    def label(self, name): self.l.append(Inst('label', [name]))
    def comment(self, t):
        i = Inst('comment', []); i.text = t; self.l.append(i)
    def raw(self, text, uses=(), defs=(), drains_vm=False):
        i = Inst('raw', []); i.text = text
        i.uses = set().union(*[regs_of(o) for o in uses]) if uses else set()
        i.defs = set().union(*[regs_of(o) for o in defs]) if defs else set()
        self.l.append(i); return i
    def waitvm(self, tag=None):
        i = Inst('waitvm', []); i.tag = tag; self.l.append(i)
    def waitlds(self, tag=None):
        i = Inst('waitlds', []); i.tag = tag; self.l.append(i)
    def cond_begin(self): self.l.append(Inst('cond_begin', []))
    def cond_end(self): self.l.append(Inst('cond_end', []))
    def __len__(self): return len(self.l)

def merge(main, fill, start=0, per=None, end_pad=0):
    out = Stream()
    nm = sum(1 for i in main.l if i.cls == 'mfma')
    slots = max(1, nm - start - end_pad)
    f = list(fill.l); nf = len(f); k = 0; seen = 0
    for i in main.l:
        out.l.append(i)
        if i.cls == 'mfma':
            seen += 1
            if seen > start:
                want = min(nf, -(-(nf * (seen - start)) // slots)) if per is None else min(nf, per * (seen - start))
                while k < want:
                    out.l.append(f[k]); k += 1
    out.l.extend(f[k:])
    return out

MFMA_PASS = {'v_mfma_f32_16x16x32_bf16': 4, 'v_mfma_f32_32x32x16_bf16': 8}
def mfma_lat(p, kind):
    return {'c_part': {4: 6, 8: 10}, 'ab': {4: 8, 8: 12}, 'other': {4: 8, 8: 12}, 'war_c': {4: 3, 8: 7}}[kind][p]

WAIT_AGE = 7
def insert_waits(lst):
    out = []; vmq = []; ldq = []; cond = None
    nmf = 0
    def do_wait(vm=None, lg=None, ext=False):
        nonlocal vmq, ldq
        if ext and lg is not None:
            while lg > 0 and nmf - ldq[len(ldq) - lg][3] >= WAIT_AGE: lg -= 1
        parts = []
        if vm is not None:
            vm = min(vm, 63)
            if len(vmq) > vm:
                parts.append('vmcnt(%d)' % vm); vmq = vmq[len(vmq) - vm:] if vm else []
        if lg is not None:
            if any(x[2] for x in ldq): lg = 0
            lg = min(lg, 15)
            if len(ldq) > lg:
                parts.append('lgkmcnt(%d)' % lg); ldq = ldq[len(ldq) - lg:] if lg else []
        if parts:
            w = Inst('s_waitcnt', [' '.join(parts)]); w.tag = 'auto'; out.append(w)
    for i in lst:
        if i.mn == 'cond_begin':
            cond = (list(vmq), list(ldq)); out.append(i); continue
        if i.mn == 'cond_end':
            vq0, lq0 = cond; cond = None
            ids0 = set(id(x) for x in vq0) | set(id(x) for x in lq0)
            for x in vmq + ldq:
                assert id(x) in ids0 or not x[0], 'load issued inside a conditional block still outstanding at its end'
            vmq = vq0; ldq = lq0; out.append(i); continue
        if i.mn == 'waitvm':
            if i.tag is None: do_wait(vm=0)
            else:
                idx = [k for k, x in enumerate(vmq) if x[1] == i.tag]
                if idx: do_wait(vm=len(vmq) - 1 - idx[-1])
            continue
        if i.mn == 'waitlds':
            if i.tag is None: do_wait(lg=0)
            else:
                idx = [k for k, x in enumerate(ldq) if x[1] == i.tag]
                if idx: do_wait(lg=len(ldq) - 1 - idx[-1])
            continue
        if i.mn == 's_waitcnt':
            t = i.ops[0]
            m = re.search(r'vmcnt\((\d+)\)', t)
            if m:
                n = int(m.group(1)); vmq = vmq[len(vmq) - n:] if n and len(vmq) > n else ([] if n == 0 else vmq)
            m = re.search(r'lgkmcnt\((\d+)\)', t)
            if m:
                n = int(m.group(1)); ldq = ldq[len(ldq) - n:] if n and len(ldq) > n else ([] if n == 0 else ldq)
            out.append(i); continue
        touched = i.uses | i.defs
        vm = lg = None
        for k, x in enumerate(vmq):
            if x[0] & touched: vm = len(vmq) - 1 - k
        for k, x in enumerate(ldq):
            if x[0] & touched: lg = len(ldq) - 1 - k
        if vm is not None or lg is not None: do_wait(vm, lg, i.cls == 'mfma')
        out.append(i)
        if i.cls == 'mfma': nmf += 1
        if not i.untracked:
            if i.cls in ('vload', 'vstore', 'dma'): vmq.append((i.defs, i.tag))
            elif i.cls in ('ldsr', 'ldsw'): ldq.append((i.defs, i.tag, False, nmf))
            elif i.cls == 'smem': ldq.append((i.defs, i.tag, True, nmf))
    return out

def hoist_waits(lst):
    out = list(lst)
    k = 1
    while k < len(out) - 1:
        w = out[k]
        if w.mn == 's_waitcnt' and w.tag == 'auto' and out[k + 1].cls == 'mfma' and 'vmcnt' not in w.ops[0]:
            n = int(re.search(r'lgkmcnt\((\d+)\)', w.ops[0]).group(1))
            j = k - 1; skipped = 0; ok = True; nvalu = 0
            while j >= 0 and out[j].cls != 'mfma':
                c = out[j].cls
                if c in ('ldsr', 'ldsw'): skipped += 1
                elif c == 'valu': nvalu += 1
                elif c in ('salu', 'vload', 'vstore', 'dma'): pass
                else: ok = False; break
                j -= 1
            if ok and j >= 0 and j < k - 1 and nvalu and n - skipped >= 0 and out[j + 1].cls == 'valu':
                del out[k]
                w2 = Inst('s_waitcnt', ['lgkmcnt(%d)' % (n - skipped)]); w2.tag = 'hoisted'
                out.insert(j + 1, w2)
        k += 1
    return out

def insert_nops(lst):
    out = []
    pos = 0
    last_valu_w = {}; last_trans_w = {}; last_mfma_w = {}; last_mfma_c = {}; last_store_data = {}; last_dot_w = {}
    last_salu_m0 = -100
    nnop = 0
    def emit(i):
        nonlocal pos
        out.append(i)
        if i.mn in ('label', 'comment'): return
        if i.mn == 's_nop': pos += int(i.ops[0]) + 1
        else: pos += 1
    cond = None
    for i in lst:
        if i.mn == 'cond_begin':
            cond = pos; continue
        if i.mn == 'cond_end':
            p0 = cond; cond = None
            delta = pos - p0
            for d in (last_valu_w, last_trans_w, last_store_data):
                for r in d:
                    if d[r] < p0: d[r] += delta
            for d in (last_mfma_w, last_mfma_c, last_dot_w):
                for r in d:
                    if d[r][0] < p0: d[r] = (d[r][0] + delta,) + tuple(d[r][1:])
            if last_salu_m0 < p0: last_salu_m0 += delta
            continue
        if i.mn in ('label', 'comment', 's_waitcnt'):
            emit(i); continue
        touched = i.uses | i.defs
        need = 0
        def req(p, n):
            nonlocal need
            need = max(need, p + n + 1 - pos)
        for r in touched:
            if r in last_dot_w:
                dp, dm = last_dot_w[r]
                if i.mn == dm and r not in (regs_of(i.ops[1]) | regs_of(i.ops[2])): pass
                else: req(dp, 3)
        is_valu = i.cls == 'valu'; is_mem = i.cls in ('ldsr', 'ldsw', 'vload', 'vstore', 'dma')
        raw_blk = i.mn == 'raw'
        if i.cls == 'mfma':
            cset = regs_of(i.ops[3]); ab = regs_of(i.ops[1]) | regs_of(i.ops[2]); p = MFMA_PASS[i.mn]
            for r in i.uses:
                if r in last_valu_w: req(last_valu_w[r], 2)
            for r in ab:
                if r in last_mfma_w: req(last_mfma_w[r][0], mfma_lat(last_mfma_w[r][1], 'ab'))
            for r in cset | i.defs:
                if r in last_mfma_w:
                    w = last_mfma_w[r]
                    if r in cset and w[2] == cset and w[1] == p: pass
                    else: req(w[0], mfma_lat(w[1], 'c_part'))
        else:
            for r in touched:
                if r in last_mfma_w and (is_valu or is_mem or raw_blk): req(last_mfma_w[r][0], mfma_lat(last_mfma_w[r][1], 'other'))
            if is_valu or raw_blk:
                for r in i.defs:
                    if r in last_mfma_c: req(last_mfma_c[r][0], mfma_lat(last_mfma_c[r][1], 'war_c'))
                    if r in last_store_data: req(last_store_data[r], 2)
                for r in i.uses:
                    if r in last_trans_w: req(last_trans_w[r], 1)
                    if r in last_valu_w:
                        if r[0] == 's': req(last_valu_w[r], 4 if 'lane' in i.mn else 2)
                        elif i.mn.startswith(('v_readfirstlane', 'v_readlane')): req(last_valu_w[r], 1)
                        elif i.mn.startswith('v_permlane') or '_dpp' in i.mn or raw_blk: req(last_valu_w[r], 2)
            if is_mem:
                for r in i.uses:
                    if r in last_trans_w: req(last_trans_w[r], 1)
                    if r[0] == 's' and r in last_valu_w: req(last_valu_w[r], 5)
                for r in i.defs:
                    if r in last_store_data: req(last_store_data[r], 1)
                if i.cls == 'dma': req(last_salu_m0, 1)
            if i.cls == 'salu':
                for r in i.uses:
                    if r in last_valu_w: req(last_valu_w[r], 1)
        while need > 0:
            n = min(need, 16); emit(Inst('s_nop', [n - 1])); need -= n; nnop += n
        p0 = pos
        emit(i)
        for r in i.defs: last_dot_w.pop(r, None)
        if i.mn.startswith('v_dot'):
            for r in i.defs: last_dot_w[r] = (p0, i.mn)
        if i.cls == 'mfma':
            p = MFMA_PASS[i.mn]
            for r in i.defs: last_mfma_w[r] = (p0, p, frozenset(i.defs)); last_valu_w.pop(r, None)
            for r in regs_of(i.ops[3]): last_mfma_c[r] = (p0, p)
        elif is_valu or raw_blk:
            for r in i.defs:
                last_valu_w[r] = p0; last_mfma_w.pop(r, None)
                if i.mn in TRANS: last_trans_w[r] = p0
                else: last_trans_w.pop(r, None)
        elif i.cls == 'salu':
            for r in i.defs:
                last_valu_w.pop(r, None)
                if r == ('s', 'm0'): last_salu_m0 = p0
        if i.cls in ('vstore', 'ldsw') and re.search(r'x3|x4|b96|b128', i.mn):
            dat = regs_of(i.ops[0]) if i.mn.startswith('buffer') else regs_of(i.ops[1])
            for r in dat: last_store_data[r] = p0
        if i.cls in ('vload', 'ldsr'):
            for r in i.defs: last_valu_w.pop(r, None); last_mfma_w.pop(r, None); last_trans_w.pop(r, None)
    return out, nnop

def finalize(stream, verbose=False):
    l = insert_waits(stream.l)
    l = hoist_waits(l)
    l, nnop = insert_nops(l)
    if verbose: print('finalize: %d insts, %d nop states, %d waits' % (len(l), nnop, sum(1 for i in l if i.mn == 's_waitcnt')))
    return l

def render(insts):
    return '\n'.join(('' if i.mn == 'label' else '    ') + str(i) for i in insts) + '\n'

HEADER = '''; @launch grid=({grid},1,1) block=(256,1,1) lds={lds}
.amdgcn_target "amdgcn-amd-amdhsa--gfx950"
.text
.globl {k}
.p2align 8
.type {k},@function
{k}:
'''
FOOTER = '''.section .rodata,"a"
.p2align 6
.amdhsa_kernel {k}
  .amdhsa_next_free_vgpr {nv}
  .amdhsa_next_free_sgpr 102
  .amdhsa_accum_offset {ao}
  .amdhsa_group_segment_fixed_size 0
  .amdhsa_kernarg_size 88
  .amdhsa_user_sgpr_count 2
  .amdhsa_user_sgpr_kernarg_segment_ptr 1
  .amdhsa_system_sgpr_workgroup_id_x 1
.end_amdhsa_kernel
'''
KNAME = "sequential_preLN__linear_kernel_hedgehog__glu_gated_geglu__prompt_kernel"

def groups_of(st, mode='single'):
    out = []; cur = []
    for i in st.l:
        cur.append(i)
        if mode in ('single', 'vmem1'):
            if i.cls != 'salu' and i.mn not in ('comment', 'waitvm', 'waitlds'): out.append(cur); cur = []
        else:
            if i.cls in ('vload', 'vstore', 'dma'): out.append(cur); cur = []
    if cur:
        if out: out[-1].extend(cur)
        else: out.append(cur)
    return out

def weave(main, fills, anchor='mfma'):
    isanch = (lambda i: i.cls == 'mfma') if anchor == 'mfma' else (lambda i: i.cls in ('valu', 'mfma', 'ldsr', 'ldsw'))
    na = sum(1 for i in main.l if isanch(i))
    at = {}
    tail = []
    for f in fills:
        st, lo, hi = f[0], f[1], f[2]
        mode = f[3] if len(f) > 3 else 'single'
        gs = groups_of(st, mode)
        if hi is None or hi > na: hi = na
        if lo < 0: lo = na + lo
        n = len(gs)
        for q, g in enumerate(gs):
            if hi <= lo: tail.append(g); continue
            idx = lo + (q * (hi - lo)) // n
            at.setdefault(idx, []).append(g)
    out = Stream(); seen = 0
    for i in main.l:
        out.l.append(i)
        if isanch(i):
            for g in at.get(seen, []): out.l.extend(g)
            seen += 1
    for g in tail: out.l.extend(g)
    return out


def icost(i):
    if i.mn in ('comment', 'label', 'cond_begin', 'cond_end'): return 0
    if i.cls == 'valu':
        if i.mn in TRANS or i.mn.startswith('v_permlane'): return 8
        return 4
    if i.cls == 'ldsr': return 8
    if i.cls == 'ldsw': return 52 if '128' in i.mn else 24
    if i.cls in ('vload', 'vstore', 'dma'): return 14
    if i.mn in ('raw', 's_barrier'): return 12
    return 4
def gap_time(insts):
    t = 4
    for i in insts:
        if i.cls == 'valu': t = max(t, 8)
        t += icost(i)
    return t

def pack(main, fills, early=2.0, late=3.0):
    marks = insert_waits(main.l)
    needw = []; prevw = False
    for i in marks:
        if i.cls == 'mfma': needw.append(prevw); prevw = False
        elif i.mn == 's_waitcnt': prevw = True
    pre = []; gaps = []
    for i in main.l:
        if i.cls == 'mfma': gaps.append([i, []])
        elif gaps: gaps[-1][1].append(i)
        else: pre.append(i)
    na = len(gaps)
    sts = []
    for f in fills:
        st, lo, hi = f[0], f[1], f[2]
        mode = f[3] if len(f) > 3 else 'single'
        gs = groups_of(st, mode)
        if hi is None or hi > na: hi = na
        n = len(gs)
        sts.append(dict(gs=gs, pos=[lo + q * (hi - lo) / max(n, 1) for q in range(n)], k=0, strict=(mode in ('vmem', 'vmem1')), lo=lo, hi=hi))
    out = Stream(); out.l.extend(pre)
    W = Inst('s_waitcnt', ['lgkmcnt(0)'])
    over = 0
    for g, (mf, pinned) in enumerate(gaps):
        budget = 16 if MFMA_PASS[mf.mn] == 4 else 32
        head = []; tail = []
        resv = [W] if (g + 1 < na and needw[g + 1] and not any(x.mn in ('waitlds', 'waitvm') for x in pinned)) else []
        valu_from = set()
        def total(h, t): return gap_time(resv + pinned + h + t)
        progress = True
        while progress:
            progress = False
            cands = sorted((st['pos'][st['k']], n_) for n_, st in enumerate(sts) if st['k'] < len(st['gs']))
            for p, n_ in cands:
                st = sts[n_]; grp = st['gs'][st['k']]
                if g < st['lo']: continue
                if st['strict']:
                    if p > g: continue
                    force = True
                else:
                    if p > g + early: continue
                    force = p <= g - late or g >= st['hi'] - 1 and p <= g
                isv = any(x.cls == 'valu' for x in grp)
                h2, t2 = (head, tail + grp) if (isv or n_ in valu_from) else (head + grp, tail)
                if force or total(h2, t2) <= budget:
                    head, tail = h2, t2
                    if isv: valu_from.add(n_)
                    st['k'] += 1; progress = True
                    break
        over += max(0, total(head, tail) - budget)
        out.l.append(mf); out.l.extend(pinned); out.l.extend(head); out.l.extend(tail)
    for st in sts:
        for grp in st['gs'][st['k']:]:
            out.l.extend(grp); over += sum(icost(x) for x in grp)
    out.est = na * (16 if MFMA_PASS[gaps[0][0].mn] == 4 else 32) + over
    return out

def seq_time(mf, insts):
    t = 4; hist = [mf]
    for i in insts:
        if i.mn in ('comment', 'label'): continue
        need = 0
        if i.cls in ('valu', 'vstore', 'ldsw', 'vload', 'dma', 'ldsr', 'mfma'):
            for d, p in enumerate(reversed(hist[-3:])):
                if p.cls != 'valu' or not (p.defs & i.uses): continue
                req = 0
                if p.mn in TRANS: req = 1
                if i.mn.startswith('v_permlane') or i.cls == 'mfma': req = 2
                if any(r[0] == 's' for r in p.defs & i.uses): req = 2
                need = max(need, req - d)
            if i.cls == 'dma' and hist[-1].cls == 'salu' and ('s', 'm0') in hist[-1].defs: need = max(need, 1)
        t += 4 * need
        if i.cls == 'valu': t = max(t, 8)
        t += 8 if i.cls == 'mfma' else icost(i)
        hist.append(i)
    return t

def pack2(main, fills, slack=2.5, beam=3000):
    marks = insert_waits(main.l)
    needw = []; prevw = False
    for i in marks:
        if i.cls == 'mfma': needw.append(prevw); prevw = False
        elif i.mn == 's_waitcnt': prevw = True
    pre = []; gaps = []
    for i in main.l:
        if i.cls == 'mfma': gaps.append([i, []])
        elif gaps: gaps[-1][1].append(i)
        else: pre.append(i)
    na = len(gaps)
    sts = []
    for f in fills:
        st, lo, hi = f[0], f[1], f[2]
        mode = f[3] if len(f) > 3 else 'single'
        gs = groups_of(st, mode)
        if not gs: continue
        if hi is None or hi > na: hi = na
        n = len(gs); strict = mode in ('vmem', 'vmem1')
        pos = [lo + q * (hi - lo) / n for q in range(n)]
        sl = min(slack, (hi - lo) / n / 2.0) if strict else None
        if strict: win = [(max(lo, p - sl), min(hi - 1, max(p + sl, lo))) for p in pos]
        else: win = [(lo, hi - 1)] * n
        win = [(int(-(-a // 1)) if a == int(a) else int(a), int(b + 0.999) if strict else b) for a, b in win]
        win = [(max(lo, a), max(min(hi - 1, b), max(lo, a))) for a, b in win]
        sts.append(dict(gs=gs, win=win, strict=strict, isv=[any(x.cls in ('valu', 'mfma') for x in g) for g in gs]))
    W = Inst('s_waitcnt', ['lgkmcnt(0)'])
    def build(g, take):
        head = []; tail = []
        for s_, (k0, k1) in enumerate(take):
            seen = False
            for q in range(k0, k1):
                if sts[s_]['isv'][q] or seen: tail += sts[s_]['gs'][q]; seen = True
                else: head += sts[s_]['gs'][q]
        return head + tail
    import itertools
    cur = {tuple([0] * len(sts)): (0, None)}
    layers = []
    for g, (mf, pinned) in enumerate(gaps):
        budget = 16 if MFMA_PASS[mf.mn] == 4 else 32
        resv = [W] if (g + 1 < na and needw[g + 1] and not any(x.mn in ('waitlds', 'waitvm') for x in pinned)) else []
        nxt = {}
        for key, (cost, _) in cur.items():
            opts = []
            for s_, st in enumerate(sts):
                k0 = key[s_]; n = len(st['gs']); lo_ = k0
                while lo_ < n and st['win'][lo_][1] <= g: lo_ += 1
                hi_ = lo_
                mx = k0 + (1 if st['strict'] else 3)
                while hi_ < n and hi_ < mx and st['win'][hi_][0] <= g: hi_ += 1
                opts.append(range(lo_, max(lo_, hi_) + 1))
            for comb in itertools.product(*opts):
                ins = build(g, list(zip(key, comb)))
                c = cost + max(budget, seq_time(mf, resv + pinned + ins))
                if comb not in nxt or c < nxt[comb][0]: nxt[comb] = (c, key)
        if len(nxt) > beam:
            def score(kv):
                rem = sum(sum(icost(x) for grp in st['gs'][kv[0][s_]:] for x in grp) for s_, st in enumerate(sts))
                return kv[1][0] + max(0, rem - (na - g - 1) * 8)
            nxt = dict(sorted(nxt.items(), key=score)[:beam])
        layers.append(nxt); cur = nxt
    def left(key): return sum(sum(icost(x) for grp in st['gs'][key[s_]:] for x in grp) for s_, st in enumerate(sts))
    key = min(cur, key=lambda q: cur[q][0] + left(q)); est = cur[key][0] + left(key)
    final = key; path = []
    for g in range(na - 1, -1, -1):
        prev = layers[g][key][1]; path.append((prev, key)); key = prev
    path.reverse()
    out = Stream(); out.l.extend(pre)
    for g, (mf, pinned) in enumerate(gaps):
        out.l.append(mf); out.l.extend(pinned); out.l.extend(build(g, list(zip(*path[g]))))
    for s_, st in enumerate(sts):
        for grp in st['gs'][final[s_]:]: out.l.extend(grp)
    out.est = est
    return out
pack_greedy = pack
pack = pack2
```

```python
import sys, math, struct
from asmgen import *

OPT = dict(stop=99, stamps=0, cqx=0, spin=100000, rot=1, ost=1, asy=1, w3a2=6, w3c2=6, map=0, ipf=3, w2e=1, x0e=0, w1ck=3, ckat=8, qpost=36, psl=14, w2at=70, qpost2=40, w2q=10, qpl=90, qpn=90, w2s=4, w2u=5, w2uat=40, w2o=3, w3o=3, w3a=6, w3b=11, w3c=4, w3t=12, w40=0, w4a=0, e7end=26, p4post=56, cst=1, w4l=60, v4end=74, h2a=10, f2at=8, f2ck=30)
for a_ in sys.argv[2:]:
    kk, vv = a_.split('='); OPT[kk] = int(vv)

def f32(x): return '0x%08x' % struct.unpack('<I', struct.pack('<f', x))[0]
LOG2E = 1.4426950408889634
OOB = 0x40000000

WS_FLAGS = 4096
F_PREP, F_KV, F_O, F_H, F_HH, F_W1, F_PREP2 = 0, 1, 2, 3, 4, 7, 8
WS_STAMP = 0x1700000
WS_PART = 0x80000
WS_O = 0x200000
WS_H = 0x500000
WS_HST = 0x780000
WS_HH = 0x800000
WS_W2 = 0x1000000
WS_W3 = 0x1100000
WS_W4 = 0x1500000
WS_W1K = 0x1800000
WS_W1Q = 0x1A00000
WS_CS = 0x1B00000
WS_CS3 = 0x1C00000
WS_DBG = 0x2000000
WS_SIZE = 0x4000000

L_XST = 0; L_W1S = 118784
L_PG = 40960; L_PU = 49152; L_P4 = 57344; L_P2 = 135168; L_PHI = 143360
L_KV = 0; L_Q = 102400; L_CSF = 155648; L_FV = 65536
L_KVR = 102400; L_ZERO = 106624
L_XR = 114688
L_W2 = 0; L_RING = 102400; L_W4 = 0; L_ST = 98304; L_RED = 0

S_X, S_W1, S_WS, S_WG, S_WU, S_WD, S_WO, S_OUT, S_PHI = 28, 32, 36, 40, 44, 48, 52, 56, 60
sR, sC, sCQ, sW, sM, sP = 64, 65, 66, 67, 68, 69
sN = 70
sT = 72
sXO = 80
sA, sB, sCc, sD = 88, 89, 90, 91
sONE_LO, sONE_HI, sONES = 92, 93, 94
sCNT = 95
sTM = 96
sXR = 98
sE, sF = 99, 100
sK = 4
sCH = 12
sV = 17
def srd(b): return s(b, 4)

vTID, vL16, vG, vJ, vSTAMP, vPOST, vFR, vFC, vNON, vXRO = 0, 1, 2, 3, 4, 5, 6, 7, 8, 10
t0, t1, t2 = 11, 12, 13
vR4, vCC, vLANE = 14, 15, 16

k = Stream()
STAMPS = []
OPT_DBG = ['setup', 'xs0', 'xs4', 'kvgemm', 'kvst', 'qgemm', 'ost', 'oflag', 'hst', 'hflag', 'g3t1', 'g3end', 'g4t2', 'g4end', 'end']
def stamp(st, name):
    if not OPT['stamps']: return
    if OPT['stamps'] == 3 and name not in ('start', 'kvst', 'opost', 'hst', 'g3end', 'end'): return
    if OPT['stamps'] == 4 and name in ('pre', 'w1s', 'prepiss', 'w1flag', 'kv0', 'kv1', 'kv2', 'kv3', 'q_a', 'q_b', 'q_c', 'q_d', 'w1a', 'w1b', 'w1st', 'w1w', 'w1d', 'colsum', 'q_e', 'q_f', 'g4t0'): return
    i = len(STAMPS); STAMPS.append(name)
    if OPT['stamps'] == 4:
        assert i < 32
        st.s_memtime(s(sTM, 2)); st.s_waitcnt('lgkmcnt(0)'); st.v_writelane_b32(v(vSTAMP), s(sTM), 32 + i)
    st.comment('stamp %d %s' % (i, name))
    (st.s_memrealtime if OPT['stamps'] >= 2 else st.s_memtime)(s(sTM, 2))
    st.s_waitcnt('lgkmcnt(0)')
    st.v_writelane_b32(v(vSTAMP), s(sTM), i)

def post(st, kind):
    st.s_lshl_b32(s(sT), s(sR), 11)
    st.s_lshl_b32(s(sT + 1), s(sC), 7)
    st.s_add_u32(s(sT), s(sT), s(sT + 1))
    st.s_add_u32(s(sT), s(sT), WS_FLAGS + kind * 32768)
    st.buffer_store_dwordx2(v(vNON, 2), v(vPOST), srd(S_WS), s(sT), mods='offen sc1')

npoll = [0]
def poll(st, voff, ssoff, tmp):
    n = npoll[0]; npoll[0] += 1
    t = '''s_cmp_lg_u32 s{w}, 0
    s_cbranch_scc1 L_pd{n}
    s_mov_b32 s{c}, {lim}
L_pl{n}:
    buffer_load_dwordx2 v[{t}:{t1}], v{vo}, s[{ws}:{ws3}], s{so} offen sc1
    s_waitcnt vmcnt(0)
    v_cmp_ne_u64 vcc, s[{n0}:{n1}], v[{t}:{t1}]
    s_cbranch_vccz L_pd{n}
    s_sub_u32 s{c}, s{c}, 1
    s_cbranch_scc0 L_pl{n}
L_pd{n}:'''.format(w=sW, n=n, c=sCNT, lim=OPT['spin'], t=tmp, t1=tmp + 1, vo=voff, ws=S_WS, ws3=S_WS + 3, so=ssoff, n0=sN, n1=sN + 1)
    st.raw(t, uses=[v(voff)], defs=[v(tmp, 2)])
def poll_row(st, kind, tmp):
    st.s_lshl_b32(s(sT), s(sR), 11); st.s_add_u32(s(sT), s(sT), WS_FLAGS + kind * 32768)
    poll(st, vFR, sT, tmp)

def allreduce_groups(st, x, t, op):
    st.v_mov_b32(v(t), v(x))
    st.v_permlane32_swap_b32(v(x), v(t))
    getattr(st, op)(v(x), v(x), v(t))
    st.v_mov_b32(v(t), v(x))
    st.v_permlane16_swap_b32(v(x), v(t))
    getattr(st, op)(v(x), v(x), v(t))

MF = 'v_mfma_f32_16x16x32_bf16'
def mfma(st, d, A, B, first=False):
    getattr(st, MF)(d, A, B, '0' if first else d)

def wg_slot(st, mul, base):
    st.s_lshl_b32(s(sT), s(sR), 4); st.s_add_u32(s(sT), s(sT), s(sC))
    st.s_lshl_b32(s(sT), s(sT), 2); st.s_add_u32(s(sT), s(sT), s(sW))
    st.s_mul_i32(s(sT), s(sT), mul)
    st.s_add_u32(s(sT), s(sT), base)

def dump(st, regs):
    st.waitvm(); st.waitlds()
    wg_slot(st, 32768, WS_DBG)
    for q, r in enumerate(regs):
        st.buffer_store_dwordx4(r, v(vL16), srd(S_WS), s(sT), mods='offen')
        st.s_add_u32(s(sT), s(sT), 1024)

def finish(st):
    if OPT['stamps']:
        st.waitvm()
        stamp(st, 'end')
        wg_slot(st, 256, WS_STAMP)
        st.v_lshlrev_b32(v(t1), 2, v(vLANE))
        st.buffer_store_dword(v(vSTAMP), v(t1), srd(S_WS), s(sT), mods='offen')
    if OPT.get('dbg'):
        st.s_load_dwordx2(s(sT + 2, 2), s(0, 2), 72)
        st.s_memrealtime(s(sTM, 2))
        st.s_waitcnt('lgkmcnt(0)')
        st.s_sub_u32(s(sTM), s(sTM), s(101))
        st.v_writelane_b32(v(vSTAMP), s(sTM), 63)
        st.v_readlane_b32(s(sT), v(vSTAMP), 0)
        st.s_nop(1)
        st.v_subrev_u32(v(t0), s(sT), v(vSTAMP))
        st.v_writelane_b32(v(t0), s(sTM), 0)
        sel = [0] + [STAMPS.index(n) for n in OPT_DBG]
        st.v_mov_b32(v(t1), OOB)
        for q, i in enumerate(sel): st.v_writelane_b32(v(t1), 4 * q, i)
        st.s_lshl_b32(s(sT), s(sR), 4); st.s_add_u32(s(sT), s(sT), s(sC)); st.s_lshl_b32(s(sT), s(sT), 2); st.s_add_u32(s(sT), s(sT), s(sW))
        st.s_mov_b32(s(S_PHI), s(sT + 2)); st.s_mov_b32(s(S_PHI + 1), s(sT + 3)); st.s_mov_b32(s(S_PHI + 2), 64); st.s_mov_b32(s(S_PHI + 3), 0x20000)
        st.s_cmp_lg_u32(s(sT), (5 * 16 + 3) * 4)
        st.s_cbranch_scc1('L_nodbg')
        st.buffer_store_dword(v(t0), v(t1), srd(S_PHI), 0, mods='offen')
        st.label('L_nodbg')
    st.s_or_b32(s(sT), s(sR), s(sC))
    st.s_cmp_lg_u32(s(sT), 0)
    st.s_cbranch_scc1('L_end')
    st.buffer_store_dwordx2(v(vNON, 2), v(vPOST), srd(S_WS), 0, mods='offen')
    st.label('L_end')
    st.s_endpgm()
    ins = finalize(st, True)
    hdr = open('sequential_preLN__linear_kernel_hedgehog__glu_gated_geglu__prompt.s.ref').read().split('\n')
    hdr = [l for l in hdr if l.startswith(';') and '@launch' not in l]
    txt = '\n'.join(hdr) + '\n' + HEADER.format(grid=256, lds=163840, k=KNAME) + render(ins) + FOOTER.format(k=KNAME, nv=512, ao=256)
    open(sys.argv[1], 'w').write(txt)
    open(sys.argv[1] + '.stamps', 'w').write('\n'.join(STAMPS))
    sys.exit(0)

def div_small(st, q, x, d):
    mul, sh = {10: (205, 11), 80: (205, 14), 5: (205, 10), 6: (171, 10), 12: (171, 11), 48: (171, 13), 3: (171, 9)}[d]
    st.v_mul_u32_u24(v(q), mul, v(x)); st.v_lshrrev_b32(v(q), sh, v(q))
for d_, lim in ((10, 512), (80, 320), (5, 256), (6, 192), (12, 512), (48, 192), (3, 8)):
    mul, sh = {10: (205, 11), 80: (205, 14), 5: (205, 10), 6: (171, 10), 12: (171, 11), 48: (171, 13), 3: (171, 9)}[d_]
    assert all((x * mul) >> sh == x // d_ for x in range(lim)), d_

vW1D = 18; vW1A = 21; vP3D = 26; vP4D = 28; vXW = 30; vXRd = 34; vKV2 = 38; vL16b = 17
vWP = 56; vWA = 58; vONE = 60; vAF = 64; vACC = 104; vGR = 164
vST = 180
vE = 184
vEA = 248
aPHI = 160; aCSQ = 240
sRHO = 3
def acc(X, col): return vACC + (X * 3 + col) * 4
def xf(ks, tt): return a(32 * (ks >> 2) + 16 * tt + 4 * (ks & 3), 4)

k.s_load_dwordx16(s(4, 16), s(0, 2), 0)
k.s_load_dwordx4(s(20, 4), s(0, 2), 64)
k.s_load_dwordx2(s(24, 2), s(0, 2), 80)
k.s_cmp_ge_u32(s(2), 256)
k.s_cbranch_scc1('L_end')
if OPT['stamps']: k.v_mov_b32(v(vSTAMP), 0)
if OPT['map'] == 0:
    k.s_bfe_u32(s(sT), s(2), 0x20001)
    k.s_lshl_b32(s(sT), s(sT), 2)
    k.s_bfe_u32(s(sT + 1), s(2), 0x20003)
    k.s_add_u32(s(sR), s(sT), s(sT + 1))
    k.s_and_b32(s(sT), s(2), 1)
    k.s_lshl_b32(s(sT), s(sT), 3)
    k.s_lshr_b32(s(sT + 2), s(2), 5)
    k.s_add_u32(s(sC), s(sT), s(sT + 2))
else:
    k.s_and_b32(s(sT), s(2), 7)
    k.s_lshl_b32(s(sT), s(sT), 1)
    k.s_bfe_u32(s(sT + 1), s(2), 0x10003)
    k.s_add_u32(s(sR), s(sT), s(sT + 1))
    k.s_lshr_b32(s(sC), s(2), 4)
    k.s_and_b32(s(sT + 2), s(sC), 7)
k.s_mov_b32(s(sCQ), s(sC))
k.s_lshr_b32(s(sM), s(sC), 1)
k.s_and_b32(s(sP), s(sC), 1)
if OPT['rot']:
    k.s_sub_u32(s(sT), s(sT + 2), 5)
    k.s_cselect_b32(s(sRHO), s(sT + 2), s(sT))
else:
    k.s_mov_b32(s(sRHO), 0)
def chunk(st, slot, dst, tmp):
    st.s_add_u32(s(dst), s(sRHO), slot)
    st.s_sub_u32(s(tmp), s(dst), 5)
    st.s_cselect_b32(s(dst), s(dst), s(tmp))
k.v_lshrrev_b32(v(t0), 6, v(vTID))
k.v_readfirstlane_b32(s(sW), v(t0))
k.v_and_b32(v(vLANE), 63, v(vTID))
k.v_lshlrev_b32(v(vL16), 4, v(vLANE))
k.v_lshrrev_b32(v(vG), 4, v(vLANE))
k.v_and_b32(v(vJ), 15, v(vLANE))
k.s_mul_i32(s(sT), s(sW), 192)
k.s_movk_i32(s(sT + 1), 3840); k.s_movk_i32(s(sT + 4), 1200)
for e in range(3):
    k.v_add_u32(v(t0), s(sT), v(vLANE))
    if e: k.v_add_u32(v(t0), 64 * e, v(t0))
    k.v_mul_u32_u24(v(t1), 4370, v(t0)); k.v_lshrrev_b32(v(t1), 16, v(t1))
    k.v_mul_u32_u24(v(t2), 15, v(t1)); k.v_sub_u32(v(t0), v(t0), v(t2))
    k.v_lshlrev_b32(v(t2), 4, v(t0))
    k.v_mad_u32_u24(v(vW1D + e), v(t1), s(sT + 1), v(t2))
    k.v_mul_u32_u24(v(t0), 52, v(t0)); k.v_lshrrev_b32(v(t0), 8, v(t0))
    k.v_mad_u32_u24(v(vW1D + e), v(t0), s(sT + 4), v(vW1D + e))
    if e: k.v_subrev_u32(v(vW1D + e), 1024 * e, v(vW1D + e))
assert all((x * 4370) >> 16 == x // 15 for x in range(768)) and all((x * 52) >> 8 == x // 5 for x in range(15))
k.v_xor_b32(v(t0), v(vJ), v(vG))
k.v_lshlrev_b32(v(t0), 4, v(t0))
k.v_mul_u32_u24(v(t1), 1280, v(vG))
for n in range(4):
    k.v_xor_b32(v(vXW + n), 64 * n, v(t0))
    k.v_add_u32(v(vXW + n), v(vXW + n), v(t1))
    if n: k.v_add_u32(v(vXW + n), n * 4096, v(vXW + n))
k.s_lshl_b32(s(sT), s(sR), 7)
k.s_lshl_b32(s(sT + 1), s(sW), 5)
k.s_add_u32(s(sT), s(sT), s(sT + 1))
k.s_mul_i32(s(sXO), s(sT), 1280)
k.s_lshl_b32(s(sXO + 1), s(sW), 13)
k.s_mul_i32(s(sA), s(sR), 40 * 3840)
k.s_mul_i32(s(sT), s(sC), 80)
k.s_add_u32(s(sA), s(sA), s(sT))
k.s_mul_i32(s(sB), s(sW), 3072)
k.s_add_u32('m0', s(sB), L_W1S)
k.s_mul_i32(s(sT + 2), s(sC), 1600)
k.s_waitcnt('lgkmcnt(0)')
def mksrd(st, b, p, size):
    st.s_mov_b32(s(b), s(p)); st.s_mov_b32(s(b + 1), s(p + 1)); st.s_mov_b32(s(b + 2), size); st.s_mov_b32(s(b + 3), 0x20000)
mksrd(k, S_W1, 6, 2457600)
if OPT.get('dbg'):
    k.s_memrealtime(s(sTM, 2)); k.s_waitcnt('lgkmcnt(0)'); k.s_mov_b32(s(101), s(sTM))
stamp(k, 'start')
for e in range(3): k.buffer_load_dwordx4(v(vW1D + e), srd(S_W1), s(sA), mods='offen offset:%d lds' % (e * 1024), tag='W1S')
if OPT['ipf']:
    k.raw('''s_getpc_b64 s[%d:%d]
L_pc:
    s_sub_u32 s%d, s%d, L_pc-%s
    s_subb_u32 s%d, s%d, 0''' % (sT + 4, sT + 5, sT + 4, sT + 4, KNAME, sT + 5, sT + 5))
    k.s_lshr_b32(s(sT + 6), s(2), 3)
    k.s_lshl_b32(s(sT + 6), s(sT + 6), 2); k.s_add_u32(s(sT + 6), s(sT + 6), s(sW)); k.s_mul_i32(s(sT + 6), s(sT + 6), OPT['ipf'] * 128)
    k.v_min_u32(v(t0), OPT['ipf'] - 1, v(vLANE))
    k.v_lshlrev_b32(v(t0), 7, v(t0))
    k.v_add_u32(v(t0), s(sT + 6), v(t0))
    k.v_min_u32(v(t0), 'L_end-%s' % KNAME, v(t0))
    k.v_mov_b32(v(vAF + 31), s(sT + 5))
    k.v_add_co_u32(v(vAF + 30), 'vcc', s(sT + 4), v(t0))
    k.v_addc_co_u32(v(vAF + 31), 'vcc', 0, v(vAF + 31), 'vcc')
    k.global_load_dword(v(vAF + 29), v(vAF + 30, 2), 'off')
mksrd(k, S_X, 4, 2621440)
XSLOT = [0, 1, 2, 3, 0]
KVPOS = [40960, 61440, 81920, 0, 20480]
def issue_x(st, sg):
    chunk(st, sg, sE, sF)
    st.s_lshl_b32(s(sE), s(sE), 8)
    st.s_add_u32(s(sE), s(sE), s(sXO))
    for tt in range(2):
        if tt: st.s_add_u32(s(sE), s(sE), 16 * 1280)
        st.s_add_u32('m0', s(sXO + 1), L_XST + XSLOT[sg] * 32768 + tt * 4096)
        for n in range(4):
            st.buffer_load_dwordx4(v(vXW + n), srd(S_X), s(sE), mods='offen offset:%d lds' % (n * 1024), tag='x%d' % sg)
k.s_load_dwordx2(s(sN, 2), s(24, 2), 0)
mksrd(k, S_PHI, 8, 25600)
k.v_lshlrev_b32(v(vWA), 3, v(vTID))
k.v_cmp_gt_u32('vcc', 200, v(vTID))
k.v_mov_b32(v(t1), OOB)
k.v_cndmask_b32(v(vWA), v(t1), v(vWA), 'vcc')
k.buffer_load_dwordx2(v(vWP, 2), v(vWA), srd(S_PHI), s(sT + 2), mods='offen')
mksrd(k, S_WS, 24, WS_SIZE)
mksrd(k, S_WG, 14, 1966080); mksrd(k, S_WU, 16, 1966080); mksrd(k, S_WD, 18, 1966080); mksrd(k, S_WO, 10, 819200); mksrd(k, S_OUT, 20, 2621440)
for i in range(4): k.v_mov_b32(v(vAF + i), 0)
k.v_lshlrev_b32(v(t0), 4, v(vTID))
k.v_add_u32(v(t0), L_PHI, v(t0))
for i in range(2): k.ds_write_b128(v(t0), v(vAF, 4), mods='offset:%d' % (i * 4096))
k.v_cmp_gt_u32('vcc', 128, v(vTID))
k.s_and_saveexec_b64(s(sT, 2), 'vcc')
k.ds_write_b128(v(t0), v(vAF, 4), mods='offset:8192')
k.s_mov_b64('exec', s(sT, 2))
k.v_bfe_u32(v(vR4), v(vLANE), 2, 2)
k.v_and_b32(v(vCC), 3, v(vLANE))
k.s_mov_b32(s(sONE_LO), 0x00003f80); k.s_mov_b32(s(sONE_HI), 0x3f800000); k.s_mov_b32(s(sONES), 0x3f803f80)
oE, oO, sE_, sO_, mE, bE, bO, pE, pO = [sV + i for i in range(9)]
k.s_lshl_b32(s(sT), s(sW), 3)
k.s_lshr_b32(s(oE), 0x20C87850, s(sT)); k.s_and_b32(s(oE), s(oE), 0xff)
k.s_lshr_b32(s(oO), 0x2800A070, s(sT)); k.s_and_b32(s(oO), s(oO), 0xff)
k.s_lshr_b32(s(sE_), 0x28080808, s(sT)); k.s_and_b32(s(sE_), s(sE_), 0xff)
k.s_lshr_b32(s(sO_), 0x08080828, s(sT)); k.s_and_b32(s(sO_), s(sO_), 0xff)
k.s_lshr_b32(s(mE), 0x01030303, s(sT)); k.s_and_b32(s(mE), s(mE), 0xff)
k.s_mul_i32(s(sT + 1), s(sC), 102400); k.s_add_u32(s(sT + 1), s(sT + 1), WS_W1K)
k.s_mul_i32(s(sT + 2), s(sC), 61440); k.s_add_u32(s(sT + 2), s(sT + 2), WS_W1Q - 5120)
k.s_lshl_b32(s(sT + 3), s(sW), 11)
k.s_movk_i32(s(sT + 4), 3072)
k.s_cmp_lt_u32(s(sW), 3)
k.s_cselect_b32(s(bE), s(sT + 1), s(sT + 2)); k.s_cselect_b32(s(pE), 5120, s(sT + 4))
k.s_cmp_lt_u32(s(sW), 2)
k.s_cselect_b32(s(bO), s(sT + 1), s(sT + 2)); k.s_cselect_b32(s(pO), 5120, s(sT + 4))
k.s_add_u32(s(bE), s(bE), s(sT + 3)); k.s_add_u32(s(bO), s(bO), s(sT + 3)); k.s_add_u32(s(bO), s(bO), 1024)
y0, y1, y2 = vAF + 4, vAF + 5, vAF + 6
k.v_and_b32(v(y0), s(mE), v(vCC)); k.v_mul_u32_u24(v(y0), s(sE_), v(y0)); k.v_add_u32(v(y0), s(oE), v(y0))
k.v_mul_u32_u24(v(y1), s(sO_), v(vCC)); k.v_add_u32(v(y1), s(oO), v(y1))
k.v_lshl_add_u32(v(t0), v(vG), 3, v(vR4)); k.v_mul_u32_u24(v(t0), 240, v(t0)); k.v_add_u32(v(t0), L_W1S, v(t0))
k.v_add_u32(v(vW1A), v(t0), v(y0)); k.v_add_u32(v(vW1A + 1), v(t0), v(y1))
k.v_and_b32(v(t1), 1, v(vG))
k.v_cmp_eq_u32('vcc', 1, v(t1))
k.v_mul_u32_u24(v(t0), 240, v(vR4)); k.v_add_u32(v(t0), L_W1S + 32 * 240, v(t0))
k.v_cndmask_b32(v(y0), v(y0), v(y1), 'vcc')
k.v_add_u32(v(vW1A + 2), v(t0), v(y0))
vW1O = 40
k.s_mul_i32(s(sT), s(sR), 5)
k.v_add_u32(v(t0), s(sT), v(vG))
k.v_lshrrev_b32(v(t2), 2, v(t0)); k.v_and_b32(v(t0), 3, v(t0)); k.v_lshlrev_b32(v(t0), 8, v(t0)); k.v_lshl_add_u32(v(t0), v(vJ), 4, v(t0))
k.v_mad_u32_u24(v(vW1O), v(t2), s(pE), v(t0)); k.v_mad_u32_u24(v(vW1O + 1), v(t2), s(pO), v(t0))
k.s_add_u32(s(sT), s(sT), 4); k.s_lshr_b32(s(sT + 1), s(sT), 2); k.s_and_b32(s(sT), s(sT), 3); k.s_lshl_b32(s(sT), s(sT), 8)
k.s_mul_i32(s(sT + 2), s(sT + 1), s(pE)); k.s_add_u32(s(sT + 2), s(sT + 2), s(bE)); k.s_add_u32(s(sT + 2), s(sT + 2), s(sT))
k.s_mul_i32(s(sT + 3), s(sT + 1), s(pO)); k.s_add_u32(s(sT + 3), s(sT + 3), s(bO)); k.s_add_u32(s(sT + 3), s(sT + 3), s(sT))
k.v_mov_b32(v(t0), s(sT + 2)); k.v_mov_b32(v(t2), s(sT + 3))
k.v_cndmask_b32(v(t0), v(t0), v(t2), 'vcc')
k.v_lshl_add_u32(v(t0), v(vJ), 4, v(t0))
k.v_mov_b32(v(t2), OOB)
k.v_cmp_gt_u32('vcc', 2, v(vG))
k.v_cndmask_b32(v(vW1O + 2), v(t2), v(t0), 'vcc')
k.v_lshrrev_b32(v(t0), 1, v(vG)); k.v_lshlrev_b32(v(t0), 10, v(t0)); k.v_lshl_add_u32(v(t0), v(vJ), 4, v(t0))
k.v_cmp_eq_u32('vcc', 0, v(t1))
k.v_cndmask_b32(v(vW1O + 3), v(t2), v(t0), 'vcc')
k.s_lshl_b32(s(sD), s(sC), 13); k.s_lshl_b32(s(sT), s(sW), 11); k.s_add_u32(s(sD), s(sD), s(sT))
k.s_lshr_b32(s(sT), s(sR), 2); k.s_lshl_b32(s(sT), s(sT), 8); k.s_add_u32(s(sD), s(sD), s(sT))
k.s_and_b32(s(sT), s(sR), 3); k.s_lshl_b32(s(sT), s(sT), 2); k.s_add_u32(s(sD), s(sD), s(sT)); k.s_add_u32(s(sD), s(sD), WS_CS)
x0, x1 = vAF + 4, vAF + 5
div_small(k, t0, vTID, 5)
k.v_mul_u32_u24(v(t1), 5, v(t0)); k.v_sub_u32(v(t1), v(vTID), v(t1))
k.v_lshlrev_b32(v(vWA), 11, v(t1))
k.v_cmp_lt_u32('vcc', 19, v(t0))
k.v_cndmask_b32(v(t1), 0, 1, 'vcc')
k.v_mul_u32_u24(v(t2), 20, v(t1)); k.v_sub_u32(v(t0), v(t0), v(t2))
k.v_lshl_add_u32(v(vWA), v(t1), 6, v(vWA))
k.v_lshrrev_b32(v(x0), 2, v(t0)); k.v_lshlrev_b32(v(x0), 8, v(x0))
k.v_and_b32(v(x1), 3, v(t0)); k.v_lshl_add_u32(v(x0), v(x1), 1, v(x0))
k.v_mul_u32_u24(v(t2), 1032, v(t1)); k.v_add_u32(v(x0), v(x0), v(t2))
k.v_lshlrev_b32(v(x1), 1, v(x1)); k.v_lshl_add_u32(v(x1), v(t1), 8, v(x1)); k.v_add_u32(v(x1), 8, v(x1))
k.v_cmp_lt_u32('vcc', 15, v(t0))
k.v_cndmask_b32(v(x0), v(x0), v(x1), 'vcc')
k.v_add_u32(v(vWA), v(vWA), v(x0))
k.v_add_u32(v(vWA), L_PHI, v(vWA))

k.v_cmp_ne_u32('vcc', 0, v(vTID))
k.v_mov_b32(v(t1), OOB)
k.v_cndmask_b32(v(vPOST), 0, v(t1), 'vcc')
def wphi_scatter(st, d):
    st.v_cmp_gt_u32('vcc', 200, v(vTID))
    st.s_and_saveexec_b64(s(sT, 2), 'vcc')
    st.ds_write_b16(v(vWA), v(d))
    st.ds_write_b16_d16_hi(v(vWA), v(d), mods='offset:16')
    st.ds_write_b16(v(vWA), v(d + 1), mods='offset:32')
    st.ds_write_b16_d16_hi(v(vWA), v(d + 1), mods='offset:48')
    st.s_mov_b64('exec', s(sT, 2))
def wphi_read(st):
    st.v_add_u32(v(t0), L_PHI, v(vL16))
    st.v_xor_b32(v(t1), 128, v(t0))
    for p in range(2):
        for i in range(10):
            st.ds_read_b128(a(aPHI + (p * 10 + i) * 4, 4), v(t0 + p), mods='offset:%d' % (i * 1024))
def prep_offsets(st):
    for e in range(2):
        st.s_lshl_b32(s(sT), s(sW), 7)
        st.v_add_u32(v(t0), s(sT), v(vLANE))
        if e: st.v_add_u32(v(t0), 64, v(t0))
        div_small(st, t1, t0, 12)
        st.v_mul_u32_u24(v(t2), 12, v(t1)); st.v_sub_u32(v(t2), v(t0), v(t2))
        st.v_mul_u32_u24(v(vP3D + e), 3072, v(t1))
        st.v_lshl_add_u32(v(vP3D + e), v(t2), 4, v(vP3D + e))
        div_small(st, t1, t0, 10)
        st.v_mul_u32_u24(v(t2), 10, v(t1)); st.v_sub_u32(v(t2), v(t0), v(t2))
        st.v_mul_u32_u24(v(vP4D + e), 1280, v(t1))
        st.v_lshl_add_u32(v(vP4D + e), v(t2), 4, v(vP4D + e))
def issue_prep(st, i, es=(0, 1)):
    a0, a1, a2 = sE, sF, sCc
    st.s_lshl_b32(s(a2), s(sW), 11)
    if i < 2:
        st.s_mul_i32(s(a0), s(sR), 40 * 3072); st.s_mul_i32(s(a1), s(sC), 192)
    else:
        if i == 2: st.s_mul_i32(s(a0), s(sR), 40 * 1280)
        else: st.s_lshl_b32(s(a0), s(sR), 1); st.s_add_u32(s(a0), s(a0), s(sP)); st.s_mul_i32(s(a0), s(a0), 48 * 1280)
        st.s_mul_i32(s(a1), s(sM), 160)
    st.s_add_u32(s(a0), s(a0), s(a1))
    S_, L_, vo = [(S_WG, L_PG, vP3D), (S_WU, L_PU, vP3D), (S_WO, L_P2, vP4D), (S_WD, L_P4, vP4D)][i]
    for e in es:
        st.s_add_u32('m0', s(a2), L_ + e * 1024)
        st.buffer_load_dwordx4(v(vo + e), srd(S_), s(a0), mods='offen lds', tag='prep%d' % i)
def gram(st, sg):
    for tt in range(2):
        for q in range(4):
            ks = 4 * sg + q
            mfma(st, v(vGR + 4 * tt, 4), xf(ks, tt), xf(ks, tt), ks == 0)
            mfma(st, v(vGR + 8 + 4 * tt, 4), v(vONE, 4), xf(ks, tt), ks == 0)
def ln_stats(st):
    for tt in range(2):
        q_, m_, u_ = vE, vE + 1, vE + 2
        G = vGR + 4 * tt
        st.v_cmp_eq_u32('vcc', 1, v(vCC)); st.v_mul_f32(v(m_), s(sINV640), v(vGR + 8 + 4 * tt)); st.v_cndmask_b32(v(q_), v(G), v(G + 1), 'vcc')
        st.v_cmp_eq_u32('vcc', 2, v(vCC)); st.v_sub_f32(v(vST + 2 * tt), 0, v(m_)); st.v_cndmask_b32(v(q_), v(q_), v(G + 2), 'vcc')
        st.v_cmp_eq_u32('vcc', 3, v(vCC)); st.v_cndmask_b32(v(q_), v(q_), v(G + 3), 'vcc')
        st.v_cmp_eq_u32('vcc', v(vR4), v(vG)); st.v_cndmask_b32(v(q_), 0, v(q_), 'vcc')
        allreduce_groups(st, q_, u_, 'v_add_f32')
        st.v_mul_f32(v(q_), s(sINV640), v(q_))
        st.v_fma_f32(v(q_), '-' + v(m_), v(m_), v(q_))
        st.v_max_f32(v(q_), 0, v(q_))
        st.v_add_f32(v(q_), s(sEPS), v(q_))
        st.v_rsq_f32(v(vST + 2 * tt + 1), v(q_))

vVA, vK1A, vFA, vKA, vKB, vPS = vEA, vEA + 1, vEA + 2, vEA + 3, vEA + 4, vEA + 6
def epi_addrs(st):
    b0, b1, b2, b3, b4, b5 = sT + 2, sT + 3, sT + 4, sT + 5, sT + 6, sT + 7
    st.s_mul_i32(s(b0), s(sW), 9216)
    st.s_add_u32(s(b0), s(b0), L_FV)
    st.v_mul_u32_u24(v(t0), 288, v(vJ))
    st.v_add_u32(v(t0), s(b0), v(t0))
    st.v_lshl_add_u32(v(vVA), v(vG), 3, v(t0))
    st.v_and_b32(v(t1), 1, v(vG)); st.v_mul_u32_u24(v(t1), 48, v(t1))
    st.v_lshrrev_b32(v(t2), 1, v(vG)); st.v_lshlrev_b32(v(t2), 3, v(t2))
    st.v_sub_u32(v(t1), v(t1), v(t2))
    st.v_add_u32(v(vK1A), v(t0), v(t1))
    st.v_lshrrev_b32(v(t1), 1, v(vG)); st.v_mul_u32_u24(v(t1), 16 * 288, v(t1))
    st.v_and_b32(v(t2), 1, v(vG)); st.v_mul_u32_u24(v(t2), 80, v(t2))
    st.v_add3_u32(v(vFA), v(t0), v(t1), v(t2))
    st.s_lshr_b32(s(b0), s(sW), 1)
    st.s_and_b32(s(b1), s(sW), 1)
    st.v_lshl_add_u32(v(t0), v(vG), 2, v(vR4))
    st.v_mul_u32_u24(v(t0), 288, v(t0))
    st.s_mul_i32(s(b2), s(b0), 80); st.s_add_u32(s(b2), s(b2), L_FV)
    st.v_lshl_add_u32(v(vKA), v(vCC), 3, v(t0))
    st.v_add_u32(v(vKA), s(b2), v(vKA))
    st.s_mul_i32(s(b2), s(b0), 48); st.s_lshl_b32(s(b3), s(b1), 5)
    st.s_add_u32(s(b2), s(b2), s(b3)); st.s_add_u32(s(b2), s(b2), L_FV + 160)
    st.s_mul_i32(s(b3), s(b1), -2); st.s_add_u32(s(b3), s(b3), 3)
    st.v_min_u32(v(t1), s(b3), v(vCC))
    st.v_lshl_add_u32(v(vKB), v(t1), 3, v(t0))
    st.v_add_u32(v(vKB), s(b2), v(vKB))
    st.s_mul_i32(s(b2), s(b1), -176); st.s_add_u32(s(b2), s(b2), 256)
    st.s_mul_i32(s(b3), s(b1), -11); st.s_add_u32(s(b3), s(b3), 16)
    st.s_mul_i32(s(b4), s(b1), 1280)
    st.s_mul_i32(s(b5), s(b0), 1792)
    st.s_add_u32(s(b4), s(b4), s(b5))
    st.v_mul_u32_u24(v(t0), s(b2), v(vG))
    st.v_lshlrev_b32(v(t1), 4, v(vJ))
    st.v_add3_u32(v(vPS), v(t0), v(t1), s(b4))
    st.s_lshl_b32(s(b2), s(b2), 2); st.s_add_u32(s(b4), s(b4), s(b2))
    st.v_lshl_add_u32(v(t0), v(vG), 3, v(t1))
    st.v_add_u32(v(vPS + 1), s(b4), v(t0))
    st.v_mov_b32(v(t2), OOB)
    st.v_cmp_gt_u32('vcc', s(b3), v(vJ))
    st.v_cndmask_b32(v(vPS), v(t2), v(vPS), 'vcc')
    st.v_cndmask_b32(v(vPS + 1), v(t2), v(vPS + 1), 'vcc')
    st.v_cmp_gt_u32('vcc', 2, v(vG))
    st.v_cndmask_b32(v(vPS + 1), v(t2), v(vPS + 1), 'vcc')

vPD = 124
PA = list(range(vE + 36, vE + 50))
def prep_addrs3(pr):
    pr.v_and_b32(v(t0), 1, v(vCC)); pr.v_lshlrev_b32(v(t0), 13, v(t0))
    pr.v_lshrrev_b32(v(t1), 1, v(vCC)); pr.v_lshl_add_u32(v(t0), v(t1), 3, v(t0))
    pr.s_mul_i32(s(sT), s(sW), 48); pr.s_add_u32(s(sT), s(sT), L_PG)
    pr.v_add_u32(v(t0), s(sT), v(t0))
    pr.v_lshrrev_b32(v(t1), 1, v(vG)); pr.v_mul_u32_u24(v(t1), 20, v(t1))
    pr.v_and_b32(v(t2), 1, v(vG)); pr.v_lshl_add_u32(v(t1), v(t2), 3, v(t1))
    pr.v_add_u32(v(t1), v(t1), v(vR4))
    pr.v_mul_u32_u24(v(t1), 192, v(t1))
    pr.v_add_u32(v(PA[0]), v(t0), v(t1))
    pr.v_mul_u32_u24(v(t1), 192, v(vR4))
    pr.v_min_u32(v(t2), 2, v(vG))
    pr.v_lshl_add_u32(v(t1), v(t2), 4, v(t1))
    pr.v_add_u32(v(PA[1]), v(t0), v(t1))
    pr.v_lshrrev_b32(v(t0), 1, v(vR4)); pr.v_lshlrev_b32(v(t0), 3, v(t0))
    pr.v_lshrrev_b32(v(t1), 1, v(vCC)); pr.v_lshl_add_u32(v(t0), v(t1), 2, v(t0))
    pr.v_and_b32(v(t1), 1, v(vR4)); pr.v_lshl_add_u32(v(t0), v(t1), 1, v(t0))
    pr.v_and_b32(v(t1), 1, v(vCC)); pr.v_add_u32(v(t0), v(t0), v(t1))
    pr.v_lshlrev_b32(v(t0), 4, v(t0))
    pr.v_lshl_add_u32(v(PA[2]), v(vG), 8, v(t0))
    pr.v_mul_u32_u24(v(t1), 20480, v(vG))
    pr.v_add_u32(v(t1), v(t1), v(t0))
    pr.v_mov_b32(v(t2), OOB)
    pr.v_cmp_gt_u32('vcc', 3, v(vG))
    pr.v_cndmask_b32(v(PA[3]), v(t2), v(t1), 'vcc')
def piece_addrs(pr, which, e, base):
    y0, y1, y2, y3 = PA[base], PA[base + 1], PA[base + 2], PA[13]
    if which == 4:
        pr.s_lshl_b32(s(sT), s(sW), 3); pr.s_add_u32(s(sT), s(sT), 4 * e); lim = 30
    else:
        pr.s_lshl_b32(s(sT), s(sW), 2); pr.s_lshl_b32(s(sT + 1), s(sP), 4); pr.s_add_u32(s(sT), s(sT), s(sT + 1)); lim = 25
    pr.v_add_u32(v(t0), s(sT), v(vG))
    pr.v_cmp_gt_u32('vcc', lim, v(t0))
    pr.v_min_u32(v(t0), lim - 1, v(t0))
    div_small(pr, t1, t0, 5)
    pr.v_mul_u32_u24(v(t2), 5, v(t1)); pr.v_sub_u32(v(t2), v(t0), v(t2))
    pr.v_mul_u32_u24(v(y2), 40, v(vCC)); pr.v_lshl_add_u32(v(y2), v(t2), 3, v(y2))
    if which == 4:
        div_small(pr, y0, t1, 3)
        pr.v_mul_u32_u24(v(y1), 3, v(y0)); pr.v_sub_u32(v(y1), v(t1), v(y1))
        pr.v_mul_u32_u24(v(y0), 24, v(y0))
        pr.v_and_b32(v(y3), 1, v(vR4)); pr.v_add_u32(v(y0), v(y0), v(y3))
        pr.v_lshrrev_b32(v(y3), 1, v(vR4))
        pr.v_lshl_add_u32(v(y0), v(y1), 1, v(y0))
        pr.v_mul_u32_u24(v(y1), 6, v(y1)); pr.v_subrev_u32(v(y1), 10, v(y1))
        pr.v_mul_i32_i24(v(y1), v(y1), v(y3))
        pr.v_add3_u32(v(y1), v(y1), v(y0), 16)
        pr.v_lshl_add_u32(v(y0), v(y3), 3, v(y0))
        L_ = L_P4
    else:
        pr.v_lshrrev_b32(v(y0), 1, v(t1)); pr.v_mul_u32_u24(v(y0), 20, v(y0))
        pr.v_and_b32(v(y1), 1, v(t1)); pr.v_lshl_add_u32(v(y0), v(y1), 3, v(y0))
        pr.v_cmp_eq_u32(s(sT + 2, 2), 4, v(t1))
        pr.v_cndmask_b32(v(y0), v(y0), 16, s(sT + 2, 2))
        pr.v_cndmask_b32(v(y1), 4, 20, s(sT + 2, 2))
        pr.v_add_u32(v(y0), v(y0), v(vR4))
        pr.v_add_u32(v(y1), v(y1), v(y0))
        L_ = L_P2
    pr.v_add_u32(v(y2), L_, v(y2))
    pr.s_movk_i32(s(sT + 4), 160)
    pr.v_mad_u32_u24(v(y0), v(y0), s(sT + 4), v(y2))
    pr.v_mad_u32_u24(v(y1), v(y1), s(sT + 4), v(y2))
    if which == 4:
        pr.s_lshl_b32(s(sT), s(sR), 1); pr.s_add_u32(s(sT), s(sT), s(sP)); pr.s_mul_i32(s(sT), s(sT), 6)
    else:
        pr.s_mul_i32(s(sT), s(sR), 5)
    pr.v_add_u32(v(t1), s(sT), v(t1))
    pr.v_lshrrev_b32(v(y2), 2, v(t1)); pr.v_mul_u32_u24(v(y2), 5120, v(y2))
    pr.v_and_b32(v(t1), 3, v(t1)); pr.v_lshl_add_u32(v(y2), v(t1), 8, v(y2))
    pr.v_lshl_add_u32(v(y2), v(t2), 10, v(y2))
    pr.v_lshl_add_u32(v(y2), v(vJ), 4, v(y2))
    pr.v_mov_b32(v(t0), OOB)
    pr.v_cndmask_b32(v(y2), v(t0), v(y2), 'vcc')
def prep_reads(pr, part, D):
    if part == 0:
        for t in range(3):
            for i in range(2): pr.ds_read_b64_tr_b16(v(D + 4 * t + 2 * i, 2), v(PA[0]), mods='offset:%d' % (768 * i + 16 * t))
        for i in range(2): pr.ds_read_b64_tr_b16(v(D + 12 + 2 * i, 2), v(PA[1]), mods='offset:%d' % (16 * 192 + 3840 * i))
    elif part == 2:
        for i in range(2): pr.ds_read_b64_tr_b16(v(D + 2 * i, 2), v(PA[10 + i]))
    else:
        for p in range(2):
            for i in range(2): pr.ds_read_b64_tr_b16(v(D + 4 * p + 2 * i, 2), v(PA[4 + 3 * p + i]))
def prep_stores(pr, part, D):
    b0, b1 = sE, sF
    if part == 0:
        pr.s_mul_i32(s(b0), s(sC), 245760); pr.s_mul_i32(s(b1), s(sW), 61440); pr.s_add_u32(s(b0), s(b0), s(b1))
        pr.s_mul_i32(s(b1), s(sR), 1280); pr.s_add_u32(s(b0), s(b0), s(b1)); pr.s_add_u32(s(b0), s(b0), WS_W3)
        pr.buffer_store_dwordx4(v(D + 12, 4), v(PA[3]), srd(S_WS), s(b0), mods='offen offset:1024 sc1')
        for t in range(3):
            if t: pr.s_add_u32(s(b0), s(b0), 20480)
            pr.buffer_store_dwordx4(v(D + 4 * t, 4), v(PA[2]), srd(S_WS), s(b0), mods='offen sc1')
    elif part == 2:
        pr.s_mul_i32(s(b1), s(sM), 102400); pr.s_add_u32(s(b1), s(b1), WS_W2)
        pr.buffer_store_dwordx4(v(D, 4), v(PA[12]), srd(S_WS), s(b1), mods='offen sc1', tag='prepstW2')
    else:
        pr.s_mul_i32(s(b1), s(sM), 245760); pr.s_add_u32(s(b1), s(b1), WS_W4)
        for p in range(2): pr.buffer_store_dwordx4(v(D + 4 * p, 4), v(PA[6 + 3 * p]), srd(S_WS), s(b1), mods='offen sc1', tag='prepst2')


def flag_issue(st, dst, voff, ssoff):
    st.buffer_load_dwordx2(v(dst, 2), v(voff), srd(S_WS), s(ssoff), mods='offen sc1')
def flag_check(st, dst, voff, ssoff):
    q = npoll[0]; npoll[0] += 1
    t = '''v_cmp_ne_u64 vcc, s[{n0}:{n1}], v[{t}:{t1}]
    s_cbranch_vccz L_pd{n}
    s_mov_b32 s{c}, {lim}
L_pl{n}:
    buffer_load_dwordx2 v[{t}:{t1}], v{vo}, s[{ws}:{ws3}], s{so} offen sc1
    s_waitcnt vmcnt(0)
    v_cmp_ne_u64 vcc, s[{n0}:{n1}], v[{t}:{t1}]
    s_cbranch_vccz L_pd{n}
    s_sub_u32 s{c}, s{c}, 1
    s_cbranch_scc0 L_pl{n}
L_pd{n}:'''.format(n=q, c=sCNT, lim=OPT['spin'], t=dst, t1=dst + 1, vo=voff, ws=S_WS, ws3=S_WS + 3, so=ssoff, n0=sN, n1=sN + 1)
    st.raw(t, uses=[v(voff), v(dst, 2)], defs=[v(dst, 2)])
def x_read(st, sg):
    for tt in range(2):
        for n in range(4):
            off = XSLOT[sg] * 32768 + tt * 4096
            ad = vXRd + n
            if off > 65535: st.v_add_u32(v(vE + n), 65536, v(ad)); ad = vE + n; off -= 65536
            st.ds_read_b128(a(32 * sg + 16 * tt + 4 * n, 4), v(ad), mods='offset:%d' % off, tag='xr%d' % sg)
prep_offsets(k)
stamp(k, 'pre')
if OPT['x0e']: issue_x(k, 0)
k.waitvm('W1S')
k.waitlds()
k.s_add_u32(s(sN), s(sN), 1); k.s_addc_u32(s(sN + 1), s(sN + 1), 0)
k.v_mov_b32(v(vNON), s(sN)); k.v_mov_b32(v(vNON + 1), s(sN + 1))
k.s_barrier()
stamp(k, 'w1s')
vW1V = vAF + 8
for p in range(3):
    for i in range(2): k.ds_read_b64_tr_b16(v(vW1V + 4 * p + 2 * i, 2), v(vW1A + p), mods='offset:%d' % (960 * i))
k.buffer_store_dwordx4(v(vW1V, 4), v(vW1O), srd(S_WS), s(bE), mods='offen sc1')
k.buffer_store_dwordx4(v(vW1V + 4, 4), v(vW1O + 1), srd(S_WS), s(bO), mods='offen sc1')
k.buffer_store_dwordx4(v(vW1V + 8, 4), v(vW1O + 2), srd(S_WS), 0, mods='offen sc1')
cE, cO, c2 = vAF + 20, vAF + 21, vAF + 22
for p, d in enumerate((cE, cO, c2)): k.v_mov_b32(v(d), 0)
for i in range(4):
    for p, d in enumerate((cE, cO, c2)): k.v_dot2_f32_bf16(v(d), v(vW1V + 4 * p + i), s(sONES), v(d))
k.v_cmp_eq_u32('vcc', 0, v(vG)); k.v_cmp_eq_u32(s(sT, 2), 1, v(vG))
k.v_cndmask_b32(v(t0), 0, v(c2), 'vcc'); k.v_cndmask_b32(v(t1), 0, v(c2), s(sT, 2))
k.v_add_f32(v(cE), v(cE), v(t0)); k.v_add_f32(v(cO), v(cO), v(t1))
k.v_permlane32_swap_b32(v(cE), v(cO))
k.v_add_f32(v(cE), v(cE), v(cO))
k.v_mov_b32(v(cO), v(cE))
k.v_permlane16_swap_b32(v(cE), v(cO))
k.v_add_f32(v(cE), v(cE), v(cO))
k.v_cvt_pk_bf16_f32(v(cO), v(cE), v(cE))
k.v_lshlrev_b32(v(cO), 16, v(cO))
k.v_sub_f32(v(cO), v(cE), v(cO))
k.v_cvt_pk_bf16_f32(v(cO), v(cE), v(cO))
k.buffer_store_dword(v(cO), v(vW1O + 3), srd(S_WS), s(sD), mods='offen sc1', tag='w1st')
stamp(k, 'w1st')
wphi_scatter(k, vWP)
u = Stream()
for i in range(4): u.v_mov_b32(v(vONE + i), 0x3f803f80)
u.v_lshlrev_b32(v(vFR), 7, v(vJ))
u.v_lshlrev_b32(v(vFC), 11, v(vJ))
u.v_mul_u32_u24(v(vXRO), 1280, v(vJ))
u.v_mul_u32_u24(v(t0), 40, v(vG))
u.v_add_u32(v(vXRO), v(vXRO), v(t0))
u.s_add_u32(s(sT), s(sXO + 1), L_XST)
u.v_xor_b32(v(t0), v(vJ), v(vG))
u.v_lshlrev_b32(v(t0), 4, v(t0))
u.v_lshl_add_u32(v(t2), v(vJ), 8, v(t0))
for n in range(4):
    u.v_xor_b32(v(vXRd + n), 64 * n, v(t2))
    u.v_add_u32(v(vXRd + n), s(sT), v(vXRd + n))
u.v_add_u32(v(vL16b), 4096, v(vL16))
u.v_add_u32(v(vKV2), 61440, v(vL16))
u.v_add_u32(v(vKV2 + 1), L_Q, v(vL16))
sL2E, sINV640, sEPS, sK1, sK3, sEPS6 = sK, sK + 1, sK + 2, sK + 3, sK + 4, sK + 5
sL2Ep = 10
u.s_mov_b32(s(sL2E), f32(LOG2E)); u.s_mov_b32(s(sINV640), f32(1.0 / 640)); u.s_mov_b32(s(sEPS), f32(1e-5))
GK1 = -2.0 * math.sqrt(2.0 / math.pi) * LOG2E
u.s_mov_b32(s(sK1), f32(GK1)); u.s_mov_b32(s(sK3), f32(GK1 * 0.044715)); u.s_mov_b32(s(sEPS6), f32(1e-6))
u.s_mov_b32(s(sL2Ep), f32(LOG2E)); u.s_mov_b32(s(sL2Ep + 1), f32(-LOG2E))
f_ = Stream(); issue_x(f_, 1 if OPT['x0e'] else 0)
k.add(weave(u, [(f_, 0, None, 'vmem')], anchor='any'))
stamp(k, 'w1w')
k.waitvm('w1st')
stamp(k, 'w1d')
k.waitlds()
k.s_barrier()
post(k, F_W1)
stamp(k, 'w1post')

u = Stream()
prep_addrs3(u); piece_addrs(u, 2, 0, 10); piece_addrs(u, 4, 0, 4); piece_addrs(u, 4, 1, 7); epi_addrs(u)
f_ = Stream()
if OPT['w2e'] == 1: issue_prep(f_, 2)
issue_x(f_, 1); issue_x(f_, 2)
k.add(weave(u, [(f_, 0, None, 'vmem')], anchor='any'))
stamp(k, 'prepiss')
sKV, sKVt, sQs, sQt, sFW = sV, sV + 1, sV + 2, sV + 3, sV + 8
k.s_mul_i32(s(sB), s(sW), 5120); k.s_mul_i32(s(sA), s(sW), 3072)
k.s_mul_i32(s(sKV), s(sC), 102400); k.s_add_u32(s(sKV), s(sKV), s(sB)); k.s_add_u32(s(sKV), s(sKV), WS_W1K)
k.s_mul_i32(s(sQs), s(sC), 61440); k.s_add_u32(s(sQs), s(sQs), s(sA)); k.s_add_u32(s(sQs), s(sQs), WS_W1Q)
k.s_lshl_b32(s(sD), s(sC), 13); k.s_lshl_b32(s(sCc), s(sW), 11); k.s_add_u32(s(sD), s(sD), s(sCc)); k.s_add_u32(s(sD), s(sD), WS_CS)
k.s_lshl_b32(s(sFW), s(sC), 7); k.s_add_u32(s(sFW), s(sFW), WS_FLAGS + F_W1 * 32768)
vF0 = 18
def issue_kv(st, sg, lo=0, hi=5):
    if lo == 0:
        chunk(st, sg, sKVt, sT + 7)
        st.s_mul_i32(s(sKVt), s(sKVt), 20480); st.s_add_u32(s(sKVt), s(sKVt), s(sKV))
    for n in range(lo, hi):
        if n % 4 == 0: st.s_add_u32('m0', s(sB), KVPOS[sg] + n * 1024)
        st.buffer_load_dwordx4(v(vL16 if n < 4 else vL16b), srd(S_WS), s(sKVt), mods='offen offset:%d sc1 lds' % ((n & 3) * 1024), tag='W%d' % sg)
def issue_q(st, lo, hi):
    for ch in range(lo, hi):
        chunk(st, ch, sQt, sT + 7)
        st.s_mul_i32(s(sQt), s(sQt), 12288); st.s_add_u32(s(sQt), s(sQt), s(sQs))
        st.s_add_u32('m0', s(sA), L_Q + ch * 12288)
        for n in range(3):
            st.buffer_load_dwordx4(v(vL16), srd(S_WS), s(sQt), mods='offen offset:%d sc1 lds' % (n * 1024), tag='Q%d' % ch)
k.waitvm('x0')
x_read(k, 0)
for sg in range(5):
    f1 = Stream(); f2 = Stream(); f3 = Stream()
    if sg == 0: issue_x(f1, 3)
    if sg == 1: issue_x(f1, 4); flag_issue(f1, vF0, vFC, sFW)
    if sg < 4: f3.waitvm('x%d' % (sg + 1)); x_read(f3, sg + 1)
    if sg == 2: wphi_read(f2)
    if sg == OPT['w1ck']:
        f1.waitlds('xr2'); f1.s_barrier()
        stamp(f1, 'w1a'); flag_check(f1, vF0, vFC, sFW); stamp(f1, 'w1b'); issue_kv(f1, 0)
        f1.s_add_u32('m0', s(sCc), L_CSF)
        for n in range(2): f1.buffer_load_dwordx4(v(vL16), srd(S_WS), s(sD), mods='offen offset:%d sc1 lds' % (n * 1024), tag='CSF')
    if sg == OPT['w1ck'] + 1: issue_kv(f1, 1)
    m_ = Stream(); gram(m_, sg)
    k.add(pack(m_, [(f1, (OPT['ckat'] if sg == OPT['w1ck'] else 0), None, 'vmem'), (f3, 1, 10), (f2, 0, None)]))
k.waitvm('W0')
k.waitlds()
k.s_barrier()
stamp(k, 'xs4')
stamp(k, 'kvgo')

vF1, vF2, vFA1, vF3, vPLO, vT16, vKR = 18, 20, 22, 24, 30, 31, 32
sW2s, sW2l, sW2t, sW3, sW3t, sPL, sFP, sFK = sV + 4, sV + 5, sV + 6, sV + 7, sXO + 3, sXO + 4, sV + 9, sV + 10
def q_setup(st):
    st.v_bfe_u32(v(vFA1), v(vLANE), 4, 1)
    st.v_lshl_add_u32(v(vFA1), v(vFA1), 7, v(vFC))
    st.s_lshl_b32(s(sFP), s(sM), 8); st.s_add_u32(s(sFP), s(sFP), WS_FLAGS + F_PREP * 32768)
    st.s_lshl_b32(s(sFK), s(sCQ), 7); st.s_add_u32(s(sFK), s(sFK), WS_FLAGS + F_KV * 32768)
    st.v_and_b32(v(vKR), 1, v(vG)); st.v_mul_u32_u24(v(vKR), 1856, v(vKR))
    st.s_lshl_b32(s(sW2l), s(sW), 12)
    st.s_mul_i32(s(sW2s), s(sM), 102400); st.s_add_u32(s(sW2s), s(sW2s), WS_W2)
    st.v_lshl_add_u32(v(vKR), v(vCC), 4, v(vKR))
    st.s_mul_i32(s(sW3), s(sC), 245760); st.s_mul_i32(s(sW3t), s(sW), 61440); st.s_add_u32(s(sW3), s(sW3), s(sW3t))
    st.v_mov_b32(v(t1), L_ZERO - L_KVR)
    st.s_add_u32(s(sW3), s(sW3), WS_W3)
    st.v_cmp_eq_u32('vcc', v(vR4), v(vG))
    st.s_mul_i32(s(sPL), s(sCQ), 16 * 3584); st.s_add_u32(s(sPL), s(sPL), WS_PART)
    st.v_lshlrev_b32(v(vT16), 4, v(vTID))
    st.v_cndmask_b32(v(vKR), v(t1), v(vKR), 'vcc')
    st.v_mov_b32(v(t1), OOB)
    st.v_cmp_gt_u32('vcc', 224, v(vTID))
    st.v_add_u32(v(vKR), L_KVR, v(vKR))
    st.v_cndmask_b32(v(vPLO), v(t1), v(vT16), 'vcc')
    st.v_cmp_lt_u32('vcc', 111, v(vTID))
    st.v_add_u32(v(vT16), L_KVR, v(vT16))
    st.v_add_u32(v(t1), 64, v(vT16))
    st.v_cndmask_b32(v(vT16), v(vT16), v(t1), 'vcc')
W2ORD = list(range(8)) + list(range(16, 25)) + list(range(8, 16))
def issue_w2(st, lo, hi):
    last = None
    for i in W2ORD[lo:hi]:
        if (i >> 2) != last:
            last = i >> 2
            if i < 24: st.s_add_u32(s(sW2t), s(sW2l), last * 16384)
            else: st.s_lshl_b32(s(sW2t), s(sW), 10); st.s_add_u32(s(sW2t), s(sW2t), 98304)
            st.s_add_u32('m0', s(sW2t), L_W2)
            st.s_add_u32(s(sW2t), s(sW2t), s(sW2s))
        st.buffer_load_dwordx4(v(vL16), srd(S_WS), s(sW2t), mods='offen offset:%d sc1 lds' % ((i & 3) * 1024), tag='W2')
def issue_w3(st, lst):
    last = None
    for i in lst:
        if (i >> 2) != last:
            last = i >> 2; st.s_add_u32(s(sW3t), s(sW3), last * 4096)
        st.buffer_load_dwordx4(a(4 * i, 4), v(vL16), srd(S_WS), s(sW3t), mods='offen offset:%d sc1' % ((i & 3) * 1024))
def kv_reads(st, ks):
    for X in range(5):
        off = KVPOS[ks >> 2] + (ks & 3) * 5120 + X * 1024
        st.ds_read_b128(v(vAF + (ks & 1) * 20 + X * 4, 4), v(vL16 if off < 61440 else vKV2), mods='offset:%d' % (L_KV + (off if off < 61440 else off - 61440)))
kv_reads(k, 0)
for sg in range(5):
    m_ = Stream()
    for q in range(4):
        ks = 4 * sg + q
        mm = Stream()
        for X in range(5):
            A = v(vAF + (q & 1) * 20 + X * 4, 4)
            mfma(mm, v(acc(X, 0), 4), A, xf(ks, 0), ks == 0)
            mfma(mm, v(acc(X, 1), 4), A, xf(ks, 1), ks == 0)
        ff = Stream()
        if ks < 19: kv_reads(ff, ks + 1)
        mm = weave(mm, [(ff, 0, 10)])
        if q == 2 and sg < 4:
            mm.waitvm('W%d' % (sg + 1))
            if sg == 1: mm.waitvm('prepstW2')
            if sg >= 2: mm.waitlds()
            mm.s_barrier()
            if sg == 1: post(mm, F_PREP2)
        m_.add(mm)
    fills = []
    f1 = Stream()
    if sg == 0: issue_kv(f1, 2); issue_kv(f1, 3, 0, 2)
    if sg == 1: issue_kv(f1, 3, 2, 5); issue_kv(f1, 4)
    if sg == 2: issue_q(f1, 0, 3)
    if sg == 3: issue_q(f1, 3, 5); issue_prep(f1, 0)
    if sg == 4: issue_prep(f1, 1); issue_prep(f1, 3)
    fills.append((f1, 0, None, 'vmem'))
    if sg == 1:
        f4 = Stream()
        f4.v_add_u32(v(t0), L_CSF, v(vL16))
        for X in range(5): f4.ds_read_b128(v(vE + 4 + 4 * X, 4), v(t0), mods='offset:%d' % (X * 1024))
        for X in range(3): f4.ds_read_b128(a(aCSQ + 4 * X, 4), v(t0), mods='offset:%d' % ((5 + X) * 1024))
        fills.append((f4, 0, 28))
    if sg == 0:
        f5 = Stream(); prep_reads(f5, 2, vE + 24); fills.append((f5, 0, 4))
        f5 = Stream(); prep_stores(f5, 2, vE + 24); fills.append((f5, 12, 13, 'vmem'))
        f4 = Stream(); ln_stats(f4); fills.append((f4, 0, None))
    if sg == 2:
        f4 = Stream(); q_setup(f4); fills.append((f4, 0, None))
    if sg == 4:
        pass
    if sg == 3:
        f4 = Stream(); f4.s_add_u32(s(sD), s(sFP), (F_PREP2 - F_PREP) * 32768); flag_issue(f4, vF3, vFA1, sD); fills.append((f4, 24, 25, 'vmem'))
    if sg == 2:
        for X in range(5): mfma(m_, v(acc(X, 2), 4), v(vE + 4 + 4 * X, 4), v(vONE, 4), True)
    m_ = pack(m_, fills); print('kv stage', sg, 'est', m_.est)
    k.add(m_)
    if sg < 4: stamp(k, 'kv%d' % sg)
stamp(k, 'kvgemm')

def ln_pack(st, X, tt, dst, pk=True):
    A = acc(X, tt); C = acc(X, 2); S = v(vST + 2 * tt, 2)
    if pk:
        for h in range(2):
            st.v_pk_fma_f32(v(A + 2 * h, 2), v(C + 2 * h, 2), S, v(A + 2 * h, 2), mods='op_sel_hi:[1,0,1]')
        for h in range(2):
            st.v_pk_mul_f32(v(A + 2 * h, 2), v(A + 2 * h, 2), S, mods='op_sel:[0,1] op_sel_hi:[1,1]')
    else:
        for i in range(4): st.v_fmac_f32(v(A + i), v(C + i), v(vST + 2 * tt))
        for i in range(4): st.v_mul_f32(v(A + i), v(A + i), v(vST + 2 * tt + 1))
    for h in range(2):
        st.v_cvt_pk_bf16_f32(v(dst + h), v(A + 2 * h), v(A + 2 * h + 1))

vBK = vE + 4
vP = vE + 16
vEP = vACC
vMX = vE + 56
vPK = vAF
def feature_map(st):
    for tt in range(2):
        for ks in range(2):
            for ft in range(5):
                mfma(st, v(vP + 4 * ft, 4), a(aPHI + (tt * 10 + ft * 2 + ks) * 4, 4), v(vBK + 6 * tt + 2 * ks, 4), tt == 0 and ks == 0)
def softmax2(st, order):
    mx, mn, sp, sn = vMX, vMX + 1, vMX + 2, vMX + 4
    st.v_max3_f32(v(mx), v(vP), v(vP + 1), v(vP + 2))
    st.v_min3_f32(v(mn), v(vP), v(vP + 1), v(vP + 2))
    for i in range(3, 19, 2):
        st.v_max3_f32(v(mx), v(mx), v(vP + i), v(vP + i + 1))
        st.v_min3_f32(v(mn), v(mn), v(vP + i), v(vP + i + 1))
    st.v_max_f32(v(mx), v(mx), v(vP + 19))
    st.v_min_f32(v(mn), v(mn), v(vP + 19))
    st.v_mul_f32(v(mx), s(sL2Ep + 1), v(mx))
    st.v_mul_f32(v(mn), s(sL2Ep), v(mn))
    for i in range(0, 20, 2):
        st.v_pk_fma_f32(v(vEP + i, 2), v(vP + i, 2), s(sL2Ep, 2), v(mx, 2), mods='op_sel_hi:[1,0,0]')
        st.v_pk_fma_f32(v(vP + i, 2), v(vP + i, 2), s(sL2Ep, 2), v(mx, 2), mods='op_sel:[0,1,1] op_sel_hi:[1,1,1]')
    for i in range(20):
        st.v_exp_f32(v(vEP + i), v(vEP + i))
        st.v_exp_f32(v(vP + i), v(vP + i))
    st.v_pk_add_f32(v(sp, 2), v(vEP, 2), v(vEP + 2, 2))
    st.v_pk_add_f32(v(sn, 2), v(vP, 2), v(vP + 2, 2))
    for i in range(4, 20, 2):
        st.v_pk_add_f32(v(sp, 2), v(sp, 2), v(vEP + i, 2))
        st.v_pk_add_f32(v(sn, 2), v(sn, 2), v(vP + i, 2))
    st.v_add_f32(v(sp), v(sp), v(sp + 1))
    st.v_add_f32(v(sn), v(sn), v(sn + 1))
    st.v_rcp_f32(v(sp), v(sp))
    st.v_rcp_f32(v(sn), v(sn))
    for i in range(0, 20, 2):
        st.v_pk_mul_f32(v(vEP + i, 2), v(vEP + i, 2), v(sp, 2), mods='op_sel_hi:[1,0]')
        st.v_pk_mul_f32(v(vP + i, 2), v(vP + i, 2), v(sn, 2), mods='op_sel_hi:[1,0]')
    for i in range(10):
        st.v_cvt_pk_bf16_f32(v(vPK + order[i]), v(vEP + 2 * i), v(vEP + 2 * i + 1))
    for i in range(10):
        st.v_cvt_pk_bf16_f32(v(vPK + order[10 + i]), v(vP + 2 * i), v(vP + 2 * i + 1))

m_ = Stream()
for tt in range(2):
    for X in range(3): ln_pack(m_, X, tt, vBK + 6 * tt + 2 * X)
k.add(m_)
vVP = vAF + 20; vK1 = vAF + 30
m_ = Stream(); feature_map(m_)
f_ = Stream()
f_.v_cmp_lt_u32('vcc', 1, v(vG))
f_.v_mov_b32(v(t1), 0x3f80)
for tt in range(2):
    f_.v_cndmask_b32(v(vK1 + 2 * tt), v(t1), v(vBK + 6 * tt + 2), 'vcc')
    f_.v_cndmask_b32(v(vK1 + 2 * tt + 1), 0, v(vBK + 6 * tt + 3), 'vcc')
    f_.ds_write_b64(v(vK1A), v(vK1 + 2 * tt, 2), mods='offset:%d' % (200 + tt * 16 * 288))
for tt in range(2):
    for h in range(2):
        ln_pack(f_, 3 + h, tt, vVP + 4 * tt + 2 * h, pk=False)
        f_.ds_write_b64(v(vVA), v(vVP + 4 * tt + 2 * h, 2), mods='offset:%d' % (160 + 48 * h + tt * 16 * 288))
k.add(pack(m_, [(f_, 0, None)]))
m_ = Stream(); softmax2(m_, list(range(20)))
k.add(m_)
for i in range(5): k.ds_write_b128(v(vFA), v(vPK + 4 * i, 4), mods='offset:%d' % (16 * i))
if OPT['stop'] == 1:
    dump(k, [v(vBK, 4), v(vBK + 4, 4), v(vBK + 8, 4), v(vVP, 4), v(vVP + 4, 4), v(vST, 4)] + [v(vPK + 4 * i, 4) for i in range(5)])
    finish(k)
k.waitvm('Q4')
k.waitlds()
k.s_barrier()
stamp(k, 'phik')
vKVA = vACC; vKVB = vACC + 48; vKVD = vE + 4
for ks in range(4):
    off = 32 * ks * 288
    for i in range(2):
        k.ds_read_b64_tr_b16(v(vKVB + 4 * ks + 2 * i, 2), v(vKB), mods='offset:%d' % (off + 16 * i * 288))
    for ft in range(3):
        for i in range(2):
            k.ds_read_b64_tr_b16(v(vKVA + (ks * 3 + ft) * 4 + 2 * i, 2), v(vKA), mods='offset:%d' % (off + 16 * i * 288 + 32 * ft))
k.s_lshl_b32(s(sT), s(sC), 4); k.s_add_u32(s(sT), s(sT), s(sR)); k.s_mul_i32(s(sT), s(sT), 3584)
k.s_add_u32(s(sT), s(sT), WS_PART)
for ks in range(4):
    for ft in range(3):
        mfma(k, v(vKVD + 4 * ft, 4), v(vKVA + (ks * 3 + ft) * 4, 4), v(vKVB + 4 * ks, 4), ks == 0)
vKVP = vE + 16
for i in range(6): k.v_cvt_pk_bf16_f32(v(vKVP + i), v(vKVD + 2 * i), v(vKVD + 2 * i + 1))
k.buffer_store_dwordx4(v(vKVP, 4), v(vPS), srd(S_WS), s(sT), mods='offen sc1')
k.buffer_store_dwordx2(v(vKVP + 4, 2), v(vPS + 1), srd(S_WS), s(sT), mods='offen sc1', tag='part')
stamp(k, 'kvst')

def qbuf(b, X): return vAF + b * 12 + X * 4
def q_reads(st, ks):
    for X in range(3): st.ds_read_b128(v(qbuf(ks & 1, X), 4), v(vKV2 + 1), mods='offset:%d' % (ks * 3072 + X * 1024))
PLQ = [88 + 4 * i for i in range(4)] + [140 + 4 * i for i in range(10)] + [248, 252]
def issue_part(st):
    for r_ in range(16):
        if r_: st.s_add_u32(s(sPL), s(sPL), 3584)
        st.buffer_load_dwordx4(v(PLQ[r_], 4), v(vPLO), srd(S_WS), s(sPL), mods='offen sc1')
q_reads(k, 0)
m_ = Stream()
for X in range(3): mfma(m_, v(acc(X, 2), 4), a(aCSQ + 4 * X, 4), v(vONE, 4), True)
for ks in range(20):
    mm = Stream()
    for X in range(3):
        A = v(qbuf(ks & 1, X), 4)
        mfma(mm, v(acc(X, 0), 4), A, xf(ks, 0), ks == 0)
        mfma(mm, v(acc(X, 1), 4), A, xf(ks, 1), ks == 0)
    ff = Stream()
    if ks < 19: q_reads(ff, ks + 1)
    m_.add(weave(mm, [(ff, 0, 6)]))
QP = OPT['qpost']
assert QP >= 3 + 6 * 4
fp = Stream(); stamp(fp, 'q_a'); fp.waitvm('part'); stamp(fp, 'q_b'); fp.s_barrier(); post(fp, F_KV)
NW3 = 0
W3ORD = [t * 20 + 4 * b_ + j_ for b_ in range(5) for t in range(3) for j_ in range(4)]
QP2 = OPT['qpost2']
fr = Stream(); prep_reads(fr, 0, vE + 4); prep_reads(fr, 1, vE + 24)
fs = Stream(); prep_stores(fs, 0, vE + 4); prep_stores(fs, 1, vE + 24)
fc = Stream()
vCA, vCD = vE + 32, vE + 52
for t in range(4):
    fc.v_cmp_eq_u32('vcc', t if t < 3 else v(vG), v(vR4))
    for i in range(4): fc.v_cndmask_b32(v(vCA + i), 0, v(vONE), 'vcc')
    mfma(fc, v(vCD, 4), v(vCA, 4), v(vE + 4 + 4 * t, 4), t == 0)
fc.v_lshlrev_b32(v(t0), 8, v(vG)); fc.v_mul_u32_u24(v(t0), 3, v(t0)); fc.v_add_u32(v(t0), v(t0), v(PA[2]))
fc.v_mov_b32(v(t1), OOB)
fc.v_cmp_gt_u32('vcc', 3, v(vG))
fc.s_mul_i32(s(sE), s(sC), 12288); fc.s_mul_i32(s(sF), s(sW), 3072); fc.s_add_u32(s(sE), s(sE), s(sF))
fc.v_cndmask_b32(v(t0), v(t1), v(t0), 'vcc')
fc.s_lshr_b32(s(sF), s(sR), 2); fc.s_lshl_b32(s(sF), s(sF), 8); fc.s_add_u32(s(sE), s(sE), s(sF))
fc.v_cvt_pk_bf16_f32(v(vCD + 1), v(vCD), v(vCD))
fc.s_and_b32(s(sF), s(sR), 3); fc.s_lshl_b32(s(sF), s(sF), 2); fc.s_add_u32(s(sE), s(sE), s(sF))
fc.v_lshlrev_b32(v(vCD + 1), 16, v(vCD + 1))
fc.v_sub_f32(v(vCD + 1), v(vCD), v(vCD + 1))
fc.v_cvt_pk_bf16_f32(v(vCD + 1), v(vCD), v(vCD + 1))
fc.s_add_u32(s(sE), s(sE), WS_CS3)
fc.buffer_store_dword(v(vCD + 1), v(t0), srd(S_WS), s(sE), mods='offen sc1', tag='prepst3')
fq = Stream(); stamp(fq, 'q_c'); fq.waitvm('prepst3'); stamp(fq, 'q_d'); fq.s_barrier(); post(fq, F_PREP)
f2 = Stream(); flag_check(f2, vF3, vFA1, sD); issue_w2(f2, 0, OPT['w2q'])
f4 = Stream(); flag_issue(f4, vF2, vFC, sFK)
m_ = pack(m_, [(fp, QP, QP + 1, 'vmem'), (fr, QP + 1, QP + 10), (fs, QP + 11, QP + 11 + OPT['psl'], 'vmem'), (fc, QP + 12 + OPT['psl'], QP + 34 + OPT['psl']), (f2, OPT['w2at'], 122, 'vmem'),
               ])
f4b = f4
print('q gemm est', m_.est)
k.add(m_)
stamp(k, 'qgemm')
m_ = Stream()
for tt in range(2):
    for X in range(3): ln_pack(m_, X, tt, vBK + 6 * tt + 2 * X)
feature_map(m_)
order = [0] * 20
for s_ in range(4):
    order[2 * s_] = 4 * s_; order[2 * s_ + 1] = 4 * s_ + 1; order[8 + 2 * s_] = 4 * s_ + 2; order[9 + 2 * s_] = 4 * s_ + 3
for i in range(16, 20): order[i] = i
softmax2(m_, order)
f5 = Stream(); stamp(f5, 'q_e'); flag_check(f5, vF2, vFC, sFK); stamp(f5, 'q_f'); issue_part(f5)
N2 = min(25, OPT['w2q'] + OPT['w2s'])
f6 = Stream(); issue_w2(f6, OPT['w2q'], N2)
k.add(weave(m_, [(f5, OPT['qpl'], OPT['qpl'] + OPT['qpn'], 'vmem'), (f6, OPT['qpl'] + OPT['qpn'] + 2, None, 'vmem'), (f4b, OPT['qpl'] - 60, OPT['qpl'] - 59, 'vmem'), (fq, QP2, QP2 + 1, 'vmem')], anchor='any'))
stamp(k, 'phiq')
if OPT['stop'] == 2:
    k.waitvm(); k.s_barrier()
    dump(k, [v(vPK + 4 * i, 4) for i in range(5)])
    finish(k)

vSUM = vE
for i in range(4): k.v_mov_b32(v(vSUM + 12 + i), 0)
k.ds_write_b128(v(vT16), v(vSUM + 12, 4), mods='offset:%d' % (L_ZERO - L_KVR))
m_ = Stream()
for r_ in range(16):
    for i in range(4):
        if r_ == 0:
            m_.v_lshlrev_b32(v(vSUM + 2 * i), 16, v(PLQ[0] + i))
            m_.v_and_b32(v(vSUM + 2 * i + 1), 0xffff0000, v(PLQ[0] + i))
        else:
            m_.v_dot2_f32_bf16(v(vSUM + 2 * i), v(PLQ[r_] + i), s(sONE_LO), v(vSUM + 2 * i))
            m_.v_dot2_f32_bf16(v(vSUM + 2 * i + 1), v(PLQ[r_] + i), s(sONE_HI), v(vSUM + 2 * i + 1))
N3 = min(25, N2 + OPT['w2u'])
f_ = Stream(); issue_w2(f_, N2, N3); flag_issue(f_, vF1, vFA1, sFP); N2 = N3
k.add(weave(m_, [(f_, OPT['w2uat'], None, 'vmem')], anchor='any'))
vOA = 104
for i in range(4): k.v_cvt_pk_bf16_f32(v(vSUM + 8 + i), v(vSUM + 2 * i), v(vSUM + 2 * i + 1))
k.ds_write_b128(v(vT16), v(vSUM + 8, 4))
k.v_lshrrev_b32(v(t0), 1, v(vG)); k.v_mul_u32_u24(v(t0), 20480, v(t0))
k.v_lshl_add_u32(v(t0), v(vJ), 4, v(t0))
k.v_and_b32(v(t1), 1, v(vG))
k.v_lshl_add_u32(v(t2), v(t1), 3, v(t0))
k.v_lshl_add_u32(v(t0), v(t1), 9, v(t0))
k.s_mul_i32(s(sT), s(sR), 163840); k.s_mul_i32(s(sT + 1), s(sW), 40960); k.s_add_u32(s(sT), s(sT), s(sT + 1))
k.s_mul_i32(s(sT + 1), s(sCQ), 1280); k.s_add_u32(s(sT), s(sT), s(sT + 1)); k.s_add_u32(s(sT), s(sT), WS_O)
k.waitlds()
k.s_barrier()
stamp(k, 'kvsum')
vOD = 224
vOP = 84
TORD = (5, 0, 1, 2, 3, 4)
def oread(st, n):
    s_, t = n // 6, TORD[n % 6]
    off = 256 * s_ + 64 * t if t < 4 else 1280 + 64 * (t - 4) + 80 * s_
    st.ds_read_b128(v(vOA + n * 4, 4), v(vKR), mods='offset:%d' % off)
for n in range(8): oread(k, n)
m_ = Stream()
for n in range(30):
    mfma(m_, v(vOD + 4 * TORD[n % 6], 4), v(vOA + n * 4, 4), v(vPK + 4 * (n // 6), 4), n < 6)
    if n + 8 < 30: oread(m_, n + 8)
N3 = min(25, N2 + OPT['w2o'])
f_ = Stream(); issue_w2(f_, N2, N3); N2 = N3
if OPT['w3o']: flag_check(f_, vF1, vFA1, sFP); issue_w3(f_, W3ORD[:OPT['w3o']]); NW3 = OPT['w3o']
k.add(pack(m_, [(f_, 0, 26, 'vmem')]))
k.v_add_f32(v(vOD + 20), s(sEPS6), v(vOD + 20))
k.v_rcp_f32(v(vOD + 20), v(vOD + 20))
for i in range(10): k.v_pk_mul_f32(v(vOD + 2 * i, 2), v(vOD + 2 * i, 2), v(vOD + 20, 2), mods='op_sel_hi:[1,0]')
for i in range(10): k.v_cvt_pk_bf16_f32(v(vOP + i), v(vOD + 2 * i), v(vOD + 2 * i + 1))
k.buffer_store_dwordx4(v(vOP, 4), v(t0), srd(S_WS), s(sT), mods='offen sc1')
k.buffer_store_dwordx4(v(vOP + 4, 4), v(t0), srd(S_WS), s(sT), mods='offen offset:256 sc1')
k.buffer_store_dwordx2(v(vOP + 8, 2), v(t2), srd(S_WS), s(sT), mods='offen offset:1024 sc1', tag='ost')
stamp(k, 'ost')
vH = 18
vXRES = 252 - 10 * 0 - 0 if False else 28
vOF = 40
vA2 = 120
vD2 = 152
vA2P = 172
k.s_lshl_b32(s(sE), s(sW), 1); k.s_add_u32(s(sE), s(sE), s(sP))
k.s_lshl_b32(s(sT), s(sR), 3); k.s_add_u32(s(sF), s(sT), s(sE))
k.s_mul_i32(s(sXR), s(sF), 16 * 1280)
k.s_mul_i32(s(sT), s(sM), 160); k.s_add_u32(s(sXR), s(sXR), s(sT))
vXD = 38 - 3
for e in range(3):
    k.v_add_u32(v(t0), 64 * e, v(vLANE)); div_small(k, t1, t0, 10)
    k.v_mul_u32_u24(v(t2), 10, v(t1)); k.v_sub_u32(v(t2), v(t0), v(t2))
    k.v_mul_u32_u24(v(vXD + e), 1280, v(t1)); k.v_lshl_add_u32(v(vXD + e), v(t2), 4, v(vXD + e))
    if e: k.v_subrev_u32(v(vXD + e), 1024 * e, v(vXD + e))
k.waitvm('ost')
k.s_barrier()
post(k, F_O)
issue_w2(k, N2, 25)
k.s_mul_i32(s(sT + 2), s(sW), 3072)
k.s_add_u32('m0', s(sT + 2), L_XR)
for e in range(3): k.buffer_load_dwordx4(v(vXD + e), srd(S_X), s(sXR), mods='offen offset:%d lds' % (e * 1024), tag='xr')
k.v_mul_u32_u24(v(vXD), 160, v(vJ)); k.v_mul_u32_u24(v(t0), 40, v(vG)); k.v_add3_u32(v(vXD), v(vXD), v(t0), s(sT + 2))
k.v_add_u32(v(vXD), L_XR, v(vXD))
stamp(k, 'opost')
if OPT['stop'] == 3: finish(k)

W3A = min(60, NW3 + OPT['w3a']); W3B = min(60, W3A + OPT['w3b'])
k.v_add_u32(v(t0), L_W2, v(vL16))
k.v_add_u32(v(t1), L_W2 + 61440, v(vL16))
k.v_mov_b32(v(38), v(vXD))
A2S = [vA2P + 4 * i for i in range(21)] + [vA2 + 4 * i for i in range(8)]
def a2read(st, i):
    st.ds_read_b128(v(A2S[i % 29], 4), v(t0 if i < 60 else t1), mods='offset:%d' % ((i if i < 60 else i - 60) * 1024))
if not OPT['w3o']: flag_check(k, vF1, vFA1, sFP)
k.s_mul_i32(s(sV), s(sF), 20480); k.s_add_u32(s(sV), s(sV), WS_O)
if OPT['asy']:
    k.s_lshl_b32(s(sV + 1), s(sR), 11); k.s_add_u32(s(sV + 1), s(sV + 1), WS_FLAGS + F_O * 32768)
    issue_w3(k, W3ORD[NW3:NW3 + 4])
    k.waitvm('xr'); k.s_barrier()
    issue_w3(k, W3ORD[NW3 + 4:W3A])
    flag_issue(k, vD2, vFR, sV + 1)
    issue_w3(k, W3ORD[W3A:W3A + OPT['w3a2']]); W3A += OPT['w3a2']; W3B = min(60, W3A + OPT['w3b'])
    for i in range(29): a2read(k, i)
    for q in range(5): k.ds_read_b64(v(vXRES + 2 * q, 2), v(38), mods='offset:%d' % (8 * q))
    flag_check(k, vD2, vFR, sV + 1)
else:
    issue_w3(k, W3ORD[NW3:W3A])
    k.waitvm('xr')
    poll_row(k, F_O, vD2)
    k.s_barrier()
stamp(k, 'oflag')
def issue_o(st, lo, hi):
    for i in range(lo, hi):
        if i % 4 == 0 and i: st.s_add_u32(s(sV), s(sV), 4096)
        st.buffer_load_dwordx4(v(vOF + 4 * i, 4), v(vL16), srd(S_WS), s(sV), mods='offen offset:%d sc1' % ((i % 4) * 1024))
issue_o(k, 0, 10)
if not OPT['asy']:
    for i in range(29): a2read(k, i)
    for q in range(5): k.ds_read_b64(v(vXRES + 2 * q, 2), v(38), mods='offset:%d' % (8 * q))
m_ = Stream()
nxt = 29
for i in range(100):
    ks, t = divmod(i, 5)
    mfma(m_, v(vD2 + 4 * t, 4), v(A2S[i % 29], 4), v(vOF + 4 * ks, 4), ks == 0)
    if nxt < 100 and i % 4 != 3 - 0 and nxt - 29 <= i: a2read(m_, nxt); nxt += 1
    elif nxt < 100 and nxt - i <= 10: a2read(m_, nxt); nxt += 1
assert nxt == 100
f1 = Stream(); issue_o(f1, 10, 20)
f2 = Stream(); issue_w3(f2, W3ORD[W3A:W3B])
m_ = pack(m_, [(f1, 0, 40, 'vmem'), (f2, 44, 100, 'vmem')]); print('gemm2 est', m_.est)
k.add(m_)
stamp(k, 'gemm2')
k.v_lshrrev_b32(v(t0), 1, v(vG)); k.v_mul_u32_u24(v(t0), 1280, v(t0))
k.v_lshl_add_u32(v(t0), v(vJ), 4, v(t0))
k.v_and_b32(v(t1), 1, v(vG))
k.v_lshl_add_u32(v(t2), v(t1), 3, v(t0))
k.v_lshl_add_u32(v(t0), v(t1), 9, v(t0))
k.s_mul_i32(s(sT), s(sF), 20480); k.s_mul_i32(s(sT + 1), s(sM), 2560); k.s_add_u32(s(sT), s(sT), s(sT + 1))
k.s_add_u32(s(sT), s(sT), WS_H)
for i in range(10):
    k.v_dot2_f32_bf16(v(vD2 + 2 * i), v(vXRES + i), s(sONE_LO), v(vD2 + 2 * i))
    k.v_dot2_f32_bf16(v(vD2 + 2 * i + 1), v(vXRES + i), s(sONE_HI), v(vD2 + 2 * i + 1))
for i in range(10): k.v_cvt_pk_bf16_f32(v(vH + i), v(vD2 + 2 * i), v(vD2 + 2 * i + 1))
k.buffer_store_dwordx4(v(vH, 4), v(t0), srd(S_WS), s(sT), mods='offen sc1')
k.buffer_store_dwordx4(v(vH + 4, 4), v(t0), srd(S_WS), s(sT), mods='offen offset:256 sc1')
k.buffer_store_dwordx2(v(vH + 8, 2), v(t2), srd(S_WS), s(sT), mods='offen offset:1024 sc1')
sS, sQ, sY = vD2, vD2 + 1, vD2 + 2
k.v_mov_b32(v(sS), 0); k.v_mov_b32(v(sQ), 0)
for i in range(10):
    k.v_dot2_f32_bf16(v(sS), v(vH + i), s(sONES), v(sS))
    k.v_dot2_f32_bf16(v(sQ), v(vH + i), v(vH + i), v(sQ))
k.v_lshrrev_b32(v(t0), 1, v(vG)); k.v_lshlrev_b32(v(t0), 2, v(t0))
k.v_lshl_add_u32(v(t0), v(vJ), 3, v(t0))
k.v_mov_b32(v(t2), OOB)
k.v_cmp_eq_u32('vcc', 0, v(t1))
k.v_permlane32_swap_b32(v(sS), v(sQ))
k.v_add_f32(v(sS), v(sS), v(sQ))
k.v_cndmask_b32(v(t0), v(t2), v(t0), 'vcc')
k.v_mov_b32(v(sY), v(sS))
k.s_lshl_b32(s(sT), s(sF), 10); k.s_lshl_b32(s(sT + 1), s(sM), 7); k.s_add_u32(s(sT), s(sT), s(sT + 1))
k.s_add_u32(s(sT), s(sT), WS_HST)
k.v_permlane16_swap_b32(v(sS), v(sY))
k.v_add_f32(v(sS), v(sS), v(sY))
k.buffer_store_dword(v(sS), v(t0), srd(S_WS), s(sT), mods='offen sc1', tag='hst')
stamp(k, 'hst')

vL8 = 111
vCS = 28
vD3 = 40
vB3 = 64
vS3 = 88
vG3 = 92
vFL = 104
vRA = 108
vW4 = 112
sW4, sW4t, sW4l, sHs, sHl, sHt, sHS, sHH, sHHt, sHL, sHLt, sFH, sFHt = sB, sV, sXO, sXO + 1, sXO + 2, sV + 1, sV + 2, sD, sV + 4, sXO + 5, sV + 5, sXO + 4, sV + 6
k.s_mul_i32(s(sW4), s(sM), 245760); k.s_mul_i32(s(sT + 1), s(sW), 61440); k.s_add_u32(s(sW4), s(sW4), s(sT + 1))
k.s_add_u32(s(sW4), s(sW4), WS_W4)
k.s_mul_i32(s(sW4l), s(sW), 24576)
def issue_w4(st, lo, hi):
    for i in range(lo, hi):
        if i % 4 == 0 or i == lo: st.s_add_u32(s(sW4t), s(sW4), (i & ~3) * 1024)
        if i < 36:
            st.buffer_load_dwordx4(v(vW4 + 4 * i, 4), v(vL16), srd(S_WS), s(sW4t), mods='offen offset:%d sc1' % ((i & 3) * 1024))
        else:
            if i % 4 == 0 or i == lo: st.s_add_u32('m0', s(sW4l), L_W4 + ((i - 36) & ~3) * 1024)
            st.buffer_load_dwordx4(v(vL16), srd(S_WS), s(sW4t), mods='offen offset:%d sc1 lds' % ((i & 3) * 1024), tag='W4')
W3C = min(60, W3B + OPT['w3c']); W3E = 60 - OPT['w3t']
k.s_mul_i32(s(sT + 2), s(sC), 12288); k.s_mul_i32(s(sT + 3), s(sW), 3072); k.s_add_u32(s(sT + 2), s(sT + 2), s(sT + 3))
k.s_add_u32(s(sT + 2), s(sT + 2), WS_CS3)
issue_w3(k, W3ORD[W3B:W3C])
for i in range(4): k.v_mov_b32(v(vB3 + i), 0x3f803f80)
k.waitvm('hst'); k.waitlds(); k.s_barrier(); post(k, F_H)
W4A = OPT['w4a']
stamp(k, 'hpost')
for t in range(3): k.buffer_load_dwordx4(v(vD3 + 4 * t, 4), v(vL16), srd(S_WS), s(sT + 2), mods='offen offset:%d sc1' % (t * 1024))
W3D = max(W3C, W3E - OPT['w3c2']) if OPT['asy'] else W3E
issue_w3(k, W3ORD[W3C:W3D])
for t in range(3): mfma(k, v(vCS + 4 * t, 4), v(vD3 + 4 * t, 4), v(vB3, 4), True)
stamp(k, 'colsum')
if OPT['stop'] == 4: finish(k)
k.s_mul_i32(s(sHl), s(sW), 5120)
k.s_mul_i32(s(sHs), s(sR), 163840); k.s_add_u32(s(sHs), s(sHs), s(sHl))
k.s_add_u32(s(sHs), s(sHs), WS_H)
k.v_lshlrev_b32(v(t0), 9, v(vG))
k.v_lshl_add_u32(v(t0), v(vJ), 3, v(t0))
k.s_lshl_b32(s(sHS), s(sR), 13); k.s_lshl_b32(s(sT + 1), s(sW), 11); k.s_add_u32(s(sHS), s(sHS), s(sT + 1))
k.s_add_u32(s(sHS), s(sHS), WS_HST)
k.v_add_u32(v(vRA), L_RING, v(vL16))
k.v_lshrrev_b32(v(vL8), 1, v(vL16))
k.v_lshlrev_b32(v(vRA + 1), 4, v(vJ)); k.v_add_u32(v(vRA + 1), L_ST, v(vRA + 1))
k.v_mov_b32(v(t2), OOB)
k.v_cmp_gt_u32('vcc', 3, v(vG))
k.v_cndmask_b32(v(vRA + 2), v(t2), v(vL16), 'vcc')
k.s_mul_i32(s(sHH), s(sR), 8 * 49152); k.s_mul_i32(s(sT), s(sC), 3072); k.s_add_u32(s(sHH), s(sHH), s(sT))
k.s_mul_i32(s(sT), s(sW), 768); k.s_add_u32(s(sHH), s(sHH), s(sT)); k.s_add_u32(s(sHH), s(sHH), WS_HH)
k.s_lshl_b32(s(sT), s(sR), 3); k.s_add_u32(s(sT), s(sT), s(sP)); k.s_mul_i32(s(sHL), s(sT), 49152)
k.s_mul_i32(s(sT), s(sW), 12288); k.s_add_u32(s(sHL), s(sHL), s(sT)); k.s_add_u32(s(sHL), s(sHL), WS_HH)
k.s_lshl_b32(s(sFH), s(sR), 11); k.s_add_u32(s(sFH), s(sFH), WS_FLAGS + F_HH * 32768)
if OPT['asy']:
    k.s_lshl_b32(s(sV + 6), s(sR), 11); k.s_add_u32(s(sV + 6), s(sV + 6), WS_FLAGS + F_H * 32768)
    flag_issue(k, vG3, vFR, sV + 6)
    issue_w3(k, W3ORD[W3D:W3E])
    issue_w4(k, 0, W4A)
    flag_check(k, vG3, vFR, sV + 6)
else:
    issue_w4(k, 0, W4A)
    poll_row(k, F_H, vG3)
    k.s_barrier()
stamp(k, 'hflag')
def issue_h(st, T):
    for i in range(5):
        if i % 4 == 0: st.s_add_u32('m0', s(sHl), L_RING + (T % 3) * 20480 + (i & 4) * 1024)
        if i % 4 == 0: st.s_add_u32(s(sHt), s(sHs), T * 20480 + i * 1024)
        st.buffer_load_dwordx4(v(vL16), srd(S_WS), s(sHt), mods='offen offset:%d sc1 lds' % ((i & 3) * 1024), tag='h%d' % T)
issue_h(k, 0)
issue_w3(k, W3ORD[W3E:W3E + 4])
issue_h(k, 1)
for i in range(4): k.buffer_load_dwordx2(v(vG3 + 2 * i, 2), v(t0), srd(S_WS), s(sHS), mods='offen offset:%d sc1' % (128 * i))
def stats3(st):
    st.v_add_f32(v(vG3), v(vG3), v(vG3 + 2)); st.v_add_f32(v(vG3 + 1), v(vG3 + 1), v(vG3 + 3))
    st.v_add_f32(v(vG3 + 4), v(vG3 + 4), v(vG3 + 6)); st.v_add_f32(v(vG3 + 5), v(vG3 + 5), v(vG3 + 7))
    st.v_add_f32(v(vG3), v(vG3), v(vG3 + 4)); st.v_add_f32(v(vG3 + 1), v(vG3 + 1), v(vG3 + 5))
    st.v_mov_b32(v(vG3 + 2), v(vG3)); st.v_mov_b32(v(vG3 + 3), v(vG3 + 1))
    st.v_lshrrev_b32(v(t0), 1, v(vG)); st.v_lshlrev_b32(v(t0), 8, v(t0))
    for i in range(2): st.v_permlane16_swap_b32(v(vG3 + i), v(vG3 + 2 + i))
    for i in range(2): st.v_add_f32(v(vG3 + i), v(vG3 + i), v(vG3 + 2 + i))
    st.v_mul_f32(v(vG3), s(sINV640), v(vG3))
    st.v_mul_f32(v(vG3 + 1), s(sINV640), v(vG3 + 1))
    st.v_fma_f32(v(vG3 + 1), '-' + v(vG3), v(vG3), v(vG3 + 1))
    st.v_max_f32(v(vG3 + 1), 0, v(vG3 + 1))
    st.v_add_f32(v(vG3 + 7), s(sEPS), v(vG3 + 1))
    st.v_sub_f32(v(vG3 + 4), 0, v(vG3))
    st.v_rsq_f32(v(vG3 + 2), v(vG3 + 7))
    st.v_lshl_add_u32(v(t0), v(vJ), 4, v(t0))
    st.v_mul_f32(v(vG3 + 5), s(sK1), v(vG3 + 2))
    st.v_mul_f32(v(vG3 + 3), v(vG3 + 2), v(vG3 + 2))
    st.v_mul_f32(v(vG3 + 6), s(sK3), v(vG3 + 2))
    st.v_mul_f32(v(vG3 + 6), v(vG3 + 6), v(vG3 + 3))
    st.s_lshl_b32(s(sT), s(sW), 9); st.s_add_u32(s(sT), s(sT), L_ST)
    st.v_add_u32(v(t0), s(sT), v(t0))
    st.ds_write_b128(v(t0), v(vG3 + 4, 4))
def epi3(st, T):
    D = vD3 + 12 * (T & 1)
    nm, c1, c3, vr = v(vS3), v(vS3 + 1), v(vS3 + 2), v(vS3 + 3)
    for t in range(3):
        for e in range(2):
            g_, u_ = D + 4 * t + e, D + 4 * t + 2 + e
            x = vG3 + 4 + e
            st.v_fmac_f32(v(g_), nm, v(vCS + 4 * t + e))
            st.v_fmac_f32(v(u_), nm, v(vCS + 4 * t + 2 + e))
            st.v_mul_f32(v(x), v(g_), v(g_))
            st.v_mul_f32(v(u_), v(g_), v(u_))
            st.v_fma_f32(v(x), v(x), c3, c1)
            st.v_mul_f32(v(x), v(x), v(g_))
            st.v_exp_f32(v(x), v(x))
        for e in range(2):
            x = vG3 + 4 + e
            st.v_fma_f32(v(x), v(x), vr, vr)
            st.v_rcp_f32(v(x), v(x))
        for e in range(2):
            u_ = D + 4 * t + 2 + e
            st.v_mul_f32(v(u_), v(u_), v(vG3 + 4 + e))
        st.v_cvt_pk_bf16_f32(v(vG3 + t), v(D + 4 * t + 2), v(D + 4 * t + 3))
        st.v_mov_b32(v(vG3 + 6 + t), v(vG3 + t))
    ta, tb, tc = vG3 + 6, vG3 + 7, vG3 + 8
    st.v_permlane16_swap_b32(v(ta), v(tb))
    st.v_permlane16_swap_b32(v(tc), v(vG3 + 3))
    st.s_add_u32(s(sHHt), s(sHH), T * 49152)
    st.v_permlane32_swap_b32(v(tb), v(vG3 + 3))
    st.buffer_store_dwordx4(v(vG3, 4), v(vRA + 2), srd(S_WS), s(sHHt), mods='offen sc1', tag='hh%d' % T)
def hhbuf(i, q): return a(80 * (i % 3) + 4 * q, 4)
def issue_hh(st, i, lo=0, hi=12):
    for q in range(lo, hi):
        if q % 4 == 0 or q == lo: st.s_add_u32(s(sHLt), s(sHL), i * 2 * 49152 + (q & ~3) * 1024)
        st.buffer_load_dwordx4(hhbuf(i, q), v(vL16), srd(S_WS), s(sHLt), mods='offen offset:%d sc1' % ((q & 3) * 1024))
def hflag_issue(st, n):
    st.s_add_u32(s(sFHt), s(sFH), n * 32768); flag_issue(st, vFL + 2 * (n & 1), vFR, sFHt)
def hflag_check(st, n):
    st.s_add_u32(s(sFHt), s(sFH), n * 32768); flag_check(st, vFL + 2 * (n & 1), vFR, sFHt)

W4L = OPT['w4l']
rem = W4L - W4A
w4sched = [W4A, W4A + OPT['w40']] + [W4A + OPT['w40'] + ((rem - OPT['w40']) * i) // 6 for i in range(1, 7)] + [W4L]
NB = 6
def b3read(st, T, ks):
    n = T * 20 + ks
    st.ds_read_b128(v(vB3 + 4 * (n % NB), 4), v(vRA), mods='offset:%d' % ((T % 3) * 20480 + ks * 1024), tag='b%d' % n)
k.waitvm('h0')
k.s_barrier()
for ks in range(4): b3read(k, 0, ks)
for T in range(8):
    stamp(k, 'g3t%d' % T)
    m_ = Stream()
    if T > 0: m_.ds_read_b128(v(vS3, 4), v(vRA + 1), mods='offset:%d' % ((T - 1) * 256))
    for ks in range(20):
        n = T * 20 + ks
        if ks == 14 and T < 7:
            m_.waitvm('h%d' % (T + 1))
            if T == 5: m_.waitvm('hh3')
            if T == 0: m_.waitlds()
            m_.s_barrier()
            if T == 5: post(m_, F_HH)
        for t in range(3):
            mfma(m_, v(vD3 + 12 * (T & 1) + 4 * t, 4), a((t * 20 + ks) * 4, 4), v(vB3 + 4 * (n % NB), 4), ks == 0)
            if t == 0 and n + 4 < 160: b3read(m_, (n + 4) // 20, (n + 4) % 20)
            if t == 2 and ks % 2 == 1 and n + 2 < 160: m_.waitlds('b%d' % (n + 2))
        if ks == 8 and T == 7:
            m_.waitvm('hh5'); m_.s_barrier(); post(m_, F_HH + 1)
    fh = Stream()
    if T <= 5: issue_h(fh, T + 2)
    fv = Stream()
    if T == 0: issue_w3(fv, W3ORD[W3E + 4:60])
    issue_w4(fv, w4sched[T], w4sched[T + 1])
    fe = Stream()
    if T > 0: epi3(fe, T - 1)
    else: stats3(fe)
    fills = [(fv, 0, 40, 'vmem'), (fh, 43, 60, 'vmem'), (fe, 2 if T else 12, 56 if T else 40)]
    if T == 7:
        f1 = Stream(); hflag_issue(f1, 0); fills.append((f1, 0, 1, 'vmem'))
        f2 = Stream(); hflag_check(f2, 0); issue_hh(f2, 0, 0, 9); fills.append((f2, 28, 60, 'vmem'))
    m_ = pack(m_, fills); print('g3 tile', T, 'est', m_.est)
    k.add(m_)
stamp(k, 'g3end')
def w4a(i): return a(80 * ((i - 36) // 8) + 48 + 4 * ((i - 36) % 8), 4)
k.ds_read_b128(v(vS3, 4), v(vRA + 1), mods='offset:%d' % (7 * 256))
k.v_add_u32(v(t0), s(sW4l), v(vL16))
k.waitvm('W4')
if OPT['stop'] == 5:
    epi3(k, 7); k.waitvm('hh7'); k.waitlds(); k.s_barrier(); post(k, F_HH + 2); finish(k)

vD4 = [64, 40]
def w4frag(i): return v(vW4 + 4 * i, 4) if i < 36 else w4a(i)
vRW = 84; vRR = 85; vOW = 86; vOR = 87; vOS = 88
QS = W4L // 5
def seg4(st, i, lo, hi):
    for q in range(lo, hi):
        for t in range(5): mfma(st, v(vD4[i & 1] + 4 * t, 4), w4frag(q * 5 + t), hhbuf(i, q), q == 0)
def red_write(st, i):
    for t in range(10): st.ds_write_b64(v(vRW), v(vD4[i & 1] + 2 * t, 2), mods='offset:%d' % (L_RED + i * 20480 + t * 512))
def issue_w4r(st, lo, hi):
    for i in range(lo, hi):
        if i % 4 == 0 or i == lo: st.s_add_u32(s(sW4t), s(sW4), (i & ~3) * 1024)
        st.buffer_load_dwordx4(w4a(i), v(vL16), srd(S_WS), s(sW4t), mods='offen offset:%d sc1' % ((i & 3) * 1024))
m_ = Stream(); seg4(m_, 0, 0, QS); seg4(m_, 1, 0, QS); seg4(m_, 0, QS, 12); seg4(m_, 1, QS, 12)
fe = Stream(); epi3(fe, 7)
fw = Stream()
for n in range(36, W4L): fw.ds_read_b128(w4a(n), v(t0), mods='offset:%d' % (L_W4 + (n - 36) * 1024))
fw.s_mul_i32(s(sT + 2), s(sW), 5120)
fw.v_add_u32(v(vRW), s(sT + 2), v(vL8))
fw.s_mul_i32(s(sT + 2), s(sW), 20480)
fw.v_add_u32(v(vRR), s(sT + 2), v(vL8))
fv = Stream()
if QS <= 9:
    issue_hh(fv, 1, 0, QS); issue_w4r(fv, W4L, W4L + 5); hflag_issue(fv, 1); issue_hh(fv, 0, 9, 12); issue_w4r(fv, W4L + 5, 60); issue_hh(fv, 1, QS, 12)
else:
    issue_hh(fv, 0, 9, 12); issue_hh(fv, 1, 0, 6); hflag_issue(fv, 1); issue_hh(fv, 1, 6, QS); issue_w4r(fv, W4L, 60); issue_hh(fv, 1, QS, 12)
fv2 = Stream(); hflag_check(fv2, 1); issue_hh(fv2, 2, 0, OPT['h2a'])
fp = Stream(); fp.waitvm('hh7'); fp.waitlds(); fp.s_barrier(); post(fp, F_HH + 2)
fr0 = Stream(); red_write(fr0, 0)
e1 = OPT['v4end']
m_ = pack(m_, [(fe, 0, OPT['e7end']), (fw, 8, 34 + (W4L - 45) // 2), (fv, 0, e1, 'vmem'), (fp, OPT['p4post'], OPT['p4post'] + 1, 'vmem'), (fv2, e1, 120, 'vmem'),
               (fr0, 120 - 5 * (12 - QS) + 2 if QS < 12 else 64, 120 if QS < 12 else 110, 'vmem1')])
print('g4 tiles 0,1 est', m_.est)
stamp(k, 'g4t0'); k.add(m_)
m_ = Stream(); seg4(m_, 2, 0, 12)
fv = Stream(); issue_hh(fv, 2, OPT['h2a'], 12); hflag_issue(fv, 2)
fv2 = Stream(); hflag_check(fv2, 2); issue_hh(fv2, 3, 0, 8)
fr1 = Stream(); red_write(fr1, 1)
fa = Stream()
fa.s_mul_i32(s(sT + 2), s(sW), 3072); fa.s_add_u32(s(sT + 2), s(sT + 2), L_RING)
fa.v_mul_u32_u24(v(vOW), 160, v(vJ)); fa.v_mul_u32_u24(v(t0), 40, v(vG)); fa.v_add3_u32(v(vOW), v(vOW), v(t0), s(sT + 2))
fa.v_add_u32(v(vOR), s(sT + 2), v(vL16))
for e in range(3):
    fa.v_add_u32(v(t0), 64 * e, v(vLANE)); div_small(fa, t1, t0, 10)
    fa.v_mul_u32_u24(v(t2), 10, v(t1)); fa.v_sub_u32(v(t2), v(t0), v(t2))
    fa.v_mul_u32_u24(v(vOS + e), 1280, v(t1)); fa.v_lshl_add_u32(v(vOS + e), v(t2), 4, v(vOS + e))
fa.v_mov_b32(v(t0), OOB)
fa.v_cmp_gt_u32(s(sT + 4, 2), 32, v(vLANE))
fa.v_cndmask_b32(v(vOS + 2), v(t0), v(vOS + 2), s(sT + 4, 2))
m_ = pack(m_, [(fv, 0, OPT['f2at'], 'vmem'), (fv2, OPT['f2ck'], 60, 'vmem'), (fr1, 4, 50, 'vmem1'), (fa, 0, None)])
stamp(k, 'g4t2'); k.add(m_)
m_ = Stream(); seg4(m_, 3, 0, 12)
fv = Stream(); issue_hh(fv, 3, 8, 12)
fr2 = Stream(); red_write(fr2, 2)
m_ = pack(m_, [(fv, 0, 16, 'vmem'), (fr2, 4, 50, 'vmem1')])
stamp(k, 'g4t3'); k.add(m_)
k.v_add_u32(v(vRW), 3 * 20480, v(vRW))
for t in range(10): k.ds_write_b64(v(vRW), v(vD4[1] + 2 * t, 2), mods='offset:%d' % (L_RED + t * 512))
k.waitlds()
k.s_barrier()
stamp(k, 'g4end')
vR2 = 112
for sl in range(4):
    for t in range(10): k.ds_read_b64(v(vR2 + 20 * sl + 2 * t, 2), v(vRR), mods='offset:%d' % (L_RED + sl * 5120 + t * 512))
for q in range(10):
    k.v_pk_add_f32(v(vR2 + 2 * q, 2), v(vR2 + 2 * q, 2), v(vR2 + 20 + 2 * q, 2))
for q in range(10):
    k.v_dot2_f32_bf16(v(vR2 + 2 * q), v(vH + q), s(sONE_LO), v(vR2 + 2 * q))
    k.v_dot2_f32_bf16(v(vR2 + 2 * q + 1), v(vH + q), s(sONE_HI), v(vR2 + 2 * q + 1))
for q in range(10):
    k.v_pk_add_f32(v(vR2 + 40 + 2 * q, 2), v(vR2 + 40 + 2 * q, 2), v(vR2 + 60 + 2 * q, 2))
for q in range(10):
    k.v_pk_add_f32(v(vR2 + 2 * q, 2), v(vR2 + 2 * q, 2), v(vR2 + 40 + 2 * q, 2))
for q in range(10): k.v_cvt_pk_bf16_f32(v(40 + q), v(vR2 + 2 * q), v(vR2 + 2 * q + 1))
if OPT['cst']:
    for q in range(5): k.ds_write_b64(v(vOW), v(40 + 2 * q, 2), mods='offset:%d' % (8 * q))
    for e in range(3): k.ds_read_b128(v(52 + 4 * e, 4), v(vOR), mods='offset:%d' % (1024 * e))
    for e in range(3): k.buffer_store_dwordx4(v(52 + 4 * e, 4), v(vOS + e), srd(S_OUT), s(sXR), mods='offen' + ['', ' sc1', ' nt', ' sc0 sc1', ' sc1 nt'][OPT['ost']])
else:
    k.buffer_store_dwordx4(v(40, 4), v(vXRO), srd(S_OUT), s(sXR), mods='offen')
    k.buffer_store_dwordx4(v(44, 4), v(vXRO), srd(S_OUT), s(sXR), mods='offen offset:16')
    k.buffer_store_dwordx2(v(48, 2), v(vXRO), srd(S_OUT), s(sXR), mods='offen offset:32')
finish(k)
```

```python
import re

REG_RE = re.compile(r'^(-|abs\()?([vas])(\d+)\)?$')
RNG_RE = re.compile(r'^(-)?([vas])\[(\d+):(\d+)\]$')

def regs_of(op):
    op = op.strip()
    m = REG_RE.match(op)
    if m: return {(m.group(2), int(m.group(3)))}
    m = RNG_RE.match(op)
    if m: return {(m.group(2), i) for i in range(int(m.group(3)), int(m.group(4)) + 1)}
    if op == 'vcc': return {('s', 'vcc')}
    if op == 'exec': return {('s', 'exec')}
    if op == 'm0': return {('s', 'm0')}
    return set()

def R(kind, base, n=1):
    return "%s%d" % (kind, base) if n == 1 else "%s[%d:%d]" % (kind, base, base + n - 1)
def v(b, n=1): return R('v', b, n)
def a(b, n=1): return R('a', b, n)
def s(b, n=1): return R('s', b, n)

TRANS = ('v_exp_f32', 'v_log_f32', 'v_rcp_f32', 'v_rsq_f32', 'v_sqrt_f32', 'v_sin_f32', 'v_cos_f32', 'v_rcp_iflag_f32')

class Inst:
    __slots__ = ('mn', 'ops', 'mods', 'defs', 'uses', 'cls', 'tag', 'cmt', 'untracked', 'text')
    def __init__(self, mn, ops, mods='', tag=None, cmt=None, untracked=False):
        self.mn = mn; self.ops = [str(o) for o in ops]; self.mods = mods; self.tag = tag; self.cmt = cmt
        self.untracked = untracked; self.text = None
        self.classify()
    def classify(self):
        mn, ops = self.mn, self.ops
        D = lambda idx: set().union(*[regs_of(ops[i]) for i in idx]) if idx else set()
        n = len(ops); allx = list(range(n))
        if mn.startswith('v_mfma'):
            self.cls = 'mfma'; self.defs = D([0]); self.uses = D([1, 2, 3])
        elif mn.startswith('v_cmp'):
            self.cls = 'valu'; self.defs = D([0]); self.uses = D(allx[1:])
        elif mn.startswith('v_permlane') and 'swap' in mn:
            self.cls = 'valu'; self.defs = D([0, 1]); self.uses = D([0, 1])
        elif mn.startswith(('v_fmac', 'v_dot2c', 'v_pk_fmac')):
            self.cls = 'valu'; self.defs = D([0]); self.uses = D(allx)
        elif mn.startswith('v_'):
            self.cls = 'valu'; self.defs = D([0]); self.uses = D(allx[1:])
            if '_dpp' in mn: self.uses |= D([0])
            if mn == 'v_cndmask_b32' and n == 3: self.uses |= {('s', 'vcc')}
        elif mn.startswith(('ds_read', 'ds_bpermute', 'ds_swizzle', 'ds_permute')):
            self.cls = 'ldsr'; self.defs = D([0]); self.uses = D(allx[1:])
        elif mn.startswith('ds_write'):
            self.cls = 'ldsw'; self.defs = set(); self.uses = D(allx)
        elif mn.startswith(('buffer_load', 'global_load')):
            if ' lds' in ' ' + self.mods or '_lds_' in mn:
                self.cls = 'dma'; self.defs = set(); self.uses = D(allx) | {('s', 'm0')}
            else:
                self.cls = 'vload'; self.defs = D([0]); self.uses = D(allx[1:])
        elif mn.startswith(('buffer_store', 'global_store', 'buffer_atomic', 'global_atomic')):
            self.cls = 'vstore'; self.defs = set(); self.uses = D(allx)
        elif mn.startswith(('s_load', 's_memtime', 's_memrealtime')):
            self.cls = 'smem'; self.defs = D([0]); self.uses = D(allx[1:])
        elif mn in ('s_waitcnt', 's_nop', 's_barrier', 's_endpgm', 's_sleep', 's_setprio', 'label', 'raw', 'waitvm', 'waitlds', 'comment', 'cond_begin', 'cond_end') or mn.startswith(('s_cbranch', 's_branch')):
            self.cls = 'ctl'; self.defs = set(); self.uses = set()
        elif mn.startswith('s_cmp'):
            self.cls = 'salu'; self.defs = set(); self.uses = D(allx)
        elif mn.startswith('s_'):
            self.cls = 'salu'; self.defs = D([0]); self.uses = D(allx[1:])
            if 'saveexec' in mn: self.defs |= {('s', 'exec')}
        else:
            raise ValueError('unknown mnemonic ' + mn)
    def __str__(self):
        if self.mn == 'label': return self.ops[0] + ':'
        if self.mn == 'raw': return self.text
        if self.mn == 'comment': return '; ' + self.text
        t = self.mn + (' ' + ', '.join(self.ops) if self.ops else '') + (' ' + self.mods if self.mods else '')
        if self.cmt: t += '   ; ' + self.cmt
        return t

class Stream:
    def __init__(self): self.l = []
    def __getattr__(self, mn):
        if mn.startswith('__'): raise AttributeError(mn)
        def f(*ops, mods='', tag=None, cmt=None, untracked=False):
            i = Inst(mn, ops, mods, tag, cmt, untracked); self.l.append(i); return i
        return f
    def add(self, other):
        self.l.extend(other.l if isinstance(other, Stream) else other); return self
    def label(self, name): self.l.append(Inst('label', [name]))
    def comment(self, t):
        i = Inst('comment', []); i.text = t; self.l.append(i)
    def raw(self, text, uses=(), defs=(), drains_vm=False):
        i = Inst('raw', []); i.text = text
        i.uses = set().union(*[regs_of(o) for o in uses]) if uses else set()
        i.defs = set().union(*[regs_of(o) for o in defs]) if defs else set()
        self.l.append(i); return i
    def waitvm(self, tag=None):
        i = Inst('waitvm', []); i.tag = tag; self.l.append(i)
    def waitlds(self, tag=None):
        i = Inst('waitlds', []); i.tag = tag; self.l.append(i)
    def cond_begin(self): self.l.append(Inst('cond_begin', []))
    def cond_end(self): self.l.append(Inst('cond_end', []))
    def __len__(self): return len(self.l)

def merge(main, fill, start=0, per=None, end_pad=0):
    out = Stream()
    nm = sum(1 for i in main.l if i.cls == 'mfma')
    slots = max(1, nm - start - end_pad)
    f = list(fill.l); nf = len(f); k = 0; seen = 0
    for i in main.l:
        out.l.append(i)
        if i.cls == 'mfma':
            seen += 1
            if seen > start:
                want = min(nf, -(-(nf * (seen - start)) // slots)) if per is None else min(nf, per * (seen - start))
                while k < want:
                    out.l.append(f[k]); k += 1
    out.l.extend(f[k:])
    return out

MFMA_PASS = {'v_mfma_f32_16x16x32_bf16': 4, 'v_mfma_f32_32x32x16_bf16': 8}
def mfma_lat(p, kind):
    return {'c_part': {4: 6, 8: 10}, 'ab': {4: 8, 8: 12}, 'other': {4: 8, 8: 12}, 'war_c': {4: 3, 8: 7}}[kind][p]

def insert_waits(lst):
    out = []; vmq = []; ldq = []; cond = None
    def do_wait(vm=None, lg=None):
        nonlocal vmq, ldq
        parts = []
        if vm is not None:
            vm = min(vm, 63)
            if len(vmq) > vm:
                parts.append('vmcnt(%d)' % vm); vmq = vmq[len(vmq) - vm:] if vm else []
        if lg is not None:
            if any(x[2] for x in ldq): lg = 0
            lg = min(lg, 15)
            if len(ldq) > lg:
                parts.append('lgkmcnt(%d)' % lg); ldq = ldq[len(ldq) - lg:] if lg else []
        if parts:
            w = Inst('s_waitcnt', [' '.join(parts)]); w.tag = 'auto'; out.append(w)
    for i in lst:
        if i.mn == 'cond_begin':
            cond = (list(vmq), list(ldq)); out.append(i); continue
        if i.mn == 'cond_end':
            vq0, lq0 = cond; cond = None
            ids0 = set(id(x) for x in vq0) | set(id(x) for x in lq0)
            for x in vmq + ldq:
                assert id(x) in ids0 or not x[0], 'load issued inside a conditional block still outstanding at its end'
            vmq = vq0; ldq = lq0; out.append(i); continue
        if i.mn == 'waitvm':
            if i.tag is None: do_wait(vm=0)
            else:
                idx = [k for k, x in enumerate(vmq) if x[1] == i.tag]
                if idx: do_wait(vm=len(vmq) - 1 - idx[-1])
            continue
        if i.mn == 'waitlds':
            if i.tag is None: do_wait(lg=0)
            else:
                idx = [k for k, x in enumerate(ldq) if x[1] == i.tag]
                if idx: do_wait(lg=len(ldq) - 1 - idx[-1])
            continue
        if i.mn == 's_waitcnt':
            t = i.ops[0]
            m = re.search(r'vmcnt\((\d+)\)', t)
            if m:
                n = int(m.group(1)); vmq = vmq[len(vmq) - n:] if n and len(vmq) > n else ([] if n == 0 else vmq)
            m = re.search(r'lgkmcnt\((\d+)\)', t)
            if m:
                n = int(m.group(1)); ldq = ldq[len(ldq) - n:] if n and len(ldq) > n else ([] if n == 0 else ldq)
            out.append(i); continue
        touched = i.uses | i.defs
        vm = lg = None
        for k, x in enumerate(vmq):
            if x[0] & touched: vm = len(vmq) - 1 - k
        for k, x in enumerate(ldq):
            if x[0] & touched: lg = len(ldq) - 1 - k
        if vm is not None or lg is not None: do_wait(vm, lg)
        out.append(i)
        if not i.untracked:
            if i.cls in ('vload', 'vstore', 'dma'): vmq.append((i.defs, i.tag))
            elif i.cls in ('ldsr', 'ldsw'): ldq.append((i.defs, i.tag, False))
            elif i.cls == 'smem': ldq.append((i.defs, i.tag, True))
    return out

def hoist_waits(lst):
    out = list(lst)
    k = 1
    while k < len(out) - 1:
        w = out[k]
        if w.mn == 's_waitcnt' and w.tag == 'auto' and out[k + 1].cls == 'mfma' and 'vmcnt' not in w.ops[0]:
            n = int(re.search(r'lgkmcnt\((\d+)\)', w.ops[0]).group(1))
            j = k - 1; skipped = 0; ok = True; nvalu = 0
            while j >= 0 and out[j].cls != 'mfma':
                c = out[j].cls
                if c in ('ldsr', 'ldsw'): skipped += 1
                elif c == 'valu': nvalu += 1
                elif c in ('salu', 'vload', 'vstore', 'dma'): pass
                else: ok = False; break
                j -= 1
            if ok and j >= 0 and j < k - 1 and nvalu and n - skipped >= 0 and out[j + 1].cls == 'valu':
                del out[k]
                w2 = Inst('s_waitcnt', ['lgkmcnt(%d)' % (n - skipped)]); w2.tag = 'hoisted'
                out.insert(j + 1, w2)
        k += 1
    return out

def insert_nops(lst):
    out = []
    pos = 0
    last_valu_w = {}; last_trans_w = {}; last_mfma_w = {}; last_mfma_c = {}; last_store_data = {}; last_dot_w = {}
    last_salu_m0 = -100
    nnop = 0
    def emit(i):
        nonlocal pos
        out.append(i)
        if i.mn in ('label', 'comment'): return
        if i.mn == 's_nop': pos += int(i.ops[0]) + 1
        else: pos += 1
    cond = None
    for i in lst:
        if i.mn == 'cond_begin':
            cond = pos; continue
        if i.mn == 'cond_end':
            p0 = cond; cond = None
            delta = pos - p0
            for d in (last_valu_w, last_trans_w, last_store_data):
                for r in d:
                    if d[r] < p0: d[r] += delta
            for d in (last_mfma_w, last_mfma_c, last_dot_w):
                for r in d:
                    if d[r][0] < p0: d[r] = (d[r][0] + delta,) + tuple(d[r][1:])
            if last_salu_m0 < p0: last_salu_m0 += delta
            continue
        if i.mn in ('label', 'comment', 's_waitcnt'):
            emit(i); continue
        touched = i.uses | i.defs
        need = 0
        def req(p, n):
            nonlocal need
            need = max(need, p + n + 1 - pos)
        for r in touched:
            if r in last_dot_w:
                dp, dm = last_dot_w[r]
                if i.mn == dm and r not in (regs_of(i.ops[1]) | regs_of(i.ops[2])): pass
                else: req(dp, 3)
        is_valu = i.cls == 'valu'; is_mem = i.cls in ('ldsr', 'ldsw', 'vload', 'vstore', 'dma')
        raw_blk = i.mn == 'raw'
        if i.cls == 'mfma':
            cset = regs_of(i.ops[3]); ab = regs_of(i.ops[1]) | regs_of(i.ops[2]); p = MFMA_PASS[i.mn]
            for r in i.uses:
                if r in last_valu_w: req(last_valu_w[r], 2)
            for r in ab:
                if r in last_mfma_w: req(last_mfma_w[r][0], mfma_lat(last_mfma_w[r][1], 'ab'))
            for r in cset | i.defs:
                if r in last_mfma_w:
                    w = last_mfma_w[r]
                    if r in cset and w[2] == cset and w[1] == p: pass
                    else: req(w[0], mfma_lat(w[1], 'c_part'))
        else:
            for r in touched:
                if r in last_mfma_w and (is_valu or is_mem or raw_blk): req(last_mfma_w[r][0], mfma_lat(last_mfma_w[r][1], 'other'))
            if is_valu or raw_blk:
                for r in i.defs:
                    if r in last_mfma_c: req(last_mfma_c[r][0], mfma_lat(last_mfma_c[r][1], 'war_c'))
                    if r in last_store_data: req(last_store_data[r], 2)
                for r in i.uses:
                    if r in last_trans_w: req(last_trans_w[r], 1)
                    if r in last_valu_w:
                        if r[0] == 's': req(last_valu_w[r], 4 if 'lane' in i.mn else 2)
                        elif i.mn.startswith(('v_readfirstlane', 'v_readlane')): req(last_valu_w[r], 1)
                        elif i.mn.startswith('v_permlane') or '_dpp' in i.mn or raw_blk: req(last_valu_w[r], 2)
            if is_mem:
                for r in i.uses:
                    if r in last_trans_w: req(last_trans_w[r], 1)
                    if r[0] == 's' and r in last_valu_w: req(last_valu_w[r], 5)
                for r in i.defs:
                    if r in last_store_data: req(last_store_data[r], 1)
                if i.cls == 'dma': req(last_salu_m0, 1)
            if i.cls == 'salu':
                for r in i.uses:
                    if r in last_valu_w: req(last_valu_w[r], 1)
        while need > 0:
            n = min(need, 16); emit(Inst('s_nop', [n - 1])); need -= n; nnop += n
        p0 = pos
        emit(i)
        for r in i.defs: last_dot_w.pop(r, None)
        if i.mn.startswith('v_dot'):
            for r in i.defs: last_dot_w[r] = (p0, i.mn)
        if i.cls == 'mfma':
            p = MFMA_PASS[i.mn]
            for r in i.defs: last_mfma_w[r] = (p0, p, frozenset(i.defs)); last_valu_w.pop(r, None)
            for r in regs_of(i.ops[3]): last_mfma_c[r] = (p0, p)
        elif is_valu or raw_blk:
            for r in i.defs:
                last_valu_w[r] = p0; last_mfma_w.pop(r, None)
                if i.mn in TRANS: last_trans_w[r] = p0
                else: last_trans_w.pop(r, None)
        elif i.cls == 'salu':
            for r in i.defs:
                last_valu_w.pop(r, None)
                if r == ('s', 'm0'): last_salu_m0 = p0
        if i.cls in ('vstore', 'ldsw') and re.search(r'x3|x4|b96|b128', i.mn):
            dat = regs_of(i.ops[0]) if i.mn.startswith('buffer') else regs_of(i.ops[1])
            for r in dat: last_store_data[r] = p0
        if i.cls in ('vload', 'ldsr'):
            for r in i.defs: last_valu_w.pop(r, None); last_mfma_w.pop(r, None); last_trans_w.pop(r, None)
    return out, nnop

def finalize(stream, verbose=False):
    l = insert_waits(stream.l)
    l = hoist_waits(l)
    l, nnop = insert_nops(l)
    if verbose: print('finalize: %d insts, %d nop states, %d waits' % (len(l), nnop, sum(1 for i in l if i.mn == 's_waitcnt')))
    return l

def render(insts):
    return '\n'.join(('' if i.mn == 'label' else '    ') + str(i) for i in insts) + '\n'

HEADER = '''; @launch grid=({grid},1,1) block=(256,1,1) lds={lds}
.amdgcn_target "amdgcn-amd-amdhsa--gfx950"
.text
.globl {k}
.p2align 8
.type {k},@function
{k}:
'''
FOOTER = '''.section .rodata,"a"
.p2align 6
.amdhsa_kernel {k}
  .amdhsa_next_free_vgpr {nv}
  .amdhsa_next_free_sgpr 102
  .amdhsa_accum_offset {ao}
  .amdhsa_group_segment_fixed_size 0
  .amdhsa_kernarg_size 88
  .amdhsa_user_sgpr_count 2
  .amdhsa_user_sgpr_kernarg_segment_ptr 1
  .amdhsa_system_sgpr_workgroup_id_x 1
.end_amdhsa_kernel
'''
KNAME = "sequential_preLN__linear_kernel_hedgehog__glu_gated_geglu__prompt_kernel"

def groups_of(st, mode='single'):
    out = []; cur = []
    for i in st.l:
        cur.append(i)
        if mode == 'single':
            if i.cls != 'salu' and i.mn not in ('comment', 'waitvm', 'waitlds'): out.append(cur); cur = []
        else:
            if i.cls in ('vload', 'vstore', 'dma'): out.append(cur); cur = []
    if cur:
        if out: out[-1].extend(cur)
        else: out.append(cur)
    return out

def weave(main, fills, anchor='mfma'):
    isanch = (lambda i: i.cls == 'mfma') if anchor == 'mfma' else (lambda i: i.cls in ('valu', 'mfma', 'ldsr', 'ldsw'))
    na = sum(1 for i in main.l if isanch(i))
    at = {}
    tail = []
    for f in fills:
        st, lo, hi = f[0], f[1], f[2]
        mode = f[3] if len(f) > 3 else 'single'
        gs = groups_of(st, mode)
        if hi is None or hi > na: hi = na
        if lo < 0: lo = na + lo
        n = len(gs)
        for q, g in enumerate(gs):
            if hi <= lo: tail.append(g); continue
            idx = lo + (q * (hi - lo)) // n
            at.setdefault(idx, []).append(g)
    out = Stream(); seen = 0
    for i in main.l:
        out.l.append(i)
        if isanch(i):
            for g in at.get(seen, []): out.l.extend(g)
            seen += 1
    for g in tail: out.l.extend(g)
    return out


def icost(i):
    if i.mn in ('comment', 'label', 'cond_begin', 'cond_end'): return 0
    if i.cls == 'valu':
        if i.mn in TRANS or i.mn.startswith('v_permlane'): return 8
        return 4
    if i.cls == 'ldsr': return 8
    if i.cls == 'ldsw': return 52 if '128' in i.mn else 24
    if i.cls in ('vload', 'vstore', 'dma'): return 14
    if i.mn in ('raw', 's_barrier'): return 12
    return 4
def gap_time(insts):
    t = 4
    for i in insts:
        if i.cls == 'valu': t = max(t, 8)
        t += icost(i)
    return t

def pack(main, fills, early=2.0, late=3.0):
    marks = insert_waits(main.l)
    needw = []; prevw = False
    for i in marks:
        if i.cls == 'mfma': needw.append(prevw); prevw = False
        elif i.mn == 's_waitcnt': prevw = True
    pre = []; gaps = []
    for i in main.l:
        if i.cls == 'mfma': gaps.append([i, []])
        elif gaps: gaps[-1][1].append(i)
        else: pre.append(i)
    na = len(gaps)
    sts = []
    for f in fills:
        st, lo, hi = f[0], f[1], f[2]
        mode = f[3] if len(f) > 3 else 'single'
        gs = groups_of(st, mode)
        if hi is None or hi > na: hi = na
        n = len(gs)
        sts.append(dict(gs=gs, pos=[lo + q * (hi - lo) / max(n, 1) for q in range(n)], k=0, strict=(mode == 'vmem'), lo=lo, hi=hi))
    out = Stream(); out.l.extend(pre)
    W = Inst('s_waitcnt', ['lgkmcnt(0)'])
    over = 0
    for g, (mf, pinned) in enumerate(gaps):
        budget = 16 if MFMA_PASS[mf.mn] == 4 else 32
        head = []; tail = []
        resv = [W] if (g + 1 < na and needw[g + 1] and not any(x.mn in ('waitlds', 'waitvm') for x in pinned)) else []
        valu_from = set()
        def total(h, t): return gap_time(resv + pinned + h + t)
        progress = True
        while progress:
            progress = False
            cands = sorted((st['pos'][st['k']], n_) for n_, st in enumerate(sts) if st['k'] < len(st['gs']))
            for p, n_ in cands:
                st = sts[n_]; grp = st['gs'][st['k']]
                if g < st['lo']: continue
                if st['strict']:
                    if p > g: continue
                    force = True
                else:
                    if p > g + early: continue
                    force = p <= g - late or g >= st['hi'] - 1 and p <= g
                isv = any(x.cls == 'valu' for x in grp)
                h2, t2 = (head, tail + grp) if (isv or n_ in valu_from) else (head + grp, tail)
                if force or total(h2, t2) <= budget:
                    head, tail = h2, t2
                    if isv: valu_from.add(n_)
                    st['k'] += 1; progress = True
                    break
        over += max(0, total(head, tail) - budget)
        out.l.append(mf); out.l.extend(pinned); out.l.extend(head); out.l.extend(tail)
    for st in sts:
        for grp in st['gs'][st['k']:]:
            out.l.extend(grp); over += sum(icost(x) for x in grp)
    out.est = na * (16 if MFMA_PASS[gaps[0][0].mn] == 4 else 32) + over
    return out
```

```python
import sys, math, struct
from asmgen import *

OPT = dict(stop=99, stamps=0, cqx=0, spin=100000, rot=1, ord=912, x0e=0, w1fl=3, qpost=36, qpost2=92, qfl=110, w2q=12, w2s=8, qpl=30, w3d=2, w3a=22, w3b=10, w4a=4, hpost=24, p4post=16)
for a_ in sys.argv[2:]:
    kk, vv = a_.split('='); OPT[kk] = int(vv)

def f32(x): return '0x%08x' % struct.unpack('<I', struct.pack('<f', x))[0]
LOG2E = 1.4426950408889634
OOB = 0x40000000

WS_FLAGS = 4096
F_PREP, F_KV, F_O, F_H, F_HH, F_W1, F_PREP2 = 0, 1, 2, 3, 4, 7, 8
WS_STAMP = 0x1700000
WS_PART = 0x80000
WS_O = 0x200000
WS_H = 0x500000
WS_HST = 0x780000
WS_HH = 0x800000
WS_W2 = 0x1000000
WS_W3 = 0x1100000
WS_W4 = 0x1500000
WS_W1K = 0x1800000
WS_W1Q = 0x1A00000
WS_CS = 0x1B00000
WS_DBG = 0x2000000
WS_SIZE = 0x4000000

L_XST = 0; L_W1S = 98304
L_PG = 0; L_PU = 8192; L_P4 = 16384; L_P2 = 135168; L_PHI = 143360
L_KV = 0; L_Q = 102400; L_CSF = 155648; L_FV = 40960
L_KVR = 102400; L_ZERO = 106496
L_W2 = 0; L_RING = 102400; L_W4 = 0; L_ST = 98304; L_RED = 0

S_X, S_W1, S_WS, S_WG, S_WU, S_WD, S_WO, S_OUT, S_PHI = 28, 32, 36, 40, 44, 48, 52, 56, 60
sR, sC, sCQ, sW, sM, sP = 64, 65, 66, 67, 68, 69
sN = 70
sT = 72
sXO = 80
sA, sB, sCc, sD = 88, 89, 90, 91
sONE_LO, sONE_HI, sONES = 92, 93, 94
sCNT = 95
sTM = 96
sXR = 98
sE, sF = 99, 100
sK = 4
sCH = 12
sV = 17
def srd(b): return s(b, 4)

vTID, vL16, vG, vJ, vSTAMP, vPOST, vFR, vFC, vNON, vXRO = 0, 1, 2, 3, 4, 5, 6, 7, 8, 10
t0, t1, t2 = 11, 12, 13
vR4, vCC, vLANE = 14, 15, 16

k = Stream()
STAMPS = []
OPT_DBG = ['setup', 'xs0', 'xs4', 'kvgemm', 'kvst', 'qgemm', 'ost', 'oflag', 'hst', 'hflag', 'g3t1', 'g3end', 'g4t2', 'g4end', 'end']
def stamp(st, name):
    if not OPT['stamps']: return
    i = len(STAMPS); STAMPS.append(name)
    st.comment('stamp %d %s' % (i, name))
    (st.s_memrealtime if OPT['stamps'] == 2 else st.s_memtime)(s(sTM, 2))
    st.s_waitcnt('lgkmcnt(0)')
    st.v_writelane_b32(v(vSTAMP), s(sTM), i)

def post(st, kind):
    st.s_lshl_b32(s(sT), s(sR), 11)
    st.s_lshl_b32(s(sT + 1), s(sC), 7)
    st.s_add_u32(s(sT), s(sT), s(sT + 1))
    st.s_add_u32(s(sT), s(sT), WS_FLAGS + kind * 32768)
    st.buffer_store_dwordx2(v(vNON, 2), v(vPOST), srd(S_WS), s(sT), mods='offen sc1')

npoll = [0]
def poll(st, voff, ssoff, tmp):
    n = npoll[0]; npoll[0] += 1
    t = '''s_cmp_lg_u32 s{w}, 0
    s_cbranch_scc1 L_pd{n}
    s_mov_b32 s{c}, {lim}
L_pl{n}:
    buffer_load_dwordx2 v[{t}:{t1}], v{vo}, s[{ws}:{ws3}], s{so} offen sc1
    s_waitcnt vmcnt(0)
    v_cmp_ne_u64 vcc, s[{n0}:{n1}], v[{t}:{t1}]
    s_cbranch_vccz L_pd{n}
    s_sub_u32 s{c}, s{c}, 1
    s_cbranch_scc0 L_pl{n}
L_pd{n}:'''.format(w=sW, n=n, c=sCNT, lim=OPT['spin'], t=tmp, t1=tmp + 1, vo=voff, ws=S_WS, ws3=S_WS + 3, so=ssoff, n0=sN, n1=sN + 1)
    st.raw(t, uses=[v(voff)], defs=[v(tmp, 2)])
def poll_row(st, kind, tmp):
    st.s_lshl_b32(s(sT), s(sR), 11); st.s_add_u32(s(sT), s(sT), WS_FLAGS + kind * 32768)
    poll(st, vFR, sT, tmp)

def allreduce_groups(st, x, t, op):
    st.v_mov_b32(v(t), v(x))
    st.v_permlane32_swap_b32(v(x), v(t))
    getattr(st, op)(v(x), v(x), v(t))
    st.v_mov_b32(v(t), v(x))
    st.v_permlane16_swap_b32(v(x), v(t))
    getattr(st, op)(v(x), v(x), v(t))

MF = 'v_mfma_f32_16x16x32_bf16'
def mfma(st, d, A, B, first=False):
    getattr(st, MF)(d, A, B, '0' if first else d)

def wg_slot(st, mul, base):
    st.s_lshl_b32(s(sT), s(sR), 4); st.s_add_u32(s(sT), s(sT), s(sC))
    st.s_lshl_b32(s(sT), s(sT), 2); st.s_add_u32(s(sT), s(sT), s(sW))
    st.s_mul_i32(s(sT), s(sT), mul)
    st.s_add_u32(s(sT), s(sT), base)

def dump(st, regs):
    st.waitvm(); st.waitlds()
    wg_slot(st, 32768, WS_DBG)
    for q, r in enumerate(regs):
        st.buffer_store_dwordx4(r, v(vL16), srd(S_WS), s(sT), mods='offen')
        st.s_add_u32(s(sT), s(sT), 1024)

def finish(st):
    if OPT['stamps']:
        st.waitvm()
        stamp(st, 'end')
        wg_slot(st, 256, WS_STAMP)
        st.v_lshlrev_b32(v(t1), 2, v(vLANE))
        st.buffer_store_dword(v(vSTAMP), v(t1), srd(S_WS), s(sT), mods='offen')
    if OPT.get('dbg'):
        st.s_load_dwordx2(s(sT + 2, 2), s(0, 2), 72)
        st.s_memrealtime(s(sTM, 2))
        st.s_waitcnt('lgkmcnt(0)')
        st.s_sub_u32(s(sTM), s(sTM), s(101))
        st.v_writelane_b32(v(vSTAMP), s(sTM), 63)
        st.v_readlane_b32(s(sT), v(vSTAMP), 0)
        st.s_nop(1)
        st.v_subrev_u32(v(t0), s(sT), v(vSTAMP))
        st.v_writelane_b32(v(t0), s(sTM), 0)
        sel = [0] + [STAMPS.index(n) for n in OPT_DBG]
        st.v_mov_b32(v(t1), OOB)
        for q, i in enumerate(sel): st.v_writelane_b32(v(t1), 4 * q, i)
        st.s_lshl_b32(s(sT), s(sR), 4); st.s_add_u32(s(sT), s(sT), s(sC)); st.s_lshl_b32(s(sT), s(sT), 2); st.s_add_u32(s(sT), s(sT), s(sW))
        st.s_mov_b32(s(S_PHI), s(sT + 2)); st.s_mov_b32(s(S_PHI + 1), s(sT + 3)); st.s_mov_b32(s(S_PHI + 2), 64); st.s_mov_b32(s(S_PHI + 3), 0x20000)
        st.s_cmp_lg_u32(s(sT), (5 * 16 + 3) * 4)
        st.s_cbranch_scc1('L_nodbg')
        st.buffer_store_dword(v(t0), v(t1), srd(S_PHI), 0, mods='offen')
        st.label('L_nodbg')
    st.s_or_b32(s(sT), s(sR), s(sC))
    st.s_cmp_lg_u32(s(sT), 0)
    st.s_cbranch_scc1('L_end')
    st.buffer_store_dwordx2(v(vNON, 2), v(vPOST), srd(S_WS), 0, mods='offen')
    st.label('L_end')
    st.s_endpgm()
    ins = finalize(st, True)
    hdr = open('sequential_preLN__linear_kernel_hedgehog__glu_gated_geglu__prompt.s.ref').read().split('\n')
    hdr = [l for l in hdr if l.startswith(';') and '@launch' not in l]
    txt = '\n'.join(hdr) + '\n' + HEADER.format(grid=256, lds=163840, k=KNAME) + render(ins) + FOOTER.format(k=KNAME, nv=512, ao=256)
    open(sys.argv[1], 'w').write(txt)
    open(sys.argv[1] + '.stamps', 'w').write('\n'.join(STAMPS))
    sys.exit(0)

def div_small(st, q, x, d):
    mul, sh = {10: (205, 11), 80: (205, 14), 5: (205, 10), 6: (171, 10), 12: (171, 11), 48: (171, 13), 3: (171, 9)}[d]
    st.v_mul_u32_u24(v(q), mul, v(x)); st.v_lshrrev_b32(v(q), sh, v(q))
for d_, lim in ((10, 512), (80, 320), (5, 256), (6, 192), (12, 512), (48, 192), (3, 8)):
    mul, sh = {10: (205, 11), 80: (205, 14), 5: (205, 10), 6: (171, 10), 12: (171, 11), 48: (171, 13), 3: (171, 9)}[d_]
    assert all((x * mul) >> sh == x // d_ for x in range(lim)), d_

vW1D = 18; vW1A = 21; vP3D = 26; vP4D = 28; vXW = 30; vXRd = 34; vKV2 = 38; vL16b = 17
vWP = 56; vWA = 58; vONE = 60; vAF = 64; vACC = 104; vGR = 164
vST = 180
vE = 184
vEA = 248
aPHI = 160; aCSQ = 240
sRHO = 3
def acc(X, col): return vACC + (X * 3 + col) * 4
def xf(ks, tt): return a(32 * (ks >> 2) + 16 * tt + 4 * (ks & 3), 4)

k.s_load_dwordx16(s(4, 16), s(0, 2), 0)
k.s_load_dwordx4(s(20, 4), s(0, 2), 64)
k.s_load_dwordx2(s(24, 2), s(0, 2), 80)
k.s_cmp_ge_u32(s(2), 256)
k.s_cbranch_scc1('L_end')
if OPT['stamps']: k.v_mov_b32(v(vSTAMP), 0)
k.s_bfe_u32(s(sT), s(2), 0x20001)
k.s_lshl_b32(s(sT), s(sT), 2)
k.s_bfe_u32(s(sT + 1), s(2), 0x20003)
k.s_add_u32(s(sR), s(sT), s(sT + 1))
k.s_and_b32(s(sT), s(2), 1)
k.s_lshl_b32(s(sT), s(sT), 3)
k.s_lshr_b32(s(sT + 2), s(2), 5)
k.s_add_u32(s(sC), s(sT), s(sT + 2))
k.s_mov_b32(s(sCQ), s(sC))
k.s_lshr_b32(s(sM), s(sC), 1)
k.s_and_b32(s(sP), s(sC), 1)
if OPT['rot']:
    k.s_sub_u32(s(sT), s(sT + 2), 5)
    k.s_cselect_b32(s(sRHO), s(sT + 2), s(sT))
else:
    k.s_mov_b32(s(sRHO), 0)
def chunk(st, slot, dst, tmp):
    st.s_add_u32(s(dst), s(sRHO), slot)
    st.s_sub_u32(s(tmp), s(dst), 5)
    st.s_cselect_b32(s(dst), s(dst), s(tmp))
k.v_lshrrev_b32(v(t0), 6, v(vTID))
k.v_readfirstlane_b32(s(sW), v(t0))
k.v_and_b32(v(vLANE), 63, v(vTID))
k.v_lshlrev_b32(v(vL16), 4, v(vLANE))
k.v_lshrrev_b32(v(vG), 4, v(vLANE))
k.v_and_b32(v(vJ), 15, v(vLANE))
k.s_mul_i32(s(sT), s(sW), 192)
k.s_movk_i32(s(sT + 1), 3840); k.s_movk_i32(s(sT + 4), 1200)
for e in range(3):
    k.v_add_u32(v(t0), s(sT), v(vLANE))
    if e: k.v_add_u32(v(t0), 64 * e, v(t0))
    k.v_mul_u32_u24(v(t1), 4370, v(t0)); k.v_lshrrev_b32(v(t1), 16, v(t1))
    k.v_mul_u32_u24(v(t2), 15, v(t1)); k.v_sub_u32(v(t0), v(t0), v(t2))
    k.v_lshlrev_b32(v(t2), 4, v(t0))
    k.v_mad_u32_u24(v(vW1D + e), v(t1), s(sT + 1), v(t2))
    k.v_mul_u32_u24(v(t0), 52, v(t0)); k.v_lshrrev_b32(v(t0), 8, v(t0))
    k.v_mad_u32_u24(v(vW1D + e), v(t0), s(sT + 4), v(vW1D + e))
    if e: k.v_subrev_u32(v(vW1D + e), 1024 * e, v(vW1D + e))
assert all((x * 4370) >> 16 == x // 15 for x in range(768)) and all((x * 52) >> 8 == x // 5 for x in range(15))
k.v_xor_b32(v(t0), v(vJ), v(vG))
k.v_lshlrev_b32(v(t0), 4, v(t0))
k.v_mul_u32_u24(v(t1), 1280, v(vG))
for n in range(4):
    k.v_xor_b32(v(vXW + n), 64 * n, v(t0))
    k.v_add_u32(v(vXW + n), v(vXW + n), v(t1))
    if n: k.v_add_u32(v(vXW + n), n * 4096, v(vXW + n))
k.s_lshl_b32(s(sT), s(sR), 7)
k.s_lshl_b32(s(sT + 1), s(sW), 5)
k.s_add_u32(s(sT), s(sT), s(sT + 1))
k.s_mul_i32(s(sXO), s(sT), 1280)
k.s_lshl_b32(s(sXO + 1), s(sW), 13)
k.s_mul_i32(s(sA), s(sR), 40 * 3840)
k.s_mul_i32(s(sT), s(sC), 80)
k.s_add_u32(s(sA), s(sA), s(sT))
k.s_mul_i32(s(sB), s(sW), 3072)
k.s_add_u32('m0', s(sB), L_W1S)
k.s_mul_i32(s(sT + 2), s(sC), 1600)
k.s_waitcnt('lgkmcnt(0)')
def mksrd(st, b, p, size):
    st.s_mov_b32(s(b), s(p)); st.s_mov_b32(s(b + 1), s(p + 1)); st.s_mov_b32(s(b + 2), size); st.s_mov_b32(s(b + 3), 0x20000)
mksrd(k, S_W1, 6, 2457600)
if OPT.get('dbg'):
    k.s_memrealtime(s(sTM, 2)); k.s_waitcnt('lgkmcnt(0)'); k.s_mov_b32(s(101), s(sTM))
stamp(k, 'start')
for e in range(3): k.buffer_load_dwordx4(v(vW1D + e), srd(S_W1), s(sA), mods='offen offset:%d lds' % (e * 1024), tag='W1S')
mksrd(k, S_X, 4, 2621440)
def issue_x(st, sg):
    chunk(st, sg, sE, sF)
    st.s_lshl_b32(s(sE), s(sE), 8)
    st.s_add_u32(s(sE), s(sE), s(sXO))
    for tt in range(2):
        if tt: st.s_add_u32(s(sE), s(sE), 16 * 1280)
        st.s_add_u32('m0', s(sXO + 1), L_XST + (sg % 3) * 32768 + tt * 4096)
        for n in range(4):
            st.buffer_load_dwordx4(v(vXW + n), srd(S_X), s(sE), mods='offen offset:%d lds' % (n * 1024), tag='x%d' % sg)
k.s_load_dwordx2(s(sN, 2), s(24, 2), 0)
mksrd(k, S_PHI, 8, 25600)
k.v_lshlrev_b32(v(vWA), 3, v(vTID))
k.v_cmp_gt_u32('vcc', 200, v(vTID))
k.v_mov_b32(v(t1), OOB)
k.v_cndmask_b32(v(vWA), v(t1), v(vWA), 'vcc')
k.buffer_load_dwordx2(v(vWP, 2), v(vWA), srd(S_PHI), s(sT + 2), mods='offen')
mksrd(k, S_WS, 24, WS_SIZE)
mksrd(k, S_WG, 14, 1966080); mksrd(k, S_WU, 16, 1966080); mksrd(k, S_WD, 18, 1966080); mksrd(k, S_WO, 10, 819200); mksrd(k, S_OUT, 20, 2621440)
for i in range(4): k.v_mov_b32(v(vAF + i), 0)
k.v_lshlrev_b32(v(t0), 4, v(vTID))
k.v_add_u32(v(t0), L_PHI, v(t0))
for i in range(2): k.ds_write_b128(v(t0), v(vAF, 4), mods='offset:%d' % (i * 4096))
k.v_cmp_gt_u32('vcc', 128, v(vTID))
k.s_and_saveexec_b64(s(sT, 2), 'vcc')
k.ds_write_b128(v(t0), v(vAF, 4), mods='offset:8192')
k.s_mov_b64('exec', s(sT, 2))
k.v_bfe_u32(v(vR4), v(vLANE), 2, 2)
k.v_and_b32(v(vCC), 3, v(vLANE))
k.s_mov_b32(s(sONE_LO), 0x00003f80); k.s_mov_b32(s(sONE_HI), 0x3f800000); k.s_mov_b32(s(sONES), 0x3f803f80)
oE, oO, sE_, sO_, mE, bE, bO, pE, pO = [sV + i for i in range(9)]
k.s_lshl_b32(s(sT), s(sW), 3)
k.s_lshr_b32(s(oE), 0x20C87850, s(sT)); k.s_and_b32(s(oE), s(oE), 0xff)
k.s_lshr_b32(s(oO), 0x2800A070, s(sT)); k.s_and_b32(s(oO), s(oO), 0xff)
k.s_lshr_b32(s(sE_), 0x28080808, s(sT)); k.s_and_b32(s(sE_), s(sE_), 0xff)
k.s_lshr_b32(s(sO_), 0x08080828, s(sT)); k.s_and_b32(s(sO_), s(sO_), 0xff)
k.s_lshr_b32(s(mE), 0x01030303, s(sT)); k.s_and_b32(s(mE), s(mE), 0xff)
k.s_mul_i32(s(sT + 1), s(sC), 102400); k.s_add_u32(s(sT + 1), s(sT + 1), WS_W1K)
k.s_mul_i32(s(sT + 2), s(sC), 61440); k.s_add_u32(s(sT + 2), s(sT + 2), WS_W1Q - 5120)
k.s_lshl_b32(s(sT + 3), s(sW), 11)
k.s_movk_i32(s(sT + 4), 3072)
k.s_cmp_lt_u32(s(sW), 3)
k.s_cselect_b32(s(bE), s(sT + 1), s(sT + 2)); k.s_cselect_b32(s(pE), 5120, s(sT + 4))
k.s_cmp_lt_u32(s(sW), 2)
k.s_cselect_b32(s(bO), s(sT + 1), s(sT + 2)); k.s_cselect_b32(s(pO), 5120, s(sT + 4))
k.s_add_u32(s(bE), s(bE), s(sT + 3)); k.s_add_u32(s(bO), s(bO), s(sT + 3)); k.s_add_u32(s(bO), s(bO), 1024)
y0, y1, y2 = vAF + 4, vAF + 5, vAF + 6
k.v_and_b32(v(y0), s(mE), v(vCC)); k.v_mul_u32_u24(v(y0), s(sE_), v(y0)); k.v_add_u32(v(y0), s(oE), v(y0))
k.v_mul_u32_u24(v(y1), s(sO_), v(vCC)); k.v_add_u32(v(y1), s(oO), v(y1))
k.v_lshl_add_u32(v(t0), v(vG), 3, v(vR4)); k.v_mul_u32_u24(v(t0), 240, v(t0)); k.v_add_u32(v(t0), L_W1S, v(t0))
k.v_add_u32(v(vW1A), v(t0), v(y0)); k.v_add_u32(v(vW1A + 1), v(t0), v(y1))
k.v_and_b32(v(t1), 1, v(vG))
k.v_cmp_eq_u32('vcc', 1, v(t1))
k.v_mul_u32_u24(v(t0), 240, v(vR4)); k.v_add_u32(v(t0), L_W1S + 32 * 240, v(t0))
k.v_cndmask_b32(v(y0), v(y0), v(y1), 'vcc')
k.v_add_u32(v(vW1A + 2), v(t0), v(y0))
vW1O = 40
k.s_mul_i32(s(sT), s(sR), 5)
k.v_add_u32(v(t0), s(sT), v(vG))
k.v_lshrrev_b32(v(t2), 2, v(t0)); k.v_and_b32(v(t0), 3, v(t0)); k.v_lshlrev_b32(v(t0), 8, v(t0)); k.v_lshl_add_u32(v(t0), v(vJ), 4, v(t0))
k.v_mad_u32_u24(v(vW1O), v(t2), s(pE), v(t0)); k.v_mad_u32_u24(v(vW1O + 1), v(t2), s(pO), v(t0))
k.s_add_u32(s(sT), s(sT), 4); k.s_lshr_b32(s(sT + 1), s(sT), 2); k.s_and_b32(s(sT), s(sT), 3); k.s_lshl_b32(s(sT), s(sT), 8)
k.s_mul_i32(s(sT + 2), s(sT + 1), s(pE)); k.s_add_u32(s(sT + 2), s(sT + 2), s(bE)); k.s_add_u32(s(sT + 2), s(sT + 2), s(sT))
k.s_mul_i32(s(sT + 3), s(sT + 1), s(pO)); k.s_add_u32(s(sT + 3), s(sT + 3), s(bO)); k.s_add_u32(s(sT + 3), s(sT + 3), s(sT))
k.v_mov_b32(v(t0), s(sT + 2)); k.v_mov_b32(v(t2), s(sT + 3))
k.v_cndmask_b32(v(t0), v(t0), v(t2), 'vcc')
k.v_lshl_add_u32(v(t0), v(vJ), 4, v(t0))
k.v_mov_b32(v(t2), OOB)
k.v_cmp_gt_u32('vcc', 2, v(vG))
k.v_cndmask_b32(v(vW1O + 2), v(t2), v(t0), 'vcc')
k.v_lshrrev_b32(v(t0), 1, v(vG)); k.v_lshlrev_b32(v(t0), 10, v(t0)); k.v_lshl_add_u32(v(t0), v(vJ), 4, v(t0))
k.v_cmp_eq_u32('vcc', 0, v(t1))
k.v_cndmask_b32(v(vW1O + 3), v(t2), v(t0), 'vcc')
k.s_lshl_b32(s(sD), s(sC), 13); k.s_lshl_b32(s(sT), s(sW), 11); k.s_add_u32(s(sD), s(sD), s(sT))
k.s_lshr_b32(s(sT), s(sR), 2); k.s_lshl_b32(s(sT), s(sT), 8); k.s_add_u32(s(sD), s(sD), s(sT))
k.s_and_b32(s(sT), s(sR), 3); k.s_lshl_b32(s(sT), s(sT), 2); k.s_add_u32(s(sD), s(sD), s(sT)); k.s_add_u32(s(sD), s(sD), WS_CS)
x0, x1 = vAF + 4, vAF + 5
div_small(k, t0, vTID, 5)
k.v_mul_u32_u24(v(t1), 5, v(t0)); k.v_sub_u32(v(t1), v(vTID), v(t1))
k.v_lshlrev_b32(v(vWA), 11, v(t1))
k.v_cmp_lt_u32('vcc', 19, v(t0))
k.v_cndmask_b32(v(t1), 0, 1, 'vcc')
k.v_mul_u32_u24(v(t2), 20, v(t1)); k.v_sub_u32(v(t0), v(t0), v(t2))
k.v_lshl_add_u32(v(vWA), v(t1), 6, v(vWA))
k.v_lshrrev_b32(v(x0), 2, v(t0)); k.v_lshlrev_b32(v(x0), 8, v(x0))
k.v_and_b32(v(x1), 3, v(t0)); k.v_lshl_add_u32(v(x0), v(x1), 1, v(x0))
k.v_mul_u32_u24(v(t2), 1032, v(t1)); k.v_add_u32(v(x0), v(x0), v(t2))
k.v_lshlrev_b32(v(x1), 1, v(x1)); k.v_lshl_add_u32(v(x1), v(t1), 8, v(x1)); k.v_add_u32(v(x1), 8, v(x1))
k.v_cmp_lt_u32('vcc', 15, v(t0))
k.v_cndmask_b32(v(x0), v(x0), v(x1), 'vcc')
k.v_add_u32(v(vWA), v(vWA), v(x0))
k.v_add_u32(v(vWA), L_PHI, v(vWA))

k.v_cmp_ne_u32('vcc', 0, v(vTID))
k.v_mov_b32(v(t1), OOB)
k.v_cndmask_b32(v(vPOST), 0, v(t1), 'vcc')
def wphi_scatter(st, d):
    st.v_cmp_gt_u32('vcc', 200, v(vTID))
    st.s_and_saveexec_b64(s(sT, 2), 'vcc')
    st.ds_write_b16(v(vWA), v(d))
    st.ds_write_b16_d16_hi(v(vWA), v(d), mods='offset:16')
    st.ds_write_b16(v(vWA), v(d + 1), mods='offset:32')
    st.ds_write_b16_d16_hi(v(vWA), v(d + 1), mods='offset:48')
    st.s_mov_b64('exec', s(sT, 2))
def wphi_read(st):
    st.v_add_u32(v(t0), L_PHI, v(vL16))
    st.v_xor_b32(v(t1), 128, v(t0))
    for p in range(2):
        for i in range(10):
            st.ds_read_b128(a(aPHI + (p * 10 + i) * 4, 4), v(t0 + p), mods='offset:%d' % (i * 1024))
def prep_offsets(st):
    for e in range(2):
        st.s_lshl_b32(s(sT), s(sW), 7)
        st.v_add_u32(v(t0), s(sT), v(vLANE))
        if e: st.v_add_u32(v(t0), 64, v(t0))
        div_small(st, t1, t0, 12)
        st.v_mul_u32_u24(v(t2), 12, v(t1)); st.v_sub_u32(v(t2), v(t0), v(t2))
        st.v_mul_u32_u24(v(vP3D + e), 3072, v(t1))
        st.v_lshl_add_u32(v(vP3D + e), v(t2), 4, v(vP3D + e))
        div_small(st, t1, t0, 10)
        st.v_mul_u32_u24(v(t2), 10, v(t1)); st.v_sub_u32(v(t2), v(t0), v(t2))
        st.v_mul_u32_u24(v(vP4D + e), 1280, v(t1))
        st.v_lshl_add_u32(v(vP4D + e), v(t2), 4, v(vP4D + e))
def issue_prep(st, i, es=(0, 1)):
    a0, a1, a2 = sE, sF, sCc
    st.s_lshl_b32(s(a2), s(sW), 11)
    if i < 2:
        st.s_mul_i32(s(a0), s(sR), 40 * 3072); st.s_mul_i32(s(a1), s(sC), 192)
    else:
        if i == 2: st.s_mul_i32(s(a0), s(sR), 40 * 1280)
        else: st.s_lshl_b32(s(a0), s(sR), 1); st.s_add_u32(s(a0), s(a0), s(sP)); st.s_mul_i32(s(a0), s(a0), 48 * 1280)
        st.s_mul_i32(s(a1), s(sM), 160)
    st.s_add_u32(s(a0), s(a0), s(a1))
    S_, L_, vo = [(S_WG, L_PG, vP3D), (S_WU, L_PU, vP3D), (S_WO, L_P2, vP4D), (S_WD, L_P4, vP4D)][i]
    for e in es:
        st.s_add_u32('m0', s(a2), L_ + e * 1024)
        st.buffer_load_dwordx4(v(vo + e), srd(S_), s(a0), mods='offen lds', tag='prep%d' % i)
def gram(st, sg):
    for tt in range(2):
        for q in range(4):
            ks = 4 * sg + q
            mfma(st, v(vGR + 4 * tt, 4), xf(ks, tt), xf(ks, tt), ks == 0)
            mfma(st, v(vGR + 8 + 4 * tt, 4), v(vONE, 4), xf(ks, tt), ks == 0)
def ln_stats(st):
    for tt in range(2):
        q_, m_, u_ = vE, vE + 1, vE + 2
        G = vGR + 4 * tt
        st.v_cmp_eq_u32('vcc', 1, v(vCC)); st.v_mul_f32(v(m_), s(sINV640), v(vGR + 8 + 4 * tt)); st.v_cndmask_b32(v(q_), v(G), v(G + 1), 'vcc')
        st.v_cmp_eq_u32('vcc', 2, v(vCC)); st.v_sub_f32(v(vST + 2 * tt), 0, v(m_)); st.v_cndmask_b32(v(q_), v(q_), v(G + 2), 'vcc')
        st.v_cmp_eq_u32('vcc', 3, v(vCC)); st.v_cndmask_b32(v(q_), v(q_), v(G + 3), 'vcc')
        st.v_cmp_eq_u32('vcc', v(vR4), v(vG)); st.v_cndmask_b32(v(q_), 0, v(q_), 'vcc')
        allreduce_groups(st, q_, u_, 'v_add_f32')
        st.v_mul_f32(v(q_), s(sINV640), v(q_))
        st.v_fma_f32(v(q_), '-' + v(m_), v(m_), v(q_))
        st.v_max_f32(v(q_), 0, v(q_))
        st.v_add_f32(v(q_), s(sEPS), v(q_))
        st.v_rsq_f32(v(vST + 2 * tt + 1), v(q_))

vVA, vK1A, vFA, vKA, vKB, vPS = vEA, vEA + 1, vEA + 2, vEA + 3, vEA + 4, vEA + 6
def epi_addrs(st):
    b0, b1, b2, b3, b4, b5 = sT + 2, sT + 3, sT + 4, sT + 5, sT + 6, sT + 7
    st.s_mul_i32(s(b0), s(sW), 9216)
    st.s_add_u32(s(b0), s(b0), L_FV)
    st.v_mul_u32_u24(v(t0), 288, v(vJ))
    st.v_add_u32(v(t0), s(b0), v(t0))
    st.v_lshl_add_u32(v(vVA), v(vG), 3, v(t0))
    st.v_and_b32(v(t1), 1, v(vG)); st.v_mul_u32_u24(v(t1), 48, v(t1))
    st.v_lshrrev_b32(v(t2), 1, v(vG)); st.v_lshlrev_b32(v(t2), 3, v(t2))
    st.v_sub_u32(v(t1), v(t1), v(t2))
    st.v_add_u32(v(vK1A), v(t0), v(t1))
    st.v_lshrrev_b32(v(t1), 1, v(vG)); st.v_mul_u32_u24(v(t1), 16 * 288, v(t1))
    st.v_and_b32(v(t2), 1, v(vG)); st.v_mul_u32_u24(v(t2), 80, v(t2))
    st.v_add3_u32(v(vFA), v(t0), v(t1), v(t2))
    st.s_lshr_b32(s(b0), s(sW), 1)
    st.s_and_b32(s(b1), s(sW), 1)
    st.v_lshl_add_u32(v(t0), v(vG), 2, v(vR4))
    st.v_mul_u32_u24(v(t0), 288, v(t0))
    st.s_mul_i32(s(b2), s(b0), 80); st.s_add_u32(s(b2), s(b2), L_FV)
    st.v_lshl_add_u32(v(vKA), v(vCC), 3, v(t0))
    st.v_add_u32(v(vKA), s(b2), v(vKA))
    st.s_mul_i32(s(b2), s(b0), 48); st.s_lshl_b32(s(b3), s(b1), 5)
    st.s_add_u32(s(b2), s(b2), s(b3)); st.s_add_u32(s(b2), s(b2), L_FV + 160)
    st.s_mul_i32(s(b3), s(b1), -2); st.s_add_u32(s(b3), s(b3), 3)
    st.v_min_u32(v(t1), s(b3), v(vCC))
    st.v_lshl_add_u32(v(vKB), v(t1), 3, v(t0))
    st.v_add_u32(v(vKB), s(b2), v(vKB))
    st.s_mul_i32(s(b2), s(b1), -176); st.s_add_u32(s(b2), s(b2), 256)
    st.s_mul_i32(s(b3), s(b1), -11); st.s_add_u32(s(b3), s(b3), 16)
    st.s_mul_i32(s(b4), s(b1), 1280)
    st.s_mul_i32(s(b5), s(b0), 1792)
    st.s_add_u32(s(b4), s(b4), s(b5))
    st.v_mul_u32_u24(v(t0), s(b2), v(vG))
    st.v_lshlrev_b32(v(t1), 4, v(vJ))
    st.v_add3_u32(v(vPS), v(t0), v(t1), s(b4))
    st.s_lshl_b32(s(b2), s(b2), 2); st.s_add_u32(s(b4), s(b4), s(b2))
    st.v_lshl_add_u32(v(t0), v(vG), 3, v(t1))
    st.v_add_u32(v(vPS + 1), s(b4), v(t0))
    st.v_mov_b32(v(t2), OOB)
    st.v_cmp_gt_u32('vcc', s(b3), v(vJ))
    st.v_cndmask_b32(v(vPS), v(t2), v(vPS), 'vcc')
    st.v_cndmask_b32(v(vPS + 1), v(t2), v(vPS + 1), 'vcc')
    st.v_cmp_gt_u32('vcc', 2, v(vG))
    st.v_cndmask_b32(v(vPS + 1), v(t2), v(vPS + 1), 'vcc')

vPD = 124
PA = list(range(vE + 36, vE + 50))
def prep_addrs3(pr):
    pr.v_and_b32(v(t0), 1, v(vCC)); pr.v_lshlrev_b32(v(t0), 13, v(t0))
    pr.v_lshrrev_b32(v(t1), 1, v(vCC)); pr.v_lshl_add_u32(v(t0), v(t1), 3, v(t0))
    pr.s_mul_i32(s(sT), s(sW), 48); pr.s_add_u32(s(sT), s(sT), L_PG)
    pr.v_add_u32(v(t0), s(sT), v(t0))
    pr.v_lshrrev_b32(v(t1), 1, v(vG)); pr.v_mul_u32_u24(v(t1), 20, v(t1))
    pr.v_and_b32(v(t2), 1, v(vG)); pr.v_lshl_add_u32(v(t1), v(t2), 3, v(t1))
    pr.v_add_u32(v(t1), v(t1), v(vR4))
    pr.v_mul_u32_u24(v(t1), 192, v(t1))
    pr.v_add_u32(v(PA[0]), v(t0), v(t1))
    pr.v_mul_u32_u24(v(t1), 192, v(vR4))
    pr.v_min_u32(v(t2), 2, v(vG))
    pr.v_lshl_add_u32(v(t1), v(t2), 4, v(t1))
    pr.v_add_u32(v(PA[1]), v(t0), v(t1))
    pr.v_lshrrev_b32(v(t0), 1, v(vR4)); pr.v_lshlrev_b32(v(t0), 3, v(t0))
    pr.v_lshrrev_b32(v(t1), 1, v(vCC)); pr.v_lshl_add_u32(v(t0), v(t1), 2, v(t0))
    pr.v_and_b32(v(t1), 1, v(vR4)); pr.v_lshl_add_u32(v(t0), v(t1), 1, v(t0))
    pr.v_and_b32(v(t1), 1, v(vCC)); pr.v_add_u32(v(t0), v(t0), v(t1))
    pr.v_lshlrev_b32(v(t0), 4, v(t0))
    pr.v_lshl_add_u32(v(PA[2]), v(vG), 8, v(t0))
    pr.v_mul_u32_u24(v(t1), 20480, v(vG))
    pr.v_add_u32(v(t1), v(t1), v(t0))
    pr.v_mov_b32(v(t2), OOB)
    pr.v_cmp_gt_u32('vcc', 3, v(vG))
    pr.v_cndmask_b32(v(PA[3]), v(t2), v(t1), 'vcc')
def piece_addrs(pr, which, e, base):
    y0, y1, y2, y3 = PA[base], PA[base + 1], PA[base + 2], PA[13]
    if which == 4:
        pr.s_lshl_b32(s(sT), s(sW), 3); pr.s_add_u32(s(sT), s(sT), 4 * e); lim = 30
    else:
        pr.s_lshl_b32(s(sT), s(sW), 2); pr.s_lshl_b32(s(sT + 1), s(sP), 4); pr.s_add_u32(s(sT), s(sT), s(sT + 1)); lim = 25
    pr.v_add_u32(v(t0), s(sT), v(vG))
    pr.v_cmp_gt_u32('vcc', lim, v(t0))
    pr.v_min_u32(v(t0), lim - 1, v(t0))
    div_small(pr, t1, t0, 5)
    pr.v_mul_u32_u24(v(t2), 5, v(t1)); pr.v_sub_u32(v(t2), v(t0), v(t2))
    pr.v_mul_u32_u24(v(y2), 40, v(vCC)); pr.v_lshl_add_u32(v(y2), v(t2), 3, v(y2))
    if which == 4:
        div_small(pr, y0, t1, 3)
        pr.v_mul_u32_u24(v(y1), 3, v(y0)); pr.v_sub_u32(v(y1), v(t1), v(y1))
        pr.v_mul_u32_u24(v(y0), 24, v(y0))
        pr.v_and_b32(v(y3), 1, v(vR4)); pr.v_add_u32(v(y0), v(y0), v(y3))
        pr.v_lshrrev_b32(v(y3), 1, v(vR4))
        pr.v_lshl_add_u32(v(y0), v(y1), 1, v(y0))
        pr.v_mul_u32_u24(v(y1), 6, v(y1)); pr.v_subrev_u32(v(y1), 10, v(y1))
        pr.v_mul_i32_i24(v(y1), v(y1), v(y3))
        pr.v_add3_u32(v(y1), v(y1), v(y0), 16)
        pr.v_lshl_add_u32(v(y0), v(y3), 3, v(y0))
        L_ = L_P4
    else:
        pr.v_lshrrev_b32(v(y0), 1, v(t1)); pr.v_mul_u32_u24(v(y0), 20, v(y0))
        pr.v_and_b32(v(y1), 1, v(t1)); pr.v_lshl_add_u32(v(y0), v(y1), 3, v(y0))
        pr.v_cmp_eq_u32(s(sT + 2, 2), 4, v(t1))
        pr.v_cndmask_b32(v(y0), v(y0), 16, s(sT + 2, 2))
        pr.v_cndmask_b32(v(y1), 4, 20, s(sT + 2, 2))
        pr.v_add_u32(v(y0), v(y0), v(vR4))
        pr.v_add_u32(v(y1), v(y1), v(y0))
        L_ = L_P2
    pr.v_add_u32(v(y2), L_, v(y2))
    pr.s_movk_i32(s(sT + 4), 160)
    pr.v_mad_u32_u24(v(y0), v(y0), s(sT + 4), v(y2))
    pr.v_mad_u32_u24(v(y1), v(y1), s(sT + 4), v(y2))
    if which == 4:
        pr.s_lshl_b32(s(sT), s(sR), 1); pr.s_add_u32(s(sT), s(sT), s(sP)); pr.s_mul_i32(s(sT), s(sT), 6)
    else:
        pr.s_mul_i32(s(sT), s(sR), 5)
    pr.v_add_u32(v(t1), s(sT), v(t1))
    pr.v_lshrrev_b32(v(y2), 2, v(t1)); pr.v_mul_u32_u24(v(y2), 5120, v(y2))
    pr.v_and_b32(v(t1), 3, v(t1)); pr.v_lshl_add_u32(v(y2), v(t1), 8, v(y2))
    pr.v_lshl_add_u32(v(y2), v(t2), 10, v(y2))
    pr.v_lshl_add_u32(v(y2), v(vJ), 4, v(y2))
    pr.v_mov_b32(v(t0), OOB)
    pr.v_cndmask_b32(v(y2), v(t0), v(y2), 'vcc')
def prep_reads(pr, part, D):
    if part == 0:
        for t in range(3):
            for i in range(2): pr.ds_read_b64_tr_b16(v(D + 4 * t + 2 * i, 2), v(PA[0]), mods='offset:%d' % (768 * i + 16 * t))
        for i in range(2): pr.ds_read_b64_tr_b16(v(D + 12 + 2 * i, 2), v(PA[1]), mods='offset:%d' % (16 * 192 + 3840 * i))
    elif part == 2:
        for i in range(2): pr.ds_read_b64_tr_b16(v(D + 2 * i, 2), v(PA[10 + i]))
    else:
        for p in range(2):
            for i in range(2): pr.ds_read_b64_tr_b16(v(D + 4 * p + 2 * i, 2), v(PA[4 + 3 * p + i]))
def prep_stores(pr, part, D):
    b0, b1 = sE, sF
    if part == 0:
        pr.s_mul_i32(s(b0), s(sC), 245760); pr.s_mul_i32(s(b1), s(sW), 61440); pr.s_add_u32(s(b0), s(b0), s(b1))
        pr.s_mul_i32(s(b1), s(sR), 1280); pr.s_add_u32(s(b0), s(b0), s(b1)); pr.s_add_u32(s(b0), s(b0), WS_W3)
        pr.buffer_store_dwordx4(v(D + 12, 4), v(PA[3]), srd(S_WS), s(b0), mods='offen offset:1024 sc1')
        for t in range(3):
            if t: pr.s_add_u32(s(b0), s(b0), 20480)
            pr.buffer_store_dwordx4(v(D + 4 * t, 4), v(PA[2]), srd(S_WS), s(b0), mods='offen sc1')
    elif part == 2:
        pr.s_mul_i32(s(b1), s(sM), 102400); pr.s_add_u32(s(b1), s(b1), WS_W2)
        pr.buffer_store_dwordx4(v(D, 4), v(PA[12]), srd(S_WS), s(b1), mods='offen sc1', tag='prepstW2')
    else:
        pr.s_mul_i32(s(b1), s(sM), 245760); pr.s_add_u32(s(b1), s(b1), WS_W4)
        for p in range(2): pr.buffer_store_dwordx4(v(D + 4 * p, 4), v(PA[6 + 3 * p]), srd(S_WS), s(b1), mods='offen sc1', tag='prepst2')


def flag_issue(st, dst, voff, ssoff):
    st.buffer_load_dwordx2(v(dst, 2), v(voff), srd(S_WS), s(ssoff), mods='offen sc1')
def flag_check(st, dst, voff, ssoff):
    q = npoll[0]; npoll[0] += 1
    t = '''v_cmp_ne_u64 vcc, s[{n0}:{n1}], v[{t}:{t1}]
    s_cbranch_vccz L_pd{n}
    s_mov_b32 s{c}, {lim}
L_pl{n}:
    buffer_load_dwordx2 v[{t}:{t1}], v{vo}, s[{ws}:{ws3}], s{so} offen sc1
    s_waitcnt vmcnt(0)
    v_cmp_ne_u64 vcc, s[{n0}:{n1}], v[{t}:{t1}]
    s_cbranch_vccz L_pd{n}
    s_sub_u32 s{c}, s{c}, 1
    s_cbranch_scc0 L_pl{n}
L_pd{n}:'''.format(n=q, c=sCNT, lim=OPT['spin'], t=dst, t1=dst + 1, vo=voff, ws=S_WS, ws3=S_WS + 3, so=ssoff, n0=sN, n1=sN + 1)
    st.raw(t, uses=[v(voff), v(dst, 2)], defs=[v(dst, 2)])
def x_read(st, sg):
    for tt in range(2):
        for n in range(4):
            off = (sg % 3) * 32768 + tt * 4096
            ad = vXRd + n
            if off > 65535: st.v_add_u32(v(vE + n), 65536, v(ad)); ad = vE + n; off -= 65536
            st.ds_read_b128(a(32 * sg + 16 * tt + 4 * n, 4), v(ad), mods='offset:%d' % off, tag='xr%d' % sg)
prep_offsets(k)
stamp(k, 'pre')
if OPT['x0e']: issue_x(k, 0)
k.waitvm('W1S')
k.waitlds()
k.s_add_u32(s(sN), s(sN), 1); k.s_addc_u32(s(sN + 1), s(sN + 1), 0)
k.v_mov_b32(v(vNON), s(sN)); k.v_mov_b32(v(vNON + 1), s(sN + 1))
k.s_barrier()
stamp(k, 'w1s')
vW1V = vAF + 8
for p in range(3):
    for i in range(2): k.ds_read_b64_tr_b16(v(vW1V + 4 * p + 2 * i, 2), v(vW1A + p), mods='offset:%d' % (960 * i))
k.buffer_store_dwordx4(v(vW1V, 4), v(vW1O), srd(S_WS), s(bE), mods='offen sc1')
k.buffer_store_dwordx4(v(vW1V + 4, 4), v(vW1O + 1), srd(S_WS), s(bO), mods='offen sc1')
k.buffer_store_dwordx4(v(vW1V + 8, 4), v(vW1O + 2), srd(S_WS), 0, mods='offen sc1')
cE, cO, c2 = vAF + 20, vAF + 21, vAF + 22
for p, d in enumerate((cE, cO, c2)): k.v_mov_b32(v(d), 0)
for i in range(4):
    for p, d in enumerate((cE, cO, c2)): k.v_dot2_f32_bf16(v(d), v(vW1V + 4 * p + i), s(sONES), v(d))
k.v_cmp_eq_u32('vcc', 0, v(vG)); k.v_cmp_eq_u32(s(sT, 2), 1, v(vG))
k.v_cndmask_b32(v(t0), 0, v(c2), 'vcc'); k.v_cndmask_b32(v(t1), 0, v(c2), s(sT, 2))
k.v_add_f32(v(cE), v(cE), v(t0)); k.v_add_f32(v(cO), v(cO), v(t1))
k.v_permlane32_swap_b32(v(cE), v(cO))
k.v_add_f32(v(cE), v(cE), v(cO))
k.v_mov_b32(v(cO), v(cE))
k.v_permlane16_swap_b32(v(cE), v(cO))
k.v_add_f32(v(cE), v(cE), v(cO))
k.v_cvt_pk_bf16_f32(v(cO), v(cE), v(cE))
k.v_lshlrev_b32(v(cO), 16, v(cO))
k.v_sub_f32(v(cO), v(cE), v(cO))
k.v_cvt_pk_bf16_f32(v(cO), v(cE), v(cO))
k.buffer_store_dword(v(cO), v(vW1O + 3), srd(S_WS), s(sD), mods='offen sc1', tag='w1st')
wphi_scatter(k, vWP)
u = Stream()
for i in range(4): u.v_mov_b32(v(vONE + i), 0x3f803f80)
u.v_lshlrev_b32(v(vFR), 7, v(vJ))
u.v_lshlrev_b32(v(vFC), 11, v(vJ))
u.v_mul_u32_u24(v(vXRO), 1280, v(vJ))
u.v_mul_u32_u24(v(t0), 40, v(vG))
u.v_add_u32(v(vXRO), v(vXRO), v(t0))
u.s_add_u32(s(sT), s(sXO + 1), L_XST)
u.v_xor_b32(v(t0), v(vJ), v(vG))
u.v_lshlrev_b32(v(t0), 4, v(t0))
u.v_lshl_add_u32(v(t2), v(vJ), 8, v(t0))
for n in range(4):
    u.v_xor_b32(v(vXRd + n), 64 * n, v(t2))
    u.v_add_u32(v(vXRd + n), s(sT), v(vXRd + n))
u.v_add_u32(v(vL16b), 4096, v(vL16))
u.v_add_u32(v(vKV2), 61440, v(vL16))
u.v_add_u32(v(vKV2 + 1), L_Q, v(vL16))
sL2E, sINV640, sEPS, sK1, sK3, sEPS6 = sK, sK + 1, sK + 2, sK + 3, sK + 4, sK + 5
sL2Ep = 10
u.s_mov_b32(s(sL2E), f32(LOG2E)); u.s_mov_b32(s(sINV640), f32(1.0 / 640)); u.s_mov_b32(s(sEPS), f32(1e-5))
GK1 = -2.0 * math.sqrt(2.0 / math.pi) * LOG2E
u.s_mov_b32(s(sK1), f32(GK1)); u.s_mov_b32(s(sK3), f32(GK1 * 0.044715)); u.s_mov_b32(s(sEPS6), f32(1e-6))
u.s_mov_b32(s(sL2Ep), f32(LOG2E)); u.s_mov_b32(s(sL2Ep + 1), f32(-LOG2E))
f_ = Stream(); issue_x(f_, 1 if OPT['x0e'] else 0)
k.add(weave(u, [(f_, 0, None, 'vmem')], anchor='any'))
k.waitvm('w1st')
k.waitlds()
k.s_barrier()
post(k, F_W1)
stamp(k, 'w1post')

u = Stream()
prep_addrs3(u); piece_addrs(u, 2, 0, 10); piece_addrs(u, 4, 0, 4); piece_addrs(u, 4, 1, 7); epi_addrs(u)
f_ = Stream()
for ch in str(OPT['ord']):
    if ch == '1' and not OPT['x0e']: issue_x(f_, 1)
    if ch == '2': issue_x(f_, 2)
    if ch == '9': issue_prep(f_, 2)
k.add(weave(u, [(f_, 0, None, 'vmem')], anchor='any'))
stamp(k, 'prepiss')
sKV, sKVt, sQs, sQt, sFW = sV, sV + 1, sV + 2, sV + 3, sV + 8
k.s_mul_i32(s(sB), s(sW), 5120); k.s_mul_i32(s(sA), s(sW), 3072)
k.s_mul_i32(s(sKV), s(sC), 102400); k.s_add_u32(s(sKV), s(sKV), s(sB)); k.s_add_u32(s(sKV), s(sKV), WS_W1K)
k.s_mul_i32(s(sQs), s(sC), 61440); k.s_add_u32(s(sQs), s(sQs), s(sA)); k.s_add_u32(s(sQs), s(sQs), WS_W1Q)
k.s_lshl_b32(s(sD), s(sC), 13); k.s_lshl_b32(s(sCc), s(sW), 11); k.s_add_u32(s(sD), s(sD), s(sCc)); k.s_add_u32(s(sD), s(sD), WS_CS)
k.s_lshl_b32(s(sFW), s(sC), 7); k.s_add_u32(s(sFW), s(sFW), WS_FLAGS + F_W1 * 32768)
vF0 = 18
k.waitvm('x0')
x_read(k, 0)
for sg in range(5):
    f1 = Stream(); f2 = Stream(); f3 = Stream()
    if sg < 2: f1.waitlds('xr%d' % sg); issue_x(f1, sg + 3)
    if sg < 4: f3.waitvm('x%d' % (sg + 1)); x_read(f3, sg + 1)
    if sg == 2: f3.s_barrier()
    if sg == 0: wphi_read(f2)
    if sg == 3:
        prep_reads(f2, 2, vE + 20); prep_stores(f2, 2, vE + 20)
    if sg == OPT['w1fl']: flag_issue(f1, vF0, vFC, sFW)
    m_ = Stream(); gram(m_, sg)
    k.add(pack(m_, [(f1, 1, None, 'vmem'), (f3, 2, 12), (f2, 0, None)]))
k.waitlds()
k.s_barrier()
stamp(k, 'xs4')
flag_check(k, vF0, vFC, sFW)
stamp(k, 'w1flag')
def issue_kv(st, sg, lo=0, hi=5):
    if lo == 0:
        chunk(st, sg, sKVt, sT + 7)
        st.s_mul_i32(s(sKVt), s(sKVt), 20480); st.s_add_u32(s(sKVt), s(sKVt), s(sKV))
    for n in range(lo, hi):
        if n % 4 == 0: st.s_add_u32('m0', s(sB), L_KV + sg * 20480 + n * 1024)
        st.buffer_load_dwordx4(v(vL16 if n < 4 else vL16b), srd(S_WS), s(sKVt), mods='offen offset:%d sc1 lds' % ((n & 3) * 1024), tag='W%d' % sg)
def issue_q(st, lo, hi):
    for ch in range(lo, hi):
        chunk(st, ch, sQt, sT + 7)
        st.s_mul_i32(s(sQt), s(sQt), 12288); st.s_add_u32(s(sQt), s(sQt), s(sQs))
        st.s_add_u32('m0', s(sA), L_Q + ch * 12288)
        for n in range(3):
            st.buffer_load_dwordx4(v(vL16), srd(S_WS), s(sQt), mods='offen offset:%d sc1 lds' % (n * 1024), tag='Q%d' % ch)
issue_kv(k, 0)
k.s_add_u32('m0', s(sCc), L_CSF)
for n in range(2): k.buffer_load_dwordx4(v(vL16), srd(S_WS), s(sD), mods='offen offset:%d sc1 lds' % (n * 1024), tag='CSF')
issue_kv(k, 1)
ln_stats(k)
k.waitvm('W0')
k.s_barrier()
stamp(k, 'kvgo')

vF1, vF2, vFA1, vF3, vPLO, vT16, vKR = 18, 20, 22, 24, 30, 31, 32
sW2s, sW2l, sW2t, sW3, sW3t, sPL, sFP, sFK = sV + 4, sV + 5, sV + 6, sV + 7, sXO + 3, sXO + 4, sV + 9, sV + 10
def q_setup(st):
    st.v_bfe_u32(v(vFA1), v(vLANE), 4, 1)
    st.v_lshl_add_u32(v(vFA1), v(vFA1), 7, v(vFC))
    st.s_lshl_b32(s(sFP), s(sM), 8); st.s_add_u32(s(sFP), s(sFP), WS_FLAGS + F_PREP * 32768)
    st.s_lshl_b32(s(sFK), s(sCQ), 7); st.s_add_u32(s(sFK), s(sFK), WS_FLAGS + F_KV * 32768)
    st.v_and_b32(v(vKR), 1, v(vG)); st.v_mul_u32_u24(v(vKR), 1792, v(vKR))
    st.s_lshl_b32(s(sW2l), s(sW), 12)
    st.s_mul_i32(s(sW2s), s(sM), 102400); st.s_add_u32(s(sW2s), s(sW2s), WS_W2)
    st.v_lshl_add_u32(v(vKR), v(vCC), 4, v(vKR))
    st.s_mul_i32(s(sW3), s(sC), 245760); st.s_mul_i32(s(sW3t), s(sW), 61440); st.s_add_u32(s(sW3), s(sW3), s(sW3t))
    st.v_mov_b32(v(t1), L_ZERO - L_KVR)
    st.s_add_u32(s(sW3), s(sW3), WS_W3)
    st.v_cmp_eq_u32('vcc', v(vR4), v(vG))
    st.s_mul_i32(s(sPL), s(sCQ), 16 * 3584); st.s_add_u32(s(sPL), s(sPL), WS_PART)
    st.v_lshlrev_b32(v(vT16), 4, v(vTID))
    st.v_cndmask_b32(v(vKR), v(t1), v(vKR), 'vcc')
    st.v_mov_b32(v(t1), OOB)
    st.v_cmp_gt_u32('vcc', 224, v(vTID))
    st.v_add_u32(v(vKR), L_KVR, v(vKR))
    st.v_cndmask_b32(v(vPLO), v(t1), v(vT16), 'vcc')
    st.v_add_u32(v(vT16), L_KVR, v(vT16))
W2ORD = list(range(8, 25)) + list(range(8))
def issue_w2(st, lo, hi):
    last = None
    for i in W2ORD[lo:hi]:
        if (i >> 2) != last:
            last = i >> 2
            if i < 24: st.s_add_u32(s(sW2t), s(sW2l), last * 16384)
            else: st.s_lshl_b32(s(sW2t), s(sW), 10); st.s_add_u32(s(sW2t), s(sW2t), 98304)
            st.s_add_u32('m0', s(sW2t), L_W2)
            st.s_add_u32(s(sW2t), s(sW2t), s(sW2s))
        st.buffer_load_dwordx4(v(vL16), srd(S_WS), s(sW2t), mods='offen offset:%d sc1 lds' % ((i & 3) * 1024), tag='W2')
def issue_w3(st, lst):
    last = None
    for i in lst:
        if (i >> 2) != last:
            last = i >> 2; st.s_add_u32(s(sW3t), s(sW3), last * 4096)
        st.buffer_load_dwordx4(a(4 * i, 4), v(vL16), srd(S_WS), s(sW3t), mods='offen offset:%d sc1' % ((i & 3) * 1024))
def kv_reads(st, ks):
    for X in range(5):
        off = ks * 5120 + X * 1024
        st.ds_read_b128(v(vAF + (ks & 1) * 20 + X * 4, 4), v(vL16 if off < 61440 else vKV2), mods='offset:%d' % (L_KV + (off if off < 61440 else off - 61440)))
kv_reads(k, 0)
for sg in range(5):
    m_ = Stream()
    for q in range(4):
        ks = 4 * sg + q
        mm = Stream()
        for X in range(5):
            A = v(vAF + (q & 1) * 20 + X * 4, 4)
            mfma(mm, v(acc(X, 0), 4), A, xf(ks, 0), ks == 0)
            mfma(mm, v(acc(X, 1), 4), A, xf(ks, 1), ks == 0)
        ff = Stream()
        if ks < 19: kv_reads(ff, ks + 1)
        mm = weave(mm, [(ff, 0, 10)])
        if q == 2 and sg < 4:
            mm.waitvm('W%d' % (sg + 1))
            if sg == 0: mm.waitvm('prepstW2')
            if sg >= 2: mm.waitlds()
            mm.s_barrier()
            if sg == 0: post(mm, F_PREP2)
        m_.add(mm)
    fills = []
    f1 = Stream()
    if sg == 0: issue_kv(f1, 2); issue_kv(f1, 3, 0, 2)
    if sg == 1: issue_kv(f1, 3, 2, 5); issue_kv(f1, 4)
    if sg == 2: issue_q(f1, 0, 3)
    if sg == 3: issue_q(f1, 3, 5); issue_prep(f1, 0)
    if sg == 4: issue_prep(f1, 1); issue_prep(f1, 3)
    fills.append((f1, 0, None, 'vmem'))
    if sg == 1:
        f4 = Stream()
        f4.v_add_u32(v(t0), L_CSF, v(vL16))
        for X in range(5): f4.ds_read_b128(v(vE + 4 + 4 * X, 4), v(t0), mods='offset:%d' % (X * 1024))
        for X in range(3): f4.ds_read_b128(a(aCSQ + 4 * X, 4), v(t0), mods='offset:%d' % ((5 + X) * 1024))
        fills.append((f4, 0, 28))
    if sg == 0:
        f4 = Stream(); q_setup(f4); fills.append((f4, 0, None))
    if sg == 4:
        pass
    if sg == 3:
        f4 = Stream(); f4.s_add_u32(s(sD), s(sFP), (F_PREP2 - F_PREP) * 32768); flag_issue(f4, vF3, vFA1, sD); fills.append((f4, 2, 3, 'vmem'))
    if sg == 2:
        for X in range(5): mfma(m_, v(acc(X, 2), 4), v(vE + 4 + 4 * X, 4), v(vONE, 4), True)
    m_ = pack(m_, fills); print('kv stage', sg, 'est', m_.est)
    k.add(m_)
    if sg < 4: stamp(k, 'kv%d' % sg)
stamp(k, 'kvgemm')

def ln_pack(st, X, tt, dst, pk=True):
    A = acc(X, tt); C = acc(X, 2); S = v(vST + 2 * tt, 2)
    if pk:
        for h in range(2):
            st.v_pk_fma_f32(v(A + 2 * h, 2), v(C + 2 * h, 2), S, v(A + 2 * h, 2), mods='op_sel_hi:[1,0,1]')
        for h in range(2):
            st.v_pk_mul_f32(v(A + 2 * h, 2), v(A + 2 * h, 2), S, mods='op_sel:[0,1] op_sel_hi:[1,1]')
    else:
        for i in range(4): st.v_fmac_f32(v(A + i), v(C + i), v(vST + 2 * tt))
        for i in range(4): st.v_mul_f32(v(A + i), v(A + i), v(vST + 2 * tt + 1))
    for h in range(2):
        st.v_cvt_pk_bf16_f32(v(dst + h), v(A + 2 * h), v(A + 2 * h + 1))

vBK = vE + 4
vP = vE + 16
vEP = vACC
vMX = vE + 56
vPK = vAF
def feature_map(st):
    for tt in range(2):
        for ks in range(2):
            for ft in range(5):
                mfma(st, v(vP + 4 * ft, 4), a(aPHI + (tt * 10 + ft * 2 + ks) * 4, 4), v(vBK + 6 * tt + 2 * ks, 4), tt == 0 and ks == 0)
def softmax2(st, order):
    mx, mn, sp, sn = vMX, vMX + 1, vMX + 2, vMX + 4
    st.v_max3_f32(v(mx), v(vP), v(vP + 1), v(vP + 2))
    st.v_min3_f32(v(mn), v(vP), v(vP + 1), v(vP + 2))
    for i in range(3, 19, 2):
        st.v_max3_f32(v(mx), v(mx), v(vP + i), v(vP + i + 1))
        st.v_min3_f32(v(mn), v(mn), v(vP + i), v(vP + i + 1))
    st.v_max_f32(v(mx), v(mx), v(vP + 19))
    st.v_min_f32(v(mn), v(mn), v(vP + 19))
    st.v_mul_f32(v(mx), s(sL2Ep + 1), v(mx))
    st.v_mul_f32(v(mn), s(sL2Ep), v(mn))
    for i in range(0, 20, 2):
        st.v_pk_fma_f32(v(vEP + i, 2), v(vP + i, 2), s(sL2Ep, 2), v(mx, 2), mods='op_sel_hi:[1,0,0]')
        st.v_pk_fma_f32(v(vP + i, 2), v(vP + i, 2), s(sL2Ep, 2), v(mx, 2), mods='op_sel:[0,1,1] op_sel_hi:[1,1,1]')
    for i in range(20):
        st.v_exp_f32(v(vEP + i), v(vEP + i))
        st.v_exp_f32(v(vP + i), v(vP + i))
    st.v_pk_add_f32(v(sp, 2), v(vEP, 2), v(vEP + 2, 2))
    st.v_pk_add_f32(v(sn, 2), v(vP, 2), v(vP + 2, 2))
    for i in range(4, 20, 2):
        st.v_pk_add_f32(v(sp, 2), v(sp, 2), v(vEP + i, 2))
        st.v_pk_add_f32(v(sn, 2), v(sn, 2), v(vP + i, 2))
    st.v_add_f32(v(sp), v(sp), v(sp + 1))
    st.v_add_f32(v(sn), v(sn), v(sn + 1))
    st.v_rcp_f32(v(sp), v(sp))
    st.v_rcp_f32(v(sn), v(sn))
    for i in range(0, 20, 2):
        st.v_pk_mul_f32(v(vEP + i, 2), v(vEP + i, 2), v(sp, 2), mods='op_sel_hi:[1,0]')
        st.v_pk_mul_f32(v(vP + i, 2), v(vP + i, 2), v(sn, 2), mods='op_sel_hi:[1,0]')
    for i in range(10):
        st.v_cvt_pk_bf16_f32(v(vPK + order[i]), v(vEP + 2 * i), v(vEP + 2 * i + 1))
    for i in range(10):
        st.v_cvt_pk_bf16_f32(v(vPK + order[10 + i]), v(vP + 2 * i), v(vP + 2 * i + 1))

m_ = Stream()
for tt in range(2):
    for X in range(3): ln_pack(m_, X, tt, vBK + 6 * tt + 2 * X)
k.add(m_)
vVP = vAF + 20; vK1 = vAF + 30
m_ = Stream(); feature_map(m_)
f_ = Stream()
f_.v_cmp_lt_u32('vcc', 1, v(vG))
f_.v_mov_b32(v(t1), 0x3f80)
for tt in range(2):
    f_.v_cndmask_b32(v(vK1 + 2 * tt), v(t1), v(vBK + 6 * tt + 2), 'vcc')
    f_.v_cndmask_b32(v(vK1 + 2 * tt + 1), 0, v(vBK + 6 * tt + 3), 'vcc')
    f_.ds_write_b64(v(vK1A), v(vK1 + 2 * tt, 2), mods='offset:%d' % (200 + tt * 16 * 288))
for tt in range(2):
    for h in range(2):
        ln_pack(f_, 3 + h, tt, vVP + 4 * tt + 2 * h, pk=False)
        f_.ds_write_b64(v(vVA), v(vVP + 4 * tt + 2 * h, 2), mods='offset:%d' % (160 + 48 * h + tt * 16 * 288))
k.add(pack(m_, [(f_, 0, None)]))
m_ = Stream(); softmax2(m_, list(range(20)))
k.add(m_)
for i in range(5): k.ds_write_b128(v(vFA), v(vPK + 4 * i, 4), mods='offset:%d' % (16 * i))
if OPT['stop'] == 1:
    dump(k, [v(vBK, 4), v(vBK + 4, 4), v(vBK + 8, 4), v(vVP, 4), v(vVP + 4, 4), v(vST, 4)] + [v(vPK + 4 * i, 4) for i in range(5)])
    finish(k)
k.waitvm('Q4')
k.waitlds()
k.s_barrier()
stamp(k, 'phik')
vKVA = vACC; vKVB = vACC + 48; vKVD = vE + 4
for ks in range(4):
    off = 32 * ks * 288
    for i in range(2):
        k.ds_read_b64_tr_b16(v(vKVB + 4 * ks + 2 * i, 2), v(vKB), mods='offset:%d' % (off + 16 * i * 288))
    for ft in range(3):
        for i in range(2):
            k.ds_read_b64_tr_b16(v(vKVA + (ks * 3 + ft) * 4 + 2 * i, 2), v(vKA), mods='offset:%d' % (off + 16 * i * 288 + 32 * ft))
k.s_lshl_b32(s(sT), s(sC), 4); k.s_add_u32(s(sT), s(sT), s(sR)); k.s_mul_i32(s(sT), s(sT), 3584)
k.s_add_u32(s(sT), s(sT), WS_PART)
for ks in range(4):
    for ft in range(3):
        mfma(k, v(vKVD + 4 * ft, 4), v(vKVA + (ks * 3 + ft) * 4, 4), v(vKVB + 4 * ks, 4), ks == 0)
vKVP = vE + 16
for i in range(6): k.v_cvt_pk_bf16_f32(v(vKVP + i), v(vKVD + 2 * i), v(vKVD + 2 * i + 1))
k.buffer_store_dwordx4(v(vKVP, 4), v(vPS), srd(S_WS), s(sT), mods='offen sc1')
k.buffer_store_dwordx2(v(vKVP + 4, 2), v(vPS + 1), srd(S_WS), s(sT), mods='offen sc1', tag='part')
stamp(k, 'kvst')

def qbuf(b, X): return vAF + b * 12 + X * 4
def q_reads(st, ks):
    for X in range(3): st.ds_read_b128(v(qbuf(ks & 1, X), 4), v(vKV2 + 1), mods='offset:%d' % (ks * 3072 + X * 1024))
PLQ = [88 + 4 * i for i in range(4)] + [140 + 4 * i for i in range(10)] + [248, 252]
def issue_part(st):
    for r_ in range(16):
        if r_: st.s_add_u32(s(sPL), s(sPL), 3584)
        st.buffer_load_dwordx4(v(PLQ[r_], 4), v(vPLO), srd(S_WS), s(sPL), mods='offen sc1')
q_reads(k, 0)
m_ = Stream()
for X in range(3): mfma(m_, v(acc(X, 2), 4), a(aCSQ + 4 * X, 4), v(vONE, 4), True)
for ks in range(20):
    mm = Stream()
    for X in range(3):
        A = v(qbuf(ks & 1, X), 4)
        mfma(mm, v(acc(X, 0), 4), A, xf(ks, 0), ks == 0)
        mfma(mm, v(acc(X, 1), 4), A, xf(ks, 1), ks == 0)
    ff = Stream()
    if ks < 19: q_reads(ff, ks + 1)
    m_.add(weave(mm, [(ff, 0, 6)]))
QP = OPT['qpost']
assert QP >= 3 + 6 * 4
fp = Stream(); stamp(fp, 'q_a'); fp.waitvm('part'); stamp(fp, 'q_b'); fp.s_barrier(); post(fp, F_KV)
NW3 = 0
W3ORD = list(range(60))
QP2 = OPT['qpost2']
fr = Stream(); prep_reads(fr, 0, vE + 4); prep_reads(fr, 1, vE + 24)
fs = Stream(); prep_stores(fs, 0, vE + 4); prep_stores(fs, 1, vE + 24)
fq = Stream(); fq.waitvm('prepst2'); fq.s_barrier(); post(fq, F_PREP)
f2 = Stream(); flag_check(f2, vF3, vFA1, sD); issue_w2(f2, 0, OPT['w2q'])
f4 = Stream(); flag_issue(f4, vF2, vFC, sFK)
m_ = pack(m_, [(fp, QP, QP + 1, 'vmem'), (fr, QP + 1, QP + 10), (fs, QP + 11, QP + 26, 'vmem'), (f2, QP + 28, 122, 'vmem'), (fq, QP2, QP2 + 1, 'vmem'),
               (f4, OPT['qfl'], OPT['qfl'] + 1, 'vmem')])
print('q gemm est', m_.est)
k.add(m_)
stamp(k, 'qgemm')
m_ = Stream()
for tt in range(2):
    for X in range(3): ln_pack(m_, X, tt, vBK + 6 * tt + 2 * X)
feature_map(m_)
order = [0] * 20
for s_ in range(4):
    order[2 * s_] = 4 * s_; order[2 * s_ + 1] = 4 * s_ + 1; order[8 + 2 * s_] = 4 * s_ + 2; order[9 + 2 * s_] = 4 * s_ + 3
for i in range(16, 20): order[i] = i
softmax2(m_, order)
f5 = Stream(); stamp(f5, 'q_e'); flag_check(f5, vF2, vFC, sFK); stamp(f5, 'q_f'); issue_part(f5)
N2 = min(25, OPT['w2q'] + OPT['w2s'])
f6 = Stream(); issue_w2(f6, OPT['w2q'], N2); flag_issue(f6, vF1, vFA1, sFP)
k.add(weave(m_, [(f5, OPT['qpl'], OPT['qpl'] + 130, 'vmem'), (f6, OPT['qpl'] + 132, None, 'vmem')], anchor='any'))
stamp(k, 'phiq')
if OPT['stop'] == 2:
    k.waitvm(); k.s_barrier()
    dump(k, [v(vPK + 4 * i, 4) for i in range(5)])
    finish(k)

vSUM = vE
for i in range(4): k.v_mov_b32(v(vSUM + 12 + i), 0)
k.ds_write_b128(v(vT16), v(vSUM + 12, 4), mods='offset:%d' % (L_ZERO - L_KVR))
for r_ in range(16):
    for i in range(4):
        if r_ == 0:
            k.v_lshlrev_b32(v(vSUM + 2 * i), 16, v(PLQ[0] + i))
            k.v_and_b32(v(vSUM + 2 * i + 1), 0xffff0000, v(PLQ[0] + i))
        else:
            k.v_dot2_f32_bf16(v(vSUM + 2 * i), v(PLQ[r_] + i), s(sONE_LO), v(vSUM + 2 * i))
            k.v_dot2_f32_bf16(v(vSUM + 2 * i + 1), v(PLQ[r_] + i), s(sONE_HI), v(vSUM + 2 * i + 1))
vOA = 104
for i in range(4): k.v_cvt_pk_bf16_f32(v(vSUM + 8 + i), v(vSUM + 2 * i), v(vSUM + 2 * i + 1))
k.ds_write_b128(v(vT16), v(vSUM + 8, 4))
k.v_lshrrev_b32(v(t0), 1, v(vG)); k.v_mul_u32_u24(v(t0), 20480, v(t0))
k.v_lshl_add_u32(v(t0), v(vJ), 4, v(t0))
k.v_and_b32(v(t1), 1, v(vG))
k.v_lshl_add_u32(v(t2), v(t1), 3, v(t0))
k.v_lshl_add_u32(v(t0), v(t1), 9, v(t0))
k.s_mul_i32(s(sT), s(sR), 163840); k.s_mul_i32(s(sT + 1), s(sW), 40960); k.s_add_u32(s(sT), s(sT), s(sT + 1))
k.s_mul_i32(s(sT + 1), s(sCQ), 1280); k.s_add_u32(s(sT), s(sT), s(sT + 1)); k.s_add_u32(s(sT), s(sT), WS_O)
k.waitlds()
k.s_barrier()
stamp(k, 'kvsum')
vOD = 224
vOP = 84
TORD = (5, 0, 1, 2, 3, 4)
def oread(st, n):
    s_, t = n // 6, TORD[n % 6]
    off = 256 * s_ + 64 * t if t < 4 else 1280 + 64 * (t - 4) + 80 * s_
    st.ds_read_b128(v(vOA + n * 4, 4), v(vKR), mods='offset:%d' % off)
for n in range(8): oread(k, n)
m_ = Stream()
for n in range(30):
    mfma(m_, v(vOD + 4 * TORD[n % 6], 4), v(vOA + n * 4, 4), v(vPK + 4 * (n // 6), 4), n < 6)
    if n + 8 < 30: oread(m_, n + 8)
k.add(m_)
k.v_add_f32(v(vOD + 20), s(sEPS6), v(vOD + 20))
k.v_rcp_f32(v(vOD + 20), v(vOD + 20))
for i in range(10): k.v_pk_mul_f32(v(vOD + 2 * i, 2), v(vOD + 2 * i, 2), v(vOD + 20, 2), mods='op_sel_hi:[1,0]')
for i in range(10): k.v_cvt_pk_bf16_f32(v(vOP + i), v(vOD + 2 * i), v(vOD + 2 * i + 1))
k.buffer_store_dwordx4(v(vOP, 4), v(t0), srd(S_WS), s(sT), mods='offen sc1')
k.buffer_store_dwordx4(v(vOP + 4, 4), v(t0), srd(S_WS), s(sT), mods='offen offset:256 sc1')
k.buffer_store_dwordx2(v(vOP + 8, 2), v(t2), srd(S_WS), s(sT), mods='offen offset:1024 sc1', tag='ost')
stamp(k, 'ost')
vH = 18
vXRES = 28
vOF = 40
vA2 = 120
vD2 = 152
vA2P = 172
issue_w2(k, N2, 25)
flag_check(k, vF1, vFA1, sFP)
issue_w3(k, W3ORD[NW3:NW3 + OPT['w3d']]); NW3 += OPT['w3d']
k.s_lshl_b32(s(sE), s(sW), 1); k.s_add_u32(s(sE), s(sE), s(sP))
k.s_lshl_b32(s(sT), s(sR), 3); k.s_add_u32(s(sF), s(sT), s(sE))
k.s_mul_i32(s(sXR), s(sF), 16 * 1280)
k.s_mul_i32(s(sT), s(sM), 160); k.s_add_u32(s(sXR), s(sXR), s(sT))
k.waitvm('ost')
k.s_barrier()
post(k, F_O)
k.buffer_load_dwordx4(v(vXRES, 4), v(vXRO), srd(S_X), s(sXR), mods='offen')
k.buffer_load_dwordx4(v(vXRES + 4, 4), v(vXRO), srd(S_X), s(sXR), mods='offen offset:16')
k.buffer_load_dwordx2(v(vXRES + 8, 2), v(vXRO), srd(S_X), s(sXR), mods='offen offset:32')
stamp(k, 'opost')
if OPT['stop'] == 3: finish(k)

W3A = min(60, NW3 + OPT['w3a']); W3B = min(60, W3A + OPT['w3b'])
if N2 < 25:
    k.waitvm('W2'); k.s_barrier()
k.v_add_u32(v(t0), L_W2, v(vL16))
k.v_add_u32(v(t1), L_W2 + 61440, v(vL16))
for i in range(20): k.ds_read_b128(v(vA2P + 4 * i, 4), v(t0), mods='offset:%d' % (i * 1024))
def a2read(st, i):
    st.ds_read_b128(v(vA2 + 4 * (i % 8), 4), v(t0 if i < 60 else t1), mods='offset:%d' % ((i if i < 60 else i - 60) * 1024))
for i in range(20, 26): a2read(k, i)
issue_w3(k, W3ORD[NW3:W3A])
k.s_mul_i32(s(sV), s(sF), 20480); k.s_add_u32(s(sV), s(sV), WS_O)
poll_row(k, F_O, vD2)
k.s_barrier()
stamp(k, 'oflag')
def issue_o(st, lo, hi):
    for i in range(lo, hi):
        if i % 4 == 0 and i: st.s_add_u32(s(sV), s(sV), 4096)
        st.buffer_load_dwordx4(v(vOF + 4 * i, 4), v(vL16), srd(S_WS), s(sV), mods='offen offset:%d sc1' % ((i % 4) * 1024))
issue_o(k, 0, 10)
m_ = Stream()
for i in range(100):
    ks, t = divmod(i, 5)
    mfma(m_, v(vD2 + 4 * t, 4), v(vA2P + 4 * i, 4) if i < 20 else v(vA2 + 4 * (i % 8), 4), v(vOF + 4 * ks, 4), ks == 0)
    if 20 <= i and i + 6 < 100: a2read(m_, i + 6)
f1 = Stream(); issue_o(f1, 10, 20)
f2 = Stream(); issue_w3(f2, W3ORD[W3A:W3B])
k.add(pack(m_, [(f1, 0, 40, 'vmem'), (f2, 44, 100, 'vmem')]))
stamp(k, 'gemm2')
k.v_lshrrev_b32(v(t0), 1, v(vG)); k.v_mul_u32_u24(v(t0), 1280, v(t0))
k.v_lshl_add_u32(v(t0), v(vJ), 4, v(t0))
k.v_and_b32(v(t1), 1, v(vG))
k.v_lshl_add_u32(v(t2), v(t1), 3, v(t0))
k.v_lshl_add_u32(v(t0), v(t1), 9, v(t0))
k.s_mul_i32(s(sT), s(sF), 20480); k.s_mul_i32(s(sT + 1), s(sM), 2560); k.s_add_u32(s(sT), s(sT), s(sT + 1))
k.s_add_u32(s(sT), s(sT), WS_H)
for i in range(10):
    k.v_dot2_f32_bf16(v(vD2 + 2 * i), v(vXRES + i), s(sONE_LO), v(vD2 + 2 * i))
    k.v_dot2_f32_bf16(v(vD2 + 2 * i + 1), v(vXRES + i), s(sONE_HI), v(vD2 + 2 * i + 1))
for i in range(10): k.v_cvt_pk_bf16_f32(v(vH + i), v(vD2 + 2 * i), v(vD2 + 2 * i + 1))
k.buffer_store_dwordx4(v(vH, 4), v(t0), srd(S_WS), s(sT), mods='offen sc1')
k.buffer_store_dwordx4(v(vH + 4, 4), v(t0), srd(S_WS), s(sT), mods='offen offset:256 sc1')
k.buffer_store_dwordx2(v(vH + 8, 2), v(t2), srd(S_WS), s(sT), mods='offen offset:1024 sc1')
sS, sQ, sY = vD2, vD2 + 1, vD2 + 2
k.v_mov_b32(v(sS), 0); k.v_mov_b32(v(sQ), 0)
for i in range(10):
    k.v_dot2_f32_bf16(v(sS), v(vH + i), s(sONES), v(sS))
    k.v_dot2_f32_bf16(v(sQ), v(vH + i), v(vH + i), v(sQ))
k.v_lshrrev_b32(v(t0), 1, v(vG)); k.v_lshlrev_b32(v(t0), 2, v(t0))
k.v_lshl_add_u32(v(t0), v(vJ), 3, v(t0))
k.v_mov_b32(v(t2), OOB)
k.v_cmp_eq_u32('vcc', 0, v(t1))
k.v_permlane32_swap_b32(v(sS), v(sQ))
k.v_add_f32(v(sS), v(sS), v(sQ))
k.v_cndmask_b32(v(t0), v(t2), v(t0), 'vcc')
k.v_mov_b32(v(sY), v(sS))
k.s_lshl_b32(s(sT), s(sF), 10); k.s_lshl_b32(s(sT + 1), s(sM), 7); k.s_add_u32(s(sT), s(sT), s(sT + 1))
k.s_add_u32(s(sT), s(sT), WS_HST)
k.v_permlane16_swap_b32(v(sS), v(sY))
k.v_add_f32(v(sS), v(sS), v(sY))
k.buffer_store_dword(v(sS), v(t0), srd(S_WS), s(sT), mods='offen sc1', tag='hst')
stamp(k, 'hst')

vCS = 28
vD3 = 40
vB3 = 64
vS3 = 88
vG3 = 92
vFL = 104
vRA = 108
vW4 = 112
sW4, sW4t, sW4l, sHs, sHl, sHt, sHS, sHH, sHHt, sHL, sHLt, sFH, sFHt = sB, sV, sXO, sXO + 1, sXO + 2, sV + 1, sV + 2, sD, sV + 4, sXO + 3, sV + 5, sXO + 4, sV + 6
k.s_mul_i32(s(sW4), s(sM), 245760); k.s_mul_i32(s(sT + 1), s(sW), 61440); k.s_add_u32(s(sW4), s(sW4), s(sT + 1))
k.s_add_u32(s(sW4), s(sW4), WS_W4)
k.s_mul_i32(s(sW4l), s(sW), 24576)
def issue_w4(st, lo, hi):
    for i in range(lo, hi):
        if i % 4 == 0 or i == lo: st.s_add_u32(s(sW4t), s(sW4), (i & ~3) * 1024)
        if i < 36:
            st.buffer_load_dwordx4(v(vW4 + 4 * i, 4), v(vL16), srd(S_WS), s(sW4t), mods='offen offset:%d sc1' % ((i & 3) * 1024))
        else:
            if i % 4 == 0 or i == lo: st.s_add_u32('m0', s(sW4l), L_W4 + ((i - 36) & ~3) * 1024)
            st.buffer_load_dwordx4(v(vL16), srd(S_WS), s(sW4t), mods='offen offset:%d sc1 lds' % ((i & 3) * 1024), tag='W4')
issue_w3(k, W3ORD[W3B:60])
for i in range(4): k.v_mov_b32(v(vB3 + i), 0x3f803f80)
m_ = Stream()
for t in range(3):
    for ks in range(20): mfma(m_, v(vCS + 4 * t, 4), a((t * 20 + ks) * 4, 4), v(vB3, 4), ks == 0)
fp = Stream(); fp.waitvm('hst'); fp.waitlds(); fp.s_barrier(); post(fp, F_H)
W4A = OPT['w4a']
f_ = Stream(); issue_w4(f_, 0, min(W4A, 12))
k.add(pack(m_, [(fp, OPT['hpost'], OPT['hpost'] + 1, 'vmem'), (f_, 10, 60, 'vmem')]))
stamp(k, 'colsum')
if OPT['stop'] == 4: finish(k)
k.s_mul_i32(s(sHl), s(sW), 5120)
k.s_mul_i32(s(sHs), s(sR), 163840); k.s_add_u32(s(sHs), s(sHs), s(sHl))
k.s_add_u32(s(sHs), s(sHs), WS_H)
k.v_lshlrev_b32(v(t0), 9, v(vG))
k.v_lshl_add_u32(v(t0), v(vJ), 3, v(t0))
k.s_lshl_b32(s(sHS), s(sR), 13); k.s_lshl_b32(s(sT + 1), s(sW), 11); k.s_add_u32(s(sHS), s(sHS), s(sT + 1))
k.s_add_u32(s(sHS), s(sHS), WS_HST)
k.v_add_u32(v(vRA), L_RING, v(vL16))
k.v_lshlrev_b32(v(vRA + 1), 4, v(vJ)); k.v_add_u32(v(vRA + 1), L_ST, v(vRA + 1))
k.v_mov_b32(v(t2), OOB)
k.v_cmp_gt_u32('vcc', 3, v(vG))
k.v_cndmask_b32(v(vRA + 2), v(t2), v(vL16), 'vcc')
k.s_mul_i32(s(sHH), s(sR), 8 * 49152); k.s_mul_i32(s(sT), s(sC), 3072); k.s_add_u32(s(sHH), s(sHH), s(sT))
k.s_mul_i32(s(sT), s(sW), 768); k.s_add_u32(s(sHH), s(sHH), s(sT)); k.s_add_u32(s(sHH), s(sHH), WS_HH)
k.s_lshl_b32(s(sT), s(sR), 3); k.s_add_u32(s(sT), s(sT), s(sP)); k.s_mul_i32(s(sHL), s(sT), 49152)
k.s_mul_i32(s(sT), s(sW), 12288); k.s_add_u32(s(sHL), s(sHL), s(sT)); k.s_add_u32(s(sHL), s(sHL), WS_HH)
k.s_lshl_b32(s(sFH), s(sR), 11); k.s_add_u32(s(sFH), s(sFH), WS_FLAGS + F_HH * 32768)
issue_w4(k, min(W4A, 12), W4A)
poll_row(k, F_H, vG3)
k.s_barrier()
stamp(k, 'hflag')
def issue_h(st, T):
    for i in range(5):
        if i % 4 == 0: st.s_add_u32('m0', s(sHl), L_RING + (T % 3) * 20480 + (i & 4) * 1024)
        if i % 4 == 0: st.s_add_u32(s(sHt), s(sHs), T * 20480 + i * 1024)
        st.buffer_load_dwordx4(v(vL16), srd(S_WS), s(sHt), mods='offen offset:%d sc1 lds' % ((i & 3) * 1024), tag='h%d' % T)
issue_h(k, 0)
issue_h(k, 1)
for i in range(4): k.buffer_load_dwordx2(v(vG3 + 2 * i, 2), v(t0), srd(S_WS), s(sHS), mods='offen offset:%d sc1' % (128 * i))
def stats3(st):
    st.v_add_f32(v(vG3), v(vG3), v(vG3 + 2)); st.v_add_f32(v(vG3 + 1), v(vG3 + 1), v(vG3 + 3))
    st.v_add_f32(v(vG3 + 4), v(vG3 + 4), v(vG3 + 6)); st.v_add_f32(v(vG3 + 5), v(vG3 + 5), v(vG3 + 7))
    st.v_add_f32(v(vG3), v(vG3), v(vG3 + 4)); st.v_add_f32(v(vG3 + 1), v(vG3 + 1), v(vG3 + 5))
    st.v_mov_b32(v(vG3 + 2), v(vG3)); st.v_mov_b32(v(vG3 + 3), v(vG3 + 1))
    st.v_lshrrev_b32(v(t0), 1, v(vG)); st.v_lshlrev_b32(v(t0), 8, v(t0))
    for i in range(2): st.v_permlane16_swap_b32(v(vG3 + i), v(vG3 + 2 + i))
    for i in range(2): st.v_add_f32(v(vG3 + i), v(vG3 + i), v(vG3 + 2 + i))
    st.v_mul_f32(v(vG3), s(sINV640), v(vG3))
    st.v_mul_f32(v(vG3 + 1), s(sINV640), v(vG3 + 1))
    st.v_fma_f32(v(vG3 + 1), '-' + v(vG3), v(vG3), v(vG3 + 1))
    st.v_max_f32(v(vG3 + 1), 0, v(vG3 + 1))
    st.v_add_f32(v(vG3 + 7), s(sEPS), v(vG3 + 1))
    st.v_sub_f32(v(vG3 + 4), 0, v(vG3))
    st.v_rsq_f32(v(vG3 + 2), v(vG3 + 7))
    st.v_lshl_add_u32(v(t0), v(vJ), 4, v(t0))
    st.v_mul_f32(v(vG3 + 5), s(sK1), v(vG3 + 2))
    st.v_mul_f32(v(vG3 + 3), v(vG3 + 2), v(vG3 + 2))
    st.v_mul_f32(v(vG3 + 6), s(sK3), v(vG3 + 2))
    st.v_mul_f32(v(vG3 + 6), v(vG3 + 6), v(vG3 + 3))
    st.s_lshl_b32(s(sT), s(sW), 9); st.s_add_u32(s(sT), s(sT), L_ST)
    st.v_add_u32(v(t0), s(sT), v(t0))
    st.ds_write_b128(v(t0), v(vG3 + 4, 4))
def epi3(st, T):
    D = vD3 + 12 * (T & 1)
    nm, c1, c3, vr = v(vS3), v(vS3 + 1), v(vS3 + 2), v(vS3 + 3)
    for t in range(3):
        for e in range(2):
            g_, u_ = D + 4 * t + e, D + 4 * t + 2 + e
            x = vG3 + 4 + e
            st.v_fmac_f32(v(g_), nm, v(vCS + 4 * t + e))
            st.v_fmac_f32(v(u_), nm, v(vCS + 4 * t + 2 + e))
            st.v_mul_f32(v(x), v(g_), v(g_))
            st.v_mul_f32(v(u_), v(g_), v(u_))
            st.v_fma_f32(v(x), v(x), c3, c1)
            st.v_mul_f32(v(x), v(x), v(g_))
            st.v_exp_f32(v(x), v(x))
        for e in range(2):
            x = vG3 + 4 + e
            st.v_fma_f32(v(x), v(x), vr, vr)
            st.v_rcp_f32(v(x), v(x))
        for e in range(2):
            u_ = D + 4 * t + 2 + e
            st.v_mul_f32(v(u_), v(u_), v(vG3 + 4 + e))
        st.v_cvt_pk_bf16_f32(v(vG3 + t), v(D + 4 * t + 2), v(D + 4 * t + 3))
        st.v_mov_b32(v(vG3 + 6 + t), v(vG3 + t))
    ta, tb, tc = vG3 + 6, vG3 + 7, vG3 + 8
    st.v_permlane16_swap_b32(v(ta), v(tb))
    st.v_permlane16_swap_b32(v(tc), v(vG3 + 3))
    st.s_add_u32(s(sHHt), s(sHH), T * 49152)
    st.v_permlane32_swap_b32(v(tb), v(vG3 + 3))
    st.buffer_store_dwordx4(v(vG3, 4), v(vRA + 2), srd(S_WS), s(sHHt), mods='offen sc1', tag='hh%d' % T)
def hhbuf(i, q): return a(80 * (i % 3) + 4 * q, 4)
def issue_hh(st, i, lo=0, hi=12):
    for q in range(lo, hi):
        if q % 4 == 0 or q == lo: st.s_add_u32(s(sHLt), s(sHL), i * 2 * 49152 + (q & ~3) * 1024)
        st.buffer_load_dwordx4(hhbuf(i, q), v(vL16), srd(S_WS), s(sHLt), mods='offen offset:%d sc1' % ((q & 3) * 1024))
def hflag_issue(st, n):
    st.s_add_u32(s(sFHt), s(sFH), n * 32768); flag_issue(st, vFL + 2 * (n & 1), vFR, sFHt)
def hflag_check(st, n):
    st.s_add_u32(s(sFHt), s(sFH), n * 32768); flag_check(st, vFL + 2 * (n & 1), vFR, sFHt)

rem = 60 - W4A
w4sched = [W4A + (rem * i) // 7 for i in range(8)] + [60]
NB = 6
def b3read(st, T, ks):
    n = T * 20 + ks
    st.ds_read_b128(v(vB3 + 4 * (n % NB), 4), v(vRA), mods='offset:%d' % ((T % 3) * 20480 + ks * 1024), tag='b%d' % n)
k.waitvm('h0')
k.s_barrier()
for ks in range(4): b3read(k, 0, ks)
for T in range(8):
    stamp(k, 'g3t%d' % T)
    m_ = Stream()
    if T > 0: m_.ds_read_b128(v(vS3, 4), v(vRA + 1), mods='offset:%d' % ((T - 1) * 256))
    for ks in range(20):
        n = T * 20 + ks
        if ks == 14 and T < 7:
            m_.waitvm('h%d' % (T + 1))
            if T == 5: m_.waitvm('hh3')
            if T == 0: m_.waitlds()
            m_.s_barrier()
            if T == 5: post(m_, F_HH)
        for t in range(3):
            mfma(m_, v(vD3 + 12 * (T & 1) + 4 * t, 4), a((t * 20 + ks) * 4, 4), v(vB3 + 4 * (n % NB), 4), ks == 0)
            if t == 0 and n + 4 < 160: b3read(m_, (n + 4) // 20, (n + 4) % 20)
            if t == 2 and ks % 2 == 1 and n + 2 < 160: m_.waitlds('b%d' % (n + 2))
        if ks == 8 and T == 7:
            m_.waitvm('hh5'); m_.s_barrier(); post(m_, F_HH + 1)
    fh = Stream()
    if T <= 5: issue_h(fh, T + 2)
    fv = Stream()
    issue_w4(fv, w4sched[T], w4sched[T + 1])
    fe = Stream()
    if T > 0: epi3(fe, T - 1)
    else: stats3(fe)
    fills = [(fv, 0, 40, 'vmem'), (fh, 43, 60, 'vmem'), (fe, 2 if T else 12, 56 if T else 40)]
    if T == 7:
        f1 = Stream(); hflag_issue(f1, 0); fills.append((f1, 0, 1, 'vmem'))
        f2 = Stream(); hflag_check(f2, 0); issue_hh(f2, 0, 0, 9); fills.append((f2, 28, 60, 'vmem'))
    m_ = pack(m_, fills); print('g3 tile', T, 'est', m_.est)
    k.add(m_)
stamp(k, 'g3end')
m_ = Stream()
m_.ds_read_b128(v(vS3, 4), v(vRA + 1), mods='offset:%d' % (7 * 256))
epi3(m_, 7)
f_ = Stream(); issue_hh(f_, 0, 9, 12)
k.add(weave(m_, [(f_, 2, 40, 'vmem')], anchor='any'))
def w4a(i): return a(80 * ((i - 36) // 8) + 48 + 4 * ((i - 36) % 8), 4)
k.v_add_u32(v(t0), s(sW4l), v(vL16))
k.v_add_u32(v(t0), L_W4, v(t0))
k.waitvm('W4')
for i in range(36, 60): k.ds_read_b128(w4a(i), v(t0), mods='offset:%d' % ((i - 36) * 1024))
if OPT['stop'] == 5:
    k.waitvm('hh7'); k.waitlds(); k.s_barrier(); post(k, F_HH + 2); finish(k)

vD4 = 40
def w4frag(i): return v(vW4 + 4 * i, 4) if i < 36 else w4a(i)
vRW = 109; vRR = 110
k.s_mul_i32(s(sT), s(sW), 5120)
k.v_add_u32(v(vRW), s(sT), v(vL16))
k.s_mul_i32(s(sT), s(sW), 20480)
k.v_add_u32(v(vRR), s(sT), v(vL16))
for i in range(4):
    D = vD4 + 20 * (i & 1)
    m_ = Stream()
    for q in range(12):
        for t in range(5): mfma(m_, v(D + 4 * t, 4), w4frag(q * 5 + t), hhbuf(i, q), q == 0)
    fills = []
    if i == 0:
        fp = Stream(); fp.waitvm('hh7'); fp.waitlds(); fp.s_barrier(); post(fp, F_HH + 2)
        fills.append((fp, OPT['p4post'], OPT['p4post'] + 1, 'vmem'))
        fv = Stream(); issue_hh(fv, 1); hflag_issue(fv, 1); fills.append((fv, 0, 56, 'vmem'))
    if i == 1:
        fv = Stream(); hflag_check(fv, 1); issue_hh(fv, 2); fills.append((fv, 4, 56, 'vmem'))
    if i == 2:
        ff = Stream(); hflag_issue(ff, 2); fills.append((ff, 0, 1, 'vmem'))
        fv = Stream(); hflag_check(fv, 2); issue_hh(fv, 3); fills.append((fv, 40, 60, 'vmem'))
    if i > 0:
        fw = Stream()
        Dp = vD4 + 20 * ((i - 1) & 1)
        for t in range(5): fw.ds_write_b128(v(vRW), v(Dp + 4 * t, 4), mods='offset:%d' % (L_RED + (i - 1) * 20480 + t * 1024))
        fills.append((fw, 3, 23))
    stamp(k, 'g4t%d' % i)
    k.add(pack(m_, fills))
k.v_add_u32(v(vRW), 3 * 20480, v(vRW))
for t in range(5): k.ds_write_b128(v(vRW), v(vD4 + 20 + 4 * t, 4), mods='offset:%d' % (L_RED + t * 1024))
k.waitlds()
k.s_barrier()
stamp(k, 'g4end')
vR2 = 112
for sl in range(4):
    for t in range(5): k.ds_read_b128(v(vR2 + 20 * sl + 4 * t, 4), v(vRR), mods='offset:%d' % (L_RED + sl * 5120 + t * 1024))
for q in range(10):
    k.v_pk_add_f32(v(vR2 + 2 * q, 2), v(vR2 + 2 * q, 2), v(vR2 + 20 + 2 * q, 2))
for q in range(10):
    k.v_dot2_f32_bf16(v(vR2 + 2 * q), v(vH + q), s(sONE_LO), v(vR2 + 2 * q))
    k.v_dot2_f32_bf16(v(vR2 + 2 * q + 1), v(vH + q), s(sONE_HI), v(vR2 + 2 * q + 1))
for q in range(10):
    k.v_pk_add_f32(v(vR2 + 40 + 2 * q, 2), v(vR2 + 40 + 2 * q, 2), v(vR2 + 60 + 2 * q, 2))
for q in range(10):
    k.v_pk_add_f32(v(vR2 + 2 * q, 2), v(vR2 + 2 * q, 2), v(vR2 + 40 + 2 * q, 2))
for q in range(10): k.v_cvt_pk_bf16_f32(v(40 + q), v(vR2 + 2 * q), v(vR2 + 2 * q + 1))
k.buffer_store_dwordx4(v(40, 4), v(vXRO), srd(S_OUT), s(sXR), mods='offen')
k.buffer_store_dwordx4(v(44, 4), v(vXRO), srd(S_OUT), s(sXR), mods='offen offset:16')
k.buffer_store_dwordx2(v(48, 2), v(vXRO), srd(S_OUT), s(sXR), mods='offen offset:32')
finish(k)
```

```python
import sys, math, struct
from asmgen import *

OPT = dict(stop=99, stamps=0, cqx=0, spin=100000, rot=1, pe=0, w3u=0, tagD=0, h3a=8, tagB=0, fx3=1, qe=4, pat=30, ost=1, asy=1, w3a2=6, w3c2=6, map=0, ipf=3, w2e=1, x0e=0, w1ck=3, ckat=8, qpost=36, psl=14, w2at=70, qpost2=80, w2q=10, qpl=90, qpn=90, w2s=4, w2u=5, w2uat=40, w2o=3, w3o=3, w3a=6, w3b=11, w3c=4, w3t=12, w40=0, w4a=0, e7end=26, p4post=56, cst=1, w4l=60, v4end=74, h2a=10, f2at=8, f2ck=30)
for a_ in sys.argv[2:]:
    kk, vv = a_.split('='); OPT[kk] = int(vv)

def f32(x): return '0x%08x' % struct.unpack('<I', struct.pack('<f', x))[0]
LOG2E = 1.4426950408889634
OOB = 0x40000000

WS_FLAGS = 4096
F_PREP, F_KV, F_O, F_H, F_HH, F_W1, F_PREP2, F_XST = 0, 1, 2, 3, 4, 7, 8, 9
WS_STAMP = 0x1700000
WS_PART = 0x80000
WS_O = 0x200000
WS_H = 0x500000
WS_HST = 0x780000
WS_HH = 0x800000
WS_W2 = 0x1000000
WS_W3 = 0x1100000
WS_W4 = 0x1500000
WS_W1K = 0x1800000
WS_W1Q = 0x1A00000
WS_CS = 0x1B00000
WS_CS3 = 0x1C00000
WS_XST = 0x1D00000
WS_DBG = 0x2000000
WS_SIZE = 0x4000000

L_XST = 0; L_W1S = 118784
L_PG = 40960; L_PU = 49152; L_P4 = 57344; L_P2 = 135168; L_PHI = 143360
L_KV = 0; L_Q = 102400; L_CSF = 153600 + 2048; L_FV = 65536
L_KVR = 102400; L_ZERO = 106624
L_XR = 114688
L_W2 = 0; L_RING = 102400; L_W4 = 0; L_ST = 98304; L_RED = 0

S_X, S_W1, S_WS, S_WG, S_WU, S_WD, S_WO, S_OUT, S_PHI = 28, 32, 36, 40, 44, 48, 52, 56, 60
sR, sC, sCQ, sW, sM, sP = 64, 65, 66, 67, 68, 69
sN = 70
sT = 72
sXO = 80
sA, sB, sCc, sD = 88, 89, 90, 91
sONE_LO, sONE_HI, sONES = 92, 93, 94
sCNT = 95
sTM = 96
sXR = 98
sE, sF = 99, 100
sK = 4
sCH = 12
sV = 17
def srd(b): return s(b, 4)

vTID, vL16, vG, vJ, vSTAMP, vPOST, vFR, vFC, vNON, vXRO = 0, 1, 2, 3, 4, 5, 6, 7, 8, 10
t0, t1, t2 = 11, 12, 13
vR4, vCC, vLANE = 14, 15, 16

k = Stream()
STAMPS = []
OPT_DBG = ['setup', 'xs0', 'xs4', 'kvgemm', 'kvst', 'qgemm', 'ost', 'oflag', 'hst', 'hflag', 'g3t1', 'g3end', 'g4t2', 'g4end', 'end']
def stamp(st, name):
    if not OPT['stamps']: return
    if OPT['stamps'] == 3 and name not in ('start', 'kvst', 'opost', 'hst', 'g3end', 'end'): return
    if OPT['stamps'] == 4 and name in ('pre', 'w1s', 'prepiss', 'w1flag', 'kv0', 'kv1', 'kv2', 'kv3', 'q_a', 'q_b', 'q_c', 'q_d', 'w1a', 'w1b', 'w1st', 'w1w', 'w1d', 'colsum', 'q_e', 'q_f', 'g4t0'): return
    i = len(STAMPS); STAMPS.append(name)
    if OPT['stamps'] == 4:
        assert i < 32
        st.s_memtime(s(sTM, 2)); st.s_waitcnt('lgkmcnt(0)'); st.v_writelane_b32(v(vSTAMP), s(sTM), 32 + i)
    st.comment('stamp %d %s' % (i, name))
    (st.s_memrealtime if OPT['stamps'] >= 2 else st.s_memtime)(s(sTM, 2))
    st.s_waitcnt('lgkmcnt(0)')
    st.v_writelane_b32(v(vSTAMP), s(sTM), i)

def post(st, kind):
    st.s_lshl_b32(s(sT), s(sR), 11)
    st.s_lshl_b32(s(sT + 1), s(sC), 7)
    st.s_add_u32(s(sT), s(sT), s(sT + 1))
    st.s_add_u32(s(sT), s(sT), WS_FLAGS + kind * 32768)
    st.buffer_store_dwordx2(v(vNON, 2), v(vPOST), srd(S_WS), s(sT), mods='offen sc1')

npoll = [0]
def poll(st, voff, ssoff, tmp):
    n = npoll[0]; npoll[0] += 1
    t = '''s_cmp_lg_u32 s{w}, 0
    s_cbranch_scc1 L_pd{n}
    s_mov_b32 s{c}, {lim}
L_pl{n}:
    buffer_load_dwordx2 v[{t}:{t1}], v{vo}, s[{ws}:{ws3}], s{so} offen sc1
    s_waitcnt vmcnt(0)
    v_cmp_ne_u64 vcc, s[{n0}:{n1}], v[{t}:{t1}]
    s_cbranch_vccz L_pd{n}
    s_sub_u32 s{c}, s{c}, 1
    s_cbranch_scc0 L_pl{n}
L_pd{n}:'''.format(w=sW, n=n, c=sCNT, lim=OPT['spin'], t=tmp, t1=tmp + 1, vo=voff, ws=S_WS, ws3=S_WS + 3, so=ssoff, n0=sN, n1=sN + 1)
    st.raw(t, uses=[v(voff)], defs=[v(tmp, 2)])
def poll_row(st, kind, tmp):
    st.s_lshl_b32(s(sT), s(sR), 11); st.s_add_u32(s(sT), s(sT), WS_FLAGS + kind * 32768)
    poll(st, vFR, sT, tmp)

def allreduce_groups(st, x, t, op):
    st.v_mov_b32(v(t), v(x))
    st.v_permlane32_swap_b32(v(x), v(t))
    getattr(st, op)(v(x), v(x), v(t))
    st.v_mov_b32(v(t), v(x))
    st.v_permlane16_swap_b32(v(x), v(t))
    getattr(st, op)(v(x), v(x), v(t))

MF = 'v_mfma_f32_16x16x32_bf16'
def mfma(st, d, A, B, first=False):
    getattr(st, MF)(d, A, B, '0' if first else d)

def wg_slot(st, mul, base):
    st.s_lshl_b32(s(sT), s(sR), 4); st.s_add_u32(s(sT), s(sT), s(sC))
    st.s_lshl_b32(s(sT), s(sT), 2); st.s_add_u32(s(sT), s(sT), s(sW))
    st.s_mul_i32(s(sT), s(sT), mul)
    st.s_add_u32(s(sT), s(sT), base)

def dump(st, regs):
    st.waitvm(); st.waitlds()
    wg_slot(st, 32768, WS_DBG)
    for q, r in enumerate(regs):
        st.buffer_store_dwordx4(r, v(vL16), srd(S_WS), s(sT), mods='offen')
        st.s_add_u32(s(sT), s(sT), 1024)

def finish(st):
    if OPT['stamps']:
        st.waitvm()
        stamp(st, 'end')
        wg_slot(st, 256, WS_STAMP)
        st.v_lshlrev_b32(v(t1), 2, v(vLANE))
        st.buffer_store_dword(v(vSTAMP), v(t1), srd(S_WS), s(sT), mods='offen')
    if OPT.get('dbg'):
        st.s_load_dwordx2(s(sT + 2, 2), s(0, 2), 72)
        st.s_memrealtime(s(sTM, 2))
        st.s_waitcnt('lgkmcnt(0)')
        st.s_sub_u32(s(sTM), s(sTM), s(101))
        st.v_writelane_b32(v(vSTAMP), s(sTM), 63)
        st.v_readlane_b32(s(sT), v(vSTAMP), 0)
        st.s_nop(1)
        st.v_subrev_u32(v(t0), s(sT), v(vSTAMP))
        st.v_writelane_b32(v(t0), s(sTM), 0)
        sel = [0] + [STAMPS.index(n) for n in OPT_DBG]
        st.v_mov_b32(v(t1), OOB)
        for q, i in enumerate(sel): st.v_writelane_b32(v(t1), 4 * q, i)
        st.s_lshl_b32(s(sT), s(sR), 4); st.s_add_u32(s(sT), s(sT), s(sC)); st.s_lshl_b32(s(sT), s(sT), 2); st.s_add_u32(s(sT), s(sT), s(sW))
        st.s_mov_b32(s(S_PHI), s(sT + 2)); st.s_mov_b32(s(S_PHI + 1), s(sT + 3)); st.s_mov_b32(s(S_PHI + 2), 64); st.s_mov_b32(s(S_PHI + 3), 0x20000)
        st.s_cmp_lg_u32(s(sT), (5 * 16 + 3) * 4)
        st.s_cbranch_scc1('L_nodbg')
        st.buffer_store_dword(v(t0), v(t1), srd(S_PHI), 0, mods='offen')
        st.label('L_nodbg')
    st.s_or_b32(s(sT), s(sR), s(sC))
    st.s_cmp_lg_u32(s(sT), 0)
    st.s_cbranch_scc1('L_end')
    st.buffer_store_dwordx2(v(vNON, 2), v(vPOST), srd(S_WS), 0, mods='offen')
    st.label('L_end')
    st.s_endpgm()
    ins = finalize(st, True)
    hdr = open('sequential_preLN__linear_kernel_hedgehog__glu_gated_geglu__prompt.s.ref').read().split('\n')
    hdr = [l for l in hdr if l.startswith(';') and '@launch' not in l]
    txt = '\n'.join(hdr) + '\n' + HEADER.format(grid=256, lds=163840, k=KNAME) + render(ins) + FOOTER.format(k=KNAME, nv=512, ao=256)
    open(sys.argv[1], 'w').write(txt)
    open(sys.argv[1] + '.stamps', 'w').write('\n'.join(STAMPS))
    sys.exit(0)

def div_small(st, q, x, d):
    mul, sh = {10: (205, 11), 80: (205, 14), 5: (205, 10), 6: (171, 10), 12: (171, 11), 48: (171, 13), 3: (171, 9)}[d]
    st.v_mul_u32_u24(v(q), mul, v(x)); st.v_lshrrev_b32(v(q), sh, v(q))
for d_, lim in ((10, 512), (80, 320), (5, 256), (6, 192), (12, 512), (48, 192), (3, 8)):
    mul, sh = {10: (205, 11), 80: (205, 14), 5: (205, 10), 6: (171, 10), 12: (171, 11), 48: (171, 13), 3: (171, 9)}[d_]
    assert all((x * mul) >> sh == x // d_ for x in range(lim)), d_

vW1D = 18; vW1A = 21; vP3D = 26; vP4D = 28; vXW = 30; vXRd = 34; vKV2 = 38; vL16b = 17
vWP = 56; vWA = 58; vONE = 60; vAF = 64; vACC = 104; vGR = 164
vST = 180
vE = 184
vEA = 248
aPHI = 160; aCSQ = 240
sRHO = 3
def acc(X, col): return vACC + (X * 3 + col) * 4
def xf(ks, tt): return a(32 * (ks >> 2) + 16 * tt + 4 * (ks & 3), 4)

k.s_load_dwordx16(s(4, 16), s(0, 2), 0)
k.s_load_dwordx4(s(20, 4), s(0, 2), 64)
k.s_load_dwordx2(s(24, 2), s(0, 2), 80)
k.s_cmp_ge_u32(s(2), 256)
k.s_cbranch_scc1('L_end')
if OPT['stamps']: k.v_mov_b32(v(vSTAMP), 0)
if OPT['map'] == 0:
    k.s_bfe_u32(s(sT), s(2), 0x20001)
    k.s_lshl_b32(s(sT), s(sT), 2)
    k.s_bfe_u32(s(sT + 1), s(2), 0x20003)
    k.s_add_u32(s(sR), s(sT), s(sT + 1))
    k.s_and_b32(s(sT), s(2), 1)
    k.s_lshl_b32(s(sT), s(sT), 3)
    k.s_lshr_b32(s(sT + 2), s(2), 5)
    k.s_add_u32(s(sC), s(sT), s(sT + 2))
else:
    k.s_and_b32(s(sT), s(2), 7)
    k.s_lshl_b32(s(sT), s(sT), 1)
    k.s_bfe_u32(s(sT + 1), s(2), 0x10003)
    k.s_add_u32(s(sR), s(sT), s(sT + 1))
    k.s_lshr_b32(s(sC), s(2), 4)
    k.s_and_b32(s(sT + 2), s(sC), 7)
k.s_mov_b32(s(sCQ), s(sC))
k.s_lshr_b32(s(sM), s(sC), 1)
k.s_and_b32(s(sP), s(sC), 1)
if OPT['rot']:
    k.s_sub_u32(s(sT), s(sT + 2), 5)
    k.s_cselect_b32(s(sRHO), s(sT + 2), s(sT))
else:
    k.s_mov_b32(s(sRHO), 0)
def chunk(st, slot, dst, tmp):
    st.s_add_u32(s(dst), s(sRHO), slot)
    st.s_sub_u32(s(tmp), s(dst), 5)
    st.s_cselect_b32(s(dst), s(dst), s(tmp))
k.v_lshrrev_b32(v(t0), 6, v(vTID))
k.v_readfirstlane_b32(s(sW), v(t0))
k.v_and_b32(v(vLANE), 63, v(vTID))
k.v_lshlrev_b32(v(vL16), 4, v(vLANE))
k.v_lshrrev_b32(v(vG), 4, v(vLANE))
k.v_and_b32(v(vJ), 15, v(vLANE))
k.s_mul_i32(s(sT), s(sW), 192)
k.s_movk_i32(s(sT + 1), 3840); k.s_movk_i32(s(sT + 4), 1200)
for e in range(3):
    k.v_add_u32(v(t0), s(sT), v(vLANE))
    if e: k.v_add_u32(v(t0), 64 * e, v(t0))
    k.v_mul_u32_u24(v(t1), 4370, v(t0)); k.v_lshrrev_b32(v(t1), 16, v(t1))
    k.v_mul_u32_u24(v(t2), 15, v(t1)); k.v_sub_u32(v(t0), v(t0), v(t2))
    k.v_lshlrev_b32(v(t2), 4, v(t0))
    k.v_mad_u32_u24(v(vW1D + e), v(t1), s(sT + 1), v(t2))
    k.v_mul_u32_u24(v(t0), 52, v(t0)); k.v_lshrrev_b32(v(t0), 8, v(t0))
    k.v_mad_u32_u24(v(vW1D + e), v(t0), s(sT + 4), v(vW1D + e))
    if e: k.v_subrev_u32(v(vW1D + e), 1024 * e, v(vW1D + e))
assert all((x * 4370) >> 16 == x // 15 for x in range(768)) and all((x * 52) >> 8 == x // 5 for x in range(15))
k.v_xor_b32(v(t0), v(vJ), v(vG))
k.v_lshlrev_b32(v(t0), 4, v(t0))
k.v_mul_u32_u24(v(t1), 1280, v(vG))
for n in range(4):
    k.v_xor_b32(v(vXW + n), 64 * n, v(t0))
    k.v_add_u32(v(vXW + n), v(vXW + n), v(t1))
    if n: k.v_add_u32(v(vXW + n), n * 4096, v(vXW + n))
k.s_lshl_b32(s(sT), s(sR), 7)
k.s_lshl_b32(s(sT + 1), s(sW), 5)
k.s_add_u32(s(sT), s(sT), s(sT + 1))
k.s_mul_i32(s(sXO), s(sT), 1280)
k.s_lshl_b32(s(sXO + 1), s(sW), 13)
k.s_mul_i32(s(sA), s(sR), 40 * 3840)
k.s_mul_i32(s(sT), s(sC), 80)
k.s_add_u32(s(sA), s(sA), s(sT))
k.s_mul_i32(s(sB), s(sW), 3072)
k.s_add_u32('m0', s(sB), L_W1S)
k.s_mul_i32(s(sT + 2), s(sC), 1600)
k.s_waitcnt('lgkmcnt(0)')
def mksrd(st, b, p, size):
    st.s_mov_b32(s(b), s(p)); st.s_mov_b32(s(b + 1), s(p + 1)); st.s_mov_b32(s(b + 2), size); st.s_mov_b32(s(b + 3), 0x20000)
mksrd(k, S_W1, 6, 2457600)
if OPT.get('dbg'):
    k.s_memrealtime(s(sTM, 2)); k.s_waitcnt('lgkmcnt(0)'); k.s_mov_b32(s(101), s(sTM))
stamp(k, 'start')
for e in range(3): k.buffer_load_dwordx4(v(vW1D + e), srd(S_W1), s(sA), mods='offen offset:%d lds' % (e * 1024), tag='W1S')
if OPT['ipf']:
    k.raw('''s_getpc_b64 s[%d:%d]
L_pc:
    s_sub_u32 s%d, s%d, L_pc-%s
    s_subb_u32 s%d, s%d, 0''' % (sT + 4, sT + 5, sT + 4, sT + 4, KNAME, sT + 5, sT + 5))
    k.s_lshr_b32(s(sT + 6), s(2), 3)
    k.s_lshl_b32(s(sT + 6), s(sT + 6), 2); k.s_add_u32(s(sT + 6), s(sT + 6), s(sW)); k.s_mul_i32(s(sT + 6), s(sT + 6), OPT['ipf'] * 128)
    k.v_min_u32(v(t0), OPT['ipf'] - 1, v(vLANE))
    k.v_lshlrev_b32(v(t0), 7, v(t0))
    k.v_add_u32(v(t0), s(sT + 6), v(t0))
    k.v_min_u32(v(t0), 'L_end-%s' % KNAME, v(t0))
    k.v_mov_b32(v(vAF + 31), s(sT + 5))
    k.v_add_co_u32(v(vAF + 30), 'vcc', s(sT + 4), v(t0))
    k.v_addc_co_u32(v(vAF + 31), 'vcc', 0, v(vAF + 31), 'vcc')
    k.global_load_dword(v(vAF + 29), v(vAF + 30, 2), 'off')
mksrd(k, S_X, 4, 2621440)
XSLOT = [0, 32768, 65536, 102400, 0]
KVPOS = [40960, 61440, 81920, 0, 20480]
def issue_x(st, sg):
    chunk(st, sg, sE, sF)
    st.s_lshl_b32(s(sE), s(sE), 8)
    st.s_add_u32(s(sE), s(sE), s(sXO))
    for tt in range(2):
        if tt: st.s_add_u32(s(sE), s(sE), 16 * 1280)
        st.s_add_u32('m0', s(sXO + 1), L_XST + XSLOT[sg] + tt * 4096)
        for n in range(4):
            st.buffer_load_dwordx4(v(vXW + n), srd(S_X), s(sE), mods='offen offset:%d lds' % (n * 1024), tag='x%d' % sg)
k.s_load_dwordx2(s(sN, 2), s(24, 2), 0)
mksrd(k, S_PHI, 8, 25600)
k.v_lshlrev_b32(v(vWA), 3, v(vTID))
k.v_cmp_gt_u32('vcc', 200, v(vTID))
k.v_mov_b32(v(t1), OOB)
k.v_cndmask_b32(v(vWA), v(t1), v(vWA), 'vcc')
k.buffer_load_dwordx2(v(vWP, 2), v(vWA), srd(S_PHI), s(sT + 2), mods='offen')
mksrd(k, S_WS, 24, WS_SIZE)
mksrd(k, S_WG, 14, 1966080); mksrd(k, S_WU, 16, 1966080); mksrd(k, S_WD, 18, 1966080); mksrd(k, S_WO, 10, 819200); mksrd(k, S_OUT, 20, 2621440)
for i in range(4): k.v_mov_b32(v(vAF + i), 0)
k.v_lshlrev_b32(v(t0), 4, v(vTID))
k.v_add_u32(v(t0), L_PHI, v(t0))
for i in range(2): k.ds_write_b128(v(t0), v(vAF, 4), mods='offset:%d' % (i * 4096))
k.v_cmp_gt_u32('vcc', 128, v(vTID))
k.s_and_saveexec_b64(s(sT, 2), 'vcc')
k.ds_write_b128(v(t0), v(vAF, 4), mods='offset:8192')
k.s_mov_b64('exec', s(sT, 2))
k.v_bfe_u32(v(vR4), v(vLANE), 2, 2)
k.v_and_b32(v(vCC), 3, v(vLANE))
k.s_mov_b32(s(sONE_LO), 0x00003f80); k.s_mov_b32(s(sONE_HI), 0x3f800000); k.s_mov_b32(s(sONES), 0x3f803f80)
oE, oO, sE_, sO_, mE, bE, bO, pE, pO = [sV + i for i in range(9)]
k.s_lshl_b32(s(sT), s(sW), 3)
k.s_lshr_b32(s(oE), 0x20C87850, s(sT)); k.s_and_b32(s(oE), s(oE), 0xff)
k.s_lshr_b32(s(oO), 0x2800A070, s(sT)); k.s_and_b32(s(oO), s(oO), 0xff)
k.s_lshr_b32(s(sE_), 0x28080808, s(sT)); k.s_and_b32(s(sE_), s(sE_), 0xff)
k.s_lshr_b32(s(sO_), 0x08080828, s(sT)); k.s_and_b32(s(sO_), s(sO_), 0xff)
k.s_lshr_b32(s(mE), 0x01030303, s(sT)); k.s_and_b32(s(mE), s(mE), 0xff)
k.s_mul_i32(s(sT + 1), s(sC), 102400); k.s_add_u32(s(sT + 1), s(sT + 1), WS_W1K)
k.s_mul_i32(s(sT + 2), s(sC), 61440); k.s_add_u32(s(sT + 2), s(sT + 2), WS_W1Q - 5120)
k.s_lshl_b32(s(sT + 3), s(sW), 11)
k.s_movk_i32(s(sT + 4), 3072)
k.s_cmp_lt_u32(s(sW), 3)
k.s_cselect_b32(s(bE), s(sT + 1), s(sT + 2)); k.s_cselect_b32(s(pE), 5120, s(sT + 4))
k.s_cmp_lt_u32(s(sW), 2)
k.s_cselect_b32(s(bO), s(sT + 1), s(sT + 2)); k.s_cselect_b32(s(pO), 5120, s(sT + 4))
k.s_add_u32(s(bE), s(bE), s(sT + 3)); k.s_add_u32(s(bO), s(bO), s(sT + 3)); k.s_add_u32(s(bO), s(bO), 1024)
y0, y1, y2 = vAF + 4, vAF + 5, vAF + 6
k.v_and_b32(v(y0), s(mE), v(vCC)); k.v_mul_u32_u24(v(y0), s(sE_), v(y0)); k.v_add_u32(v(y0), s(oE), v(y0))
k.v_mul_u32_u24(v(y1), s(sO_), v(vCC)); k.v_add_u32(v(y1), s(oO), v(y1))
k.v_lshl_add_u32(v(t0), v(vG), 3, v(vR4)); k.v_mul_u32_u24(v(t0), 240, v(t0)); k.v_add_u32(v(t0), L_W1S, v(t0))
k.v_add_u32(v(vW1A), v(t0), v(y0)); k.v_add_u32(v(vW1A + 1), v(t0), v(y1))
k.v_and_b32(v(t1), 1, v(vG))
k.v_cmp_eq_u32('vcc', 1, v(t1))
k.v_mul_u32_u24(v(t0), 240, v(vR4)); k.v_add_u32(v(t0), L_W1S + 32 * 240, v(t0))
k.v_cndmask_b32(v(y0), v(y0), v(y1), 'vcc')
k.v_add_u32(v(vW1A + 2), v(t0), v(y0))
vW1O = 40
k.s_mul_i32(s(sT), s(sR), 5)
k.v_add_u32(v(t0), s(sT), v(vG))
k.v_lshrrev_b32(v(t2), 2, v(t0)); k.v_and_b32(v(t0), 3, v(t0)); k.v_lshlrev_b32(v(t0), 8, v(t0)); k.v_lshl_add_u32(v(t0), v(vJ), 4, v(t0))
k.v_mad_u32_u24(v(vW1O), v(t2), s(pE), v(t0)); k.v_mad_u32_u24(v(vW1O + 1), v(t2), s(pO), v(t0))
k.s_add_u32(s(sT), s(sT), 4); k.s_lshr_b32(s(sT + 1), s(sT), 2); k.s_and_b32(s(sT), s(sT), 3); k.s_lshl_b32(s(sT), s(sT), 8)
k.s_mul_i32(s(sT + 2), s(sT + 1), s(pE)); k.s_add_u32(s(sT + 2), s(sT + 2), s(bE)); k.s_add_u32(s(sT + 2), s(sT + 2), s(sT))
k.s_mul_i32(s(sT + 3), s(sT + 1), s(pO)); k.s_add_u32(s(sT + 3), s(sT + 3), s(bO)); k.s_add_u32(s(sT + 3), s(sT + 3), s(sT))
k.v_mov_b32(v(t0), s(sT + 2)); k.v_mov_b32(v(t2), s(sT + 3))
k.v_cndmask_b32(v(t0), v(t0), v(t2), 'vcc')
k.v_lshl_add_u32(v(t0), v(vJ), 4, v(t0))
k.v_mov_b32(v(t2), OOB)
k.v_cmp_gt_u32('vcc', 2, v(vG))
k.v_cndmask_b32(v(vW1O + 2), v(t2), v(t0), 'vcc')
k.v_lshrrev_b32(v(t0), 1, v(vG)); k.v_lshlrev_b32(v(t0), 10, v(t0)); k.v_lshl_add_u32(v(t0), v(vJ), 4, v(t0))
k.v_cmp_eq_u32('vcc', 0, v(t1))
k.v_cndmask_b32(v(vW1O + 3), v(t2), v(t0), 'vcc')
k.s_lshl_b32(s(sD), s(sC), 13); k.s_lshl_b32(s(sT), s(sW), 11); k.s_add_u32(s(sD), s(sD), s(sT))
k.s_lshr_b32(s(sT), s(sR), 2); k.s_lshl_b32(s(sT), s(sT), 8); k.s_add_u32(s(sD), s(sD), s(sT))
k.s_and_b32(s(sT), s(sR), 3); k.s_lshl_b32(s(sT), s(sT), 2); k.s_add_u32(s(sD), s(sD), s(sT)); k.s_add_u32(s(sD), s(sD), WS_CS)
x0, x1 = vAF + 4, vAF + 5
div_small(k, t0, vTID, 5)
k.v_mul_u32_u24(v(t1), 5, v(t0)); k.v_sub_u32(v(t1), v(vTID), v(t1))
k.v_lshlrev_b32(v(vWA), 11, v(t1))
k.v_cmp_lt_u32('vcc', 19, v(t0))
k.v_cndmask_b32(v(t1), 0, 1, 'vcc')
k.v_mul_u32_u24(v(t2), 20, v(t1)); k.v_sub_u32(v(t0), v(t0), v(t2))
k.v_lshl_add_u32(v(vWA), v(t1), 6, v(vWA))
k.v_lshrrev_b32(v(x0), 2, v(t0)); k.v_lshlrev_b32(v(x0), 8, v(x0))
k.v_and_b32(v(x1), 3, v(t0)); k.v_lshl_add_u32(v(x0), v(x1), 1, v(x0))
k.v_mul_u32_u24(v(t2), 1032, v(t1)); k.v_add_u32(v(x0), v(x0), v(t2))
k.v_lshlrev_b32(v(x1), 1, v(x1)); k.v_lshl_add_u32(v(x1), v(t1), 8, v(x1)); k.v_add_u32(v(x1), 8, v(x1))
k.v_cmp_lt_u32('vcc', 15, v(t0))
k.v_cndmask_b32(v(x0), v(x0), v(x1), 'vcc')
k.v_add_u32(v(vWA), v(vWA), v(x0))
k.v_add_u32(v(vWA), L_PHI, v(vWA))

k.v_cmp_ne_u32('vcc', 0, v(vTID))
k.v_mov_b32(v(t1), OOB)
k.v_cndmask_b32(v(vPOST), 0, v(t1), 'vcc')
def wphi_scatter(st, d):
    st.v_cmp_gt_u32('vcc', 200, v(vTID))
    st.s_and_saveexec_b64(s(sT, 2), 'vcc')
    st.ds_write_b16(v(vWA), v(d))
    st.ds_write_b16_d16_hi(v(vWA), v(d), mods='offset:16')
    st.ds_write_b16(v(vWA), v(d + 1), mods='offset:32')
    st.ds_write_b16_d16_hi(v(vWA), v(d + 1), mods='offset:48')
    st.s_mov_b64('exec', s(sT, 2))
def wphi_read(st):
    st.v_add_u32(v(t0), L_PHI, v(vL16))
    st.v_xor_b32(v(t1), 128, v(t0))
    for p in range(2):
        for i in range(10):
            st.ds_read_b128(a(aPHI + (p * 10 + i) * 4, 4), v(t0 + p), mods='offset:%d' % (i * 1024))
def prep_offsets(st):
    for e in range(2):
        st.s_lshl_b32(s(sT), s(sW), 7)
        st.v_add_u32(v(t0), s(sT), v(vLANE))
        if e: st.v_add_u32(v(t0), 64, v(t0))
        div_small(st, t1, t0, 12)
        st.v_mul_u32_u24(v(t2), 12, v(t1)); st.v_sub_u32(v(t2), v(t0), v(t2))
        st.v_mul_u32_u24(v(vP3D + e), 3072, v(t1))
        st.v_lshl_add_u32(v(vP3D + e), v(t2), 4, v(vP3D + e))
        div_small(st, t1, t0, 10)
        st.v_mul_u32_u24(v(t2), 10, v(t1)); st.v_sub_u32(v(t2), v(t0), v(t2))
        st.v_mul_u32_u24(v(vP4D + e), 1280, v(t1))
        st.v_lshl_add_u32(v(vP4D + e), v(t2), 4, v(vP4D + e))
def issue_prep(st, i, es=(0, 1)):
    a0, a1, a2 = sE, sF, sCc
    st.s_lshl_b32(s(a2), s(sW), 11)
    if i < 2:
        st.s_mul_i32(s(a0), s(sR), 40 * 3072); st.s_mul_i32(s(a1), s(sC), 192)
    else:
        if i == 2: st.s_mul_i32(s(a0), s(sR), 40 * 1280)
        else: st.s_lshl_b32(s(a0), s(sR), 1); st.s_add_u32(s(a0), s(a0), s(sP)); st.s_mul_i32(s(a0), s(a0), 48 * 1280)
        st.s_mul_i32(s(a1), s(sM), 160)
    st.s_add_u32(s(a0), s(a0), s(a1))
    S_, L_, vo = [(S_WG, L_PG, vP3D), (S_WU, L_PU, vP3D), (S_WO, L_P2, vP4D), (S_WD, L_P4, vP4D)][i]
    for e in es:
        st.s_add_u32('m0', s(a2), L_ + e * 1024)
        st.buffer_load_dwordx4(v(vo + e), srd(S_), s(a0), mods='offen lds', tag='prep%d' % i)
def gram(st, sg):
    for tt in range(2):
        for q in range(4):
            ks = 4 * sg + q
            mfma(st, v(vGR + 4 * tt, 4), xf(ks, tt), xf(ks, tt), ks == 0)
            mfma(st, v(vGR + 8 + 4 * tt, 4), v(vONE, 4), xf(ks, tt), ks == 0)
def ln_stats(st):
    for tt in range(2):
        q_, m_, u_ = vE, vE + 1, vE + 2
        G = vGR + 4 * tt
        st.v_cmp_eq_u32('vcc', 1, v(vCC)); st.v_mul_f32(v(m_), s(sINV640), v(vGR + 8 + 4 * tt)); st.v_cndmask_b32(v(q_), v(G), v(G + 1), 'vcc')
        st.v_cmp_eq_u32('vcc', 2, v(vCC)); st.v_sub_f32(v(vST + 2 * tt), 0, v(m_)); st.v_cndmask_b32(v(q_), v(q_), v(G + 2), 'vcc')
        st.v_cmp_eq_u32('vcc', 3, v(vCC)); st.v_cndmask_b32(v(q_), v(q_), v(G + 3), 'vcc')
        st.v_cmp_eq_u32('vcc', v(vR4), v(vG)); st.v_cndmask_b32(v(q_), 0, v(q_), 'vcc')
        allreduce_groups(st, q_, u_, 'v_add_f32')
        st.v_mul_f32(v(q_), s(sINV640), v(q_))
        st.v_fma_f32(v(q_), '-' + v(m_), v(m_), v(q_))
        st.v_max_f32(v(q_), 0, v(q_))
        st.v_add_f32(v(q_), s(sEPS), v(q_))
        st.v_rsq_f32(v(vST + 2 * tt + 1), v(q_))

vVA, vK1A, vFA, vKA, vKB, vPS = vEA, vEA + 1, vEA + 2, vEA + 3, vEA + 4, vEA + 6
def epi_addrs(st):
    b0, b1, b2, b3, b4, b5 = sT + 2, sT + 3, sT + 4, sT + 5, sT + 6, sT + 7
    st.s_mul_i32(s(b0), s(sW), 9216)
    st.s_add_u32(s(b0), s(b0), L_FV)
    st.v_mul_u32_u24(v(t0), 288, v(vJ))
    st.v_add_u32(v(t0), s(b0), v(t0))
    st.v_lshl_add_u32(v(vVA), v(vG), 3, v(t0))
    st.v_and_b32(v(t1), 1, v(vG)); st.v_mul_u32_u24(v(t1), 48, v(t1))
    st.v_lshrrev_b32(v(t2), 1, v(vG)); st.v_lshlrev_b32(v(t2), 3, v(t2))
    st.v_sub_u32(v(t1), v(t1), v(t2))
    st.v_add_u32(v(vK1A), v(t0), v(t1))
    st.v_lshrrev_b32(v(t1), 1, v(vG)); st.v_mul_u32_u24(v(t1), 16 * 288, v(t1))
    st.v_and_b32(v(t2), 1, v(vG)); st.v_mul_u32_u24(v(t2), 80, v(t2))
    st.v_add3_u32(v(vFA), v(t0), v(t1), v(t2))
    st.s_lshr_b32(s(b0), s(sW), 1)
    st.s_and_b32(s(b1), s(sW), 1)
    st.v_lshl_add_u32(v(t0), v(vG), 2, v(vR4))
    st.v_mul_u32_u24(v(t0), 288, v(t0))
    st.s_mul_i32(s(b2), s(b0), 80); st.s_add_u32(s(b2), s(b2), L_FV)
    st.v_lshl_add_u32(v(vKA), v(vCC), 3, v(t0))
    st.v_add_u32(v(vKA), s(b2), v(vKA))
    st.s_mul_i32(s(b2), s(b0), 48); st.s_lshl_b32(s(b3), s(b1), 5)
    st.s_add_u32(s(b2), s(b2), s(b3)); st.s_add_u32(s(b2), s(b2), L_FV + 160)
    st.s_mul_i32(s(b3), s(b1), -2); st.s_add_u32(s(b3), s(b3), 3)
    st.v_min_u32(v(t1), s(b3), v(vCC))
    st.v_lshl_add_u32(v(vKB), v(t1), 3, v(t0))
    st.v_add_u32(v(vKB), s(b2), v(vKB))
    st.s_mul_i32(s(b2), s(b1), -176); st.s_add_u32(s(b2), s(b2), 256)
    st.s_mul_i32(s(b3), s(b1), -11); st.s_add_u32(s(b3), s(b3), 16)
    st.s_mul_i32(s(b4), s(b1), 1280)
    st.s_mul_i32(s(b5), s(b0), 1792)
    st.s_add_u32(s(b4), s(b4), s(b5))
    st.v_mul_u32_u24(v(t0), s(b2), v(vG))
    st.v_lshlrev_b32(v(t1), 4, v(vJ))
    st.v_add3_u32(v(vPS), v(t0), v(t1), s(b4))
    st.s_lshl_b32(s(b2), s(b2), 2); st.s_add_u32(s(b4), s(b4), s(b2))
    st.v_lshl_add_u32(v(t0), v(vG), 3, v(t1))
    st.v_add_u32(v(vPS + 1), s(b4), v(t0))
    st.v_mov_b32(v(t2), OOB)
    st.v_cmp_gt_u32('vcc', s(b3), v(vJ))
    st.v_cndmask_b32(v(vPS), v(t2), v(vPS), 'vcc')
    st.v_cndmask_b32(v(vPS + 1), v(t2), v(vPS + 1), 'vcc')
    st.v_cmp_gt_u32('vcc', 2, v(vG))
    st.v_cndmask_b32(v(vPS + 1), v(t2), v(vPS + 1), 'vcc')

vPD = 124
PA = list(range(vE + 36, vE + 50))
def prep_addrs3(pr):
    pr.v_and_b32(v(t0), 1, v(vCC)); pr.v_lshlrev_b32(v(t0), 13, v(t0))
    pr.v_lshrrev_b32(v(t1), 1, v(vCC)); pr.v_lshl_add_u32(v(t0), v(t1), 3, v(t0))
    pr.s_mul_i32(s(sT), s(sW), 48); pr.s_add_u32(s(sT), s(sT), L_PG)
    pr.v_add_u32(v(t0), s(sT), v(t0))
    pr.v_lshrrev_b32(v(t1), 1, v(vG)); pr.v_mul_u32_u24(v(t1), 20, v(t1))
    pr.v_and_b32(v(t2), 1, v(vG)); pr.v_lshl_add_u32(v(t1), v(t2), 3, v(t1))
    pr.v_add_u32(v(t1), v(t1), v(vR4))
    pr.v_mul_u32_u24(v(t1), 192, v(t1))
    pr.v_add_u32(v(PA[0]), v(t0), v(t1))
    pr.v_mul_u32_u24(v(t1), 192, v(vR4))
    pr.v_min_u32(v(t2), 2, v(vG))
    pr.v_lshl_add_u32(v(t1), v(t2), 4, v(t1))
    pr.v_add_u32(v(PA[1]), v(t0), v(t1))
    pr.v_lshrrev_b32(v(t0), 1, v(vR4)); pr.v_lshlrev_b32(v(t0), 3, v(t0))
    pr.v_lshrrev_b32(v(t1), 1, v(vCC)); pr.v_lshl_add_u32(v(t0), v(t1), 2, v(t0))
    pr.v_and_b32(v(t1), 1, v(vR4)); pr.v_lshl_add_u32(v(t0), v(t1), 1, v(t0))
    pr.v_and_b32(v(t1), 1, v(vCC)); pr.v_add_u32(v(t0), v(t0), v(t1))
    pr.v_lshlrev_b32(v(t0), 4, v(t0))
    pr.v_lshl_add_u32(v(PA[2]), v(vG), 8, v(t0))
    pr.v_mul_u32_u24(v(t1), 20480, v(vG))
    pr.v_add_u32(v(t1), v(t1), v(t0))
    pr.v_mov_b32(v(t2), OOB)
    pr.v_cmp_gt_u32('vcc', 3, v(vG))
    pr.v_cndmask_b32(v(PA[3]), v(t2), v(t1), 'vcc')
def piece_addrs(pr, which, e, base):
    y0, y1, y2, y3 = PA[base], PA[base + 1], PA[base + 2], PA[13]
    if which == 4:
        pr.s_lshl_b32(s(sT), s(sW), 3); pr.s_add_u32(s(sT), s(sT), 4 * e); lim = 30
    else:
        pr.s_lshl_b32(s(sT), s(sW), 2); pr.s_lshl_b32(s(sT + 1), s(sP), 4); pr.s_add_u32(s(sT), s(sT), s(sT + 1)); lim = 25
    pr.v_add_u32(v(t0), s(sT), v(vG))
    pr.v_cmp_gt_u32('vcc', lim, v(t0))
    pr.v_min_u32(v(t0), lim - 1, v(t0))
    div_small(pr, t1, t0, 5)
    pr.v_mul_u32_u24(v(t2), 5, v(t1)); pr.v_sub_u32(v(t2), v(t0), v(t2))
    pr.v_mul_u32_u24(v(y2), 40, v(vCC)); pr.v_lshl_add_u32(v(y2), v(t2), 3, v(y2))
    if which == 4:
        div_small(pr, y0, t1, 3)
        pr.v_mul_u32_u24(v(y1), 3, v(y0)); pr.v_sub_u32(v(y1), v(t1), v(y1))
        pr.v_mul_u32_u24(v(y0), 24, v(y0))
        pr.v_and_b32(v(y3), 1, v(vR4)); pr.v_add_u32(v(y0), v(y0), v(y3))
        pr.v_lshrrev_b32(v(y3), 1, v(vR4))
        pr.v_lshl_add_u32(v(y0), v(y1), 1, v(y0))
        pr.v_mul_u32_u24(v(y1), 6, v(y1)); pr.v_subrev_u32(v(y1), 10, v(y1))
        pr.v_mul_i32_i24(v(y1), v(y1), v(y3))
        pr.v_add3_u32(v(y1), v(y1), v(y0), 16)
        pr.v_lshl_add_u32(v(y0), v(y3), 3, v(y0))
        L_ = L_P4
    else:
        pr.v_lshrrev_b32(v(y0), 1, v(t1)); pr.v_mul_u32_u24(v(y0), 20, v(y0))
        pr.v_and_b32(v(y1), 1, v(t1)); pr.v_lshl_add_u32(v(y0), v(y1), 3, v(y0))
        pr.v_cmp_eq_u32(s(sT + 2, 2), 4, v(t1))
        pr.v_cndmask_b32(v(y0), v(y0), 16, s(sT + 2, 2))
        pr.v_cndmask_b32(v(y1), 4, 20, s(sT + 2, 2))
        pr.v_add_u32(v(y0), v(y0), v(vR4))
        pr.v_add_u32(v(y1), v(y1), v(y0))
        L_ = L_P2
    pr.v_add_u32(v(y2), L_, v(y2))
    pr.s_movk_i32(s(sT + 4), 160)
    pr.v_mad_u32_u24(v(y0), v(y0), s(sT + 4), v(y2))
    pr.v_mad_u32_u24(v(y1), v(y1), s(sT + 4), v(y2))
    if which == 4:
        pr.s_lshl_b32(s(sT), s(sR), 1); pr.s_add_u32(s(sT), s(sT), s(sP)); pr.s_mul_i32(s(sT), s(sT), 6)
    else:
        pr.s_mul_i32(s(sT), s(sR), 5)
    pr.v_add_u32(v(t1), s(sT), v(t1))
    pr.v_lshrrev_b32(v(y2), 2, v(t1)); pr.v_mul_u32_u24(v(y2), 5120, v(y2))
    pr.v_and_b32(v(t1), 3, v(t1)); pr.v_lshl_add_u32(v(y2), v(t1), 8, v(y2))
    pr.v_lshl_add_u32(v(y2), v(t2), 10, v(y2))
    pr.v_lshl_add_u32(v(y2), v(vJ), 4, v(y2))
    pr.v_mov_b32(v(t0), OOB)
    pr.v_cndmask_b32(v(y2), v(t0), v(y2), 'vcc')
def prep_reads(pr, part, D):
    if part == 0:
        for t in range(3):
            for i in range(2): pr.ds_read_b64_tr_b16(v(D + 4 * t + 2 * i, 2), v(PA[0]), mods='offset:%d' % (768 * i + 16 * t))
        for i in range(2): pr.ds_read_b64_tr_b16(v(D + 12 + 2 * i, 2), v(PA[1]), mods='offset:%d' % (16 * 192 + 3840 * i))
    elif part == 2:
        for i in range(2): pr.ds_read_b64_tr_b16(v(D + 2 * i, 2), v(PA[10 + i]))
    else:
        for p in range(2):
            for i in range(2): pr.ds_read_b64_tr_b16(v(D + 4 * p + 2 * i, 2), v(PA[4 + 3 * p + i]))
def prep_stores(pr, part, D):
    b0, b1 = sE, sF
    if part == 0:
        pr.s_mul_i32(s(b0), s(sC), 245760); pr.s_mul_i32(s(b1), s(sW), 61440); pr.s_add_u32(s(b0), s(b0), s(b1))
        pr.s_mul_i32(s(b1), s(sR), 1280); pr.s_add_u32(s(b0), s(b0), s(b1)); pr.s_add_u32(s(b0), s(b0), WS_W3)
        pr.buffer_store_dwordx4(v(D + 12, 4), v(PA[3]), srd(S_WS), s(b0), mods='offen offset:1024 sc1')
        for t in range(3):
            if t: pr.s_add_u32(s(b0), s(b0), 20480)
            pr.buffer_store_dwordx4(v(D + 4 * t, 4), v(PA[2]), srd(S_WS), s(b0), mods='offen sc1')
    elif part == 2:
        pr.s_mul_i32(s(b1), s(sM), 102400); pr.s_add_u32(s(b1), s(b1), WS_W2)
        pr.buffer_store_dwordx4(v(D, 4), v(PA[12]), srd(S_WS), s(b1), mods='offen sc1', tag='prepstW2')
    else:
        pr.s_mul_i32(s(b1), s(sM), 245760); pr.s_add_u32(s(b1), s(b1), WS_W4)
        for p in range(2): pr.buffer_store_dwordx4(v(D + 4 * p, 4), v(PA[6 + 3 * p]), srd(S_WS), s(b1), mods='offen sc1', tag='prepst2')


def flag_issue(st, dst, voff, ssoff):
    st.buffer_load_dwordx2(v(dst, 2), v(voff), srd(S_WS), s(ssoff), mods='offen sc1')
def flag_check(st, dst, voff, ssoff):
    q = npoll[0]; npoll[0] += 1
    t = '''v_cmp_ne_u64 vcc, s[{n0}:{n1}], v[{t}:{t1}]
    s_cbranch_vccz L_pd{n}
    s_mov_b32 s{c}, {lim}
L_pl{n}:
    buffer_load_dwordx2 v[{t}:{t1}], v{vo}, s[{ws}:{ws3}], s{so} offen sc1
    s_waitcnt vmcnt(0)
    v_cmp_ne_u64 vcc, s[{n0}:{n1}], v[{t}:{t1}]
    s_cbranch_vccz L_pd{n}
    s_sub_u32 s{c}, s{c}, 1
    s_cbranch_scc0 L_pl{n}
L_pd{n}:'''.format(n=q, c=sCNT, lim=OPT['spin'], t=dst, t1=dst + 1, vo=voff, ws=S_WS, ws3=S_WS + 3, so=ssoff, n0=sN, n1=sN + 1)
    st.raw(t, uses=[v(voff), v(dst, 2)], defs=[v(dst, 2)])
sL2E, sINV640, sEPS, sK1, sK3, sEPS6 = sK, sK + 1, sK + 2, sK + 3, sK + 4, sK + 5
vSX = vACC
def stats_load(st):
    st.s_lshl_b32(s(sV + 9), s(sR), 7); st.s_lshl_b32(s(sV + 10), s(sC), 3); st.s_add_u32(s(sV + 9), s(sV + 9), s(sV + 10))
    st.s_lshl_b32(s(sV + 10), s(sW), 1); st.s_add_u32(s(sSTK), s(sV + 9), s(sV + 10))
    st.s_mul_i32(s(sV + 9), s(sSTK), 1280)
    st.v_mov_b32(v(vSX + 20), OOB)
    st.v_cmp_gt_u32(s(sV + 7, 2), 32, v(vLANE))
    st.v_cndmask_b32(v(vSX + 20), v(vSX + 20), v(vL16), s(sV + 7, 2))
    for e in range(3): st.buffer_load_dwordx4(v(vSX + 4 * e, 4), v(vL16 if e < 2 else vSX + 20), srd(S_X), s(sV + 9), mods='offen offset:%d' % (e * 1024))
def stats_compute(st):
    A = vSX + 12
    for i in range(6): st.v_mov_b32(v(A + i), 0)
    for i in range(4):
        for e in range(3):
            st.v_dot2_f32_bf16(v(A + 2 * e), v(vSX + 4 * e + i), s(sONES), v(A + 2 * e))
            st.v_dot2_f32_bf16(v(A + 2 * e + 1), v(vSX + 4 * e + i), v(vSX + 4 * e + i), v(A + 2 * e + 1))
    st.v_cmp_eq_u32('vcc', 0, v(vG))
    for i in range(2):
        st.v_cndmask_b32(v(A + 6 + i), 0, v(A + 2 + i), 'vcc')
        st.v_cndmask_b32(v(A + 2 + i), v(A + 2 + i), 0, 'vcc')
    for i in range(2):
        st.v_add_f32(v(A + i), v(A + i), v(A + 6 + i))
        st.v_add_f32(v(A + 4 + i), v(A + 4 + i), v(A + 2 + i))
    for i in range(2): st.v_permlane32_swap_b32(v(A + i), v(A + 4 + i))
    for i in range(2): st.v_add_f32(v(A + i), v(A + i), v(A + 4 + i))
    for i in range(2): st.v_mov_b32(v(A + 2 + i), v(A + i))
    for i in range(2): st.v_permlane16_swap_b32(v(A + i), v(A + 2 + i))
    for i in range(2): st.v_add_f32(v(A + i), v(A + i), v(A + 2 + i))
    for sh in (8, 4, 2, 1):
        for i in range(2): st.v_add_f32_dpp(v(A + i), v(A + i), v(A + i), mods='row_ror:%d row_mask:0xf bank_mask:0xf' % sh)
    st.v_mul_f32(v(A), s(sINV640), v(A))
    st.v_mul_f32(v(A + 1), s(sINV640), v(A + 1))
    st.v_fma_f32(v(A + 1), '-' + v(A), v(A), v(A + 1))
    st.v_max_f32(v(A + 1), 0, v(A + 1))
    st.v_add_f32(v(A + 1), s(sEPS), v(A + 1))
    st.v_sub_f32(v(A), 0, v(A))
    st.v_rsq_f32(v(A + 2), v(A + 1))
    st.v_mov_b32(v(A + 1), s(sN)); st.v_mov_b32(v(A + 3), s(sTG))
    st.v_lshrrev_b32(v(vSX + 20), 1, v(vLANE))
    st.v_and_b32(v(vSX + 21), 31, v(vLANE))
    st.v_mov_b32(v(vSX + 22), OOB)
    st.v_cmp_eq_u32('vcc', 0, v(vSX + 21))
    st.s_lshl_b32(s(sV + 9), s(sSTK), 4); st.s_add_u32(s(sV + 9), s(sV + 9), WS_XST)
    st.v_cndmask_b32(v(vSX + 20), v(vSX + 22), v(vSX + 20), 'vcc')
    st.buffer_store_dwordx4(v(A, 4), v(vSX + 20), srd(S_WS), s(sV + 9), mods='offen sc1', tag='xst')
sSTK = sXO + 2; sTG = sXO + 6
def x_read(st, sg):
    for tt in range(2):
        for n in range(4):
            off = XSLOT[sg] + tt * 4096
            ad = vXRd + n
            if off > 65535: st.v_add_u32(v(vE + n), 65536, v(ad)); ad = vE + n; off -= 65536
            st.ds_read_b128(a(32 * sg + 16 * tt + 4 * n, 4), v(ad), mods='offset:%d' % off, tag='xr%d' % sg)
prep_offsets(k)
stamp(k, 'pre')
if OPT['x0e']: issue_x(k, 0)
k.waitvm('W1S')
k.waitlds()
k.s_add_u32(s(sN), s(sN), 1); k.s_addc_u32(s(sN + 1), s(sN + 1), 0)
k.v_mov_b32(v(vNON), s(sN)); k.v_mov_b32(v(vNON + 1), s(sN + 1))
k.s_mul_i32(s(sTG), s(sN), 0x9E3779B1); k.s_add_u32(s(sTG), s(sTG), s(sN + 1))
k.s_barrier()
stamp(k, 'w1s')
vW1V = vAF + 8
for p in range(3):
    for i in range(2): k.ds_read_b64_tr_b16(v(vW1V + 4 * p + 2 * i, 2), v(vW1A + p), mods='offset:%d' % (960 * i))
k.buffer_store_dwordx4(v(vW1V, 4), v(vW1O), srd(S_WS), s(bE), mods='offen sc1')
k.buffer_store_dwordx4(v(vW1V + 4, 4), v(vW1O + 1), srd(S_WS), s(bO), mods='offen sc1')
k.buffer_store_dwordx4(v(vW1V + 8, 4), v(vW1O + 2), srd(S_WS), 0, mods='offen sc1')
cE, cO, c2 = vAF + 20, vAF + 21, vAF + 22
for p, d in enumerate((cE, cO, c2)): k.v_mov_b32(v(d), 0)
for i in range(4):
    for p, d in enumerate((cE, cO, c2)): k.v_dot2_f32_bf16(v(d), v(vW1V + 4 * p + i), s(sONES), v(d))
k.v_cmp_eq_u32('vcc', 0, v(vG)); k.v_cmp_eq_u32(s(sT, 2), 1, v(vG))
k.v_cndmask_b32(v(t0), 0, v(c2), 'vcc'); k.v_cndmask_b32(v(t1), 0, v(c2), s(sT, 2))
k.v_add_f32(v(cE), v(cE), v(t0)); k.v_add_f32(v(cO), v(cO), v(t1))
k.v_permlane32_swap_b32(v(cE), v(cO))
k.v_add_f32(v(cE), v(cE), v(cO))
k.v_mov_b32(v(cO), v(cE))
k.v_permlane16_swap_b32(v(cE), v(cO))
k.v_add_f32(v(cE), v(cE), v(cO))
k.v_cvt_pk_bf16_f32(v(cO), v(cE), v(cE))
k.v_lshlrev_b32(v(cO), 16, v(cO))
k.v_sub_f32(v(cO), v(cE), v(cO))
k.v_cvt_pk_bf16_f32(v(cO), v(cE), v(cO))
k.buffer_store_dword(v(cO), v(vW1O + 3), srd(S_WS), s(sD), mods='offen sc1', tag='w1st')
stamp(k, 'w1st')
wphi_scatter(k, vWP)
u = Stream()
for i in range(4): u.v_mov_b32(v(vONE + i), 0x3f803f80)
u.v_lshlrev_b32(v(vFR), 7, v(vJ))
u.v_lshlrev_b32(v(vFC), 11, v(vJ))
u.v_mul_u32_u24(v(vXRO), 1280, v(vJ))
u.v_mul_u32_u24(v(t0), 40, v(vG))
u.v_add_u32(v(vXRO), v(vXRO), v(t0))
u.s_add_u32(s(sT), s(sXO + 1), L_XST)
u.v_xor_b32(v(t0), v(vJ), v(vG))
u.v_lshlrev_b32(v(t0), 4, v(t0))
u.v_lshl_add_u32(v(t2), v(vJ), 8, v(t0))
for n in range(4):
    u.v_xor_b32(v(vXRd + n), 64 * n, v(t2))
    u.v_add_u32(v(vXRd + n), s(sT), v(vXRd + n))
u.v_add_u32(v(vL16b), 4096, v(vL16))
u.v_add_u32(v(vKV2), 61440, v(vL16))
u.v_add_u32(v(vKV2 + 1), L_Q, v(vL16))
sL2E, sINV640, sEPS, sK1, sK3, sEPS6 = sK, sK + 1, sK + 2, sK + 3, sK + 4, sK + 5
sL2Ep = 10
u.s_mov_b32(s(sL2E), f32(LOG2E)); u.s_mov_b32(s(sINV640), f32(1.0 / 640)); u.s_mov_b32(s(sEPS), f32(1e-5))
GK1 = -2.0 * math.sqrt(2.0 / math.pi) * LOG2E
u.s_mov_b32(s(sK1), f32(GK1)); u.s_mov_b32(s(sK3), f32(GK1 * 0.044715)); u.s_mov_b32(s(sEPS6), f32(1e-6))
u.s_mov_b32(s(sL2Ep), f32(LOG2E)); u.s_mov_b32(s(sL2Ep + 1), f32(-LOG2E))
f_ = Stream(); issue_x(f_, 0)
k.add(weave(u, [(f_, 0, None, 'vmem')], anchor='any'))
stamp(k, 'w1w')
k.waitvm('w1st')
stamp(k, 'w1d')
k.waitlds()
k.s_barrier()
post(k, F_W1)
stamp(k, 'w1post')

u = Stream()
prep_addrs3(u); piece_addrs(u, 2, 0, 10); piece_addrs(u, 4, 0, 4); piece_addrs(u, 4, 1, 7); epi_addrs(u)
f_ = Stream()
if OPT['w2e'] == 1: issue_prep(f_, 2)
issue_x(f_, 1); issue_x(f_, 2); stats_load(f_)
k.add(weave(u, [(f_, 0, None, 'vmem')], anchor='any'))
stamp(k, 'prepiss')
sKV, sKVt, sQs, sQt, sFW = sV, sV + 1, sV + 2, sV + 3, sV + 8
k.s_mul_i32(s(sB), s(sW), 5120); k.s_mul_i32(s(sA), s(sW), 3072)
k.s_mul_i32(s(sKV), s(sC), 102400); k.s_add_u32(s(sKV), s(sKV), s(sB)); k.s_add_u32(s(sKV), s(sKV), WS_W1K)
k.s_mul_i32(s(sQs), s(sC), 61440); k.s_add_u32(s(sQs), s(sQs), s(sA)); k.s_add_u32(s(sQs), s(sQs), WS_W1Q)
k.s_lshl_b32(s(sD), s(sC), 13); k.s_lshl_b32(s(sCc), s(sW), 11); k.s_add_u32(s(sD), s(sD), s(sCc)); k.s_add_u32(s(sD), s(sD), WS_CS)
k.s_lshl_b32(s(sFW), s(sC), 7); k.s_add_u32(s(sFW), s(sFW), WS_FLAGS + F_W1 * 32768)
vF0 = 18
def issue_kv(st, sg, lo=0, hi=5):
    if lo == 0:
        chunk(st, sg, sKVt, sT + 7)
        st.s_mul_i32(s(sKVt), s(sKVt), 20480); st.s_add_u32(s(sKVt), s(sKVt), s(sKV))
    for n in range(lo, hi):
        if n % 4 == 0: st.s_add_u32('m0', s(sB), KVPOS[sg] + n * 1024)
        st.buffer_load_dwordx4(v(vL16 if n < 4 else vL16b), srd(S_WS), s(sKVt), mods='offen offset:%d sc1 lds' % ((n & 3) * 1024), tag='W%d' % sg)
def issue_q(st, lo, hi):
    for ch in range(lo, hi):
        chunk(st, ch, sQt, sT + 7)
        st.s_mul_i32(s(sQt), s(sQt), 12288); st.s_add_u32(s(sQt), s(sQt), s(sQs))
        st.s_add_u32('m0', s(sA), L_Q + ch * 12288)
        for n in range(3):
            st.buffer_load_dwordx4(v(vL16), srd(S_WS), s(sQt), mods='offen offset:%d sc1 lds' % (n * 1024), tag='Q%d' % ch)
flag_issue(k, vF0, vFC, sFW)
for sg in range(3): k.waitvm('x%d' % sg); x_read(k, sg)
k.waitlds(); k.s_barrier()
stamp(k, 'w1a'); flag_check(k, vF0, vFC, sFW); stamp(k, 'w1b')
issue_kv(k, 0)
issue_kv(k, 1)
stats_compute(k)
wphi_read(k)
issue_x(k, 3)
k.waitvm('W0')
k.s_barrier()
stamp(k, 'kvgo')

vF1, vF2, vFA1, vF3, vPLO, vT16, vKR = 18, 20, 22, 24, 30, 31, 32
sW2s, sW2l, sW2t, sW3, sW3t, sPL, sFP, sFK = sV + 4, sV + 5, sV + 6, sV + 7, sXO + 3, sXO + 4, sV + 9, sV + 10
def q_setup(st):
    st.v_bfe_u32(v(vFA1), v(vLANE), 4, 1)
    st.v_lshl_add_u32(v(vFA1), v(vFA1), 7, v(vFC))
    st.s_lshl_b32(s(sFP), s(sM), 8); st.s_add_u32(s(sFP), s(sFP), WS_FLAGS + F_PREP * 32768)
    st.s_lshl_b32(s(sFK), s(sCQ), 7); st.s_add_u32(s(sFK), s(sFK), WS_FLAGS + F_KV * 32768)
    st.v_and_b32(v(vKR), 1, v(vG)); st.v_mul_u32_u24(v(vKR), 1856, v(vKR))
    st.s_lshl_b32(s(sW2l), s(sW), 12)
    st.s_mul_i32(s(sW2s), s(sM), 102400); st.s_add_u32(s(sW2s), s(sW2s), WS_W2)
    st.v_lshl_add_u32(v(vKR), v(vCC), 4, v(vKR))
    st.s_mul_i32(s(sW3), s(sC), 245760); st.s_mul_i32(s(sW3t), s(sW), 61440); st.s_add_u32(s(sW3), s(sW3), s(sW3t))
    st.v_mov_b32(v(t1), L_ZERO - L_KVR)
    st.s_add_u32(s(sW3), s(sW3), WS_W3)
    st.v_cmp_eq_u32('vcc', v(vR4), v(vG))
    st.s_mul_i32(s(sPL), s(sCQ), 16 * 3584); st.s_add_u32(s(sPL), s(sPL), WS_PART)
    st.v_lshlrev_b32(v(vT16), 4, v(vTID))
    st.v_cndmask_b32(v(vKR), v(t1), v(vKR), 'vcc')
    st.v_mov_b32(v(t1), OOB)
    st.v_cmp_gt_u32('vcc', 224, v(vTID))
    st.v_add_u32(v(vKR), L_KVR, v(vKR))
    st.v_cndmask_b32(v(vPLO), v(t1), v(vT16), 'vcc')
    st.v_cmp_lt_u32('vcc', 111, v(vTID))
    st.v_add_u32(v(vT16), L_KVR, v(vT16))
    st.v_add_u32(v(t1), 64, v(vT16))
    st.v_cndmask_b32(v(vT16), v(vT16), v(t1), 'vcc')
W2ORD = list(range(8)) + list(range(16, 25)) + list(range(8, 16))
def issue_w2(st, lo, hi):
    last = None
    for i in W2ORD[lo:hi]:
        if (i >> 2) != last:
            last = i >> 2
            if i < 24: st.s_add_u32(s(sW2t), s(sW2l), last * 16384)
            else: st.s_lshl_b32(s(sW2t), s(sW), 10); st.s_add_u32(s(sW2t), s(sW2t), 98304)
            st.s_add_u32('m0', s(sW2t), L_W2)
            st.s_add_u32(s(sW2t), s(sW2t), s(sW2s))
        st.buffer_load_dwordx4(v(vL16), srd(S_WS), s(sW2t), mods='offen offset:%d sc1 lds' % ((i & 3) * 1024), tag='W2')
def issue_w3(st, lst):
    last = None
    for i in lst:
        if (i >> 2) != last:
            last = i >> 2; st.s_add_u32(s(sW3t), s(sW3), last * 4096)
        st.buffer_load_dwordx4(a(4 * i, 4), v(vL16), srd(S_WS), s(sW3t), mods='offen offset:%d sc1' % ((i & 3) * 1024))
vSL = vGR; vSA = vGR + 8
def stats_check(st):
    t = '''s_mov_b32 s{c}, {lim}
L_sc:
    v_cmp_ne_u32 vcc, s{n}, v{a1}
    v_cmp_ne_u32 s[{p}:{p1}], s{n}, v{b1}
    s_or_b64 vcc, vcc, s[{p}:{p1}]
    v_cmp_ne_u32 s[{p}:{p1}], s{g}, v{a3}
    s_or_b64 vcc, vcc, s[{p}:{p1}]
    v_cmp_ne_u32 s[{p}:{p1}], s{g}, v{b3}
    s_or_b64 vcc, vcc, s[{p}:{p1}]
    s_cbranch_scc0 L_sd
    buffer_load_dwordx4 v[{a0}:{a3}], v{ad}, s[{ws}:{ws3}], s{so} offen sc1
    buffer_load_dwordx4 v[{b0}:{b3}], v{ad}, s[{ws}:{ws3}], s{so} offen offset:256 sc1
    s_waitcnt vmcnt(0)
    s_sub_u32 s{c}, s{c}, 1
    s_cbranch_scc0 L_sc
L_sd:'''.format(c=sCNT, lim=OPT['spin'], n=sN, g=sTG, p=sT + 4, p1=sT + 5, a0=vSL, a1=vSL + 1, a3=vSL + 3, b0=vSL + 4, b1=vSL + 5, b3=vSL + 7,
               ad=vSA, ws=S_WS, ws3=S_WS + 3, so=sV + 8)
    st.raw(t, uses=[v(vSL, 8), v(vSA)], defs=[v(vSL, 8)])
    for tt in range(2):
        st.v_mov_b32(v(vST + 2 * tt), v(vSL + 4 * tt)); st.v_mov_b32(v(vST + 2 * tt + 1), v(vSL + 4 * tt + 2))
vOAd = 44; vPOI = 48; sOS = sXO + 7
def o_addrs(st):
    for i in range(4): st.v_mov_b32(v(vPOI + i), -1)
    st.v_lshrrev_b32(v(vOAd), 1, v(vG)); st.v_mul_u32_u24(v(vOAd), 20480, v(vOAd))
    st.v_lshl_add_u32(v(vOAd), v(vJ), 4, v(vOAd))
    st.v_and_b32(v(vOAd + 2), 1, v(vG))
    st.v_lshl_add_u32(v(vOAd + 1), v(vOAd + 2), 3, v(vOAd))
    st.s_mul_i32(s(sOS), s(sR), 163840); st.s_mul_i32(s(sT + 6), s(sW), 40960); st.s_add_u32(s(sOS), s(sOS), s(sT + 6))
    st.s_mul_i32(s(sT + 6), s(sCQ), 1280); st.s_add_u32(s(sOS), s(sOS), s(sT + 6)); st.s_add_u32(s(sOS), s(sOS), WS_O)
    st.v_lshl_add_u32(v(vOAd), v(vOAd + 2), 9, v(vOAd))
def o_store(st, A, B, C, tag):
    st.buffer_store_dwordx4(v(A, 4), v(vOAd), srd(S_WS), s(sOS), mods='offen sc1')
    st.buffer_store_dwordx4(v(B, 4), v(vOAd), srd(S_WS), s(sOS), mods='offen offset:256 sc1')
    st.buffer_store_dwordx2(v(C, 2), v(vOAd + 1), srd(S_WS), s(sOS), mods='offen offset:1024 sc1', tag=tag)
def sent_issue(st, dst, voff, ssoff):
    st.buffer_load_dwordx4(v(dst, 4), v(voff), srd(S_WS), s(ssoff), mods='offen sc1')
def sent_check(st, dst, voff, ssoff):
    q = npoll[0]; npoll[0] += 1
    t = '''s_mov_b32 s{c}, {lim}
L_pl{n}:
    v_max_u32 v{t}, v{t}, v{t2}
    v_cmp_eq_u32 vcc, -1, v{t}
    s_cbranch_vccz L_pd{n}
    buffer_load_dwordx4 v[{t}:{t3}], v{vo}, s[{ws}:{ws3}], s{so} offen sc1
    s_waitcnt vmcnt(0)
    s_sub_u32 s{c}, s{c}, 1
    s_cbranch_scc0 L_pl{n}
L_pd{n}:'''.format(n=q, c=sCNT, lim=OPT['spin'], t=dst, t2=dst + 2, t3=dst + 3, vo=voff, ws=S_WS, ws3=S_WS + 3, so=ssoff)
    st.raw(t, uses=[v(voff), v(dst, 4)], defs=[v(dst, 4)])
def redo_check(st, vm, label):
    q = npoll[0]; npoll[0] += 1
    t = '''v_cmp_eq_u32 vcc, -1, v{m}
    s_cbranch_vccz L_pd{n}
    s_sub_u32 s{c}, s{c}, 1
    s_cbranch_scc1 L_pd{n}
    s_waitcnt vmcnt(0) lgkmcnt(0)
    s_nop 15
    s_branch {l}
L_pd{n}:'''.format(n=q, m=vm, c=sRC, l=label)
    st.raw(t, uses=[v(vm)])
sRC = 101
def kv_reads(st, ks):
    for X in range(5):
        off = KVPOS[ks >> 2] + (ks & 3) * 5120 + X * 1024
        st.ds_read_b128(v(vAF + (ks & 1) * 20 + X * 4, 4), v(vL16 if off < 61440 else vKV2), mods='offset:%d' % (L_KV + (off if off < 61440 else off - 61440)))
kv_reads(k, 0)
for sg in range(5):
    m_ = Stream()
    for q in range(4):
        ks = 4 * sg + q
        mm = Stream()
        for X in range(5):
            A = v(vAF + (q & 1) * 20 + X * 4, 4)
            mfma(mm, v(acc(X, 0), 4), A, xf(ks, 0), ks == 0)
            mfma(mm, v(acc(X, 1), 4), A, xf(ks, 1), ks == 0)
        ff = Stream()
        if ks < 19: kv_reads(ff, ks + 1)
        mm = weave(mm, [(ff, 0, 10)])
        if q == 2 and sg < 4:
            mm.waitvm('W%d' % (sg + 1))
            if sg == 1: mm.waitvm('prepstW2'); mm.waitvm('poiO')
            mm.waitlds()
            mm.s_barrier()
            if sg == 1: post(mm, F_PREP2)
        m_.add(mm)
    fills = []
    f1 = Stream()
    if sg == 0:
        issue_x(f1, 4)
        f6 = Stream(); f6.waitvm('x3'); x_read(f6, 3); fills.append((f6, 12, 28))
        f7 = Stream(); issue_kv(f7, 2, 0, 3); fills.append((f7, 29, None, 'vmem'))
    if sg == 1:
        issue_kv(f1, 2, 3, 5)
        f1.s_add_u32('m0', s(sCc), L_CSF)
        for n in range(2): f1.buffer_load_dwordx4(v(vL16), srd(S_WS), s(sD), mods='offen offset:%d sc1 lds' % (n * 1024), tag='CSF')
        issue_q(f1, 0, 1)
        f6 = Stream(); f6.waitvm('x4'); x_read(f6, 4); fills.append((f6, 4, 20))
        f7 = Stream(); issue_kv(f7, 3, 0, 4); fills.append((f7, 31, None, 'vmem'))
    if sg == 2: issue_kv(f1, 3, 4, 5); issue_kv(f1, 4); issue_q(f1, 1, 2)
    if sg == 3:
        issue_q(f1, 2, OPT['qe'])
        f7 = Stream(); issue_prep(f7, 0); issue_prep(f7, 1); fills.append((f7, OPT['pat'], None, 'vmem'))
    if sg == 4: issue_prep(f1, 3)
    fills.append((f1, 0, (28 if sg in (0, 1) else OPT['pat'] - 9 if sg == 3 else 10 if sg == 4 else None), 'vmem'))
    if sg == 3:
        f4 = Stream()
        f4.v_add_u32(v(t0), L_CSF, v(vL16))
        for X in range(5): f4.ds_read_b128(v(vE + 4 + 4 * X, 4), v(t0), mods='offset:%d' % (X * 1024))
        for X in range(3): f4.ds_read_b128(a(aCSQ + 4 * X, 4), v(t0), mods='offset:%d' % ((5 + X) * 1024))
        fills.append((f4, 0, 28))
    if sg == 0:
        f5 = Stream(); prep_reads(f5, 2, vE + 24); fills.append((f5, 0, 4))
        f5 = Stream(); prep_stores(f5, 2, vE + 24); fills.append((f5, 5, 6, 'vmem'))
    if sg == 0 and OPT['tagB']:
        f8 = Stream(); o_addrs(f8); fills.append((f8, 0, 26))
    if sg == 1 and OPT['tagB']:
        f8 = Stream(); o_store(f8, vPOI, vPOI, vPOI, 'poiO'); fills.append((f8, 1, 12, 'vmem'))
    if sg == 2:
        f4 = Stream(); q_setup(f4); fills.append((f4, 0, None))
    if sg == 3:
        f4 = Stream(); f4.s_add_u32(s(sD), s(sFP), (F_PREP2 - F_PREP) * 32768); flag_issue(f4, vF3, vFA1, sD)
        f4.s_lshl_b32(s(sV + 8), s(sR), 11); f4.s_lshl_b32(s(sT + 3), s(sW), 9); f4.s_add_u32(s(sV + 8), s(sV + 8), s(sT + 3)); f4.s_add_u32(s(sV + 8), s(sV + 8), WS_XST)
        f4.v_lshlrev_b32(v(vSA), 4, v(vJ))
        for tt in range(2): f4.buffer_load_dwordx4(v(vSL + 4 * tt, 4), v(vSA), srd(S_WS), s(sV + 8), mods='offen offset:%d sc1' % (256 * tt))
        fills.append((f4, OPT['pat'] - 8, OPT['pat'] - 1, 'vmem'))
    if sg == 4:
        f4 = Stream(); stats_check(f4); fills.append((f4, 20, None))
    if sg == 4:
        for X in range(5): mfma(m_, v(acc(X, 2), 4), v(vE + 4 + 4 * X, 4), v(vONE, 4), True)
    m_ = pack(m_, fills); print('kv stage', sg, 'est', m_.est)
    k.add(m_)
    if sg < 4: stamp(k, 'kv%d' % sg)
stamp(k, 'kvgemm')

def ln_pack(st, X, tt, dst, pk=True):
    A = acc(X, tt); C = acc(X, 2); S = v(vST + 2 * tt, 2)
    if pk:
        for h in range(2):
            st.v_pk_fma_f32(v(A + 2 * h, 2), v(C + 2 * h, 2), S, v(A + 2 * h, 2), mods='op_sel_hi:[1,0,1]')
        for h in range(2):
            st.v_pk_mul_f32(v(A + 2 * h, 2), v(A + 2 * h, 2), S, mods='op_sel:[0,1] op_sel_hi:[1,1]')
    else:
        for i in range(4): st.v_fmac_f32(v(A + i), v(C + i), v(vST + 2 * tt))
        for i in range(4): st.v_mul_f32(v(A + i), v(A + i), v(vST + 2 * tt + 1))
    for h in range(2):
        st.v_cvt_pk_bf16_f32(v(dst + h), v(A + 2 * h), v(A + 2 * h + 1))

vBK = vE + 4
vP = vE + 16
vEP = vACC
vMX = vE + 56
vPK = vAF
def feature_map(st):
    for tt in range(2):
        for ks in range(2):
            for ft in range(5):
                mfma(st, v(vP + 4 * ft, 4), a(aPHI + (tt * 10 + ft * 2 + ks) * 4, 4), v(vBK + 6 * tt + 2 * ks, 4), tt == 0 and ks == 0)
def softmax2(st, order):
    mx, mn, sp, sn = vMX, vMX + 1, vMX + 2, vMX + 4
    st.v_max3_f32(v(mx), v(vP), v(vP + 1), v(vP + 2))
    st.v_min3_f32(v(mn), v(vP), v(vP + 1), v(vP + 2))
    for i in range(3, 19, 2):
        st.v_max3_f32(v(mx), v(mx), v(vP + i), v(vP + i + 1))
        st.v_min3_f32(v(mn), v(mn), v(vP + i), v(vP + i + 1))
    st.v_max_f32(v(mx), v(mx), v(vP + 19))
    st.v_min_f32(v(mn), v(mn), v(vP + 19))
    st.v_mul_f32(v(mx), s(sL2Ep + 1), v(mx))
    st.v_mul_f32(v(mn), s(sL2Ep), v(mn))
    for i in range(0, 20, 2):
        st.v_pk_fma_f32(v(vEP + i, 2), v(vP + i, 2), s(sL2Ep, 2), v(mx, 2), mods='op_sel_hi:[1,0,0]')
        st.v_pk_fma_f32(v(vP + i, 2), v(vP + i, 2), s(sL2Ep, 2), v(mx, 2), mods='op_sel:[0,1,1] op_sel_hi:[1,1,1]')
    for i in range(20):
        st.v_exp_f32(v(vEP + i), v(vEP + i))
        st.v_exp_f32(v(vP + i), v(vP + i))
    st.v_pk_add_f32(v(sp, 2), v(vEP, 2), v(vEP + 2, 2))
    st.v_pk_add_f32(v(sn, 2), v(vP, 2), v(vP + 2, 2))
    for i in range(4, 20, 2):
        st.v_pk_add_f32(v(sp, 2), v(sp, 2), v(vEP + i, 2))
        st.v_pk_add_f32(v(sn, 2), v(sn, 2), v(vP + i, 2))
    st.v_add_f32(v(sp), v(sp), v(sp + 1))
    st.v_add_f32(v(sn), v(sn), v(sn + 1))
    st.v_rcp_f32(v(sp), v(sp))
    st.v_rcp_f32(v(sn), v(sn))
    for i in range(0, 20, 2):
        st.v_pk_mul_f32(v(vEP + i, 2), v(vEP + i, 2), v(sp, 2), mods='op_sel_hi:[1,0]')
        st.v_pk_mul_f32(v(vP + i, 2), v(vP + i, 2), v(sn, 2), mods='op_sel_hi:[1,0]')
    for i in range(10):
        st.v_cvt_pk_bf16_f32(v(vPK + order[i]), v(vEP + 2 * i), v(vEP + 2 * i + 1))
    for i in range(10):
        st.v_cvt_pk_bf16_f32(v(vPK + order[10 + i]), v(vP + 2 * i), v(vP + 2 * i + 1))

m_ = Stream()
for tt in range(2):
    for X in range(3): ln_pack(m_, X, tt, vBK + 6 * tt + 2 * X)
k.add(m_)
vVP = vAF + 20; vK1 = vAF + 30
m_ = Stream(); feature_map(m_)
f_ = Stream()
f_.v_cmp_lt_u32('vcc', 1, v(vG))
f_.v_mov_b32(v(t1), 0x3f80)
for tt in range(2):
    f_.v_cndmask_b32(v(vK1 + 2 * tt), v(t1), v(vBK + 6 * tt + 2), 'vcc')
    f_.v_cndmask_b32(v(vK1 + 2 * tt + 1), 0, v(vBK + 6 * tt + 3), 'vcc')
    f_.ds_write_b64(v(vK1A), v(vK1 + 2 * tt, 2), mods='offset:%d' % (200 + tt * 16 * 288))
for tt in range(2):
    for h in range(2):
        ln_pack(f_, 3 + h, tt, vVP + 4 * tt + 2 * h, pk=False)
        f_.ds_write_b64(v(vVA), v(vVP + 4 * tt + 2 * h, 2), mods='offset:%d' % (160 + 48 * h + tt * 16 * 288))
k.add(pack(m_, [(f_, 0, None)]))
m_ = Stream(); softmax2(m_, list(range(20)))
k.add(m_)
for i in range(5): k.ds_write_b128(v(vFA), v(vPK + 4 * i, 4), mods='offset:%d' % (16 * i))
if OPT['stop'] == 1:
    dump(k, [v(vBK, 4), v(vBK + 4, 4), v(vBK + 8, 4), v(vVP, 4), v(vVP + 4, 4), v(vST, 4)] + [v(vPK + 4 * i, 4) for i in range(5)])
    finish(k)
k.waitvm('Q%d' % (OPT['qe'] - 1))
if OPT['pe']: k.waitvm('prep3')
k.waitlds()
k.s_barrier()
stamp(k, 'phik')
vKVA = vACC; vKVB = vACC + 48; vKVD = vE + 4
for ks in range(4):
    off = 32 * ks * 288
    for i in range(2):
        k.ds_read_b64_tr_b16(v(vKVB + 4 * ks + 2 * i, 2), v(vKB), mods='offset:%d' % (off + 16 * i * 288))
    for ft in range(3):
        for i in range(2):
            k.ds_read_b64_tr_b16(v(vKVA + (ks * 3 + ft) * 4 + 2 * i, 2), v(vKA), mods='offset:%d' % (off + 16 * i * 288 + 32 * ft))
k.s_lshl_b32(s(sT), s(sC), 4); k.s_add_u32(s(sT), s(sT), s(sR)); k.s_mul_i32(s(sT), s(sT), 3584)
k.s_add_u32(s(sT), s(sT), WS_PART)
for ks in range(4):
    for ft in range(3):
        mfma(k, v(vKVD + 4 * ft, 4), v(vKVA + (ks * 3 + ft) * 4, 4), v(vKVB + 4 * ks, 4), ks == 0)
vKVP = vE + 16
for i in range(6): k.v_cvt_pk_bf16_f32(v(vKVP + i), v(vKVD + 2 * i), v(vKVD + 2 * i + 1))
k.buffer_store_dwordx4(v(vKVP, 4), v(vPS), srd(S_WS), s(sT), mods='offen sc1')
k.buffer_store_dwordx2(v(vKVP + 4, 2), v(vPS + 1), srd(S_WS), s(sT), mods='offen sc1', tag='part')
stamp(k, 'kvst')

def qbuf(b, X): return vAF + b * 12 + X * 4
def q_reads(st, ks):
    for X in range(3): st.ds_read_b128(v(qbuf(ks & 1, X), 4), v(vKV2 + 1), mods='offset:%d' % (ks * 3072 + X * 1024))
PLQ = [88 + 4 * i for i in range(4)] + [140 + 4 * i for i in range(10)] + [248, 252]
def issue_part(st):
    for r_ in range(16):
        if r_: st.s_add_u32(s(sPL), s(sPL), 3584)
        st.buffer_load_dwordx4(v(PLQ[r_], 4), v(vPLO), srd(S_WS), s(sPL), mods='offen sc1')
q_reads(k, 0)
m_ = Stream()
for X in range(3): mfma(m_, v(acc(X, 2), 4), a(aCSQ + 4 * X, 4), v(vONE, 4), True)
for ks in range(20):
    mm = Stream()
    for X in range(3):
        A = v(qbuf(ks & 1, X), 4)
        mfma(mm, v(acc(X, 0), 4), A, xf(ks, 0), ks == 0)
        mfma(mm, v(acc(X, 1), 4), A, xf(ks, 1), ks == 0)
    ff = Stream()
    if ks < 19: q_reads(ff, ks + 1)
    m_.add(weave(mm, [(ff, 0, 6)]))
QP = OPT['qpost']
assert QP >= 3 + 6 * 4
fp = Stream(); stamp(fp, 'q_a'); fp.waitvm('part' if OPT['qe'] > 2 else 'Q2'); stamp(fp, 'q_b'); fp.s_barrier(); post(fp, F_KV)
NW3 = 0
W3ORD = [t * 20 + 4 * b_ + j_ for b_ in range(5) for t in range(3) for j_ in range(4)]
QP2 = OPT['qpost2']
fr = Stream(); prep_reads(fr, 0, vE + 4); prep_reads(fr, 1, vE + 24)
fs = Stream(); prep_stores(fs, 0, vE + 4); prep_stores(fs, 1, vE + 24)
fc = Stream()
vCA, vCD = vE + 32, vE + 52
for t in range(4):
    fc.v_cmp_eq_u32(s(sT + 4, 2), t if t < 3 else v(vG), v(vR4))
    for i in range(4): fc.v_cndmask_b32(v(vCA + i), 0, v(vONE), s(sT + 4, 2))
    mfma(fc, v(vCD, 4), v(vCA, 4), v(vE + 4 + 4 * t, 4), t == 0)
fc.v_lshlrev_b32(v(t0), 8, v(vG)); fc.v_mul_u32_u24(v(t0), 3, v(t0)); fc.v_add_u32(v(t0), v(t0), v(PA[2]))
fc.v_mov_b32(v(t1), OOB)
fc.v_cmp_gt_u32(s(sT + 4, 2), 3, v(vG))
fc.s_mul_i32(s(sE), s(sC), 12288); fc.s_mul_i32(s(sF), s(sW), 3072); fc.s_add_u32(s(sE), s(sE), s(sF))
fc.v_cndmask_b32(v(t0), v(t1), v(t0), s(sT + 4, 2))
fc.s_lshr_b32(s(sF), s(sR), 2); fc.s_lshl_b32(s(sF), s(sF), 8); fc.s_add_u32(s(sE), s(sE), s(sF))
fc.v_cvt_pk_bf16_f32(v(vCD + 1), v(vCD), v(vCD))
fc.s_and_b32(s(sF), s(sR), 3); fc.s_lshl_b32(s(sF), s(sF), 2); fc.s_add_u32(s(sE), s(sE), s(sF))
fc.v_lshlrev_b32(v(vCD + 1), 16, v(vCD + 1))
fc.v_sub_f32(v(vCD + 1), v(vCD), v(vCD + 1))
fc.v_cvt_pk_bf16_f32(v(vCD + 1), v(vCD), v(vCD + 1))
fc.s_add_u32(s(sE), s(sE), WS_CS3)
fc.buffer_store_dword(v(vCD + 1), v(t0), srd(S_WS), s(sE), mods='offen sc1', tag='prepst3')
fq = Stream(); stamp(fq, 'q_c'); fq.waitvm('prepst3'); stamp(fq, 'q_d'); fq.s_barrier(); post(fq, F_PREP)
f2 = Stream(); flag_check(f2, vF3, vFA1, sD); issue_w2(f2, 0, OPT['w2q'])
f4 = Stream(); flag_issue(f4, vF2, vFC, sFK)
fqq = Stream(); issue_q(fqq, OPT['qe'], 5)
fb3 = Stream(); fb3.waitvm('Q3'); fb3.s_barrier()
fb4 = Stream(); fb4.waitvm('Q4'); fb4.s_barrier()
PB = 0 if OPT['pe'] else QP + 1
fl = [(fqq, 0, 34, 'vmem'), (fb3, 67, 68, 'vmem'), (fb4, 91, 92, 'vmem'), (fp, QP, QP + 1, 'vmem'), (fr, PB, PB + 9), (fs, PB + 10, PB + 10 + OPT['psl'], 'vmem'),
      (fc, PB + 11 + OPT['psl'], PB + 33 + OPT['psl']), (f2, OPT['w2at'], 122, 'vmem')]
if OPT['pe']: fl.append((fq, OPT['pe'], OPT['pe'] + 1, 'vmem')); fq = Stream()
m_ = pack(m_, fl)
f4b = f4
print('q gemm est', m_.est)
k.add(m_)
stamp(k, 'qgemm')
m_ = Stream()
for tt in range(2):
    for X in range(3): ln_pack(m_, X, tt, vBK + 6 * tt + 2 * X)
feature_map(m_)
order = [0] * 20
for s_ in range(4):
    order[2 * s_] = 4 * s_; order[2 * s_ + 1] = 4 * s_ + 1; order[8 + 2 * s_] = 4 * s_ + 2; order[9 + 2 * s_] = 4 * s_ + 3
for i in range(16, 20): order[i] = i
softmax2(m_, order)
f5 = Stream(); stamp(f5, 'q_e'); flag_check(f5, vF2, vFC, sFK); stamp(f5, 'q_f'); issue_part(f5)
N2 = min(25, OPT['w2q'] + OPT['w2s'])
f6 = Stream(); issue_w2(f6, OPT['w2q'], N2)
if OPT['w3u']: flag_issue(f6, vF1, vFA1, sFP)
k.add(weave(m_, [(f5, OPT['qpl'], OPT['qpl'] + OPT['qpn'], 'vmem'), (f6, OPT['qpl'] + OPT['qpn'] + 2, None, 'vmem'), (f4b, OPT['qpl'] - 60, OPT['qpl'] - 59, 'vmem'), (fq, QP2, QP2 + 1, 'vmem')], anchor='any'))
stamp(k, 'phiq')
if OPT['stop'] == 2:
    k.waitvm(); k.s_barrier()
    dump(k, [v(vPK + 4 * i, 4) for i in range(5)])
    finish(k)

vSUM = vE
for i in range(4): k.v_mov_b32(v(vSUM + 12 + i), 0)
k.ds_write_b128(v(vT16), v(vSUM + 12, 4), mods='offset:%d' % (L_ZERO - L_KVR))
m_ = Stream()
for r_ in range(16):
    for i in range(4):
        if r_ == 0:
            m_.v_lshlrev_b32(v(vSUM + 2 * i), 16, v(PLQ[0] + i))
            m_.v_and_b32(v(vSUM + 2 * i + 1), 0xffff0000, v(PLQ[0] + i))
        else:
            m_.v_dot2_f32_bf16(v(vSUM + 2 * i), v(PLQ[r_] + i), s(sONE_LO), v(vSUM + 2 * i))
            m_.v_dot2_f32_bf16(v(vSUM + 2 * i + 1), v(PLQ[r_] + i), s(sONE_HI), v(vSUM + 2 * i + 1))
N3 = min(25, N2 + OPT['w2u'])
f_ = Stream(); issue_w2(f_, N2, N3); N2 = N3
if OPT['w3u']: flag_check(f_, vF1, vFA1, sFP); issue_w3(f_, W3ORD[:OPT['w3u']]); NW3 = OPT['w3u']
else: flag_issue(f_, vF1, vFA1, sFP)
if OPT['tagB']:
    f_.s_lshl_b32(s(sD), s(sR), 11); f_.s_add_u32(s(sD), s(sD), WS_FLAGS + F_PREP2 * 32768); flag_issue(f_, vF3, vFR, sD)
k.add(weave(m_, [(f_, OPT['w2uat'], None, 'vmem')], anchor='any'))
vOA = 104
for i in range(4): k.v_cvt_pk_bf16_f32(v(vSUM + 8 + i), v(vSUM + 2 * i), v(vSUM + 2 * i + 1))
k.ds_write_b128(v(vT16), v(vSUM + 8, 4))
if not OPT['tagB']: o_addrs(k)
k.waitlds()
k.s_barrier()
stamp(k, 'kvsum')
vOD = 224
vOP = 84
TORD = (5, 0, 1, 2, 3, 4)
def oread(st, n):
    s_, t = n // 6, TORD[n % 6]
    off = 256 * s_ + 64 * t if t < 4 else 1280 + 64 * (t - 4) + 80 * s_
    st.ds_read_b128(v(vOA + n * 4, 4), v(vKR), mods='offset:%d' % off)
for n in range(8): oread(k, n)
m_ = Stream()
for n in range(30):
    mfma(m_, v(vOD + 4 * TORD[n % 6], 4), v(vOA + n * 4, 4), v(vPK + 4 * (n // 6), 4), n < 6)
    if n + 8 < 30: oread(m_, n + 8)
N3 = min(25, N2 + OPT['w2o'])
f_ = Stream(); issue_w2(f_, N2, N3); N2 = N3
if OPT['w3o']:
    if not OPT['w3u']: flag_check(f_, vF1, vFA1, sFP)
    issue_w3(f_, W3ORD[NW3:NW3 + OPT['w3o']]); NW3 += OPT['w3o']
k.add(pack(m_, [(f_, 0, 26, 'vmem')]))
k.v_add_f32(v(vOD + 20), s(sEPS6), v(vOD + 20))
k.v_rcp_f32(v(vOD + 20), v(vOD + 20))
for i in range(10): k.v_pk_mul_f32(v(vOD + 2 * i, 2), v(vOD + 2 * i, 2), v(vOD + 20, 2), mods='op_sel_hi:[1,0]')
for i in range(10): k.v_cvt_pk_bf16_f32(v(vOP + i), v(vOD + 2 * i), v(vOD + 2 * i + 1))
if OPT['tagB']:
    for i in range(0, 10, 2): k.v_min_u32(v(vOP + i), -2, v(vOP + i))
o_store(k, vOP, vOP + 4, vOP + 8, 'ost')
stamp(k, 'ost')
vH = 18
vXRES = 252 - 10 * 0 - 0 if False else 28
vOF = 40
vA2 = 120
vD2 = 152
vA2P = 172
k.s_lshl_b32(s(sE), s(sW), 1); k.s_add_u32(s(sE), s(sE), s(sP))
k.s_lshl_b32(s(sT), s(sR), 3); k.s_add_u32(s(sF), s(sT), s(sE))
k.s_mul_i32(s(sXR), s(sF), 16 * 1280)
k.s_mul_i32(s(sT), s(sM), 160); k.s_add_u32(s(sXR), s(sXR), s(sT))
vXD = 38 - 3
for e in range(3):
    k.v_add_u32(v(t0), 64 * e, v(vLANE)); div_small(k, t1, t0, 10)
    k.v_mul_u32_u24(v(t2), 10, v(t1)); k.v_sub_u32(v(t2), v(t0), v(t2))
    k.v_mul_u32_u24(v(vXD + e), 1280, v(t1)); k.v_lshl_add_u32(v(vXD + e), v(t2), 4, v(vXD + e))
    if e: k.v_subrev_u32(v(vXD + e), 1024 * e, v(vXD + e))
if OPT['tagB']: flag_check(k, vF3, vFR, sD)
else:
    k.waitvm('ost')
    k.s_barrier()
    post(k, F_O)
issue_w2(k, N2, 25)
k.s_mul_i32(s(sT + 2), s(sW), 3072)
k.s_add_u32('m0', s(sT + 2), L_XR)
for e in range(3): k.buffer_load_dwordx4(v(vXD + e), srd(S_X), s(sXR), mods='offen offset:%d lds' % (e * 1024), tag='xr')
k.v_mul_u32_u24(v(vXD), 160, v(vJ)); k.v_mul_u32_u24(v(t0), 40, v(vG)); k.v_add3_u32(v(vXD), v(vXD), v(t0), s(sT + 2))
k.v_add_u32(v(vXD), L_XR, v(vXD))
if OPT['tagD']:
    for i in range(4): k.v_mov_b32(v(vD2 + 8 + i), -1)
    k.v_mov_b32(v(t2), OOB)
    k.v_cmp_gt_u32('vcc', 3, v(vG))
    k.v_cndmask_b32(v(vD2 + 12), v(t2), v(vL16), 'vcc')
    k.s_mul_i32(s(sT + 4), s(sR), 8 * 49152); k.s_mul_i32(s(sT + 5), s(sC), 3072); k.s_add_u32(s(sT + 4), s(sT + 4), s(sT + 5))
    k.s_mul_i32(s(sT + 5), s(sW), 768); k.s_add_u32(s(sT + 4), s(sT + 4), s(sT + 5)); k.s_add_u32(s(sT + 4), s(sT + 4), WS_HH + 6 * 49152)
    k.buffer_store_dwordx4(v(vD2 + 8, 4), v(vD2 + 12), srd(S_WS), s(sT + 4), mods='offen sc1')
    k.s_add_u32(s(sT + 4), s(sT + 4), 49152)
    k.buffer_store_dwordx4(v(vD2 + 8, 4), v(vD2 + 12), srd(S_WS), s(sT + 4), mods='offen sc1')
stamp(k, 'opost')
if OPT['stop'] == 3: finish(k)

W3A = min(60, NW3 + OPT['w3a']); W3B = min(60, W3A + OPT['w3b'])
k.v_add_u32(v(t0), L_W2, v(vL16))
k.v_add_u32(v(t1), L_W2 + 61440, v(vL16))
k.v_mov_b32(v(38), v(vXD))
A2S = [vA2P + 4 * i for i in range(21)] + [vA2 + 4 * i for i in range(8)]
def a2read(st, i):
    st.ds_read_b128(v(A2S[i % 29], 4), v(t0 if i < 60 else t1), mods='offset:%d' % ((i if i < 60 else i - 60) * 1024))
if not OPT['w3o']: flag_check(k, vF1, vFA1, sFP)
k.s_mul_i32(s(sV), s(sF), 20480); k.s_add_u32(s(sV), s(sV), WS_O)
if OPT['asy']:
    k.s_lshl_b32(s(sV + 1), s(sR), 11); k.s_add_u32(s(sV + 1), s(sV + 1), WS_FLAGS + F_O * 32768)
    issue_w3(k, W3ORD[NW3:NW3 + 4])
    k.waitvm('xr'); k.s_barrier()
    issue_w3(k, W3ORD[NW3 + 4:W3A])
    if OPT['tagB']:
        k.v_mul_u32_u24(v(vD2 + 4), 1280, v(vJ)); k.v_lshl_add_u32(v(vD2 + 4), v(vG), 6, v(vD2 + 4)); k.v_add_u32(v(vD2 + 4), 1024, v(vD2 + 4))
        sent_issue(k, vD2, vD2 + 4, sV)
    else: flag_issue(k, vD2, vFR, sV + 1)
    issue_w3(k, W3ORD[W3A:W3A + OPT['w3a2']]); W3A += OPT['w3a2']; W3B = min(60, W3A + OPT['w3b'])
    for q in range(5): k.ds_read_b64(v(vXRES + 2 * q, 2), v(38), mods='offset:%d' % (8 * q))
    if OPT['tagB']:
        k.s_mov_b32(s(sRC), 64)
        sent_check(k, vD2, vD2 + 4, sV)
    else:
        for i in range(29): a2read(k, i)
        flag_check(k, vD2, vFR, sV + 1)
else:
    issue_w3(k, W3ORD[NW3:W3A])
    k.waitvm('xr')
    poll_row(k, F_O, vD2)
    k.s_barrier()
stamp(k, 'oflag')
def issue_o(st, lo, hi):
    for i in range(lo, hi):
        if i % 4 == 0 or i == lo: st.s_add_u32(s(sV + 1), s(sV), (i & ~3) * 1024)
        st.buffer_load_dwordx4(v(vOF + 4 * i, 4), v(vL16), srd(S_WS), s(sV + 1), mods='offen offset:%d sc1' % ((i % 4) * 1024))
if OPT['tagB']: k.label('L_g2')
issue_o(k, 0, 10)
if OPT['tagB']:
    for i in range(29): a2read(k, i)
if not OPT['asy']:
    for i in range(29): a2read(k, i)
    for q in range(5): k.ds_read_b64(v(vXRES + 2 * q, 2), v(38), mods='offset:%d' % (8 * q))
m_ = Stream()
nxt = 29
for i in range(100):
    ks, t = divmod(i, 5)
    mfma(m_, v(vD2 + 4 * t, 4), v(A2S[i % 29], 4), v(vOF + 4 * ks, 4), ks == 0)
    if OPT['tagB'] and i % 4 == 1 and i // 4 < 20 and False: pass
    if nxt < 100 and i % 4 != 3 - 0 and nxt - 29 <= i: a2read(m_, nxt); nxt += 1
    elif nxt < 100 and nxt - i <= 10: a2read(m_, nxt); nxt += 1
assert nxt == 100
if OPT['tagB']:
    mk = Stream(); cnt = 0
    for x in m_.l:
        mk.l.append(x)
        if x.cls == 'mfma':
            if cnt % 5 == 1:
                q = cnt // 5
                if q == 0: mk.v_max_u32(v(39), v(vOF), v(vOF + 2))
                else: mk.v_max3_u32(v(39), v(39), v(vOF + 4 * q), v(vOF + 4 * q + 2))
            cnt += 1
    for n in range(len(mk.l) - 1):
        if mk.l[n].cls == 'valu' and mk.l[n + 1].cls == 'ldsr': mk.l[n], mk.l[n + 1] = mk.l[n + 1], mk.l[n]
    m_ = mk
f1 = Stream(); issue_o(f1, 10, 20)
f2 = Stream(); issue_w3(f2, W3ORD[W3A:W3B])
m_ = pack(m_, [(f1, 0, 40, 'vmem'), (f2, 44, 100, 'vmem')]); print('gemm2 est', m_.est)
k.add(m_)
if OPT['tagB']: redo_check(k, 39, 'L_g2')
stamp(k, 'gemm2')
k.v_lshrrev_b32(v(t0), 1, v(vG)); k.v_mul_u32_u24(v(t0), 1280, v(t0))
k.v_lshl_add_u32(v(t0), v(vJ), 4, v(t0))
k.v_and_b32(v(t1), 1, v(vG))
k.v_lshl_add_u32(v(t2), v(t1), 3, v(t0))
k.v_lshl_add_u32(v(t0), v(t1), 9, v(t0))
k.s_mul_i32(s(sT), s(sF), 20480); k.s_mul_i32(s(sT + 1), s(sM), 2560); k.s_add_u32(s(sT), s(sT), s(sT + 1))
k.s_add_u32(s(sT), s(sT), WS_H)
for i in range(10):
    k.v_dot2_f32_bf16(v(vD2 + 2 * i), v(vXRES + i), s(sONE_LO), v(vD2 + 2 * i))
    k.v_dot2_f32_bf16(v(vD2 + 2 * i + 1), v(vXRES + i), s(sONE_HI), v(vD2 + 2 * i + 1))
for i in range(10): k.v_cvt_pk_bf16_f32(v(vH + i), v(vD2 + 2 * i), v(vD2 + 2 * i + 1))
k.buffer_store_dwordx4(v(vH, 4), v(t0), srd(S_WS), s(sT), mods='offen sc1')
k.buffer_store_dwordx4(v(vH + 4, 4), v(t0), srd(S_WS), s(sT), mods='offen offset:256 sc1')
k.buffer_store_dwordx2(v(vH + 8, 2), v(t2), srd(S_WS), s(sT), mods='offen offset:1024 sc1')
sS, sQ, sY = vD2, vD2 + 1, vD2 + 2
k.v_mov_b32(v(sS), 0); k.v_mov_b32(v(sQ), 0)
for i in range(10):
    k.v_dot2_f32_bf16(v(sS), v(vH + i), s(sONES), v(sS))
    k.v_dot2_f32_bf16(v(sQ), v(vH + i), v(vH + i), v(sQ))
k.v_lshrrev_b32(v(t0), 1, v(vG)); k.v_lshlrev_b32(v(t0), 2, v(t0))
k.v_lshl_add_u32(v(t0), v(vJ), 3, v(t0))
k.v_mov_b32(v(t2), OOB)
k.v_cmp_eq_u32('vcc', 0, v(t1))
k.v_permlane32_swap_b32(v(sS), v(sQ))
k.v_add_f32(v(sS), v(sS), v(sQ))
k.v_cndmask_b32(v(t0), v(t2), v(t0), 'vcc')
k.v_mov_b32(v(sY), v(sS))
k.s_lshl_b32(s(sT), s(sF), 10); k.s_lshl_b32(s(sT + 1), s(sM), 7); k.s_add_u32(s(sT), s(sT), s(sT + 1))
k.s_add_u32(s(sT), s(sT), WS_HST)
k.v_permlane16_swap_b32(v(sS), v(sY))
k.v_add_f32(v(sS), v(sS), v(sY))
k.buffer_store_dword(v(sS), v(t0), srd(S_WS), s(sT), mods='offen sc1', tag='hst')
stamp(k, 'hst')

vL8 = 111
vCS = 28
vD3 = 40
vB3 = 64
vS3 = 88
vG3 = 92
vFL = 104
vRA = 108
vW4 = 112
sW4, sW4t, sW4l, sHs, sHl, sHt, sHS, sHH, sHHt, sHL, sHLt, sFH, sFHt = sB, sV, sXO, sXO + 1, sXO + 2, sV + 1, sV + 2, sD, sV + 4, sXO + 5, sV + 5, sXO + 4, sV + 6
k.s_mul_i32(s(sW4), s(sM), 245760); k.s_mul_i32(s(sT + 1), s(sW), 61440); k.s_add_u32(s(sW4), s(sW4), s(sT + 1))
k.s_add_u32(s(sW4), s(sW4), WS_W4)
k.s_mul_i32(s(sW4l), s(sW), 24576)
def issue_w4(st, lo, hi):
    for i in range(lo, hi):
        if i % 4 == 0 or i == lo: st.s_add_u32(s(sW4t), s(sW4), (i & ~3) * 1024)
        if i < 36:
            st.buffer_load_dwordx4(v(vW4 + 4 * i, 4), v(vL16), srd(S_WS), s(sW4t), mods='offen offset:%d sc1' % ((i & 3) * 1024))
        else:
            if i % 4 == 0 or i == lo: st.s_add_u32('m0', s(sW4l), L_W4 + ((i - 36) & ~3) * 1024)
            st.buffer_load_dwordx4(v(vL16), srd(S_WS), s(sW4t), mods='offen offset:%d sc1 lds' % ((i & 3) * 1024), tag='W4')
W3C = min(60, W3B + OPT['w3c']); W3E = 60 - OPT['w3t']
k.s_mul_i32(s(sT + 2), s(sC), 12288); k.s_mul_i32(s(sT + 3), s(sW), 3072); k.s_add_u32(s(sT + 2), s(sT + 2), s(sT + 3))
k.s_add_u32(s(sT + 2), s(sT + 2), WS_CS3)
issue_w3(k, W3ORD[W3B:W3C])
for i in range(4): k.v_mov_b32(v(vB3 + i), 0x3f803f80)
k.waitvm('hst'); k.waitlds(); k.s_barrier(); post(k, F_H)
W4A = OPT['w4a']
stamp(k, 'hpost')
for t in range(3): k.buffer_load_dwordx4(v(vD3 + 4 * t, 4), v(vL16), srd(S_WS), s(sT + 2), mods='offen offset:%d sc1' % (t * 1024))
W3D = max(W3C, W3E - OPT['w3c2']) if OPT['asy'] else W3E
issue_w3(k, W3ORD[W3C:W3D])
for t in range(3): mfma(k, v(vCS + 4 * t, 4), v(vD3 + 4 * t, 4), v(vB3, 4), True)
stamp(k, 'colsum')
if OPT['stop'] == 4: finish(k)
k.s_mul_i32(s(sHl), s(sW), 5120)
k.s_mul_i32(s(sHs), s(sR), 163840); k.s_add_u32(s(sHs), s(sHs), s(sHl))
k.s_add_u32(s(sHs), s(sHs), WS_H)
k.v_lshlrev_b32(v(t0), 9, v(vG))
k.v_lshl_add_u32(v(t0), v(vJ), 3, v(t0))
k.s_lshl_b32(s(sHS), s(sR), 13); k.s_lshl_b32(s(sT + 1), s(sW), 11); k.s_add_u32(s(sHS), s(sHS), s(sT + 1))
k.s_add_u32(s(sHS), s(sHS), WS_HST)
k.v_add_u32(v(vRA), L_RING, v(vL16))
k.v_lshrrev_b32(v(vL8), 1, v(vL16))
k.v_lshlrev_b32(v(vRA + 1), 4, v(vJ)); k.v_add_u32(v(vRA + 1), L_ST, v(vRA + 1))
k.v_mov_b32(v(t2), OOB)
k.v_cmp_gt_u32('vcc', 3, v(vG))
k.v_cndmask_b32(v(vRA + 2), v(t2), v(vL16), 'vcc')
k.s_mul_i32(s(sHH), s(sR), 8 * 49152); k.s_mul_i32(s(sT), s(sC), 3072); k.s_add_u32(s(sHH), s(sHH), s(sT))
k.s_mul_i32(s(sT), s(sW), 768); k.s_add_u32(s(sHH), s(sHH), s(sT)); k.s_add_u32(s(sHH), s(sHH), WS_HH)
k.s_lshl_b32(s(sT), s(sR), 3); k.s_add_u32(s(sT), s(sT), s(sP)); k.s_mul_i32(s(sHL), s(sT), 49152)
k.s_mul_i32(s(sT), s(sW), 12288); k.s_add_u32(s(sHL), s(sHL), s(sT)); k.s_add_u32(s(sHL), s(sHL), WS_HH)
k.s_lshl_b32(s(sFH), s(sR), 11); k.s_add_u32(s(sFH), s(sFH), WS_FLAGS + F_HH * 32768)
if OPT['asy']:
    k.s_lshl_b32(s(sV + 6), s(sR), 11); k.s_add_u32(s(sV + 6), s(sV + 6), WS_FLAGS + F_H * 32768)
    flag_issue(k, vG3, vFR, sV + 6)
    issue_w3(k, W3ORD[W3D:W3E])
    issue_w4(k, 0, W4A)
    flag_check(k, vG3, vFR, sV + 6)
else:
    issue_w4(k, 0, W4A)
    poll_row(k, F_H, vG3)
    k.s_barrier()
stamp(k, 'hflag')
def issue_h(st, T):
    for i in range(5):
        if i % 4 == 0: st.s_add_u32('m0', s(sHl), L_RING + (T % 3) * 20480 + (i & 4) * 1024)
        if i % 4 == 0: st.s_add_u32(s(sHt), s(sHs), T * 20480 + i * 1024)
        st.buffer_load_dwordx4(v(vL16), srd(S_WS), s(sHt), mods='offen offset:%d sc1 lds' % ((i & 3) * 1024), tag='h%d' % T)
issue_h(k, 0)
issue_w3(k, W3ORD[W3E:W3E + 4])
issue_h(k, 1)
for i in range(4): k.buffer_load_dwordx2(v(vG3 + 2 * i, 2), v(t0), srd(S_WS), s(sHS), mods='offen offset:%d sc1' % (128 * i))
def stats3(st):
    st.v_add_f32(v(vG3), v(vG3), v(vG3 + 2)); st.v_add_f32(v(vG3 + 1), v(vG3 + 1), v(vG3 + 3))
    st.v_add_f32(v(vG3 + 4), v(vG3 + 4), v(vG3 + 6)); st.v_add_f32(v(vG3 + 5), v(vG3 + 5), v(vG3 + 7))
    st.v_add_f32(v(vG3), v(vG3), v(vG3 + 4)); st.v_add_f32(v(vG3 + 1), v(vG3 + 1), v(vG3 + 5))
    st.v_mov_b32(v(vG3 + 2), v(vG3)); st.v_mov_b32(v(vG3 + 3), v(vG3 + 1))
    st.v_lshrrev_b32(v(t0), 1, v(vG)); st.v_lshlrev_b32(v(t0), 8, v(t0))
    for i in range(2): st.v_permlane16_swap_b32(v(vG3 + i), v(vG3 + 2 + i))
    for i in range(2): st.v_add_f32(v(vG3 + i), v(vG3 + i), v(vG3 + 2 + i))
    st.v_mul_f32(v(vG3), s(sINV640), v(vG3))
    st.v_mul_f32(v(vG3 + 1), s(sINV640), v(vG3 + 1))
    st.v_fma_f32(v(vG3 + 1), '-' + v(vG3), v(vG3), v(vG3 + 1))
    st.v_max_f32(v(vG3 + 1), 0, v(vG3 + 1))
    st.v_add_f32(v(vG3 + 7), s(sEPS), v(vG3 + 1))
    st.v_sub_f32(v(vG3 + 4), 0, v(vG3))
    st.v_rsq_f32(v(vG3 + 2), v(vG3 + 7))
    st.v_lshl_add_u32(v(t0), v(vJ), 4, v(t0))
    st.v_mul_f32(v(vG3 + 5), s(sK1), v(vG3 + 2))
    st.v_mul_f32(v(vG3 + 3), v(vG3 + 2), v(vG3 + 2))
    st.v_mul_f32(v(vG3 + 6), s(sK3), v(vG3 + 2))
    st.v_mul_f32(v(vG3 + 6), v(vG3 + 6), v(vG3 + 3))
    st.s_lshl_b32(s(sT), s(sW), 9); st.s_add_u32(s(sT), s(sT), L_ST)
    st.v_add_u32(v(t0), s(sT), v(t0))
    st.ds_write_b128(v(t0), v(vG3 + 4, 4))
def epi3(st, T):
    D = vD3 + 12 * (T & 1)
    nm, c1, c3, vr = v(vS3), v(vS3 + 1), v(vS3 + 2), v(vS3 + 3)
    for t in range(3):
        for e in range(2):
            g_, u_ = D + 4 * t + e, D + 4 * t + 2 + e
            x = vG3 + 4 + e
            st.v_fmac_f32(v(g_), nm, v(vCS + 4 * t + e))
            st.v_fmac_f32(v(u_), nm, v(vCS + 4 * t + 2 + e))
            st.v_mul_f32(v(x), v(g_), v(g_))
            st.v_mul_f32(v(u_), v(g_), v(u_))
            st.v_fma_f32(v(x), v(x), c3, c1)
            st.v_mul_f32(v(x), v(x), v(g_))
            st.v_exp_f32(v(x), v(x))
        for e in range(2):
            x = vG3 + 4 + e
            st.v_fma_f32(v(x), v(x), vr, vr)
            st.v_rcp_f32(v(x), v(x))
        for e in range(2):
            u_ = D + 4 * t + 2 + e
            st.v_mul_f32(v(u_), v(u_), v(vG3 + 4 + e))
        st.v_cvt_pk_bf16_f32(v(vG3 + t), v(D + 4 * t + 2), v(D + 4 * t + 3))
        st.v_mov_b32(v(vG3 + 6 + t), v(vG3 + t))
    ta, tb, tc = vG3 + 6, vG3 + 7, vG3 + 8
    st.v_permlane16_swap_b32(v(ta), v(tb))
    st.v_permlane16_swap_b32(v(tc), v(vG3 + 3))
    st.s_add_u32(s(sHHt), s(sHH), T * 49152)
    if OPT['tagD'] and T >= 6: st.v_min_u32(v(vG3), -2, v(vG3)); st.v_min_u32(v(vG3 + 2), -2, v(vG3 + 2))
    st.v_permlane32_swap_b32(v(tb), v(vG3 + 3))
    st.buffer_store_dwordx4(v(vG3, 4), v(vRA + 2), srd(S_WS), s(sHHt), mods='offen sc1', tag='hh%d' % T)
def hhbuf(i, q): return a(80 * (i % 3) + 4 * q, 4)
def issue_hh(st, i, lo=0, hi=12):
    for q in range(lo, hi):
        if q % 4 == 0 or q == lo: st.s_add_u32(s(sHLt), s(sHL), i * 2 * 49152 + (q & ~3) * 1024)
        st.buffer_load_dwordx4(hhbuf(i, q), v(vL16), srd(S_WS), s(sHLt), mods='offen offset:%d sc1' % ((q & 3) * 1024))
def hflag_issue(st, n):
    st.s_add_u32(s(sFHt), s(sFH), n * 32768); flag_issue(st, vFL + 2 * (n & 1), vFR, sFHt)
def hflag_check(st, n):
    st.s_add_u32(s(sFHt), s(sFH), n * 32768); flag_check(st, vFL + 2 * (n & 1), vFR, sFHt)

W4L = OPT['w4l']
rem = W4L - W4A
w4sched = [W4A, W4A + OPT['w40']] + [W4A + OPT['w40'] + ((rem - OPT['w40']) * i) // 6 for i in range(1, 7)] + [W4L]
NB = 6
def b3read(st, T, ks):
    n = T * 20 + ks
    st.ds_read_b128(v(vB3 + 4 * (n % NB), 4), v(vRA), mods='offset:%d' % ((T % 3) * 20480 + ks * 1024), tag='b%d' % n)
k.waitvm('h0')
k.s_barrier()
for ks in range(4): b3read(k, 0, ks)
for T in range(8):
    stamp(k, 'g3t%d' % T)
    m_ = Stream()
    if T > 0: m_.ds_read_b128(v(vS3, 4), v(vRA + 1), mods='offset:%d' % ((T - 1) * 256))
    for ks in range(20):
        n = T * 20 + ks
        if ks == 14 and T < 7:
            m_.waitvm('h%d' % (T + 1))
            if T == 5: m_.waitvm('hh3')
            if T == 0: m_.waitlds()
            m_.s_barrier()
            if T == 5: post(m_, F_HH)
        for t in range(3):
            mfma(m_, v(vD3 + 12 * (T & 1) + 4 * t, 4), a((t * 20 + ks) * 4, 4), v(vB3 + 4 * (n % NB), 4), ks == 0)
            if t == 0 and n + 4 < 160: b3read(m_, (n + 4) // 20, (n + 4) % 20)
            if t == 2 and ks % 2 == 1 and n + 2 < 160: m_.waitlds('b%d' % (n + 2))
        if ks == 8 and T == 7:
            m_.waitvm('hh5'); m_.s_barrier(); post(m_, F_HH + 1)
    fh = Stream()
    if T <= 5: issue_h(fh, T + 2)
    fv = Stream()
    if T == 0: issue_w3(fv, W3ORD[W3E + 4:60])
    if not OPT.get('now4'): issue_w4(fv, w4sched[T], w4sched[T + 1])
    fe = Stream()
    if T > 0 and OPT.get('noe'):
        fe.s_add_u32(s(sHHt), s(sHH), (T - 1) * 49152); fe.buffer_store_dwordx4(v(vG3, 4), v(vRA + 2), srd(S_WS), s(sHHt), mods='offen sc1', tag='hh%d' % (T - 1))
    elif T > 0: epi3(fe, T - 1)
    else: stats3(fe)
    fills = [(fv, 0, 40, 'vmem'), (fh, 43, 60, 'vmem'), (fe, 2 if T else 12, 56 if T else 40)]
    if T == 7:
        f1 = Stream(); hflag_issue(f1, 0); fills.append((f1, 0, 1, 'vmem'))
        f2 = Stream(); hflag_check(f2, 0); issue_hh(f2, 0, 0, 9); fills.append((f2, 28, 60, 'vmem'))
    m_ = pack(m_, fills); print('g3 tile', T, 'est', m_.est)
    k.add(m_)
stamp(k, 'g3end')
def w4a(i): return a(80 * ((i - 36) // 8) + 48 + 4 * ((i - 36) % 8), 4)
k.ds_read_b128(v(vS3, 4), v(vRA + 1), mods='offset:%d' % (7 * 256))
k.v_add_u32(v(t0), s(sW4l), v(vL16))
k.waitvm('W4')
if OPT['stop'] == 5:
    epi3(k, 7); k.waitvm('hh7'); k.waitlds(); k.s_barrier(); post(k, F_HH + 2); finish(k)

vD4 = [64, 40]
def w4frag(i): return v(vW4 + 4 * i, 4) if i < 36 else w4a(i)
vRW = 84; vRR = 85; vOW = 86; vOR = 87; vOS = 88
QS = W4L // 5
def seg4(st, i, lo, hi):
    for q in range(lo, hi):
        for t in range(5): mfma(st, v(vD4[i & 1] + 4 * t, 4), w4frag(q * 5 + t), hhbuf(i, q), q == 0)
def red_write(st, i):
    for t in range(10): st.ds_write_b64(v(vRW), v(vD4[i & 1] + 2 * t, 2), mods='offset:%d' % (L_RED + i * 20480 + t * 512))
def issue_w4r(st, lo, hi):
    for i in range(lo, hi):
        if i % 4 == 0 or i == lo: st.s_add_u32(s(sW4t), s(sW4), (i & ~3) * 1024)
        st.buffer_load_dwordx4(w4a(i), v(vL16), srd(S_WS), s(sW4t), mods='offen offset:%d sc1' % ((i & 3) * 1024))
m_ = Stream(); seg4(m_, 0, 0, QS); seg4(m_, 1, 0, QS); seg4(m_, 0, QS, 12); seg4(m_, 1, QS, 12)
fe = Stream(); epi3(fe, 7)
fw = Stream()
for n in range(36, W4L): fw.ds_read_b128(w4a(n), v(t0), mods='offset:%d' % (L_W4 + (n - 36) * 1024))
fw.s_mul_i32(s(sT + 2), s(sW), 5120)
fw.v_add_u32(v(vRW), s(sT + 2), v(vL8))
fw.s_mul_i32(s(sT + 2), s(sW), 20480)
fw.v_add_u32(v(vRR), s(sT + 2), v(vL8))
fv = Stream()
if QS <= 9:
    issue_hh(fv, 1, 0, QS); issue_w4r(fv, W4L, W4L + 5); hflag_issue(fv, 1); issue_hh(fv, 0, 9, 12); issue_w4r(fv, W4L + 5, 60); issue_hh(fv, 1, QS, 12)
else:
    issue_hh(fv, 0, 9, 12); issue_hh(fv, 1, 0, 6); hflag_issue(fv, 1); issue_hh(fv, 1, 6, QS); issue_w4r(fv, W4L, 60); issue_hh(fv, 1, QS, 12)
fv2 = Stream(); hflag_check(fv2, 1); issue_hh(fv2, 2, 0, OPT['h2a'])
fp = Stream()
if OPT['tagD']: fp.waitlds(); fp.s_barrier()
else: fp.waitvm('hh7'); fp.waitlds(); fp.s_barrier(); post(fp, F_HH + 2)
fr0 = Stream(); red_write(fr0, 0)
e1 = OPT['v4end']
m_ = pack(m_, [(fe, 0, OPT['e7end']), (fw, 8, 34 + (W4L - 45) // 2), (fv, 0, e1, 'vmem'), (fp, OPT['p4post'], OPT['p4post'] + 1, 'vmem'), (fv2, e1, 120, 'vmem'),
               (fr0, 120 - 5 * (12 - QS) + 2 if QS < 12 else 64, 120 if QS < 12 else 110, 'vmem1')])
print('g4 tiles 0,1 est', m_.est)
stamp(k, 'g4t0'); k.add(m_)
m_ = Stream(); seg4(m_, 2, 0, 12)
fv = Stream(); issue_hh(fv, 2, OPT['h2a'], 12)
fv2 = Stream()
vSN = 92; vMX4 = 97
if OPT['tagD']:
    k.v_mul_u32_u24(v(vSN + 4), 768, v(vJ)); k.v_mul_u32_u24(v(t0), 192, v(vG)); k.v_add_u32(v(vSN + 4), v(vSN + 4), v(t0))
    k.s_add_u32(s(sFHt), s(sHL), 6 * 49152)
    k.s_mov_b32(s(sRC), 64)
    sent_issue(fv, vSN, vSN + 4, sFHt); sent_check(fv2, vSN, vSN + 4, sFHt)
else:
    hflag_issue(fv, 2); hflag_check(fv2, 2)
issue_hh(fv2, 3, 0, OPT['h3a'])
fr1 = Stream(); red_write(fr1, 1)
fa = Stream()
fa.s_mul_i32(s(sT + 2), s(sW), 3072); fa.s_add_u32(s(sT + 2), s(sT + 2), L_RING)
fa.v_mul_u32_u24(v(vOW), 160, v(vJ)); fa.v_mul_u32_u24(v(t0), 40, v(vG)); fa.v_add3_u32(v(vOW), v(vOW), v(t0), s(sT + 2))
fa.v_add_u32(v(vOR), s(sT + 2), v(vL16))
for e in range(3):
    fa.v_add_u32(v(t0), 64 * e, v(vLANE)); div_small(fa, t1, t0, 10)
    fa.v_mul_u32_u24(v(t2), 10, v(t1)); fa.v_sub_u32(v(t2), v(t0), v(t2))
    fa.v_mul_u32_u24(v(vOS + e), 1280, v(t1)); fa.v_lshl_add_u32(v(vOS + e), v(t2), 4, v(vOS + e))
fa.v_mov_b32(v(t0), OOB)
fa.v_cmp_gt_u32(s(sT + 4, 2), 32, v(vLANE))
fa.v_cndmask_b32(v(vOS + 2), v(t0), v(vOS + 2), s(sT + 4, 2))
m_ = pack(m_, [(fv, 0, OPT['f2at'], 'vmem'), (fv2, OPT['f2ck'], 60, 'vmem'), (fr1, 4, 50, 'vmem1'), (fa, 0, None)])
stamp(k, 'g4t2'); k.add(m_)
m_ = Stream(); seg4(m_, 3, 0, 12)
fv = Stream(); issue_hh(fv, 3, OPT['h3a'], 12)
fr2 = Stream(); red_write(fr2, 2)
def hh_verify(st):
    for q in range(12):
        r0 = 80 * (3 % 3) + 4 * q
        st.v_accvgpr_read_b32(v(vSN), a(r0)); st.v_accvgpr_read_b32(v(vSN + 1), a(r0 + 2))
        if q == 0: st.v_max_u32(v(vMX4), v(vSN), v(vSN + 1))
        else: st.v_max3_u32(v(vMX4), v(vMX4), v(vSN), v(vSN + 1))
if OPT['tagD']:
    mk = Stream(); cnt = 0; hv = Stream(); hh_verify(hv)
    for x in m_.l:
        mk.l.append(x); cnt += 1
        if cnt % 5 in (1, 2, 3): mk.l.append(hv.l[3 * (cnt // 5) + cnt % 5 - 1])
    m_ = mk
m_ = pack(m_, [(fv, 0, 4 * (12 - OPT['h3a']), 'vmem'), (fr2, 4, 50, 'vmem1')])
stamp(k, 'g4t3'); k.add(m_)
if OPT['tagD']:
    redo_check(k, vMX4, 'L_r3')
    k.s_branch('L_r3d')
    k.label('L_r3')
    k.cond_begin()
    issue_hh(k, 3); k.waitvm(); seg4(k, 3, 0, 12); hh_verify(k); redo_check(k, vMX4, 'L_r3')
    k.s_nop(7)
    k.cond_end()
    k.label('L_r3d')
k.v_add_u32(v(vRW), 3 * 20480, v(vRW))
for t in range(10): k.ds_write_b64(v(vRW), v(vD4[1] + 2 * t, 2), mods='offset:%d' % (L_RED + t * 512))
k.waitlds()
k.s_barrier()
stamp(k, 'g4end')
vR2 = 112
for sl in range(4):
    for t in range(10): k.ds_read_b64(v(vR2 + 20 * sl + 2 * t, 2), v(vRR), mods='offset:%d' % (L_RED + sl * 5120 + t * 512))
for q in range(10):
    k.v_pk_add_f32(v(vR2 + 2 * q, 2), v(vR2 + 2 * q, 2), v(vR2 + 20 + 2 * q, 2))
for q in range(10):
    k.v_dot2_f32_bf16(v(vR2 + 2 * q), v(vH + q), s(sONE_LO), v(vR2 + 2 * q))
    k.v_dot2_f32_bf16(v(vR2 + 2 * q + 1), v(vH + q), s(sONE_HI), v(vR2 + 2 * q + 1))
for q in range(10):
    k.v_pk_add_f32(v(vR2 + 40 + 2 * q, 2), v(vR2 + 40 + 2 * q, 2), v(vR2 + 60 + 2 * q, 2))
for q in range(10):
    k.v_pk_add_f32(v(vR2 + 2 * q, 2), v(vR2 + 2 * q, 2), v(vR2 + 40 + 2 * q, 2))
for q in range(10): k.v_cvt_pk_bf16_f32(v(40 + q), v(vR2 + 2 * q), v(vR2 + 2 * q + 1))
if OPT['cst']:
    for q in range(5): k.ds_write_b64(v(vOW), v(40 + 2 * q, 2), mods='offset:%d' % (8 * q))
    for e in range(3): k.ds_read_b128(v(52 + 4 * e, 4), v(vOR), mods='offset:%d' % (1024 * e))
    for e in range(3): k.buffer_store_dwordx4(v(52 + 4 * e, 4), v(vOS + e), srd(S_OUT), s(sXR), mods='offen' + ['', ' sc1', ' nt', ' sc0 sc1', ' sc1 nt'][OPT['ost']])
else:
    k.buffer_store_dwordx4(v(40, 4), v(vXRO), srd(S_OUT), s(sXR), mods='offen')
    k.buffer_store_dwordx4(v(44, 4), v(vXRO), srd(S_OUT), s(sXR), mods='offen offset:16')
    k.buffer_store_dwordx2(v(48, 2), v(vXRO), srd(S_OUT), s(sXR), mods='offen offset:32')
finish(k)
```

```python
import sys, math, struct
from asmgen import *

OPT = dict(stop=99, stamps=0, cqx=0, spin=100000, rot=1, x3e=1, fin=0, h0=0, g2e=88, ql=0, qlat=0, nt=3, ipf0=1, pe=0, w3u=0, tagD=0, h3a=8, tagB=0, fx3=1, qe=4, pat=30, ost=1, asy=1, w3a2=6, w3c2=6, map=0, ipf=3, w2e=1, x0e=1, w1ck=3, ckat=8, qpost=36, psl=14, w2at=70, qpost2=80, w2q=10, qpl=90, qpn=90, w2s=4, w2u=5, w2uat=40, w2o=3, w3o=3, w3a=6, w3b=11, w3c=4, w3t=12, w40=0, w4a=0, e7end=26, p4post=56, cst=1, w4l=60, v4end=74, h2a=10, f2at=8, f2ck=30)
for a_ in sys.argv[2:]:
    kk, vv = a_.split('='); OPT[kk] = int(vv)

def f32(x): return '0x%08x' % struct.unpack('<I', struct.pack('<f', x))[0]
LOG2E = 1.4426950408889634
OOB = 0x40000000

WS_FLAGS = 4096
F_PREP, F_KV, F_O, F_H, F_HH, F_W1, F_PREP2, F_H0 = 0, 1, 2, 3, 4, 7, 8, 2 + 7
WS_STAMP = 0x1700000
WS_PART = 0x80000
WS_O = 0x200000
WS_H = 0x500000
WS_HST = 0x780000
WS_HH = 0x800000
WS_W2 = 0x1000000
WS_W3 = 0x1100000
WS_W4 = 0x1500000
WS_W1K = 0x1800000
WS_W1Q = 0x1A00000
WS_CS = 0x1B00000
WS_CS3 = 0x1C00000
WS_XST = 0x1D00000
WS_DBG = 0x2000000
WS_SIZE = 0x4000000

L_XST = 0; L_W1S = 118784
L_PG = 40960; L_PU = 49152; L_P4 = 57344; L_P2 = 135168; L_PHI = 143360
L_KV = 0; L_Q = 102400; L_CSF = 153600 + 2048; L_FV = 65536
L_KVR = 102400; L_ZERO = 106624
L_XR = 114688
L_W2 = 0; L_RING = 102400; L_W4 = 0; L_ST = 98304; L_RED = 0

S_X, S_W1, S_WS, S_WG, S_WU, S_WD, S_WO, S_OUT, S_PHI = 28, 32, 36, 40, 44, 48, 52, 56, 60
sR, sC, sCQ, sW, sM, sP = 64, 65, 66, 67, 68, 69
sN = 70
sT = 72
sXO = 80
sA, sB, sCc, sD = 88, 89, 90, 91
sONE_LO, sONE_HI, sONES = 92, 93, 94
sCNT = 95
sTM = 96
sXR = 98
sE, sF = 99, 100
sK = 4
sCH = 12
sV = 17
def srd(b): return s(b, 4)

vTID, vL16, vG, vJ, vSTAMP, vPOST, vFR, vFC, vNON, vXRO = 0, 1, 2, 3, 4, 5, 6, 7, 8, 10
t0, t1, t2 = 11, 12, 13
vR4, vCC, vLANE = 14, 15, 16

k = Stream()
STAMPS = []
OPT_DBG = ['setup', 'xs0', 'xs4', 'kvgemm', 'kvst', 'qgemm', 'ost', 'oflag', 'hst', 'hflag', 'g3t1', 'g3end', 'g4t2', 'g4end', 'end']
def stamp(st, name):
    if not OPT['stamps']: return
    if OPT['stamps'] == 3 and name not in ('start', 'kvst', 'opost', 'hst', 'g3end', 'end'): return
    if OPT['stamps'] == 4 and name in ('pre', 'w1s', 'prepiss', 'w1flag', 'kv0', 'kv1', 'kv2', 'kv3', 'q_a', 'q_b', 'q_c', 'q_d', 'w1a', 'w1b', 'w1st', 'w1w', 'w1d', 'colsum', 'q_e', 'q_f', 'g4t0'): return
    i = len(STAMPS); STAMPS.append(name)
    if OPT['stamps'] == 4:
        assert i < 32
        st.s_memtime(s(sTM, 2)); st.s_waitcnt('lgkmcnt(0)'); st.v_writelane_b32(v(vSTAMP), s(sTM), 32 + i)
    st.comment('stamp %d %s' % (i, name))
    (st.s_memrealtime if OPT['stamps'] >= 2 else st.s_memtime)(s(sTM, 2))
    st.s_waitcnt('lgkmcnt(0)')
    st.v_writelane_b32(v(vSTAMP), s(sTM), i)

def post(st, kind):
    st.s_lshl_b32(s(sT), s(sR), 11)
    st.s_lshl_b32(s(sT + 1), s(sC), 7)
    st.s_add_u32(s(sT), s(sT), s(sT + 1))
    st.s_add_u32(s(sT), s(sT), WS_FLAGS + kind * 32768)
    st.buffer_store_dwordx2(v(vNON, 2), v(vPOST), srd(S_WS), s(sT), mods='offen sc1')

npoll = [0]
def poll(st, voff, ssoff, tmp):
    n = npoll[0]; npoll[0] += 1
    t = '''s_cmp_lg_u32 s{w}, 0
    s_cbranch_scc1 L_pd{n}
    s_mov_b32 s{c}, {lim}
L_pl{n}:
    buffer_load_dwordx2 v[{t}:{t1}], v{vo}, s[{ws}:{ws3}], s{so} offen sc1
    s_waitcnt vmcnt(0)
    v_cmp_ne_u64 vcc, s[{n0}:{n1}], v[{t}:{t1}]
    s_cbranch_vccz L_pd{n}
    s_sub_u32 s{c}, s{c}, 1
    s_cbranch_scc0 L_pl{n}
L_pd{n}:'''.format(w=sW, n=n, c=sCNT, lim=OPT['spin'], t=tmp, t1=tmp + 1, vo=voff, ws=S_WS, ws3=S_WS + 3, so=ssoff, n0=sN, n1=sN + 1)
    st.raw(t, uses=[v(voff)], defs=[v(tmp, 2)])
def poll_row(st, kind, tmp):
    st.s_lshl_b32(s(sT), s(sR), 11); st.s_add_u32(s(sT), s(sT), WS_FLAGS + kind * 32768)
    poll(st, vFR, sT, tmp)

def allreduce_groups(st, x, t, op):
    st.v_mov_b32(v(t), v(x))
    st.v_permlane32_swap_b32(v(x), v(t))
    getattr(st, op)(v(x), v(x), v(t))
    st.v_mov_b32(v(t), v(x))
    st.v_permlane16_swap_b32(v(x), v(t))
    getattr(st, op)(v(x), v(x), v(t))

MF = 'v_mfma_f32_16x16x32_bf16'
def mfma(st, d, A, B, first=False):
    getattr(st, MF)(d, A, B, '0' if first else d)

def wg_slot(st, mul, base):
    st.s_lshl_b32(s(sT), s(sR), 4); st.s_add_u32(s(sT), s(sT), s(sC))
    st.s_lshl_b32(s(sT), s(sT), 2); st.s_add_u32(s(sT), s(sT), s(sW))
    st.s_mul_i32(s(sT), s(sT), mul)
    st.s_add_u32(s(sT), s(sT), base)

def dump(st, regs):
    st.waitvm(); st.waitlds()
    wg_slot(st, 32768, WS_DBG)
    for q, r in enumerate(regs):
        st.buffer_store_dwordx4(r, v(vL16), srd(S_WS), s(sT), mods='offen')
        st.s_add_u32(s(sT), s(sT), 1024)

def finish(st):
    if OPT['stamps']:
        st.waitvm()
        stamp(st, 'end')
        wg_slot(st, 256, WS_STAMP)
        st.v_lshlrev_b32(v(t1), 2, v(vLANE))
        st.buffer_store_dword(v(vSTAMP), v(t1), srd(S_WS), s(sT), mods='offen')
    if OPT.get('dbg'):
        st.s_load_dwordx2(s(sT + 2, 2), s(0, 2), 72)
        st.s_memrealtime(s(sTM, 2))
        st.s_waitcnt('lgkmcnt(0)')
        st.s_sub_u32(s(sTM), s(sTM), s(101))
        st.v_writelane_b32(v(vSTAMP), s(sTM), 63)
        st.v_readlane_b32(s(sT), v(vSTAMP), 0)
        st.s_nop(1)
        st.v_subrev_u32(v(t0), s(sT), v(vSTAMP))
        st.v_writelane_b32(v(t0), s(sTM), 0)
        sel = [0] + [STAMPS.index(n) for n in OPT_DBG]
        st.v_mov_b32(v(t1), OOB)
        for q, i in enumerate(sel): st.v_writelane_b32(v(t1), 4 * q, i)
        st.s_lshl_b32(s(sT), s(sR), 4); st.s_add_u32(s(sT), s(sT), s(sC)); st.s_lshl_b32(s(sT), s(sT), 2); st.s_add_u32(s(sT), s(sT), s(sW))
        st.s_mov_b32(s(S_PHI), s(sT + 2)); st.s_mov_b32(s(S_PHI + 1), s(sT + 3)); st.s_mov_b32(s(S_PHI + 2), 64); st.s_mov_b32(s(S_PHI + 3), 0x20000)
        st.s_cmp_lg_u32(s(sT), (5 * 16 + 3) * 4)
        st.s_cbranch_scc1('L_nodbg')
        st.buffer_store_dword(v(t0), v(t1), srd(S_PHI), 0, mods='offen')
        st.label('L_nodbg')
    st.s_or_b32(s(sT), s(sR), s(sC))
    st.s_cmp_lg_u32(s(sT), 0)
    st.s_cbranch_scc1('L_end')
    st.buffer_store_dwordx2(v(vNON, 2), v(vPOST), srd(S_WS), 0, mods='offen')
    st.label('L_end')
    st.s_endpgm()
    ins = finalize(st, True)
    hdr = open('sequential_preLN__linear_kernel_hedgehog__glu_gated_geglu__prompt.s.ref').read().split('\n')
    hdr = [l for l in hdr if l.startswith(';') and '@launch' not in l]
    txt = '\n'.join(hdr) + '\n' + HEADER.format(grid=256, lds=163840, k=KNAME) + render(ins) + FOOTER.format(k=KNAME, nv=512, ao=256)
    open(sys.argv[1], 'w').write(txt)
    open(sys.argv[1] + '.stamps', 'w').write('\n'.join(STAMPS))
    sys.exit(0)

def div_small(st, q, x, d):
    mul, sh = {10: (205, 11), 80: (205, 14), 5: (205, 10), 6: (171, 10), 12: (171, 11), 48: (171, 13), 3: (171, 9)}[d]
    st.v_mul_u32_u24(v(q), mul, v(x)); st.v_lshrrev_b32(v(q), sh, v(q))
for d_, lim in ((10, 512), (80, 320), (5, 256), (6, 192), (12, 512), (48, 192), (3, 8)):
    mul, sh = {10: (205, 11), 80: (205, 14), 5: (205, 10), 6: (171, 10), 12: (171, 11), 48: (171, 13), 3: (171, 9)}[d_]
    assert all((x * mul) >> sh == x // d_ for x in range(lim)), d_

vW1D = 18; vW1A = 21; vP3D = 26; vP4D = 28; vXW = 30; vXRd = 34; vKV2 = 38; vL16b = 17
vWP = 56; vWA = 58; vONE = 60; vAF = 64; vACC = 104; vGR = 164
vST = 180
vE = 184
vEA = 248
aPHI = 160; aCSQ = 240
sRHO = 3
def acc(X, col): return vACC + (X * 3 + col) * 4
def xf(ks, tt): return a(32 * (ks >> 2) + 16 * tt + 4 * (ks & 3), 4)

k.s_load_dwordx16(s(4, 16), s(0, 2), 0)
k.s_load_dwordx4(s(20, 4), s(0, 2), 64)
k.s_load_dwordx2(s(24, 2), s(0, 2), 80)
k.s_cmp_ge_u32(s(2), 256)
k.s_cbranch_scc1('L_end')
if OPT['stamps']: k.v_mov_b32(v(vSTAMP), 0)
if OPT['map'] == 0:
    k.s_bfe_u32(s(sT), s(2), 0x20001)
    k.s_lshl_b32(s(sT), s(sT), 2)
    k.s_bfe_u32(s(sT + 1), s(2), 0x20003)
    k.s_add_u32(s(sR), s(sT), s(sT + 1))
    k.s_and_b32(s(sT), s(2), 1)
    k.s_lshl_b32(s(sT), s(sT), 3)
    k.s_lshr_b32(s(sT + 2), s(2), 5)
    k.s_add_u32(s(sC), s(sT), s(sT + 2))
else:
    k.s_and_b32(s(sT), s(2), 7)
    k.s_lshl_b32(s(sT), s(sT), 1)
    k.s_bfe_u32(s(sT + 1), s(2), 0x10003)
    k.s_add_u32(s(sR), s(sT), s(sT + 1))
    k.s_lshr_b32(s(sC), s(2), 4)
    k.s_and_b32(s(sT + 2), s(sC), 7)
k.s_mov_b32(s(sCQ), s(sC))
k.s_lshr_b32(s(sM), s(sC), 1)
k.s_and_b32(s(sP), s(sC), 1)
if OPT['rot']:
    k.s_sub_u32(s(sT), s(sT + 2), 5)
    k.s_cselect_b32(s(sRHO), s(sT + 2), s(sT))
else:
    k.s_mov_b32(s(sRHO), 0)
def chunk(st, slot, dst, tmp):
    st.s_add_u32(s(dst), s(sRHO), slot)
    st.s_sub_u32(s(tmp), s(dst), 5)
    st.s_cselect_b32(s(dst), s(dst), s(tmp))
k.v_lshrrev_b32(v(t0), 6, v(vTID))
k.v_readfirstlane_b32(s(sW), v(t0))
k.v_and_b32(v(vLANE), 63, v(vTID))
k.v_lshlrev_b32(v(vL16), 4, v(vLANE))
k.v_lshrrev_b32(v(vG), 4, v(vLANE))
k.v_and_b32(v(vJ), 15, v(vLANE))
if OPT['ipf0']:
    if OPT['ipf']:
        k.raw('''s_getpc_b64 s[%d:%d]
L_pc:
        s_sub_u32 s%d, s%d, L_pc-%s
        s_subb_u32 s%d, s%d, 0''' % (sT + 4, sT + 5, sT + 4, sT + 4, KNAME, sT + 5, sT + 5))
        k.s_lshr_b32(s(sT + 6), s(2), 3)
        k.s_lshl_b32(s(sT + 6), s(sT + 6), 2); k.s_add_u32(s(sT + 6), s(sT + 6), s(sW)); k.s_mul_i32(s(sT + 6), s(sT + 6), OPT['ipf'] * 128)
        k.v_min_u32(v(t0), OPT['ipf'] - 1, v(vLANE))
        k.v_lshlrev_b32(v(t0), 7, v(t0))
        k.v_add_u32(v(t0), s(sT + 6), v(t0))
        k.v_min_u32(v(t0), 'L_end-%s' % KNAME, v(t0))
        k.v_mov_b32(v(vAF + 31), s(sT + 5))
        k.v_add_co_u32(v(vAF + 30), 'vcc', s(sT + 4), v(t0))
        k.v_addc_co_u32(v(vAF + 31), 'vcc', 0, v(vAF + 31), 'vcc')
        k.global_load_dword(v(vAF + 29), v(vAF + 30, 2), 'off')
k.s_mul_i32(s(sT), s(sW), 192)
k.s_movk_i32(s(sT + 1), 3840); k.s_movk_i32(s(sT + 4), 1200)
for e in range(3):
    k.v_add_u32(v(t0), s(sT), v(vLANE))
    if e: k.v_add_u32(v(t0), 64 * e, v(t0))
    k.v_mul_u32_u24(v(t1), 4370, v(t0)); k.v_lshrrev_b32(v(t1), 16, v(t1))
    k.v_mul_u32_u24(v(t2), 15, v(t1)); k.v_sub_u32(v(t0), v(t0), v(t2))
    k.v_lshlrev_b32(v(t2), 4, v(t0))
    k.v_mad_u32_u24(v(vW1D + e), v(t1), s(sT + 1), v(t2))
    k.v_mul_u32_u24(v(t0), 52, v(t0)); k.v_lshrrev_b32(v(t0), 8, v(t0))
    k.v_mad_u32_u24(v(vW1D + e), v(t0), s(sT + 4), v(vW1D + e))
    if e: k.v_subrev_u32(v(vW1D + e), 1024 * e, v(vW1D + e))
assert all((x * 4370) >> 16 == x // 15 for x in range(768)) and all((x * 52) >> 8 == x // 5 for x in range(15))
k.v_xor_b32(v(t0), v(vJ), v(vG))
k.v_lshlrev_b32(v(t0), 4, v(t0))
k.v_mul_u32_u24(v(t1), 1280, v(vG))
for n in range(4):
    k.v_xor_b32(v(vXW + n), 64 * n, v(t0))
    k.v_add_u32(v(vXW + n), v(vXW + n), v(t1))
    if n: k.v_add_u32(v(vXW + n), n * 4096, v(vXW + n))
k.s_lshl_b32(s(sT), s(sR), 7)
k.s_lshl_b32(s(sT + 1), s(sW), 5)
k.s_add_u32(s(sT), s(sT), s(sT + 1))
k.s_mul_i32(s(sXO), s(sT), 1280)
k.s_lshl_b32(s(sXO + 1), s(sW), 13)
k.s_mul_i32(s(sA), s(sR), 40 * 3840)
k.s_mul_i32(s(sT), s(sC), 80)
k.s_add_u32(s(sA), s(sA), s(sT))
k.s_mul_i32(s(sB), s(sW), 3072)
k.s_add_u32('m0', s(sB), L_W1S)
k.s_mul_i32(s(sT + 2), s(sC), 1600)
k.s_waitcnt('lgkmcnt(0)')
def mksrd(st, b, p, size):
    st.s_mov_b32(s(b), s(p)); st.s_mov_b32(s(b + 1), s(p + 1)); st.s_mov_b32(s(b + 2), size); st.s_mov_b32(s(b + 3), 0x20000)
mksrd(k, S_W1, 6, 2457600)
if OPT.get('dbg'):
    k.s_memrealtime(s(sTM, 2)); k.s_waitcnt('lgkmcnt(0)'); k.s_mov_b32(s(101), s(sTM))
stamp(k, 'start')
for e in range(3): k.buffer_load_dwordx4(v(vW1D + e), srd(S_W1), s(sA), mods='offen offset:%d%s lds' % (e * 1024, ' nt' if OPT['nt'] & 1 else ''), tag='W1S')
if not OPT['ipf0']:
    if OPT['ipf']:
        k.raw('''s_getpc_b64 s[%d:%d]
L_pc:
        s_sub_u32 s%d, s%d, L_pc-%s
        s_subb_u32 s%d, s%d, 0''' % (sT + 4, sT + 5, sT + 4, sT + 4, KNAME, sT + 5, sT + 5))
        k.s_lshr_b32(s(sT + 6), s(2), 3)
        k.s_lshl_b32(s(sT + 6), s(sT + 6), 2); k.s_add_u32(s(sT + 6), s(sT + 6), s(sW)); k.s_mul_i32(s(sT + 6), s(sT + 6), OPT['ipf'] * 128)
        k.v_min_u32(v(t0), OPT['ipf'] - 1, v(vLANE))
        k.v_lshlrev_b32(v(t0), 7, v(t0))
        k.v_add_u32(v(t0), s(sT + 6), v(t0))
        k.v_min_u32(v(t0), 'L_end-%s' % KNAME, v(t0))
        k.v_mov_b32(v(vAF + 31), s(sT + 5))
        k.v_add_co_u32(v(vAF + 30), 'vcc', s(sT + 4), v(t0))
        k.v_addc_co_u32(v(vAF + 31), 'vcc', 0, v(vAF + 31), 'vcc')
        k.global_load_dword(v(vAF + 29), v(vAF + 30, 2), 'off')
mksrd(k, S_X, 4, 2621440)
XSLOT = [0, 32768, 65536, 102400, 0]
KVPOS = [40960, 61440, 81920, 0, 20480]
def issue_x(st, sg, tts=(0, 1)):
    chunk(st, sg, sE, sF)
    st.s_lshl_b32(s(sE), s(sE), 8)
    st.s_add_u32(s(sE), s(sE), s(sXO))
    for tt in tts:
        if tt: st.s_add_u32(s(sE), s(sE), 16 * 1280)
        st.s_add_u32('m0', s(sXO + 1), L_XST + XSLOT[sg] + tt * 4096)
        for n in range(4):
            st.buffer_load_dwordx4(v(vXW + n), srd(S_X), s(sE), mods='offen offset:%d%s lds' % (n * 1024, ' nt' if (OPT['nt'] & 4 and sg == 0) else ''), tag='x%d' % sg)
k.s_load_dwordx2(s(sN, 2), s(24, 2), 0)
mksrd(k, S_PHI, 8, 25600)
k.v_lshlrev_b32(v(vWA), 3, v(vTID))
k.v_cmp_gt_u32('vcc', 200, v(vTID))
k.v_mov_b32(v(t1), OOB)
k.v_cndmask_b32(v(vWA), v(t1), v(vWA), 'vcc')
k.buffer_load_dwordx2(v(vWP, 2), v(vWA), srd(S_PHI), s(sT + 2), mods='offen')
mksrd(k, S_WS, 24, WS_SIZE)
mksrd(k, S_WG, 14, 1966080); mksrd(k, S_WU, 16, 1966080); mksrd(k, S_WD, 18, 1966080); mksrd(k, S_WO, 10, 819200); mksrd(k, S_OUT, 20, 2621440)
for i in range(4): k.v_mov_b32(v(vAF + i), 0)
k.v_lshlrev_b32(v(t0), 4, v(vTID))
k.v_add_u32(v(t0), L_PHI, v(t0))
for i in range(2): k.ds_write_b128(v(t0), v(vAF, 4), mods='offset:%d' % (i * 4096))
k.v_cmp_gt_u32('vcc', 128, v(vTID))
k.s_and_saveexec_b64(s(sT, 2), 'vcc')
k.ds_write_b128(v(t0), v(vAF, 4), mods='offset:8192')
k.s_mov_b64('exec', s(sT, 2))
k.v_bfe_u32(v(vR4), v(vLANE), 2, 2)
k.v_and_b32(v(vCC), 3, v(vLANE))
k.s_mov_b32(s(sONE_LO), 0x00003f80); k.s_mov_b32(s(sONE_HI), 0x3f800000); k.s_mov_b32(s(sONES), 0x3f803f80)
oE, oO, sE_, sO_, mE, bE, bO, pE, pO = [sV + i for i in range(9)]
k.s_lshl_b32(s(sT), s(sW), 3)
k.s_lshr_b32(s(oE), 0x20C87850, s(sT)); k.s_and_b32(s(oE), s(oE), 0xff)
k.s_lshr_b32(s(oO), 0x2800A070, s(sT)); k.s_and_b32(s(oO), s(oO), 0xff)
k.s_lshr_b32(s(sE_), 0x28080808, s(sT)); k.s_and_b32(s(sE_), s(sE_), 0xff)
k.s_lshr_b32(s(sO_), 0x08080828, s(sT)); k.s_and_b32(s(sO_), s(sO_), 0xff)
k.s_lshr_b32(s(mE), 0x01030303, s(sT)); k.s_and_b32(s(mE), s(mE), 0xff)
k.s_mul_i32(s(sT + 1), s(sC), 102400); k.s_add_u32(s(sT + 1), s(sT + 1), WS_W1K)
k.s_mul_i32(s(sT + 2), s(sC), 61440); k.s_add_u32(s(sT + 2), s(sT + 2), WS_W1Q - 5120)
k.s_lshl_b32(s(sT + 3), s(sW), 11)
k.s_movk_i32(s(sT + 4), 3072)
k.s_cmp_lt_u32(s(sW), 3)
k.s_cselect_b32(s(bE), s(sT + 1), s(sT + 2)); k.s_cselect_b32(s(pE), 5120, s(sT + 4))
k.s_cmp_lt_u32(s(sW), 2)
k.s_cselect_b32(s(bO), s(sT + 1), s(sT + 2)); k.s_cselect_b32(s(pO), 5120, s(sT + 4))
k.s_add_u32(s(bE), s(bE), s(sT + 3)); k.s_add_u32(s(bO), s(bO), s(sT + 3)); k.s_add_u32(s(bO), s(bO), 1024)
y0, y1, y2 = vAF + 4, vAF + 5, vAF + 6
k.v_and_b32(v(y0), s(mE), v(vCC)); k.v_mul_u32_u24(v(y0), s(sE_), v(y0)); k.v_add_u32(v(y0), s(oE), v(y0))
k.v_mul_u32_u24(v(y1), s(sO_), v(vCC)); k.v_add_u32(v(y1), s(oO), v(y1))
k.v_lshl_add_u32(v(t0), v(vG), 3, v(vR4)); k.v_mul_u32_u24(v(t0), 240, v(t0)); k.v_add_u32(v(t0), L_W1S, v(t0))
k.v_add_u32(v(vW1A), v(t0), v(y0)); k.v_add_u32(v(vW1A + 1), v(t0), v(y1))
k.v_and_b32(v(t1), 1, v(vG))
k.v_cmp_eq_u32('vcc', 1, v(t1))
k.v_mul_u32_u24(v(t0), 240, v(vR4)); k.v_add_u32(v(t0), L_W1S + 32 * 240, v(t0))
k.v_cndmask_b32(v(y0), v(y0), v(y1), 'vcc')
k.v_add_u32(v(vW1A + 2), v(t0), v(y0))
vW1O = 40
k.s_mul_i32(s(sT), s(sR), 5)
k.v_add_u32(v(t0), s(sT), v(vG))
k.v_lshrrev_b32(v(t2), 2, v(t0)); k.v_and_b32(v(t0), 3, v(t0)); k.v_lshlrev_b32(v(t0), 8, v(t0)); k.v_lshl_add_u32(v(t0), v(vJ), 4, v(t0))
k.v_mad_u32_u24(v(vW1O), v(t2), s(pE), v(t0)); k.v_mad_u32_u24(v(vW1O + 1), v(t2), s(pO), v(t0))
k.s_add_u32(s(sT), s(sT), 4); k.s_lshr_b32(s(sT + 1), s(sT), 2); k.s_and_b32(s(sT), s(sT), 3); k.s_lshl_b32(s(sT), s(sT), 8)
k.s_mul_i32(s(sT + 2), s(sT + 1), s(pE)); k.s_add_u32(s(sT + 2), s(sT + 2), s(bE)); k.s_add_u32(s(sT + 2), s(sT + 2), s(sT))
k.s_mul_i32(s(sT + 3), s(sT + 1), s(pO)); k.s_add_u32(s(sT + 3), s(sT + 3), s(bO)); k.s_add_u32(s(sT + 3), s(sT + 3), s(sT))
k.v_mov_b32(v(t0), s(sT + 2)); k.v_mov_b32(v(t2), s(sT + 3))
k.v_cndmask_b32(v(t0), v(t0), v(t2), 'vcc')
k.v_lshl_add_u32(v(t0), v(vJ), 4, v(t0))
k.v_mov_b32(v(t2), OOB)
k.v_cmp_gt_u32('vcc', 2, v(vG))
k.v_cndmask_b32(v(vW1O + 2), v(t2), v(t0), 'vcc')
k.v_lshrrev_b32(v(t0), 1, v(vG)); k.v_lshlrev_b32(v(t0), 10, v(t0)); k.v_lshl_add_u32(v(t0), v(vJ), 4, v(t0))
k.v_cmp_eq_u32('vcc', 0, v(t1))
k.v_cndmask_b32(v(vW1O + 3), v(t2), v(t0), 'vcc')
k.s_lshl_b32(s(sD), s(sC), 13); k.s_lshl_b32(s(sT), s(sW), 11); k.s_add_u32(s(sD), s(sD), s(sT))
k.s_lshr_b32(s(sT), s(sR), 2); k.s_lshl_b32(s(sT), s(sT), 8); k.s_add_u32(s(sD), s(sD), s(sT))
k.s_and_b32(s(sT), s(sR), 3); k.s_lshl_b32(s(sT), s(sT), 2); k.s_add_u32(s(sD), s(sD), s(sT)); k.s_add_u32(s(sD), s(sD), WS_CS)
x0, x1 = vAF + 4, vAF + 5
div_small(k, t0, vTID, 5)
k.v_mul_u32_u24(v(t1), 5, v(t0)); k.v_sub_u32(v(t1), v(vTID), v(t1))
k.v_lshlrev_b32(v(vWA), 11, v(t1))
k.v_cmp_lt_u32('vcc', 19, v(t0))
k.v_cndmask_b32(v(t1), 0, 1, 'vcc')
k.v_mul_u32_u24(v(t2), 20, v(t1)); k.v_sub_u32(v(t0), v(t0), v(t2))
k.v_lshl_add_u32(v(vWA), v(t1), 6, v(vWA))
k.v_lshrrev_b32(v(x0), 2, v(t0)); k.v_lshlrev_b32(v(x0), 8, v(x0))
k.v_and_b32(v(x1), 3, v(t0)); k.v_lshl_add_u32(v(x0), v(x1), 1, v(x0))
k.v_mul_u32_u24(v(t2), 1032, v(t1)); k.v_add_u32(v(x0), v(x0), v(t2))
k.v_lshlrev_b32(v(x1), 1, v(x1)); k.v_lshl_add_u32(v(x1), v(t1), 8, v(x1)); k.v_add_u32(v(x1), 8, v(x1))
k.v_cmp_lt_u32('vcc', 15, v(t0))
k.v_cndmask_b32(v(x0), v(x0), v(x1), 'vcc')
k.v_add_u32(v(vWA), v(vWA), v(x0))
k.v_add_u32(v(vWA), L_PHI, v(vWA))

k.v_cmp_ne_u32('vcc', 0, v(vTID))
k.v_mov_b32(v(t1), OOB)
k.v_cndmask_b32(v(vPOST), 0, v(t1), 'vcc')
def wphi_scatter(st, d):
    st.v_cmp_gt_u32('vcc', 200, v(vTID))
    st.s_and_saveexec_b64(s(sT, 2), 'vcc')
    st.ds_write_b16(v(vWA), v(d))
    st.ds_write_b16_d16_hi(v(vWA), v(d), mods='offset:16')
    st.ds_write_b16(v(vWA), v(d + 1), mods='offset:32')
    st.ds_write_b16_d16_hi(v(vWA), v(d + 1), mods='offset:48')
    st.s_mov_b64('exec', s(sT, 2))
def wphi_read(st):
    st.v_add_u32(v(t0), L_PHI, v(vL16))
    st.v_xor_b32(v(t1), 128, v(t0))
    for p in range(2):
        for i in range(10):
            st.ds_read_b128(a(aPHI + (p * 10 + i) * 4, 4), v(t0 + p), mods='offset:%d' % (i * 1024))
def prep_offsets(st):
    for e in range(2):
        st.s_lshl_b32(s(sT), s(sW), 7)
        st.v_add_u32(v(t0), s(sT), v(vLANE))
        if e: st.v_add_u32(v(t0), 64, v(t0))
        div_small(st, t1, t0, 12)
        st.v_mul_u32_u24(v(t2), 12, v(t1)); st.v_sub_u32(v(t2), v(t0), v(t2))
        st.v_mul_u32_u24(v(vP3D + e), 3072, v(t1))
        st.v_lshl_add_u32(v(vP3D + e), v(t2), 4, v(vP3D + e))
        div_small(st, t1, t0, 10)
        st.v_mul_u32_u24(v(t2), 10, v(t1)); st.v_sub_u32(v(t2), v(t0), v(t2))
        st.v_mul_u32_u24(v(vP4D + e), 1280, v(t1))
        st.v_lshl_add_u32(v(vP4D + e), v(t2), 4, v(vP4D + e))
def issue_prep(st, i, es=(0, 1)):
    a0, a1, a2 = sE, sF, sCc
    st.s_lshl_b32(s(a2), s(sW), 11)
    if i < 2:
        st.s_mul_i32(s(a0), s(sR), 40 * 3072); st.s_mul_i32(s(a1), s(sC), 192)
    else:
        if i == 2: st.s_mul_i32(s(a0), s(sR), 40 * 1280)
        else: st.s_lshl_b32(s(a0), s(sR), 1); st.s_add_u32(s(a0), s(a0), s(sP)); st.s_mul_i32(s(a0), s(a0), 48 * 1280)
        st.s_mul_i32(s(a1), s(sM), 160)
    st.s_add_u32(s(a0), s(a0), s(a1))
    S_, L_, vo = [(S_WG, L_PG, vP3D), (S_WU, L_PU, vP3D), (S_WO, L_P2, vP4D), (S_WD, L_P4, vP4D)][i]
    for e in es:
        st.s_add_u32('m0', s(a2), L_ + e * 1024)
        st.buffer_load_dwordx4(v(vo + e), srd(S_), s(a0), mods='offen%s lds' % (' nt' if OPT['nt'] & 2 else ''), tag='prep%d' % i)
def gram(st, sg):
    for tt in range(2):
        for q in range(4):
            ks = 4 * sg + q
            mfma(st, v(vGR + 4 * tt, 4), xf(ks, tt), xf(ks, tt), ks == 0)
            mfma(st, v(vGR + 8 + 4 * tt, 4), v(vONE, 4), xf(ks, tt), ks == 0)
def ln_stats(st):
    for tt in range(2):
        q_, m_, u_ = vE, vE + 1, vE + 2
        G = vGR + 4 * tt
        st.v_cmp_eq_u32('vcc', 1, v(vCC)); st.v_mul_f32(v(m_), s(sINV640), v(vGR + 8 + 4 * tt)); st.v_cndmask_b32(v(q_), v(G), v(G + 1), 'vcc')
        st.v_cmp_eq_u32('vcc', 2, v(vCC)); st.v_sub_f32(v(vST + 2 * tt), 0, v(m_)); st.v_cndmask_b32(v(q_), v(q_), v(G + 2), 'vcc')
        st.v_cmp_eq_u32('vcc', 3, v(vCC)); st.v_cndmask_b32(v(q_), v(q_), v(G + 3), 'vcc')
        st.v_cmp_eq_u32('vcc', v(vR4), v(vG)); st.v_cndmask_b32(v(q_), 0, v(q_), 'vcc')
        allreduce_groups(st, q_, u_, 'v_add_f32')
        st.v_mul_f32(v(q_), s(sINV640), v(q_))
        st.v_fma_f32(v(q_), '-' + v(m_), v(m_), v(q_))
        st.v_max_f32(v(q_), 0, v(q_))
        st.v_add_f32(v(q_), s(sEPS), v(q_))
        st.v_rsq_f32(v(vST + 2 * tt + 1), v(q_))

vVA, vK1A, vFA, vKA, vKB, vPS = vEA, vEA + 1, vEA + 2, vEA + 3, vEA + 4, vEA + 6
def epi_addrs(st):
    b0, b1, b2, b3, b4, b5 = sT + 2, sT + 3, sT + 4, sT + 5, sT + 6, sT + 7
    st.s_mul_i32(s(b0), s(sW), 9216)
    st.s_add_u32(s(b0), s(b0), L_FV)
    st.v_mul_u32_u24(v(t0), 288, v(vJ))
    st.v_add_u32(v(t0), s(b0), v(t0))
    st.v_lshl_add_u32(v(vVA), v(vG), 3, v(t0))
    st.v_and_b32(v(t1), 1, v(vG)); st.v_mul_u32_u24(v(t1), 48, v(t1))
    st.v_lshrrev_b32(v(t2), 1, v(vG)); st.v_lshlrev_b32(v(t2), 3, v(t2))
    st.v_sub_u32(v(t1), v(t1), v(t2))
    st.v_add_u32(v(vK1A), v(t0), v(t1))
    st.v_lshrrev_b32(v(t1), 1, v(vG)); st.v_mul_u32_u24(v(t1), 16 * 288, v(t1))
    st.v_and_b32(v(t2), 1, v(vG)); st.v_mul_u32_u24(v(t2), 80, v(t2))
    st.v_add3_u32(v(vFA), v(t0), v(t1), v(t2))
    st.s_lshr_b32(s(b0), s(sW), 1)
    st.s_and_b32(s(b1), s(sW), 1)
    st.v_lshl_add_u32(v(t0), v(vG), 2, v(vR4))
    st.v_mul_u32_u24(v(t0), 288, v(t0))
    st.s_mul_i32(s(b2), s(b0), 80); st.s_add_u32(s(b2), s(b2), L_FV)
    st.v_lshl_add_u32(v(vKA), v(vCC), 3, v(t0))
    st.v_add_u32(v(vKA), s(b2), v(vKA))
    st.s_mul_i32(s(b2), s(b0), 48); st.s_lshl_b32(s(b3), s(b1), 5)
    st.s_add_u32(s(b2), s(b2), s(b3)); st.s_add_u32(s(b2), s(b2), L_FV + 160)
    st.s_mul_i32(s(b3), s(b1), -2); st.s_add_u32(s(b3), s(b3), 3)
    st.v_min_u32(v(t1), s(b3), v(vCC))
    st.v_lshl_add_u32(v(vKB), v(t1), 3, v(t0))
    st.v_add_u32(v(vKB), s(b2), v(vKB))
    st.s_mul_i32(s(b2), s(b1), -176); st.s_add_u32(s(b2), s(b2), 256)
    st.s_mul_i32(s(b3), s(b1), -11); st.s_add_u32(s(b3), s(b3), 16)
    st.s_mul_i32(s(b4), s(b1), 1280)
    st.s_mul_i32(s(b5), s(b0), 1792)
    st.s_add_u32(s(b4), s(b4), s(b5))
    st.v_mul_u32_u24(v(t0), s(b2), v(vG))
    st.v_lshlrev_b32(v(t1), 4, v(vJ))
    st.v_add3_u32(v(vPS), v(t0), v(t1), s(b4))
    st.s_lshl_b32(s(b2), s(b2), 2); st.s_add_u32(s(b4), s(b4), s(b2))
    st.v_lshl_add_u32(v(t0), v(vG), 3, v(t1))
    st.v_add_u32(v(vPS + 1), s(b4), v(t0))
    st.v_mov_b32(v(t2), OOB)
    st.v_cmp_gt_u32('vcc', s(b3), v(vJ))
    st.v_cndmask_b32(v(vPS), v(t2), v(vPS), 'vcc')
    st.v_cndmask_b32(v(vPS + 1), v(t2), v(vPS + 1), 'vcc')
    st.v_cmp_gt_u32('vcc', 2, v(vG))
    st.v_cndmask_b32(v(vPS + 1), v(t2), v(vPS + 1), 'vcc')

vPD = 124
PA = list(range(vE + 36, vE + 50))
def prep_addrs3(pr):
    pr.v_and_b32(v(t0), 1, v(vCC)); pr.v_lshlrev_b32(v(t0), 13, v(t0))
    pr.v_lshrrev_b32(v(t1), 1, v(vCC)); pr.v_lshl_add_u32(v(t0), v(t1), 3, v(t0))
    pr.s_mul_i32(s(sT), s(sW), 48); pr.s_add_u32(s(sT), s(sT), L_PG)
    pr.v_add_u32(v(t0), s(sT), v(t0))
    pr.v_lshrrev_b32(v(t1), 1, v(vG)); pr.v_mul_u32_u24(v(t1), 20, v(t1))
    pr.v_and_b32(v(t2), 1, v(vG)); pr.v_lshl_add_u32(v(t1), v(t2), 3, v(t1))
    pr.v_add_u32(v(t1), v(t1), v(vR4))
    pr.v_mul_u32_u24(v(t1), 192, v(t1))
    pr.v_add_u32(v(PA[0]), v(t0), v(t1))
    pr.v_mul_u32_u24(v(t1), 192, v(vR4))
    pr.v_min_u32(v(t2), 2, v(vG))
    pr.v_lshl_add_u32(v(t1), v(t2), 4, v(t1))
    pr.v_add_u32(v(PA[1]), v(t0), v(t1))
    pr.v_lshrrev_b32(v(t0), 1, v(vR4)); pr.v_lshlrev_b32(v(t0), 3, v(t0))
    pr.v_lshrrev_b32(v(t1), 1, v(vCC)); pr.v_lshl_add_u32(v(t0), v(t1), 2, v(t0))
    pr.v_and_b32(v(t1), 1, v(vR4)); pr.v_lshl_add_u32(v(t0), v(t1), 1, v(t0))
    pr.v_and_b32(v(t1), 1, v(vCC)); pr.v_add_u32(v(t0), v(t0), v(t1))
    pr.v_lshlrev_b32(v(t0), 4, v(t0))
    pr.v_lshl_add_u32(v(PA[2]), v(vG), 8, v(t0))
    pr.v_mul_u32_u24(v(t1), 20480, v(vG))
    pr.v_add_u32(v(t1), v(t1), v(t0))
    pr.v_mov_b32(v(t2), OOB)
    pr.v_cmp_gt_u32('vcc', 3, v(vG))
    pr.v_cndmask_b32(v(PA[3]), v(t2), v(t1), 'vcc')
def piece_addrs(pr, which, e, base):
    y0, y1, y2, y3 = PA[base], PA[base + 1], PA[base + 2], PA[13]
    if which == 4:
        pr.s_lshl_b32(s(sT), s(sW), 3); pr.s_add_u32(s(sT), s(sT), 4 * e); lim = 30
    else:
        pr.s_lshl_b32(s(sT), s(sW), 2); pr.s_lshl_b32(s(sT + 1), s(sP), 4); pr.s_add_u32(s(sT), s(sT), s(sT + 1)); lim = 25
    pr.v_add_u32(v(t0), s(sT), v(vG))
    pr.v_cmp_gt_u32('vcc', lim, v(t0))
    pr.v_min_u32(v(t0), lim - 1, v(t0))
    div_small(pr, t1, t0, 5)
    pr.v_mul_u32_u24(v(t2), 5, v(t1)); pr.v_sub_u32(v(t2), v(t0), v(t2))
    pr.v_mul_u32_u24(v(y2), 40, v(vCC)); pr.v_lshl_add_u32(v(y2), v(t2), 3, v(y2))
    if which == 4:
        div_small(pr, y0, t1, 3)
        pr.v_mul_u32_u24(v(y1), 3, v(y0)); pr.v_sub_u32(v(y1), v(t1), v(y1))
        pr.v_mul_u32_u24(v(y0), 24, v(y0))
        pr.v_and_b32(v(y3), 1, v(vR4)); pr.v_add_u32(v(y0), v(y0), v(y3))
        pr.v_lshrrev_b32(v(y3), 1, v(vR4))
        pr.v_lshl_add_u32(v(y0), v(y1), 1, v(y0))
        pr.v_mul_u32_u24(v(y1), 6, v(y1)); pr.v_subrev_u32(v(y1), 10, v(y1))
        pr.v_mul_i32_i24(v(y1), v(y1), v(y3))
        pr.v_add3_u32(v(y1), v(y1), v(y0), 16)
        pr.v_lshl_add_u32(v(y0), v(y3), 3, v(y0))
        L_ = L_P4
    else:
        pr.v_lshrrev_b32(v(y0), 1, v(t1)); pr.v_mul_u32_u24(v(y0), 20, v(y0))
        pr.v_and_b32(v(y1), 1, v(t1)); pr.v_lshl_add_u32(v(y0), v(y1), 3, v(y0))
        pr.v_cmp_eq_u32(s(sT + 2, 2), 4, v(t1))
        pr.v_cndmask_b32(v(y0), v(y0), 16, s(sT + 2, 2))
        pr.v_cndmask_b32(v(y1), 4, 20, s(sT + 2, 2))
        pr.v_add_u32(v(y0), v(y0), v(vR4))
        pr.v_add_u32(v(y1), v(y1), v(y0))
        L_ = L_P2
    pr.v_add_u32(v(y2), L_, v(y2))
    pr.s_movk_i32(s(sT + 4), 160)
    pr.v_mad_u32_u24(v(y0), v(y0), s(sT + 4), v(y2))
    pr.v_mad_u32_u24(v(y1), v(y1), s(sT + 4), v(y2))
    if which == 4:
        pr.s_lshl_b32(s(sT), s(sR), 1); pr.s_add_u32(s(sT), s(sT), s(sP)); pr.s_mul_i32(s(sT), s(sT), 6)
    else:
        pr.s_mul_i32(s(sT), s(sR), 5)
    pr.v_add_u32(v(t1), s(sT), v(t1))
    pr.v_lshrrev_b32(v(y2), 2, v(t1)); pr.v_mul_u32_u24(v(y2), 5120, v(y2))
    pr.v_and_b32(v(t1), 3, v(t1)); pr.v_lshl_add_u32(v(y2), v(t1), 8, v(y2))
    pr.v_lshl_add_u32(v(y2), v(t2), 10, v(y2))
    pr.v_lshl_add_u32(v(y2), v(vJ), 4, v(y2))
    pr.v_mov_b32(v(t0), OOB)
    pr.v_cndmask_b32(v(y2), v(t0), v(y2), 'vcc')
def prep_reads(pr, part, D):
    if part == 0:
        for t in range(3):
            for i in range(2): pr.ds_read_b64_tr_b16(v(D + 4 * t + 2 * i, 2), v(PA[0]), mods='offset:%d' % (768 * i + 16 * t))
        for i in range(2): pr.ds_read_b64_tr_b16(v(D + 12 + 2 * i, 2), v(PA[1]), mods='offset:%d' % (16 * 192 + 3840 * i))
    elif part == 2:
        for i in range(2): pr.ds_read_b64_tr_b16(v(D + 2 * i, 2), v(PA[10 + i]))
    else:
        for p in range(2):
            for i in range(2): pr.ds_read_b64_tr_b16(v(D + 4 * p + 2 * i, 2), v(PA[4 + 3 * p + i]))
def prep_stores(pr, part, D):
    b0, b1 = sE, sF
    if part == 0:
        pr.s_mul_i32(s(b0), s(sC), 245760); pr.s_mul_i32(s(b1), s(sW), 61440); pr.s_add_u32(s(b0), s(b0), s(b1))
        pr.s_mul_i32(s(b1), s(sR), 1280); pr.s_add_u32(s(b0), s(b0), s(b1)); pr.s_add_u32(s(b0), s(b0), WS_W3)
        pr.buffer_store_dwordx4(v(D + 12, 4), v(PA[3]), srd(S_WS), s(b0), mods='offen offset:1024 sc1')
        for t in range(3):
            if t: pr.s_add_u32(s(b0), s(b0), 20480)
            pr.buffer_store_dwordx4(v(D + 4 * t, 4), v(PA[2]), srd(S_WS), s(b0), mods='offen sc1')
    elif part == 2:
        pr.s_mul_i32(s(b1), s(sM), 102400); pr.s_add_u32(s(b1), s(b1), WS_W2)
        pr.buffer_store_dwordx4(v(D, 4), v(PA[12]), srd(S_WS), s(b1), mods='offen sc1', tag='prepstW2')
    else:
        pr.s_mul_i32(s(b1), s(sM), 245760); pr.s_add_u32(s(b1), s(b1), WS_W4)
        for p in range(2): pr.buffer_store_dwordx4(v(D + 4 * p, 4), v(PA[6 + 3 * p]), srd(S_WS), s(b1), mods='offen sc1', tag='prepst2')


def flag_issue(st, dst, voff, ssoff):
    st.buffer_load_dwordx2(v(dst, 2), v(voff), srd(S_WS), s(ssoff), mods='offen sc1')
def flag_check(st, dst, voff, ssoff):
    q = npoll[0]; npoll[0] += 1
    t = '''v_cmp_ne_u64 vcc, s[{n0}:{n1}], v[{t}:{t1}]
    s_cbranch_vccz L_pd{n}
    s_mov_b32 s{c}, {lim}
L_pl{n}:
    buffer_load_dwordx2 v[{t}:{t1}], v{vo}, s[{ws}:{ws3}], s{so} offen sc1
    s_waitcnt vmcnt(0)
    v_cmp_ne_u64 vcc, s[{n0}:{n1}], v[{t}:{t1}]
    s_cbranch_vccz L_pd{n}
    s_sub_u32 s{c}, s{c}, 1
    s_cbranch_scc0 L_pl{n}
L_pd{n}:'''.format(n=q, c=sCNT, lim=OPT['spin'], t=dst, t1=dst + 1, vo=voff, ws=S_WS, ws3=S_WS + 3, so=ssoff, n0=sN, n1=sN + 1)
    st.raw(t, uses=[v(voff), v(dst, 2)], defs=[v(dst, 2)])
sL2E, sINV640, sEPS, sK1, sK3, sEPS6 = sK, sK + 1, sK + 2, sK + 3, sK + 4, sK + 5
vSX = vACC
def stats_load(st):
    st.s_lshl_b32(s(sV + 9), s(sR), 7); st.s_lshl_b32(s(sV + 10), s(sC), 3); st.s_add_u32(s(sV + 9), s(sV + 9), s(sV + 10))
    st.s_lshl_b32(s(sV + 10), s(sW), 1); st.s_add_u32(s(sSTK), s(sV + 9), s(sV + 10))
    st.s_mul_i32(s(sV + 9), s(sSTK), 1280)
    st.v_mov_b32(v(vSX + 20), OOB)
    st.v_cmp_gt_u32(s(sV + 7, 2), 32, v(vLANE))
    st.v_cndmask_b32(v(vSX + 20), v(vSX + 20), v(vL16), s(sV + 7, 2))
    for e in range(3): st.buffer_load_dwordx4(v(vSX + 4 * e, 4), v(vL16 if e < 2 else vSX + 20), srd(S_X), s(sV + 9), mods='offen offset:%d' % (e * 1024))
def stats_compute(st):
    A = vSX + 12
    for i in range(6): st.v_mov_b32(v(A + i), 0)
    for i in range(4):
        for e in range(3):
            st.v_dot2_f32_bf16(v(A + 2 * e), v(vSX + 4 * e + i), s(sONES), v(A + 2 * e))
            st.v_dot2_f32_bf16(v(A + 2 * e + 1), v(vSX + 4 * e + i), v(vSX + 4 * e + i), v(A + 2 * e + 1))
    st.v_cmp_eq_u32('vcc', 0, v(vG))
    for i in range(2):
        st.v_cndmask_b32(v(A + 6 + i), 0, v(A + 2 + i), 'vcc')
        st.v_cndmask_b32(v(A + 2 + i), v(A + 2 + i), 0, 'vcc')
    for i in range(2):
        st.v_add_f32(v(A + i), v(A + i), v(A + 6 + i))
        st.v_add_f32(v(A + 4 + i), v(A + 4 + i), v(A + 2 + i))
    for i in range(2): st.v_permlane32_swap_b32(v(A + i), v(A + 4 + i))
    for i in range(2): st.v_add_f32(v(A + i), v(A + i), v(A + 4 + i))
    for i in range(2): st.v_mov_b32(v(A + 2 + i), v(A + i))
    for i in range(2): st.v_permlane16_swap_b32(v(A + i), v(A + 2 + i))
    for i in range(2): st.v_add_f32(v(A + i), v(A + i), v(A + 2 + i))
    for sh in (8, 4, 2, 1):
        for i in range(2): st.v_add_f32_dpp(v(A + i), v(A + i), v(A + i), mods='row_ror:%d row_mask:0xf bank_mask:0xf' % sh)
    st.v_mul_f32(v(A), s(sINV640), v(A))
    st.v_mul_f32(v(A + 1), s(sINV640), v(A + 1))
    st.v_fma_f32(v(A + 1), '-' + v(A), v(A), v(A + 1))
    st.v_max_f32(v(A + 1), 0, v(A + 1))
    st.v_add_f32(v(A + 1), s(sEPS), v(A + 1))
    st.v_sub_f32(v(A), 0, v(A))
    st.v_rsq_f32(v(A + 2), v(A + 1))
    st.v_mov_b32(v(A + 1), s(sN)); st.v_mov_b32(v(A + 3), s(sTG))
    st.v_lshrrev_b32(v(vSX + 20), 1, v(vLANE))
    st.v_and_b32(v(vSX + 21), 31, v(vLANE))
    st.v_mov_b32(v(vSX + 22), OOB)
    st.v_cmp_eq_u32('vcc', 0, v(vSX + 21))
    st.s_lshl_b32(s(sV + 9), s(sSTK), 4); st.s_add_u32(s(sV + 9), s(sV + 9), WS_XST)
    st.v_cndmask_b32(v(vSX + 20), v(vSX + 22), v(vSX + 20), 'vcc')
    st.buffer_store_dwordx4(v(A, 4), v(vSX + 20), srd(S_WS), s(sV + 9), mods='offen sc1', tag='xst')
sSTK = sXO + 2; sTG = sXO + 6
vOAd = 44; vPOI = 48; sOS = sXO + 7
def o_addrs(st):
    if OPT['tagB']:
        for i in range(4): st.v_mov_b32(v(vPOI + i), -1)
    st.v_lshrrev_b32(v(vOAd), 1, v(vG)); st.v_mul_u32_u24(v(vOAd), 20480, v(vOAd))
    st.v_lshl_add_u32(v(vOAd), v(vJ), 4, v(vOAd))
    st.v_and_b32(v(vOAd + 2), 1, v(vG))
    st.v_lshl_add_u32(v(vOAd + 1), v(vOAd + 2), 3, v(vOAd))
    st.s_mul_i32(s(sOS), s(sR), 163840); st.s_mul_i32(s(sT + 6), s(sW), 40960); st.s_add_u32(s(sOS), s(sOS), s(sT + 6))
    st.s_mul_i32(s(sT + 6), s(sCQ), 1280); st.s_add_u32(s(sOS), s(sOS), s(sT + 6)); st.s_add_u32(s(sOS), s(sOS), WS_O)
    st.v_lshl_add_u32(v(vOAd), v(vOAd + 2), 9, v(vOAd))
def o_store(st, A, B, C, tag):
    st.buffer_store_dwordx4(v(A, 4), v(vOAd), srd(S_WS), s(sOS), mods='offen sc1')
    st.buffer_store_dwordx4(v(B, 4), v(vOAd), srd(S_WS), s(sOS), mods='offen offset:256 sc1')
    st.buffer_store_dwordx2(v(C, 2), v(vOAd + 1), srd(S_WS), s(sOS), mods='offen offset:1024 sc1', tag=tag)
def x_read(st, sg):
    for tt in range(2):
        for n in range(4):
            off = XSLOT[sg] + tt * 4096
            ad = vXRd + n
            if off > 65535: st.v_add_u32(v(vE + n), 65536, v(ad)); ad = vE + n; off -= 65536
            st.ds_read_b128(a(32 * sg + 16 * tt + 4 * n, 4), v(ad), mods='offset:%d' % off, tag='xr%d' % sg)
prep_offsets(k)
stamp(k, 'pre')
if OPT['x0e']: issue_x(k, 0, (0,) if OPT['x0e'] >= 3 else (0, 1))
k.waitvm('W1S')
k.waitlds()
k.s_add_u32(s(sN), s(sN), 1); k.s_addc_u32(s(sN + 1), s(sN + 1), 0)
k.v_mov_b32(v(vNON), s(sN)); k.v_mov_b32(v(vNON + 1), s(sN + 1))
k.s_mul_i32(s(sTG), s(sN), 0x9E3779B1); k.s_add_u32(s(sTG), s(sTG), s(sN + 1))
k.s_barrier()
stamp(k, 'w1s')
vW1V = vAF + 8
for p in range(3):
    for i in range(2): k.ds_read_b64_tr_b16(v(vW1V + 4 * p + 2 * i, 2), v(vW1A + p), mods='offset:%d' % (960 * i))
k.buffer_store_dwordx4(v(vW1V, 4), v(vW1O), srd(S_WS), s(bE), mods='offen sc1')
k.buffer_store_dwordx4(v(vW1V + 4, 4), v(vW1O + 1), srd(S_WS), s(bO), mods='offen sc1')
k.buffer_store_dwordx4(v(vW1V + 8, 4), v(vW1O + 2), srd(S_WS), 0, mods='offen sc1')
cE, cO, c2 = vAF + 20, vAF + 21, vAF + 22
for p, d in enumerate((cE, cO, c2)): k.v_mov_b32(v(d), 0)
for i in range(4):
    for p, d in enumerate((cE, cO, c2)): k.v_dot2_f32_bf16(v(d), v(vW1V + 4 * p + i), s(sONES), v(d))
k.v_cmp_eq_u32('vcc', 0, v(vG)); k.v_cmp_eq_u32(s(sT, 2), 1, v(vG))
k.v_cndmask_b32(v(t0), 0, v(c2), 'vcc'); k.v_cndmask_b32(v(t1), 0, v(c2), s(sT, 2))
k.v_add_f32(v(cE), v(cE), v(t0)); k.v_add_f32(v(cO), v(cO), v(t1))
k.v_permlane32_swap_b32(v(cE), v(cO))
k.v_add_f32(v(cE), v(cE), v(cO))
k.v_mov_b32(v(cO), v(cE))
k.v_permlane16_swap_b32(v(cE), v(cO))
k.v_add_f32(v(cE), v(cE), v(cO))
k.v_cvt_pk_bf16_f32(v(cO), v(cE), v(cE))
k.v_lshlrev_b32(v(cO), 16, v(cO))
k.v_sub_f32(v(cO), v(cE), v(cO))
k.v_cvt_pk_bf16_f32(v(cO), v(cE), v(cO))
k.buffer_store_dword(v(cO), v(vW1O + 3), srd(S_WS), s(sD), mods='offen sc1', tag='w1st')
stamp(k, 'w1st')
wphi_scatter(k, vWP)
u = Stream()
for i in range(4): u.v_mov_b32(v(vONE + i), 0x3f803f80)
u.v_lshlrev_b32(v(vFR), 7, v(vJ))
u.v_lshlrev_b32(v(vFC), 11, v(vJ))
u.v_mul_u32_u24(v(vXRO), 1280, v(vJ))
u.v_mul_u32_u24(v(t0), 40, v(vG))
u.v_add_u32(v(vXRO), v(vXRO), v(t0))
u.s_add_u32(s(sT), s(sXO + 1), L_XST)
u.v_xor_b32(v(t0), v(vJ), v(vG))
u.v_lshlrev_b32(v(t0), 4, v(t0))
u.v_lshl_add_u32(v(t2), v(vJ), 8, v(t0))
for n in range(4):
    u.v_xor_b32(v(vXRd + n), 64 * n, v(t2))
    u.v_add_u32(v(vXRd + n), s(sT), v(vXRd + n))
u.v_add_u32(v(vL16b), 4096, v(vL16))
u.v_add_u32(v(vKV2), 61440, v(vL16))
u.v_add_u32(v(vKV2 + 1), L_Q, v(vL16))
sL2E, sINV640, sEPS, sK1, sK3, sEPS6 = sK, sK + 1, sK + 2, sK + 3, sK + 4, sK + 5
sL2Ep = 10
u.s_mov_b32(s(sL2E), f32(LOG2E)); u.s_mov_b32(s(sINV640), f32(1.0 / 640)); u.s_mov_b32(s(sEPS), f32(1e-5))
GK1 = -2.0 * math.sqrt(2.0 / math.pi) * LOG2E
u.s_mov_b32(s(sK1), f32(GK1)); u.s_mov_b32(s(sK3), f32(GK1 * 0.044715)); u.s_mov_b32(s(sEPS6), f32(1e-6))
u.s_mov_b32(s(sL2Ep), f32(LOG2E)); u.s_mov_b32(s(sL2Ep + 1), f32(-LOG2E))
f_ = Stream()
if OPT['x0e'] == 3: issue_x(f_, 0, (1,))
elif OPT['x0e'] == 4: issue_x(f_, 0, (1,)); issue_x(f_, 1, (0,))
elif OPT['x0e'] != 2: issue_x(f_, 1 if OPT['x0e'] else 0)
k.add(weave(u, [(f_, 0, None, 'vmem')], anchor='any'))
stamp(k, 'w1w')
k.waitvm('w1st')
stamp(k, 'w1d')
k.waitlds()
k.s_barrier()
post(k, F_W1)
stamp(k, 'w1post')

u = Stream()
o_addrs(u)
prep_addrs3(u); piece_addrs(u, 2, 0, 10); piece_addrs(u, 4, 0, 4); piece_addrs(u, 4, 1, 7); epi_addrs(u)
f_ = Stream()
if OPT['w2e'] == 1: issue_prep(f_, 2)
if OPT['x0e'] == 4: issue_x(f_, 1, (1,))
elif OPT['x0e'] != 1: issue_x(f_, 1)
issue_x(f_, 2); stats_load(f_)
if OPT['x3e']: issue_x(f_, 3)
k.add(weave(u, [(f_, 0, None, 'vmem')], anchor='any'))
stamp(k, 'prepiss')
sKV, sKVt, sQs, sQt, sFW = sV, sV + 1, sV + 2, sV + 3, sV + 8
k.s_mul_i32(s(sB), s(sW), 5120); k.s_mul_i32(s(sA), s(sW), 3072)
k.s_mul_i32(s(sKV), s(sC), 102400); k.s_add_u32(s(sKV), s(sKV), s(sB)); k.s_add_u32(s(sKV), s(sKV), WS_W1K)
k.s_mul_i32(s(sQs), s(sC), 61440); k.s_add_u32(s(sQs), s(sQs), s(sA)); k.s_add_u32(s(sQs), s(sQs), WS_W1Q)
k.s_lshl_b32(s(sD), s(sC), 13); k.s_lshl_b32(s(sCc), s(sW), 11); k.s_add_u32(s(sD), s(sD), s(sCc)); k.s_add_u32(s(sD), s(sD), WS_CS)
k.s_lshl_b32(s(sFW), s(sC), 7); k.s_add_u32(s(sFW), s(sFW), WS_FLAGS + F_W1 * 32768)
vF0 = 18
def issue_kv(st, sg, lo=0, hi=5):
    if lo == 0:
        chunk(st, sg, sKVt, sT + 7)
        st.s_mul_i32(s(sKVt), s(sKVt), 20480); st.s_add_u32(s(sKVt), s(sKVt), s(sKV))
    for n in range(lo, hi):
        if n % 4 == 0 or n == lo: st.s_add_u32('m0', s(sB), KVPOS[sg] + (n & 4) * 1024)
        st.buffer_load_dwordx4(v(vL16 if n < 4 else vL16b), srd(S_WS), s(sKVt), mods='offen offset:%d sc1 lds' % ((n & 3) * 1024), tag='W%d' % sg)
def issue_q(st, lo, hi):
    for ch in range(lo, hi):
        chunk(st, ch, sQt, sT + 7)
        st.s_mul_i32(s(sQt), s(sQt), 12288); st.s_add_u32(s(sQt), s(sQt), s(sQs))
        st.s_add_u32('m0', s(sA), L_Q + ch * 12288)
        for n in range(3):
            st.buffer_load_dwordx4(v(vL16), srd(S_WS), s(sQt), mods='offen offset:%d sc1 lds' % (n * 1024), tag='Q%d' % ch)
flag_issue(k, vF0, vFC, sFW)
if OPT['tagB'] == 3: o_store(k, vPOI, vPOI, vPOI, 'poiO')
for sg in range(3): k.waitvm('x%d' % sg); x_read(k, sg)
k.waitlds(); k.s_barrier()
stamp(k, 'w1a'); flag_check(k, vF0, vFC, sFW); stamp(k, 'w1b')
issue_kv(k, 0)
issue_kv(k, 1)
stats_compute(k)
wphi_read(k)
if OPT['tagB'] == 1: o_store(k, vPOI, vPOI, vPOI, 'poiO')
issue_x(k, 4 if OPT['x3e'] else 3)
if OPT['tagB'] == 2: o_store(k, vPOI, vPOI, vPOI, 'poiO')
k.waitvm('W0')
k.s_barrier()
stamp(k, 'kvgo')

vF1, vF2, vFA1, vF3, vPLO, vT16, vKR = 18, 20, 22, 24, 30, 31, 32
sW2s, sW2l, sW2t, sW3, sW3t, sPL, sFP, sFK = sV + 4, sV + 5, sV + 6, sV + 7, sXO + 3, sXO + 4, sV + 9, sV + 10
def q_setup(st):
    st.v_bfe_u32(v(vFA1), v(vLANE), 4, 1)
    st.v_lshl_add_u32(v(vFA1), v(vFA1), 7, v(vFC))
    st.s_lshl_b32(s(sFP), s(sM), 8); st.s_add_u32(s(sFP), s(sFP), WS_FLAGS + F_PREP * 32768)
    st.s_lshl_b32(s(sFK), s(sCQ), 7); st.s_add_u32(s(sFK), s(sFK), WS_FLAGS + F_KV * 32768)
    st.v_and_b32(v(vKR), 1, v(vG)); st.v_mul_u32_u24(v(vKR), 1856, v(vKR))
    st.s_lshl_b32(s(sW2l), s(sW), 12)
    st.s_mul_i32(s(sW2s), s(sM), 102400); st.s_add_u32(s(sW2s), s(sW2s), WS_W2)
    st.v_lshl_add_u32(v(vKR), v(vCC), 4, v(vKR))
    st.s_mul_i32(s(sW3), s(sC), 245760); st.s_mul_i32(s(sW3t), s(sW), 61440); st.s_add_u32(s(sW3), s(sW3), s(sW3t))
    st.v_mov_b32(v(t1), L_ZERO - L_KVR)
    st.s_add_u32(s(sW3), s(sW3), WS_W3)
    st.v_cmp_eq_u32('vcc', v(vR4), v(vG))
    st.s_mul_i32(s(sPL), s(sCQ), 16 * 3584); st.s_add_u32(s(sPL), s(sPL), WS_PART)
    st.v_lshlrev_b32(v(vT16), 4, v(vTID))
    st.v_cndmask_b32(v(vKR), v(t1), v(vKR), 'vcc')
    st.v_mov_b32(v(t1), OOB)
    st.v_cmp_gt_u32('vcc', 224, v(vTID))
    st.v_add_u32(v(vKR), L_KVR, v(vKR))
    st.v_cndmask_b32(v(vPLO), v(t1), v(vT16), 'vcc')
    st.v_cmp_lt_u32('vcc', 111, v(vTID))
    st.v_add_u32(v(vT16), L_KVR, v(vT16))
    st.v_add_u32(v(t1), 64, v(vT16))
    st.v_cndmask_b32(v(vT16), v(vT16), v(t1), 'vcc')
W2ORD = list(range(8)) + list(range(16, 25)) + list(range(8, 16))
def issue_w2(st, lo, hi):
    last = None
    for i in W2ORD[lo:hi]:
        if (i >> 2) != last:
            last = i >> 2
            if i < 24: st.s_add_u32(s(sW2t), s(sW2l), last * 16384)
            else: st.s_lshl_b32(s(sW2t), s(sW), 10); st.s_add_u32(s(sW2t), s(sW2t), 98304)
            st.s_add_u32('m0', s(sW2t), L_W2)
            st.s_add_u32(s(sW2t), s(sW2t), s(sW2s))
        st.buffer_load_dwordx4(v(vL16), srd(S_WS), s(sW2t), mods='offen offset:%d sc1 lds' % ((i & 3) * 1024), tag='W2')
def issue_w3(st, lst):
    last = None
    for i in lst:
        if (i >> 2) != last:
            last = i >> 2; st.s_add_u32(s(sW3t), s(sW3), last * 4096)
        st.buffer_load_dwordx4(a(4 * i, 4), v(vL16), srd(S_WS), s(sW3t), mods='offen offset:%d sc1' % ((i & 3) * 1024))
vSL = vGR; vSA = vGR + 8
def stats_check(st):
    t = '''s_mov_b32 s{c}, {lim}
L_sc:
    v_cmp_ne_u32 vcc, s{n}, v{a1}
    v_cmp_ne_u32 s[{p}:{p1}], s{n}, v{b1}
    s_or_b64 vcc, vcc, s[{p}:{p1}]
    v_cmp_ne_u32 s[{p}:{p1}], s{g}, v{a3}
    s_or_b64 vcc, vcc, s[{p}:{p1}]
    v_cmp_ne_u32 s[{p}:{p1}], s{g}, v{b3}
    s_or_b64 vcc, vcc, s[{p}:{p1}]
    s_cbranch_scc0 L_sd
    buffer_load_dwordx4 v[{a0}:{a3}], v{ad}, s[{ws}:{ws3}], s{so} offen sc1
    buffer_load_dwordx4 v[{b0}:{b3}], v{ad}, s[{ws}:{ws3}], s{so} offen offset:256 sc1
    s_waitcnt vmcnt(0)
    s_sub_u32 s{c}, s{c}, 1
    s_cbranch_scc0 L_sc
L_sd:'''.format(c=sCNT, lim=OPT['spin'], n=sN, g=sTG, p=sT + 4, p1=sT + 5, a0=vSL, a1=vSL + 1, a3=vSL + 3, b0=vSL + 4, b1=vSL + 5, b3=vSL + 7,
               ad=vSA, ws=S_WS, ws3=S_WS + 3, so=sV + 8)
    st.raw(t, uses=[v(vSL, 8), v(vSA)], defs=[v(vSL, 8)])
    for tt in range(2):
        st.v_mov_b32(v(vST + 2 * tt), v(vSL + 4 * tt)); st.v_mov_b32(v(vST + 2 * tt + 1), v(vSL + 4 * tt + 2))
def sent_issue(st, dst, voff, ssoff):
    st.buffer_load_dwordx4(v(dst, 4), v(voff), srd(S_WS), s(ssoff), mods='offen sc1')
def sent_check(st, dst, voff, ssoff):
    q = npoll[0]; npoll[0] += 1
    t = '''s_mov_b32 s{c}, {lim}
L_pl{n}:
    v_max_u32 v{t}, v{t}, v{t2}
    v_cmp_eq_u32 vcc, -1, v{t}
    s_cbranch_vccz L_pd{n}
    buffer_load_dwordx4 v[{t}:{t3}], v{vo}, s[{ws}:{ws3}], s{so} offen sc1
    s_waitcnt vmcnt(0)
    s_sub_u32 s{c}, s{c}, 1
    s_cbranch_scc0 L_pl{n}
L_pd{n}:'''.format(n=q, c=sCNT, lim=OPT['spin'], t=dst, t2=dst + 2, t3=dst + 3, vo=voff, ws=S_WS, ws3=S_WS + 3, so=ssoff)
    st.raw(t, uses=[v(voff), v(dst, 4)], defs=[v(dst, 4)])
def redo_check(st, vm, label):
    q = npoll[0]; npoll[0] += 1
    t = '''v_cmp_eq_u32 vcc, -1, v{m}
    s_cbranch_vccz L_pd{n}
    s_sub_u32 s{c}, s{c}, 1
    s_cbranch_scc1 L_pd{n}
    s_waitcnt vmcnt(0) lgkmcnt(0)
    s_nop 15
    s_branch {l}
L_pd{n}:'''.format(n=q, m=vm, c=sRC, l=label)
    st.raw(t, uses=[v(vm)])
sRC = 101
def kv_reads(st, ks):
    for X in range(5):
        off = KVPOS[ks >> 2] + (ks & 3) * 5120 + X * 1024
        st.ds_read_b128(v(vAF + (ks & 1) * 20 + X * 4, 4), v(vL16 if off < 61440 else vKV2), mods='offset:%d' % (L_KV + (off if off < 61440 else off - 61440)))
kv_reads(k, 0)
for sg in range(5):
    m_ = Stream()
    for q in range(4):
        ks = 4 * sg + q
        mm = Stream()
        for X in range(5):
            A = v(vAF + (q & 1) * 20 + X * 4, 4)
            mfma(mm, v(acc(X, 0), 4), A, xf(ks, 0), ks == 0)
            mfma(mm, v(acc(X, 1), 4), A, xf(ks, 1), ks == 0)
        ff = Stream()
        if ks < 19: kv_reads(ff, ks + 1)
        mm = weave(mm, [(ff, 0, 10)])
        if q == 2 and sg < 4:
            mm.waitvm('W%d' % (sg + 1))
            if sg == 2: mm.waitvm('CSF')
            if sg == 1: mm.waitvm('prepstW2')
            mm.waitlds()
            mm.s_barrier()
            if sg == 1: post(mm, F_PREP2)
        m_.add(mm)
    fills = []
    f1 = Stream()
    if sg == 0 and OPT['x3e']:
        issue_kv(f1, 2)
        f6 = Stream(); x_read(f6, 3); f6.waitvm('x4'); x_read(f6, 4); fills.append((f6, 0, 29))
        f7 = Stream(); issue_kv(f7, 3, 0, 3); fills.append((f7, 31, None, 'vmem'))
    if sg == 1 and OPT['x3e']:
        f1.s_add_u32('m0', s(sCc), L_CSF)
        for n in range(2): f1.buffer_load_dwordx4(v(vL16), srd(S_WS), s(sD), mods='offen offset:%d sc1 lds' % (n * 1024), tag='CSF')
        issue_kv(f1, 3, 3, 5)
        issue_kv(f1, 4)
    if sg == 2 and OPT['x3e']: issue_q(f1, 0, 3)
    if sg == 0 and not OPT['x3e']:
        issue_x(f1, 4)
        f6 = Stream(); f6.waitvm('x3'); x_read(f6, 3); fills.append((f6, 12, 28))
        f7 = Stream(); issue_kv(f7, 2, 0, 3); fills.append((f7, 29, None, 'vmem'))
    if sg == 1 and not OPT['x3e']:
        issue_kv(f1, 2, 3, 5)
        f1.s_add_u32('m0', s(sCc), L_CSF)
        for n in range(2): f1.buffer_load_dwordx4(v(vL16), srd(S_WS), s(sD), mods='offen offset:%d sc1 lds' % (n * 1024), tag='CSF')
        if not OPT['ql']: issue_q(f1, 0, 1)
        f6 = Stream(); f6.waitvm('x4'); x_read(f6, 4); fills.append((f6, 4, 20))
        f7 = Stream(); issue_kv(f7, 3, 0, 4); fills.append((f7, 31, None, 'vmem'))
    if sg == 2 and not OPT['x3e']:
        issue_kv(f1, 3, 4, 5); issue_kv(f1, 4)
        if not OPT['ql']: issue_q(f1, 1, 2)
    if sg == 3:
        if not OPT['ql']: issue_q(f1, 3 if OPT['x3e'] else 2, OPT['qe'])
        f7 = Stream(); issue_prep(f7, 0); issue_prep(f7, 1)
        if OPT['ql']: issue_prep(f7, 3)
        fills.append((f7, OPT['pat'], None, 'vmem'))
    if sg == 4 and not OPT['ql']: issue_prep(f1, 3)
    fills.append((f1, 0, (28 if (sg == 0 or (sg == 1 and not OPT['x3e'])) else OPT['pat'] - 9 if sg == 3 else 10 if sg == 4 else None), 'vmem'))
    if sg == 3:
        f4 = Stream()
        f4.v_add_u32(v(t0), L_CSF, v(vL16))
        for X in range(5): f4.ds_read_b128(v(vE + 4 + 4 * X, 4), v(t0), mods='offset:%d' % (X * 1024))
        for X in range(3): f4.ds_read_b128(a(aCSQ + 4 * X, 4), v(t0), mods='offset:%d' % ((5 + X) * 1024))
        fills.append((f4, 0, 28))
    if sg == 0:
        f5 = Stream(); prep_reads(f5, 2, vE + 24); fills.append((f5, 0, 4))
        f5 = Stream(); prep_stores(f5, 2, vE + 24); fills.append((f5, 5, 6, 'vmem'))
    if OPT['tagB'] >= 4 and sg == OPT['tagB'] - 4:
        f8 = Stream(); o_store(f8, vPOI, vPOI, vPOI, 'poiO'); fills.append((f8, 6, 36, 'vmem'))
    if sg == 2:
        f4 = Stream(); q_setup(f4); fills.append((f4, 0, None))
    if sg == 3:
        f4 = Stream(); f4.s_add_u32(s(sD), s(sFP), (F_PREP2 - F_PREP) * 32768); flag_issue(f4, vF3, vFA1, sD)
        f4.s_lshl_b32(s(sV + 8), s(sR), 11); f4.s_lshl_b32(s(sT + 3), s(sW), 9); f4.s_add_u32(s(sV + 8), s(sV + 8), s(sT + 3)); f4.s_add_u32(s(sV + 8), s(sV + 8), WS_XST)
        f4.v_lshlrev_b32(v(vSA), 4, v(vJ))
        for tt in range(2): f4.buffer_load_dwordx4(v(vSL + 4 * tt, 4), v(vSA), srd(S_WS), s(sV + 8), mods='offen offset:%d sc1' % (256 * tt))
        fills.append((f4, OPT['pat'] - 8, OPT['pat'] - 1, 'vmem'))
    if sg == 4:
        f4 = Stream(); stats_check(f4); fills.append((f4, 20, None))
    if sg == 4:
        for X in range(5): mfma(m_, v(acc(X, 2), 4), v(vE + 4 + 4 * X, 4), v(vONE, 4), True)
    m_ = pack(m_, fills); print('kv stage', sg, 'est', m_.est)
    k.add(m_)
    if sg < 4: stamp(k, 'kv%d' % sg)
stamp(k, 'kvgemm')

def ln_pack(st, X, tt, dst, pk=True):
    A = acc(X, tt); C = acc(X, 2); S = v(vST + 2 * tt, 2)
    if pk:
        for h in range(2):
            st.v_pk_fma_f32(v(A + 2 * h, 2), v(C + 2 * h, 2), S, v(A + 2 * h, 2), mods='op_sel_hi:[1,0,1]')
        for h in range(2):
            st.v_pk_mul_f32(v(A + 2 * h, 2), v(A + 2 * h, 2), S, mods='op_sel:[0,1] op_sel_hi:[1,1]')
    else:
        for i in range(4): st.v_fmac_f32(v(A + i), v(C + i), v(vST + 2 * tt))
        for i in range(4): st.v_mul_f32(v(A + i), v(A + i), v(vST + 2 * tt + 1))
    for h in range(2):
        st.v_cvt_pk_bf16_f32(v(dst + h), v(A + 2 * h), v(A + 2 * h + 1))

vBK = vE + 4
vP = vE + 16
vEP = vACC
vMX = vE + 56
vPK = vAF
def feature_map(st):
    for tt in range(2):
        for ks in range(2):
            for ft in range(5):
                mfma(st, v(vP + 4 * ft, 4), a(aPHI + (tt * 10 + ft * 2 + ks) * 4, 4), v(vBK + 6 * tt + 2 * ks, 4), tt == 0 and ks == 0)
def softmax2(st, order, write=False):
    mx, mn, sp, sn = vMX, vMX + 1, vMX + 2, vMX + 4
    st.v_max3_f32(v(mx), v(vP), v(vP + 1), v(vP + 2))
    st.v_min3_f32(v(mn), v(vP), v(vP + 1), v(vP + 2))
    for i in range(3, 19, 2):
        st.v_max3_f32(v(mx), v(mx), v(vP + i), v(vP + i + 1))
        st.v_min3_f32(v(mn), v(mn), v(vP + i), v(vP + i + 1))
    st.v_max_f32(v(mx), v(mx), v(vP + 19))
    st.v_min_f32(v(mn), v(mn), v(vP + 19))
    st.v_mul_f32(v(mx), s(sL2Ep + 1), v(mx))
    st.v_mul_f32(v(mn), s(sL2Ep), v(mn))
    for i in range(0, 20, 2):
        st.v_pk_fma_f32(v(vEP + i, 2), v(vP + i, 2), s(sL2Ep, 2), v(mx, 2), mods='op_sel_hi:[1,0,0]')
        st.v_pk_fma_f32(v(vP + i, 2), v(vP + i, 2), s(sL2Ep, 2), v(mx, 2), mods='op_sel:[0,1,1] op_sel_hi:[1,1,1]')
    for i in range(20):
        st.v_exp_f32(v(vEP + i), v(vEP + i))
        st.v_exp_f32(v(vP + i), v(vP + i))
    st.v_pk_add_f32(v(sp, 2), v(vEP, 2), v(vEP + 2, 2))
    st.v_pk_add_f32(v(sn, 2), v(vP, 2), v(vP + 2, 2))
    for i in range(4, 20, 2):
        st.v_pk_add_f32(v(sp, 2), v(sp, 2), v(vEP + i, 2))
        st.v_pk_add_f32(v(sn, 2), v(sn, 2), v(vP + i, 2))
    st.v_add_f32(v(sp), v(sp), v(sp + 1))
    st.v_add_f32(v(sn), v(sn), v(sn + 1))
    st.v_rcp_f32(v(sp), v(sp))
    st.v_rcp_f32(v(sn), v(sn))
    def wr(q):
        if write: st.ds_write_b128(v(vFA), v(vPK + 4 * q, 4), mods='offset:%d' % (16 * q))
    for i in range(0, 20, 2): st.v_pk_mul_f32(v(vEP + i, 2), v(vEP + i, 2), v(sp, 2), mods='op_sel_hi:[1,0]')
    for i in range(10):
        st.v_cvt_pk_bf16_f32(v(vPK + order[i]), v(vEP + 2 * i), v(vEP + 2 * i + 1))
        if i == 3: wr(0)
    for i in range(0, 20, 2):
        st.v_pk_mul_f32(v(vP + i, 2), v(vP + i, 2), v(sn, 2), mods='op_sel_hi:[1,0]')
        if i == 6: wr(1)
    for i in range(10):
        st.v_cvt_pk_bf16_f32(v(vPK + order[10 + i]), v(vP + 2 * i), v(vP + 2 * i + 1))
        if i == 2: wr(2)
    wr(3); wr(4)

m_ = Stream()
for tt in range(2):
    for X in range(3): ln_pack(m_, X, tt, vBK + 6 * tt + 2 * X)
k.add(m_)
vVP = vAF + 20; vK1 = vAF + 30
m_ = Stream(); feature_map(m_)
f_ = Stream()
f_.v_cmp_lt_u32('vcc', 1, v(vG))
f_.v_mov_b32(v(t1), 0x3f80)
for tt in range(2):
    f_.v_cndmask_b32(v(vK1 + 2 * tt), v(t1), v(vBK + 6 * tt + 2), 'vcc')
    f_.v_cndmask_b32(v(vK1 + 2 * tt + 1), 0, v(vBK + 6 * tt + 3), 'vcc')
    f_.ds_write_b64(v(vK1A), v(vK1 + 2 * tt, 2), mods='offset:%d' % (200 + tt * 16 * 288))
for tt in range(2):
    for h in range(2):
        ln_pack(f_, 3 + h, tt, vVP + 4 * tt + 2 * h, pk=False)
        f_.ds_write_b64(v(vVA), v(vVP + 4 * tt + 2 * h, 2), mods='offset:%d' % (160 + 48 * h + tt * 16 * 288))
k.add(pack(m_, [(f_, 0, None)]))
m_ = Stream(); softmax2(m_, list(range(20)), True)
f_ = Stream()
if OPT['ql']: issue_q(f_, 0, OPT['qe'])
k.add(weave(m_, [(f_, OPT['qlat'], 165, 'vmem')], anchor='any'))
if OPT['stop'] == 1:
    dump(k, [v(vBK, 4), v(vBK + 4, 4), v(vBK + 8, 4), v(vVP, 4), v(vVP + 4, 4), v(vST, 4)] + [v(vPK + 4 * i, 4) for i in range(5)])
    finish(k)
k.waitvm('Q%d' % (min(OPT['qe'], 2) - 1 if OPT['ql'] else OPT['qe'] - 1))
if OPT['pe']: k.waitvm('prep3')
k.waitlds()
k.s_barrier()
stamp(k, 'phik')
vKVA = vACC; vKVB = vACC + 48; vKVD = vE + 4
def kvm_reads(st, ks):
    off = 32 * ks * 288
    for i in range(2):
        st.ds_read_b64_tr_b16(v(vKVB + 4 * ks + 2 * i, 2), v(vKB), mods='offset:%d' % (off + 16 * i * 288))
    for ft in range(3):
        for i in range(2):
            st.ds_read_b64_tr_b16(v(vKVA + (ks * 3 + ft) * 4 + 2 * i, 2), v(vKA), mods='offset:%d' % (off + 16 * i * 288 + 32 * ft))
kvm_reads(k, 0); kvm_reads(k, 1)
k.s_lshl_b32(s(sT), s(sC), 4); k.s_add_u32(s(sT), s(sT), s(sR)); k.s_mul_i32(s(sT), s(sT), 3584)
k.s_add_u32(s(sT), s(sT), WS_PART)
m_ = Stream()
for ks in range(4):
    for ft in range(3):
        mfma(m_, v(vKVD + 4 * ft, 4), v(vKVA + (ks * 3 + ft) * 4, 4), v(vKVB + 4 * ks, 4), ks == 0)
f_ = Stream(); kvm_reads(f_, 2); kvm_reads(f_, 3)
k.add(weave(m_, [(f_, 0, 6)]))
vKVP = vE + 16
for i in range(6): k.v_cvt_pk_bf16_f32(v(vKVP + i), v(vKVD + 2 * i), v(vKVD + 2 * i + 1))
k.buffer_store_dwordx4(v(vKVP, 4), v(vPS), srd(S_WS), s(sT), mods='offen sc1')
k.buffer_store_dwordx2(v(vKVP + 4, 2), v(vPS + 1), srd(S_WS), s(sT), mods='offen sc1', tag='part')
stamp(k, 'kvst')

def qbuf(b, X): return vAF + b * 12 + X * 4
def q_reads(st, ks):
    for X in range(3): st.ds_read_b128(v(qbuf(ks & 1, X), 4), v(vKV2 + 1), mods='offset:%d' % (ks * 3072 + X * 1024))
PLQ = [88 + 4 * i for i in range(4)] + [140 + 4 * i for i in range(10)] + [248, 252]
def issue_part(st):
    for r_ in range(16):
        if r_: st.s_add_u32(s(sPL), s(sPL), 3584)
        st.buffer_load_dwordx4(v(PLQ[r_], 4), v(vPLO), srd(S_WS), s(sPL), mods='offen sc1')
q_reads(k, 0)
m_ = Stream()
for X in range(3): mfma(m_, v(acc(X, 2), 4), a(aCSQ + 4 * X, 4), v(vONE, 4), True)
for ks in range(20):
    mm = Stream()
    for X in range(3):
        A = v(qbuf(ks & 1, X), 4)
        mfma(mm, v(acc(X, 0), 4), A, xf(ks, 0), ks == 0)
        mfma(mm, v(acc(X, 1), 4), A, xf(ks, 1), ks == 0)
    ff = Stream()
    if ks < 19: q_reads(ff, ks + 1)
    m_.add(weave(mm, [(ff, 0, 6)]))
QP = OPT['qpost']
assert QP >= 3 + 6 * 4
fp = Stream(); stamp(fp, 'q_a'); fp.waitvm('part' if OPT['qe'] > 2 else 'Q2'); stamp(fp, 'q_b'); fp.s_barrier(); post(fp, F_KV)
NW3 = 0
W3ORD = [t * 20 + 4 * b_ + j_ for b_ in range(5) for t in range(3) for j_ in range(4)]
QP2 = OPT['qpost2']
fr = Stream(); prep_reads(fr, 0, vE + 4); prep_reads(fr, 1, vE + 24)
fs = Stream(); prep_stores(fs, 0, vE + 4); prep_stores(fs, 1, vE + 24)
fc = Stream()
vCA, vCD = vE + 32, vE + 52
for t in range(4):
    fc.v_cmp_eq_u32(s(sT + 4, 2), t if t < 3 else v(vG), v(vR4))
    for i in range(4): fc.v_cndmask_b32(v(vCA + i), 0, v(vONE), s(sT + 4, 2))
    mfma(fc, v(vCD, 4), v(vCA, 4), v(vE + 4 + 4 * t, 4), t == 0)
fc.v_lshlrev_b32(v(t0), 8, v(vG)); fc.v_mul_u32_u24(v(t0), 3, v(t0)); fc.v_add_u32(v(t0), v(t0), v(PA[2]))
fc.v_mov_b32(v(t1), OOB)
fc.v_cmp_gt_u32(s(sT + 4, 2), 3, v(vG))
fc.s_mul_i32(s(sE), s(sC), 12288); fc.s_mul_i32(s(sF), s(sW), 3072); fc.s_add_u32(s(sE), s(sE), s(sF))
fc.v_cndmask_b32(v(t0), v(t1), v(t0), s(sT + 4, 2))
fc.s_lshr_b32(s(sF), s(sR), 2); fc.s_lshl_b32(s(sF), s(sF), 8); fc.s_add_u32(s(sE), s(sE), s(sF))
fc.v_cvt_pk_bf16_f32(v(vCD + 1), v(vCD), v(vCD))
fc.s_and_b32(s(sF), s(sR), 3); fc.s_lshl_b32(s(sF), s(sF), 2); fc.s_add_u32(s(sE), s(sE), s(sF))
fc.v_lshlrev_b32(v(vCD + 1), 16, v(vCD + 1))
fc.v_sub_f32(v(vCD + 1), v(vCD), v(vCD + 1))
fc.v_cvt_pk_bf16_f32(v(vCD + 1), v(vCD), v(vCD + 1))
fc.s_add_u32(s(sE), s(sE), WS_CS3)
fc.buffer_store_dword(v(vCD + 1), v(t0), srd(S_WS), s(sE), mods='offen sc1', tag='prepst3')
fq = Stream(); stamp(fq, 'q_c'); fq.waitvm('prepst3'); stamp(fq, 'q_d'); fq.s_barrier(); post(fq, F_PREP)
f2 = Stream(); flag_check(f2, vF3, vFA1, sD); issue_w2(f2, 0, OPT['w2q'])
f4 = Stream(); flag_issue(f4, vF2, vFC, sFK)
fqq = Stream(); issue_q(fqq, OPT['qe'], 5)
fb3 = Stream(); fb3.waitvm('Q3'); fb3.s_barrier()
fb4 = Stream(); fb4.waitvm('Q4'); fb4.s_barrier()
fz = Stream()
for i in range(2): fz.v_mov_b32(v(52 + i), 0)
for i in range(2): fz.ds_write_b64(v(vT16), v(52, 2), mods='offset:%d' % (L_ZERO - L_KVR + 8 * i))
PB = 0 if OPT['pe'] else QP + 1
fl = [(fqq, 0, 34, 'vmem'), (fb3, 67, 68, 'vmem'), (fb4, 91, 92, 'vmem'), (fp, QP, QP + 1, 'vmem'), (fr, PB, PB + 9), (fs, PB + 10, PB + 10 + OPT['psl'], 'vmem'),
      (fc, PB + 11 + OPT['psl'], PB + 33 + OPT['psl']), (f2, OPT['w2at'], 122, 'vmem'), (fz, 100, 120)]
if OPT['pe']: fl.append((fq, OPT['pe'], OPT['pe'] + 1, 'vmem')); fq = Stream()
m_ = pack(m_, fl)
f4b = f4
print('q gemm est', m_.est)
k.add(m_)
stamp(k, 'qgemm')
m_ = Stream()
for tt in range(2):
    for X in range(3): ln_pack(m_, X, tt, vBK + 6 * tt + 2 * X)
feature_map(m_)
order = [0] * 20
for s_ in range(4):
    order[2 * s_] = 4 * s_; order[2 * s_ + 1] = 4 * s_ + 1; order[8 + 2 * s_] = 4 * s_ + 2; order[9 + 2 * s_] = 4 * s_ + 3
for i in range(16, 20): order[i] = i
softmax2(m_, order)
f5 = Stream(); stamp(f5, 'q_e'); flag_check(f5, vF2, vFC, sFK); stamp(f5, 'q_f'); issue_part(f5)
N2 = min(25, OPT['w2q'] + OPT['w2s'])
f6 = Stream(); issue_w2(f6, OPT['w2q'], N2)
if OPT['w3u']: flag_issue(f6, vF1, vFA1, sFP)
k.add(weave(m_, [(f5, OPT['qpl'], OPT['qpl'] + OPT['qpn'], 'vmem'), (f6, OPT['qpl'] + OPT['qpn'] + 2, None, 'vmem'), (f4b, OPT['qpl'] - 60, OPT['qpl'] - 59, 'vmem'), (fq, QP2, QP2 + 1, 'vmem')], anchor='any'))
stamp(k, 'phiq')
if OPT['stop'] == 2:
    k.waitvm(); k.s_barrier()
    dump(k, [v(vPK + 4 * i, 4) for i in range(5)])
    finish(k)

vSUM = vE
m_ = Stream()
for r_ in range(16):
    for i in range(4):
        if r_ == 0:
            m_.v_lshlrev_b32(v(vSUM + 2 * i), 16, v(PLQ[0] + i))
            m_.v_and_b32(v(vSUM + 2 * i + 1), 0xffff0000, v(PLQ[0] + i))
        else:
            m_.v_dot2_f32_bf16(v(vSUM + 2 * i), v(PLQ[r_] + i), s(sONE_LO), v(vSUM + 2 * i))
            m_.v_dot2_f32_bf16(v(vSUM + 2 * i + 1), v(PLQ[r_] + i), s(sONE_HI), v(vSUM + 2 * i + 1))
N3 = min(25, N2 + OPT['w2u'])
f_ = Stream(); issue_w2(f_, N2, N3); N2 = N3
if OPT['w3u']: flag_check(f_, vF1, vFA1, sFP); issue_w3(f_, W3ORD[:OPT['w3u']]); NW3 = OPT['w3u']
else: flag_issue(f_, vF1, vFA1, sFP)
if OPT['tagB']:
    f_.s_lshl_b32(s(sD), s(sR), 11); f_.s_add_u32(s(sD), s(sD), WS_FLAGS + F_KV * 32768); flag_issue(f_, vF3, vFR, sD)
k.add(weave(m_, [(f_, OPT['w2uat'], None, 'vmem')], anchor='any'))
vOA = 104
for i in range(4): k.v_cvt_pk_bf16_f32(v(vSUM + 8 + i), v(vSUM + 2 * i), v(vSUM + 2 * i + 1))
k.ds_write_b128(v(vT16), v(vSUM + 8, 4))
k.waitlds()
k.s_barrier()
stamp(k, 'kvsum')
vOD = 224
vOP = 84
TORD = (5, 0, 1, 2, 3, 4)
def oread(st, n):
    s_, t = n // 6, TORD[n % 6]
    off = 256 * s_ + 64 * t if t < 4 else 1280 + 64 * (t - 4) + 80 * s_
    st.ds_read_b128(v(vOA + n * 4, 4), v(vKR), mods='offset:%d' % off)
for n in range(8): oread(k, n)
m_ = Stream()
for n in range(30):
    mfma(m_, v(vOD + 4 * TORD[n % 6], 4), v(vOA + n * 4, 4), v(vPK + 4 * (n // 6), 4), n < 6)
    if n + 8 < 30: oread(m_, n + 8)
N3 = min(25, N2 + OPT['w2o'])
f_ = Stream(); issue_w2(f_, N2, N3); N2 = N3
if OPT['w3o']:
    if not OPT['w3u']: flag_check(f_, vF1, vFA1, sFP)
    issue_w3(f_, W3ORD[NW3:NW3 + OPT['w3o']]); NW3 += OPT['w3o']
k.add(pack(m_, [(f_, 0, 26, 'vmem')]))
k.v_add_f32(v(vOD + 20), s(sEPS6), v(vOD + 20))
k.v_rcp_f32(v(vOD + 20), v(vOD + 20))
for i in range(10): k.v_pk_mul_f32(v(vOD + 2 * i, 2), v(vOD + 2 * i, 2), v(vOD + 20, 2), mods='op_sel_hi:[1,0]')
for i in range(10): k.v_cvt_pk_bf16_f32(v(vOP + i), v(vOD + 2 * i), v(vOD + 2 * i + 1))
if OPT['tagB']:
    for i in range(0, 10, 2): k.v_min_u32(v(vOP + i), -2, v(vOP + i))
o_store(k, vOP, vOP + 4, vOP + 8, 'ost')
stamp(k, 'ost')
vH = 18
vXRES = 252 - 10 * 0 - 0 if False else 28
vOF = 40
vA2 = 120
vD2 = 152
vA2P = 172
k.s_lshl_b32(s(sE), s(sW), 1); k.s_add_u32(s(sE), s(sE), s(sP))
k.s_lshl_b32(s(sT), s(sR), 3); k.s_add_u32(s(sF), s(sT), s(sE))
k.s_mul_i32(s(sXR), s(sF), 16 * 1280)
k.s_mul_i32(s(sT), s(sM), 160); k.s_add_u32(s(sXR), s(sXR), s(sT))
vXD = vD2 + 16
for e in range(3):
    k.v_add_u32(v(t0), 64 * e, v(vLANE)); div_small(k, t1, t0, 10)
    k.v_mul_u32_u24(v(t2), 10, v(t1)); k.v_sub_u32(v(t2), v(t0), v(t2))
    k.v_mul_u32_u24(v(vXD + e), 1280, v(t1)); k.v_lshl_add_u32(v(vXD + e), v(t2), 4, v(vXD + e))
    if e: k.v_subrev_u32(v(vXD + e), 1024 * e, v(vXD + e))
if OPT['tagB']: flag_check(k, vF3, vFR, sD)
else:
    k.waitvm('ost')
    k.s_barrier()
    post(k, F_O)
issue_w2(k, N2, 25)
k.s_mul_i32(s(sT + 2), s(sW), 3072)
k.s_add_u32('m0', s(sT + 2), L_XR)
for e in range(3): k.buffer_load_dwordx4(v(vXD + e), srd(S_X), s(sXR), mods='offen offset:%d lds' % (e * 1024), tag='xr')
k.v_mul_u32_u24(v(vXD), 160, v(vJ)); k.v_mul_u32_u24(v(t0), 40, v(vG)); k.v_add3_u32(v(vXD), v(vXD), v(t0), s(sT + 2))
k.v_add_u32(v(vXD), L_XR, v(vXD))
if OPT['tagD']:
    for i in range(4): k.v_mov_b32(v(vD2 + 8 + i), -1)
    k.v_mov_b32(v(t2), OOB)
    k.v_cmp_gt_u32('vcc', 3, v(vG))
    k.v_cndmask_b32(v(vD2 + 12), v(t2), v(vL16), 'vcc')
    k.s_mul_i32(s(sT + 4), s(sR), 8 * 49152); k.s_mul_i32(s(sT + 5), s(sC), 3072); k.s_add_u32(s(sT + 4), s(sT + 4), s(sT + 5))
    k.s_mul_i32(s(sT + 5), s(sW), 768); k.s_add_u32(s(sT + 4), s(sT + 4), s(sT + 5)); k.s_add_u32(s(sT + 4), s(sT + 4), WS_HH + 6 * 49152)
    k.buffer_store_dwordx4(v(vD2 + 8, 4), v(vD2 + 12), srd(S_WS), s(sT + 4), mods='offen sc1')
    k.s_add_u32(s(sT + 4), s(sT + 4), 49152)
    k.buffer_store_dwordx4(v(vD2 + 8, 4), v(vD2 + 12), srd(S_WS), s(sT + 4), mods='offen sc1')
stamp(k, 'opost')
if OPT['stop'] == 3: finish(k)

W3A = min(60, NW3 + OPT['w3a']); W3B = min(60, W3A + OPT['w3b'])
k.v_add_u32(v(t0), L_W2, v(vL16))
k.v_add_u32(v(t1), L_W2 + 61440, v(vL16))
k.v_mov_b32(v(38), v(vXD))
A2S = [vA2P + 4 * i for i in range(21)] + [vA2 + 4 * i for i in range(8)]
def a2read(st, i):
    st.ds_read_b128(v(A2S[i % 29], 4), v(t0 if i < 60 else t1), mods='offset:%d' % ((i if i < 60 else i - 60) * 1024))
if not OPT['w3o']: flag_check(k, vF1, vFA1, sFP)
k.s_mul_i32(s(sV), s(sF), 20480); k.s_add_u32(s(sV), s(sV), WS_O)
if OPT['asy']:
    k.s_lshl_b32(s(sV + 1), s(sR), 11); k.s_add_u32(s(sV + 1), s(sV + 1), WS_FLAGS + F_O * 32768)
    issue_w3(k, W3ORD[NW3:NW3 + 4])
    k.waitvm('xr'); k.s_barrier()
    issue_w3(k, W3ORD[NW3 + 4:W3A])
    if OPT['tagB']:
        k.v_mul_u32_u24(v(vD2 + 4), 1280, v(vJ)); k.v_lshl_add_u32(v(vD2 + 4), v(vG), 6, v(vD2 + 4)); k.v_add_u32(v(vD2 + 4), 1024, v(vD2 + 4))
        sent_issue(k, vD2, vD2 + 4, sV)
    else: flag_issue(k, vD2, vFR, sV + 1)
    issue_w3(k, W3ORD[W3A:W3A + OPT['w3a2']]); W3A += OPT['w3a2']; W3B = min(60, W3A + OPT['w3b'])
    for q in range(5): k.ds_read_b64(v(vXRES + 2 * q, 2), v(38), mods='offset:%d' % (8 * q))
    if OPT['tagB']:
        k.s_mov_b32(s(sRC), 64)
        sent_check(k, vD2, vD2 + 4, sV)
    else:
        for i in range(29): a2read(k, i)
        flag_check(k, vD2, vFR, sV + 1)
else:
    issue_w3(k, W3ORD[NW3:W3A])
    k.waitvm('xr')
    poll_row(k, F_O, vD2)
    k.s_barrier()
stamp(k, 'oflag')
def issue_o(st, lo, hi):
    for i in range(lo, hi):
        if i % 4 == 0 or i == lo: st.s_add_u32(s(sV + 1), s(sV), (i & ~3) * 1024)
        st.buffer_load_dwordx4(v(vOF + 4 * i, 4), v(vL16), srd(S_WS), s(sV + 1), mods='offen offset:%d sc1' % ((i % 4) * 1024))
if OPT['tagB']: k.label('L_g2')
issue_o(k, 0, 10)
if OPT['tagB']:
    for i in range(29): a2read(k, i)
if not OPT['asy']:
    for i in range(29): a2read(k, i)
    for q in range(5): k.ds_read_b64(v(vXRES + 2 * q, 2), v(38), mods='offset:%d' % (8 * q))
vHA = 36
for i in range(10):
    k.v_lshlrev_b32(v(vD2 + 2 * i), 16, v(vXRES + i)); k.v_and_b32(v(vD2 + 2 * i + 1), 0xffff0000, v(vXRES + i))
k.v_lshrrev_b32(v(vHA), 1, v(vG)); k.v_mul_u32_u24(v(vHA), 1280, v(vHA))
k.v_lshl_add_u32(v(vHA), v(vJ), 4, v(vHA))
k.v_and_b32(v(vHA + 2), 1, v(vG))
k.v_lshl_add_u32(v(vHA + 1), v(vHA + 2), 3, v(vHA))
k.v_lshl_add_u32(v(vHA), v(vHA + 2), 9, v(vHA))
k.v_lshrrev_b32(v(vHA - 1), 1, v(vG)); k.v_lshlrev_b32(v(vHA - 1), 2, v(vHA - 1))
k.v_lshl_add_u32(v(vHA - 1), v(vJ), 3, v(vHA - 1))
k.v_cmp_eq_u32('vcc', 0, v(vHA + 2))
k.v_mov_b32(v(vHA + 2), OOB)
k.v_cndmask_b32(v(vHA - 1), v(vHA + 2), v(vHA - 1), 'vcc')
k.s_mul_i32(s(sT + 2), s(sF), 20480); k.s_mul_i32(s(sT + 1), s(sM), 2560); k.s_add_u32(s(sT + 2), s(sT + 2), s(sT + 1))
k.s_add_u32(s(sT + 2), s(sT + 2), WS_H)
k.s_lshl_b32(s(sT + 3), s(sF), 10); k.s_lshl_b32(s(sT + 1), s(sM), 7); k.s_add_u32(s(sT + 3), s(sT + 3), s(sT + 1))
k.s_add_u32(s(sT + 3), s(sT + 3), WS_HST)
m_ = Stream()
nxt = 29
for i in range(100):
    ks, t = divmod(i, 5)
    mfma(m_, v(vD2 + 4 * t, 4), v(A2S[i % 29], 4), v(vOF + 4 * ks, 4), False)
    if OPT['tagB'] and i % 4 == 1 and i // 4 < 20 and False: pass
    if nxt < 100 and i % 4 != 3 - 0 and nxt - 29 <= i: a2read(m_, nxt); nxt += 1
    elif nxt < 100 and nxt - i <= 10: a2read(m_, nxt); nxt += 1
assert nxt == 100
if OPT['tagB']:
    mk = Stream(); cnt = 0
    for x in m_.l:
        mk.l.append(x)
        if x.cls == 'mfma':
            if cnt % 5 == 1:
                q = cnt // 5
                if q == 0: mk.v_max_u32(v(39), v(vOF), v(vOF + 2))
                else: mk.v_max3_u32(v(39), v(39), v(vOF + 4 * q), v(vOF + 4 * q + 2))
            cnt += 1
    for n in range(len(mk.l) - 1):
        if mk.l[n].cls == 'valu' and mk.l[n + 1].cls == 'ldsr': mk.l[n], mk.l[n + 1] = mk.l[n + 1], mk.l[n]
    m_ = mk
f1 = Stream(); issue_o(f1, 10, 20)
f2 = Stream(); issue_w3(f2, W3ORD[W3A:W3B])
m_ = pack(m_, [(f1, 0, 40, 'vmem'), (f2, 44, OPT['g2e'], 'vmem')]); print('gemm2 est', m_.est)
k.add(m_)
if OPT['tagB']: redo_check(k, 39, 'L_g2')
stamp(k, 'gemm2')
for i in range(10): k.v_cvt_pk_bf16_f32(v(vH + i), v(vD2 + 2 * i), v(vD2 + 2 * i + 1))
def h_store(st, unt):
    st.buffer_store_dwordx4(v(vH, 4), v(vHA), srd(S_WS), s(sT + 2), mods='offen sc1', untracked=unt)
    st.buffer_store_dwordx4(v(vH + 4, 4), v(vHA), srd(S_WS), s(sT + 2), mods='offen offset:256 sc1', untracked=unt)
    st.buffer_store_dwordx2(v(vH + 8, 2), v(vHA + 1), srd(S_WS), s(sT + 2), mods='offen offset:1024 sc1', tag='hdat', untracked=unt)
if OPT['h0'] == 2:
    k.s_cmp_lg_u32(s(sW), 0); k.s_cbranch_scc1('L_h1'); k.cond_begin(); h_store(k, True); k.cond_end(); k.label('L_h1')
else: h_store(k, False)
sS, sQ, sY = vD2, vD2 + 1, vD2 + 2
k.v_mov_b32(v(sS), 0); k.v_mov_b32(v(sQ), 0)
for i in range(10):
    k.v_dot2_f32_bf16(v(sS), v(vH + i), s(sONES), v(sS))
    k.v_dot2_f32_bf16(v(sQ), v(vH + i), v(vH + i), v(sQ))
k.v_permlane32_swap_b32(v(sS), v(sQ))
k.v_add_f32(v(sS), v(sS), v(sQ))
k.v_mov_b32(v(sY), v(sS))
k.v_permlane16_swap_b32(v(sS), v(sY))
k.v_add_f32(v(sS), v(sS), v(sY))
if OPT['h0'] == 2:
    k.s_cmp_eq_u32(s(sW), 0); k.s_cbranch_scc1('L_h2'); h_store(k, False); k.label('L_h2'); k.s_nop(1)
k.buffer_store_dword(v(sS), v(vHA - 1), srd(S_WS), s(sT + 3), mods='offen sc1', tag='hst')
stamp(k, 'hst')

vL8 = 111
vCS = 28
vD3 = 40
vB3 = 64
vS3 = 88
vG3 = 92
vFL = 104
vRA = 108
vW4 = 112
sW4, sW4t, sW4l, sHs, sHl, sHt, sHS, sHH, sHHt, sHL, sHLt, sFH, sFHt = sB, sV, sXO, sXO + 1, sXO + 2, sV + 1, sV + 2, sD, sV + 4, sXO + 5, sV + 5, sXO + 4, sV + 6
k.s_mul_i32(s(sW4), s(sM), 245760); k.s_mul_i32(s(sT + 1), s(sW), 61440); k.s_add_u32(s(sW4), s(sW4), s(sT + 1))
k.s_add_u32(s(sW4), s(sW4), WS_W4)
k.s_mul_i32(s(sW4l), s(sW), 24576)
def issue_w4(st, lo, hi):
    for i in range(lo, hi):
        if i % 4 == 0 or i == lo: st.s_add_u32(s(sW4t), s(sW4), (i & ~3) * 1024)
        if i < 36:
            st.buffer_load_dwordx4(v(vW4 + 4 * i, 4), v(vL16), srd(S_WS), s(sW4t), mods='offen offset:%d sc1' % ((i & 3) * 1024))
        else:
            if i % 4 == 0 or i == lo: st.s_add_u32('m0', s(sW4l), L_W4 + ((i - 36) & ~3) * 1024)
            st.buffer_load_dwordx4(v(vL16), srd(S_WS), s(sW4t), mods='offen offset:%d sc1 lds' % ((i & 3) * 1024), tag='W4')
W3C = min(60, W3B + OPT['w3c']); W3E = 60 - OPT['w3t']
k.s_mul_i32(s(sT + 2), s(sC), 12288); k.s_mul_i32(s(sT + 3), s(sW), 3072); k.s_add_u32(s(sT + 2), s(sT + 2), s(sT + 3))
k.s_add_u32(s(sT + 2), s(sT + 2), WS_CS3)
issue_w3(k, W3ORD[W3B:W3C])
for i in range(4): k.v_mov_b32(v(vB3 + i), 0x3f803f80)
if OPT['h0']: k.waitvm('hdat'); post(k, F_H0)
k.waitvm('hst'); k.waitlds(); k.s_barrier(); post(k, F_H)
W4A = OPT['w4a']
stamp(k, 'hpost')
for t in range(3): k.buffer_load_dwordx4(v(vD3 + 4 * t, 4), v(vL16), srd(S_WS), s(sT + 2), mods='offen offset:%d sc1' % (t * 1024))
W3D = max(W3C, W3E - OPT['w3c2']) if OPT['asy'] else W3E
issue_w3(k, W3ORD[W3C:W3D])
for t in range(3): mfma(k, v(vCS + 4 * t, 4), v(vD3 + 4 * t, 4), v(vB3, 4), True)
stamp(k, 'colsum')
if OPT['stop'] == 4: finish(k)
k.s_mul_i32(s(sHl), s(sW), 5120)
k.s_mul_i32(s(sHs), s(sR), 163840); k.s_add_u32(s(sHs), s(sHs), s(sHl))
k.s_add_u32(s(sHs), s(sHs), WS_H)
k.v_lshlrev_b32(v(t0), 9, v(vG))
k.v_lshl_add_u32(v(t0), v(vJ), 3, v(t0))
k.s_lshl_b32(s(sHS), s(sR), 13); k.s_lshl_b32(s(sT + 1), s(sW), 11); k.s_add_u32(s(sHS), s(sHS), s(sT + 1))
k.s_add_u32(s(sHS), s(sHS), WS_HST)
k.v_add_u32(v(vRA), L_RING, v(vL16))
k.v_lshrrev_b32(v(vL8), 1, v(vL16))
k.v_lshlrev_b32(v(vRA + 1), 4, v(vJ)); k.v_add_u32(v(vRA + 1), L_ST, v(vRA + 1))
k.v_mov_b32(v(t2), OOB)
k.v_cmp_gt_u32('vcc', 3, v(vG))
k.v_cndmask_b32(v(vRA + 2), v(t2), v(vL16), 'vcc')
k.s_mul_i32(s(sHH), s(sR), 8 * 49152); k.s_mul_i32(s(sT), s(sC), 3072); k.s_add_u32(s(sHH), s(sHH), s(sT))
k.s_mul_i32(s(sT), s(sW), 768); k.s_add_u32(s(sHH), s(sHH), s(sT)); k.s_add_u32(s(sHH), s(sHH), WS_HH)
k.s_lshl_b32(s(sT), s(sR), 3); k.s_add_u32(s(sT), s(sT), s(sP)); k.s_mul_i32(s(sHL), s(sT), 49152)
k.s_mul_i32(s(sT), s(sW), 12288); k.s_add_u32(s(sHL), s(sHL), s(sT)); k.s_add_u32(s(sHL), s(sHL), WS_HH)
k.s_lshl_b32(s(sFH), s(sR), 11); k.s_add_u32(s(sFH), s(sFH), WS_FLAGS + F_HH * 32768)
if OPT['asy']:
    k.s_lshl_b32(s(sV + 6), s(sR), 11); k.s_add_u32(s(sV + 6), s(sV + 6), WS_FLAGS + (F_H0 if OPT['h0'] else F_H) * 32768)
    flag_issue(k, vG3, vFR, sV + 6)
    issue_w3(k, W3ORD[W3D:W3E])
    issue_w4(k, 0, W4A)
    flag_check(k, vG3, vFR, sV + 6)
else:
    issue_w4(k, 0, W4A)
    poll_row(k, F_H, vG3)
    k.s_barrier()
if OPT.get('slp'): k.s_sleep(OPT['slp'])
stamp(k, 'hflag')
def issue_h(st, T):
    for i in range(5):
        if i % 4 == 0: st.s_add_u32('m0', s(sHl), L_RING + (T % 3) * 20480 + (i & 4) * 1024)
        if i % 4 == 0: st.s_add_u32(s(sHt), s(sHs), T * 20480 + i * 1024)
        st.buffer_load_dwordx4(v(vL16), srd(S_WS), s(sHt), mods='offen offset:%d sc1 lds' % ((i & 3) * 1024), tag='h%d' % T)
issue_h(k, 0)
issue_w3(k, W3ORD[W3E:W3E + 4])
issue_h(k, 1)
def stats3_load(st):
    for i in range(4): st.buffer_load_dwordx2(v(vG3 + 2 * i, 2), v(t0), srd(S_WS), s(sHS), mods='offen offset:%d sc1' % (128 * i))
if OPT['h0']:
    k.s_add_u32(s(sV + 6), s(sV + 6), (F_H - F_H0) * 32768); flag_issue(k, vFL, vFR, sV + 6)
else: stats3_load(k)
def stats3(st):
    st.v_add_f32(v(vG3), v(vG3), v(vG3 + 2)); st.v_add_f32(v(vG3 + 1), v(vG3 + 1), v(vG3 + 3))
    st.v_add_f32(v(vG3 + 4), v(vG3 + 4), v(vG3 + 6)); st.v_add_f32(v(vG3 + 5), v(vG3 + 5), v(vG3 + 7))
    st.v_add_f32(v(vG3), v(vG3), v(vG3 + 4)); st.v_add_f32(v(vG3 + 1), v(vG3 + 1), v(vG3 + 5))
    st.v_mov_b32(v(vG3 + 2), v(vG3)); st.v_mov_b32(v(vG3 + 3), v(vG3 + 1))
    st.v_lshrrev_b32(v(t0), 1, v(vG)); st.v_lshlrev_b32(v(t0), 8, v(t0))
    for i in range(2): st.v_permlane16_swap_b32(v(vG3 + i), v(vG3 + 2 + i))
    for i in range(2): st.v_add_f32(v(vG3 + i), v(vG3 + i), v(vG3 + 2 + i))
    st.v_mul_f32(v(vG3), s(sINV640), v(vG3))
    st.v_mul_f32(v(vG3 + 1), s(sINV640), v(vG3 + 1))
    st.v_fma_f32(v(vG3 + 1), '-' + v(vG3), v(vG3), v(vG3 + 1))
    st.v_max_f32(v(vG3 + 1), 0, v(vG3 + 1))
    st.v_add_f32(v(vG3 + 7), s(sEPS), v(vG3 + 1))
    st.v_sub_f32(v(vG3 + 4), 0, v(vG3))
    st.v_rsq_f32(v(vG3 + 2), v(vG3 + 7))
    st.v_lshl_add_u32(v(t0), v(vJ), 4, v(t0))
    st.v_mul_f32(v(vG3 + 5), s(sK1), v(vG3 + 2))
    st.v_mul_f32(v(vG3 + 3), v(vG3 + 2), v(vG3 + 2))
    st.v_mul_f32(v(vG3 + 6), s(sK3), v(vG3 + 2))
    st.v_mul_f32(v(vG3 + 6), v(vG3 + 6), v(vG3 + 3))
    st.s_lshl_b32(s(sT), s(sW), 9); st.s_add_u32(s(sT), s(sT), L_ST)
    st.v_add_u32(v(t0), s(sT), v(t0))
    st.ds_write_b128(v(t0), v(vG3 + 4, 4))
def epi3(st, T):
    D = vD3 + 12 * (T & 1)
    nm, c1, c3, vr = v(vS3), v(vS3 + 1), v(vS3 + 2), v(vS3 + 3)
    for t in range(3):
        for e in range(2):
            g_, u_ = D + 4 * t + e, D + 4 * t + 2 + e
            x = vG3 + 4 + e
            st.v_fmac_f32(v(g_), nm, v(vCS + 4 * t + e))
            st.v_fmac_f32(v(u_), nm, v(vCS + 4 * t + 2 + e))
            st.v_mul_f32(v(x), v(g_), v(g_))
            st.v_mul_f32(v(u_), v(g_), v(u_))
            st.v_fma_f32(v(x), v(x), c3, c1)
            st.v_mul_f32(v(x), v(x), v(g_))
            st.v_exp_f32(v(x), v(x))
        for e in range(2):
            x = vG3 + 4 + e
            st.v_fma_f32(v(x), v(x), vr, vr)
            st.v_rcp_f32(v(x), v(x))
        for e in range(2):
            u_ = D + 4 * t + 2 + e
            st.v_mul_f32(v(u_), v(u_), v(vG3 + 4 + e))
        st.v_cvt_pk_bf16_f32(v(vG3 + t), v(D + 4 * t + 2), v(D + 4 * t + 3))
        st.v_mov_b32(v(vG3 + 6 + t), v(vG3 + t))
    ta, tb, tc = vG3 + 6, vG3 + 7, vG3 + 8
    st.v_permlane16_swap_b32(v(ta), v(tb))
    st.v_permlane16_swap_b32(v(tc), v(vG3 + 3))
    st.s_add_u32(s(sHHt), s(sHH), T * 49152)
    if OPT['tagD'] and T >= 6: st.v_min_u32(v(vG3), -2, v(vG3)); st.v_min_u32(v(vG3 + 2), -2, v(vG3 + 2))
    st.v_permlane32_swap_b32(v(tb), v(vG3 + 3))
    st.buffer_store_dwordx4(v(vG3, 4), v(vRA + 2), srd(S_WS), s(sHHt), mods='offen sc1', tag='hh%d' % T)
def hhbuf(i, q): return a(80 * (i % 3) + 4 * q, 4)
def issue_hh(st, i, lo=0, hi=12):
    for q in range(lo, hi):
        if q % 4 == 0 or q == lo: st.s_add_u32(s(sHLt), s(sHL), i * 2 * 49152 + (q & ~3) * 1024)
        st.buffer_load_dwordx4(hhbuf(i, q), v(vL16), srd(S_WS), s(sHLt), mods='offen offset:%d sc1' % ((q & 3) * 1024))
def hflag_issue(st, n):
    st.s_add_u32(s(sFHt), s(sFH), n * 32768); flag_issue(st, vFL + 2 * (n & 1), vFR, sFHt)
def hflag_check(st, n):
    st.s_add_u32(s(sFHt), s(sFH), n * 32768); flag_check(st, vFL + 2 * (n & 1), vFR, sFHt)

W4L = OPT['w4l']
rem = W4L - W4A
w4sched = [W4A, W4A + OPT['w40']] + [W4A + OPT['w40'] + ((rem - OPT['w40']) * i) // 6 for i in range(1, 7)] + [W4L]
NB = 6
def b3read(st, T, ks):
    n = T * 20 + ks
    st.ds_read_b128(v(vB3 + 4 * (n % NB), 4), v(vRA), mods='offset:%d' % ((T % 3) * 20480 + ks * 1024), tag='b%d' % n)
k.waitvm('h0')
k.s_barrier()
for ks in range(4): b3read(k, 0, ks)
if OPT['h0']: flag_check(k, vFL, vFR, sV + 6); stats3_load(k)
for T in range(8):
    stamp(k, 'g3t%d' % T)
    m_ = Stream()
    if T > 0: m_.ds_read_b128(v(vS3, 4), v(vRA + 1), mods='offset:%d' % ((T - 1) * 256))
    for ks in range(20):
        n = T * 20 + ks
        if ks == 14 and T < 7:
            m_.waitvm('h%d' % (T + 1))
            if T == 5: m_.waitvm('hh3')
            if T == 0: m_.waitlds()
            m_.s_barrier()
            if T == 5: post(m_, F_HH)
        for t in range(3):
            mfma(m_, v(vD3 + 12 * (T & 1) + 4 * t, 4), a((t * 20 + ks) * 4, 4), v(vB3 + 4 * (n % NB), 4), ks == 0)
            if t == 0 and n + 4 < 160: b3read(m_, (n + 4) // 20, (n + 4) % 20)
            if t == 2 and ks % 2 == 1 and n + 2 < 160: m_.waitlds('b%d' % (n + 2))
        if ks == 8 and T == 7:
            m_.waitvm('hh5'); m_.s_barrier(); post(m_, F_HH + 1)
    fh = Stream()
    if T <= 5: issue_h(fh, T + 2)
    fv = Stream()
    if T == 0: issue_w3(fv, W3ORD[W3E + 4:60])
    if not OPT.get('now4'): issue_w4(fv, w4sched[T], w4sched[T + 1])
    fe = Stream()
    if T > 0 and OPT.get('noe'):
        fe.s_add_u32(s(sHHt), s(sHH), (T - 1) * 49152); fe.buffer_store_dwordx4(v(vG3, 4), v(vRA + 2), srd(S_WS), s(sHHt), mods='offen sc1', tag='hh%d' % (T - 1))
    elif T > 0: epi3(fe, T - 1)
    else: stats3(fe)
    fills = [(fv, 0, 40, 'vmem'), (fh, 43, 60, 'vmem'), (fe, 2 if T else (24 if OPT['h0'] else 12), 56 if T else 41)]
    if T == 7:
        f1 = Stream(); hflag_issue(f1, 0); fills.append((f1, 0, 1, 'vmem'))
        f2 = Stream(); hflag_check(f2, 0); issue_hh(f2, 0, 0, 9); fills.append((f2, 28, 60, 'vmem'))
    m_ = pack(m_, fills); print('g3 tile', T, 'est', m_.est)
    k.add(m_)
stamp(k, 'g3end')
def w4a(i): return a(80 * ((i - 36) // 8) + 48 + 4 * ((i - 36) % 8), 4)
k.ds_read_b128(v(vS3, 4), v(vRA + 1), mods='offset:%d' % (7 * 256))
k.v_add_u32(v(t0), s(sW4l), v(vL16))
k.waitvm('W4')
if OPT['stop'] == 5:
    epi3(k, 7); k.waitvm('hh7'); k.waitlds(); k.s_barrier(); post(k, F_HH + 2); finish(k)

vD4 = [64, 40]
def w4frag(i): return v(vW4 + 4 * i, 4) if i < 36 else w4a(i)
vRW = 84; vRR = 85; vOW = 86; vOR = 87; vOS = 88
QS = W4L // 5
def seg4(st, i, lo, hi):
    for q in range(lo, hi):
        for t in range(5): mfma(st, v(vD4[i & 1] + 4 * t, 4), w4frag(q * 5 + t), hhbuf(i, q), q == 0)
def red_write(st, i):
    for t in range(10): st.ds_write_b64(v(vRW), v(vD4[i & 1] + 2 * t, 2), mods='offset:%d' % (L_RED + i * 20480 + t * 512))
def issue_w4r(st, lo, hi):
    for i in range(lo, hi):
        if i % 4 == 0 or i == lo: st.s_add_u32(s(sW4t), s(sW4), (i & ~3) * 1024)
        st.buffer_load_dwordx4(w4a(i), v(vL16), srd(S_WS), s(sW4t), mods='offen offset:%d sc1' % ((i & 3) * 1024))
m_ = Stream(); seg4(m_, 0, 0, QS); seg4(m_, 1, 0, QS); seg4(m_, 0, QS, 12); seg4(m_, 1, QS, 12)
fe = Stream(); epi3(fe, 7)
fw = Stream()
for n in range(36, W4L): fw.ds_read_b128(w4a(n), v(t0), mods='offset:%d' % (L_W4 + (n - 36) * 1024))
fw.s_mul_i32(s(sT + 2), s(sW), 5120)
fw.v_add_u32(v(vRW), s(sT + 2), v(vL8))
fw.s_mul_i32(s(sT + 2), s(sW), 20480)
fw.v_add_u32(v(vRR), s(sT + 2), v(vL8))
fv = Stream()
if QS <= 9:
    issue_hh(fv, 1, 0, QS); issue_w4r(fv, W4L, W4L + 5); hflag_issue(fv, 1); issue_hh(fv, 0, 9, 12); issue_w4r(fv, W4L + 5, 60); issue_hh(fv, 1, QS, 12)
else:
    issue_hh(fv, 0, 9, 12); issue_hh(fv, 1, 0, 6); hflag_issue(fv, 1); issue_hh(fv, 1, 6, QS); issue_w4r(fv, W4L, 60); issue_hh(fv, 1, QS, 12)
fv2 = Stream(); hflag_check(fv2, 1); issue_hh(fv2, 2, 0, OPT['h2a'])
fp = Stream()
if OPT['tagD']: fp.waitlds(); fp.s_barrier()
else: fp.waitvm('hh7'); fp.waitlds(); fp.s_barrier(); post(fp, F_HH + 2)
fr0 = Stream(); red_write(fr0, 0)
e1 = OPT['v4end']
m_ = pack(m_, [(fe, 0, OPT['e7end']), (fw, 8, 34 + (W4L - 45) // 2), (fv, 0, e1, 'vmem'), (fp, OPT['p4post'], OPT['p4post'] + 1, 'vmem'), (fv2, e1, 120, 'vmem'),
               (fr0, 120 - 5 * (12 - QS) + 2 if QS < 12 else 64, 120 if QS < 12 else 110, 'vmem1')])
print('g4 tiles 0,1 est', m_.est)
stamp(k, 'g4t0'); k.add(m_)
if OPT['fin']:
    L_HS = L_RING; L_OI = L_RING + 10240
    vFR_, vFH, vFW, vFW2, vFS, vFO, vFD = 85, 86, 87, 88, 89, 90, 28
    sOB = sXO + 1
    fa = Stream()
    fa.s_mul_i32(s(sT + 2), s(sW), 2560); fa.s_add_u32(s(sT + 2), s(sT + 2), L_HS)
    fa.v_lshrrev_b32(v(t0), 1, v(vL8)); fa.v_add_u32(v(t1), s(sT + 2), v(t0))
    for q in range(10): fa.ds_write_b32(v(t1), v(vH + q), mods='offset:%d' % (q * 256))
    fa.s_lshl_b32(s(sT + 2), s(sW), 9)
    fa.v_add_u32(v(vFR_), s(sT + 2), v(vL8))
    fa.s_lshl_b32(s(sT + 2), s(sW), 8); fa.s_add_u32(s(sT + 2), s(sT + 2), L_HS)
    fa.v_add_u32(v(vFH), s(sT + 2), v(t0))
    fa.s_lshl_b32(s(sT + 2), s(sW), 2); fa.s_add_u32(s(sT + 2), s(sT + 2), L_OI)
    fa.v_mul_u32_u24(v(vFW), 160, v(vJ)); fa.v_mul_u32_u24(v(t0), 40, v(vG)); fa.v_add3_u32(v(vFW), v(vFW), v(t0), s(sT + 2))
    fa.s_cmp_lt_u32(s(sW), 2); fa.s_cselect_b32(s(sT + 2), 0, 16384)
    fa.v_add_u32(v(vFW2), s(sT + 2), v(vFW))
    fa.s_lshl_b32(s(sT + 2), s(sW), 6)
    fa.v_add_u32(v(t0), s(sT + 2), v(vLANE)); div_small(fa, t1, t0, 10)
    fa.v_lshlrev_b32(v(vFS), 4, v(t0)); fa.v_add_u32(v(vFS), L_OI, v(vFS))
    fa.v_mul_u32_u24(v(t2), 10, v(t1)); fa.v_sub_u32(v(t2), v(t0), v(t2))
    fa.v_mul_u32_u24(v(vFO), 1280, v(t1)); fa.v_lshl_add_u32(v(vFO), v(t2), 4, v(vFO))
    fa.v_mov_b32(v(t1), OOB); fa.s_movk_i32(s(sT + 2), 160)
    fa.v_cmp_gt_u32(s(sT + 4, 2), s(sT + 2), v(t0))
    fa.s_mul_i32(s(sT + 2), s(sW), 2 * 16 * 1280); fa.s_sub_u32(s(sOB), s(sXR), s(sT + 2))
    fa.v_cndmask_b32(v(vFO), v(t1), v(vFO), s(sT + 4, 2))
    FD = list(range(28, 40)) + list(range(92, 104))
    def fin_tile(st, i, pk=False):
        hi = i * 20480 > 40000
        for q in range(3):
            for sl in range(4):
                off = L_RED + i * 20480 + sl * 5120 + q * 2048
                r = FD[8 * q + 2 * sl]
                if off > 65535: st.ds_read_b64(v(r, 2), v(vFR2), mods='offset:%d' % (off - 61440))
                else: st.ds_read_b64(v(r, 2), v(vFR_), mods='offset:%d' % off)
            st.ds_read_b32(v(60 + q), v(vFH), mods='offset:%d' % (i * 2560 + q * 1024))
        for q in range(3):
            r = FD[8 * q:8 * q + 8:2]
            for e in range(2): st.v_add_f32(v(r[0] + e), v(r[0] + e), v(r[1] + e))
            for e in range(2): st.v_add_f32(v(r[2] + e), v(r[2] + e), v(r[3] + e))
            st.v_lshlrev_b32(v(r[1]), 16, v(60 + q)); st.v_and_b32(v(r[1] + 1), 0xffff0000, v(60 + q))
            for e in range(2): st.v_add_f32(v(r[0] + e), v(r[0] + e), v(r[2] + e))
            for e in range(2): st.v_add_f32(v(r[0] + e), v(r[0] + e), v(r[1] + e))
            st.v_cvt_pk_bf16_f32(v(r[0]), v(r[0]), v(r[0] + 1))
            st.ds_write_b32(v(vFW if q < 2 else vFW2), v(r[0]), mods='offset:%d' % (i * 2560 + q * 16))
    vFR2 = 91
    def out_tile(st, i, d):
        st.ds_read_b128(v(d, 4), v(vFS), mods='offset:%d' % (i * 2560))
        st.s_add_u32(s(sT + 3), s(sOB), i * 2 * 16 * 1280)
        st.buffer_store_dwordx4(v(d, 4), v(vFO), srd(S_OUT), s(sT + 3), mods='offen sc1')
    def bar():
        x = Stream(); x.waitlds(); x.s_barrier(); return x
    m_ = Stream(); seg4(m_, 2, 0, 12)
    fv = Stream(); issue_hh(fv, 2, OPT['h2a'], 12); hflag_issue(fv, 2)
    fv2 = Stream(); hflag_check(fv2, 2); issue_hh(fv2, 3, 0, OPT['h3a'])
    fr1 = Stream(); red_write(fr1, 1)
    ff = Stream(); fin_tile(ff, 0)
    fa.v_add_u32(v(vFR2), 61440, v(vFR_))
    m_ = pack(m_, [(fv, 0, OPT['f2at'], 'vmem'), (fv2, OPT['f2ck'], 60, 'vmem'), (fr1, 3, 26, 'vmem1'), (fa, 0, 26), (bar(), 27, 28, 'vmem'), (ff, 28, 60)])
    print('g4 tile 2 est', m_.est)
    stamp(k, 'g4t2'); k.add(m_)
    m_ = Stream(); seg4(m_, 3, 0, 12)
    fv = Stream(); issue_hh(fv, 3, OPT['h3a'], 12)
    fr2 = Stream(); red_write(fr2, 2)
    ff = Stream(); fin_tile(ff, 1)
    fg = Stream(); fin_tile(fg, 2)
    fo = Stream(); out_tile(fo, 0, 108); out_tile(fo, 1, 108)
    m_ = pack(m_, [(fv, 0, 4 * (12 - OPT['h3a']), 'vmem'), (fr2, 3, 28, 'vmem1'), (ff, 0, 28), (bar(), 29, 30, 'vmem'), (fg, 30, 60), (fo, 32, 56, 'vmem')])
    print('g4 tile 3 est', m_.est)
    stamp(k, 'g4t3'); k.add(m_)
    k.v_add_u32(v(vRW), 3 * 20480, v(vRW))
    for t in range(10): k.ds_write_b64(v(vRW), v(vD4[1] + 2 * t, 2), mods='offset:%d' % (L_RED + t * 512))
    k.waitlds()
    k.s_barrier()
    stamp(k, 'g4end')
    f_ = Stream(); fin_tile(f_, 3)
    o_ = Stream(); out_tile(o_, 2, 108)
    k.add(weave(f_, [(o_, 14, 15, 'vmem')], anchor='any'))
    k.waitlds()
    k.s_barrier()
    out_tile(k, 3, 108)
    finish(k)
m_ = Stream(); seg4(m_, 2, 0, 12)
fv = Stream(); issue_hh(fv, 2, OPT['h2a'], 12)
fv2 = Stream()
vSN = 92; vMX4 = 97
if OPT['tagD']:
    k.v_mul_u32_u24(v(vSN + 4), 768, v(vJ)); k.v_mul_u32_u24(v(t0), 192, v(vG)); k.v_add_u32(v(vSN + 4), v(vSN + 4), v(t0))
    k.s_add_u32(s(sFHt), s(sHL), 6 * 49152)
    k.s_mov_b32(s(sRC), 64)
    sent_issue(fv, vSN, vSN + 4, sFHt); sent_check(fv2, vSN, vSN + 4, sFHt)
else:
    hflag_issue(fv, 2); hflag_check(fv2, 2)
issue_hh(fv2, 3, 0, OPT['h3a'])
fr1 = Stream(); red_write(fr1, 1)
fa = Stream()
fa.s_mul_i32(s(sT + 2), s(sW), 3072); fa.s_add_u32(s(sT + 2), s(sT + 2), L_RING)
fa.v_mul_u32_u24(v(vOW), 160, v(vJ)); fa.v_mul_u32_u24(v(t0), 40, v(vG)); fa.v_add3_u32(v(vOW), v(vOW), v(t0), s(sT + 2))
fa.v_add_u32(v(vOR), s(sT + 2), v(vL16))
for e in range(3):
    fa.v_add_u32(v(t0), 64 * e, v(vLANE)); div_small(fa, t1, t0, 10)
    fa.v_mul_u32_u24(v(t2), 10, v(t1)); fa.v_sub_u32(v(t2), v(t0), v(t2))
    fa.v_mul_u32_u24(v(vOS + e), 1280, v(t1)); fa.v_lshl_add_u32(v(vOS + e), v(t2), 4, v(vOS + e))
fa.v_mov_b32(v(t0), OOB)
fa.v_cmp_gt_u32(s(sT + 4, 2), 32, v(vLANE))
fa.v_cndmask_b32(v(vOS + 2), v(t0), v(vOS + 2), s(sT + 4, 2))
m_ = pack(m_, [(fv, 0, OPT['f2at'], 'vmem'), (fv2, OPT['f2ck'], 60, 'vmem'), (fr1, 4, 50, 'vmem1'), (fa, 0, None)])
stamp(k, 'g4t2'); k.add(m_)
m_ = Stream(); seg4(m_, 3, 0, 12)
fv = Stream(); issue_hh(fv, 3, OPT['h3a'], 12)
fr2 = Stream(); red_write(fr2, 2)
def hh_verify(st):
    for q in range(12):
        r0 = 80 * (3 % 3) + 4 * q
        st.v_accvgpr_read_b32(v(vSN), a(r0)); st.v_accvgpr_read_b32(v(vSN + 1), a(r0 + 2))
        if q == 0: st.v_max_u32(v(vMX4), v(vSN), v(vSN + 1))
        else: st.v_max3_u32(v(vMX4), v(vMX4), v(vSN), v(vSN + 1))
if OPT['tagD']:
    mk = Stream(); cnt = 0; hv = Stream(); hh_verify(hv)
    for x in m_.l:
        mk.l.append(x); cnt += 1
        if cnt % 5 in (1, 2, 3): mk.l.append(hv.l[3 * (cnt // 5) + cnt % 5 - 1])
    m_ = mk
m_ = pack(m_, [(fv, 0, 4 * (12 - OPT['h3a']), 'vmem'), (fr2, 4, 50, 'vmem1')])
stamp(k, 'g4t3'); k.add(m_)
if OPT['tagD']:
    redo_check(k, vMX4, 'L_r3')
    k.s_branch('L_r3d')
    k.label('L_r3')
    k.cond_begin()
    issue_hh(k, 3); k.waitvm(); seg4(k, 3, 0, 12); hh_verify(k); redo_check(k, vMX4, 'L_r3')
    k.s_nop(7)
    k.cond_end()
    k.label('L_r3d')
k.v_add_u32(v(vRW), 3 * 20480, v(vRW))
for t in range(10): k.ds_write_b64(v(vRW), v(vD4[1] + 2 * t, 2), mods='offset:%d' % (L_RED + t * 512))
k.waitlds()
k.s_barrier()
stamp(k, 'g4end')
vR2 = 112
for sl in range(4):
    for t in range(10): k.ds_read_b64(v(vR2 + 20 * sl + 2 * t, 2), v(vRR), mods='offset:%d' % (L_RED + sl * 5120 + t * 512))
for q in range(10):
    k.v_pk_add_f32(v(vR2 + 2 * q, 2), v(vR2 + 2 * q, 2), v(vR2 + 20 + 2 * q, 2))
for q in range(10):
    k.v_dot2_f32_bf16(v(vR2 + 2 * q), v(vH + q), s(sONE_LO), v(vR2 + 2 * q))
    k.v_dot2_f32_bf16(v(vR2 + 2 * q + 1), v(vH + q), s(sONE_HI), v(vR2 + 2 * q + 1))
for q in range(10):
    k.v_pk_add_f32(v(vR2 + 40 + 2 * q, 2), v(vR2 + 40 + 2 * q, 2), v(vR2 + 60 + 2 * q, 2))
for q in range(10):
    k.v_pk_add_f32(v(vR2 + 2 * q, 2), v(vR2 + 2 * q, 2), v(vR2 + 40 + 2 * q, 2))
for q in range(10): k.v_cvt_pk_bf16_f32(v(40 + q), v(vR2 + 2 * q), v(vR2 + 2 * q + 1))
if OPT['cst']:
    for q in range(5): k.ds_write_b64(v(vOW), v(40 + 2 * q, 2), mods='offset:%d' % (8 * q))
    for e in range(3): k.ds_read_b128(v(52 + 4 * e, 4), v(vOR), mods='offset:%d' % (1024 * e))
    for e in range(3): k.buffer_store_dwordx4(v(52 + 4 * e, 4), v(vOS + e), srd(S_OUT), s(sXR), mods='offen' + ['', ' sc1', ' nt', ' sc0 sc1', ' sc1 nt'][OPT['ost']])
else:
    k.buffer_store_dwordx4(v(40, 4), v(vXRO), srd(S_OUT), s(sXR), mods='offen')
    k.buffer_store_dwordx4(v(44, 4), v(vXRO), srd(S_OUT), s(sXR), mods='offen offset:16')
    k.buffer_store_dwordx2(v(48, 2), v(vXRO), srd(S_OUT), s(sXR), mods='offen offset:32')
finish(k)
```

```python
import sys, math, struct
from asmgen import *

OPT = dict(stop=99, stamps=0, cqx=0, spin=100000, rot=1, stl=0, tlb=0, x3e=1, fin=0, h0=0, g2e=88, ql=0, qlat=0, nt=3, ipf0=1, pe=0, w3u=0, tagD=0, h3a=8, tagB=0, fx3=1, qe=4, pat=30, ost=1, asy=1, w3a2=6, w3c2=6, map=0, ipf=3, w2e=1, x0e=1, w1ck=3, ckat=8, qpost=36, psl=14, w2at=70, qpost2=80, w2q=10, qpl=90, qpn=90, w2s=4, w2u=5, w2uat=40, w2o=3, w3o=3, w3a=6, w3b=11, w3c=4, w3t=12, w40=0, w4a=0, e7end=26, p4post=56, cst=1, w4l=60, v4end=74, h2a=10, f2at=8, f2ck=30)
for a_ in sys.argv[2:]:
    kk, vv = a_.split('='); OPT[kk] = int(vv)

def f32(x): return '0x%08x' % struct.unpack('<I', struct.pack('<f', x))[0]
LOG2E = 1.4426950408889634
OOB = 0x40000000

WS_FLAGS = 4096
F_PREP, F_KV, F_O, F_H, F_HH, F_W1, F_PREP2, F_H0 = 0, 1, 2, 3, 4, 7, 8, 2 + 7
WS_STAMP = 0x1700000
WS_PART = 0x80000
WS_O = 0x200000
WS_H = 0x500000
WS_HST = 0x780000
WS_HH = 0x800000
WS_W2 = 0x1000000
WS_W3 = 0x1100000
WS_W4 = 0x1500000
WS_W1K = 0x1800000
WS_W1Q = 0x1A00000
WS_CS = 0x1B00000
WS_CS3 = 0x1C00000
WS_XST = 0x1D00000
WS_DBG = 0x2000000
WS_SIZE = 0x4000000

L_XST = 0; L_W1S = 118784
L_PG = 40960; L_PU = 49152; L_P4 = 57344; L_P2 = 135168; L_PHI = 143360
L_KV = 0; L_Q = 102400; L_CSF = 153600 + 2048; L_FV = 65536
L_KVR = 102400; L_ZERO = 106624
L_XR = 114688
L_W2 = 0; L_RING = 102400; L_W4 = 0; L_ST = 98304; L_RED = 0

S_X, S_W1, S_WS, S_WG, S_WU, S_WD, S_WO, S_OUT, S_PHI = 28, 32, 36, 40, 44, 48, 52, 56, 60
sR, sC, sCQ, sW, sM, sP = 64, 65, 66, 67, 68, 69
sN = 70
sT = 72
sXO = 80
sA, sB, sCc, sD = 88, 89, 90, 91
sONE_LO, sONE_HI, sONES = 92, 93, 94
sCNT = 95
sTM = 96
sXR = 98
sE, sF = 99, 100
sK = 4
sCH = 12
sV = 17
def srd(b): return s(b, 4)

vTID, vL16, vG, vJ, vSTAMP, vPOST, vFR, vFC, vNON, vXRO = 0, 1, 2, 3, 4, 5, 6, 7, 8, 10
t0, t1, t2 = 11, 12, 13
vR4, vCC, vLANE = 14, 15, 16

k = Stream()
STAMPS = []
OPT_DBG = ['setup', 'xs0', 'xs4', 'kvgemm', 'kvst', 'qgemm', 'ost', 'oflag', 'hst', 'hflag', 'g3t1', 'g3end', 'g4t2', 'g4end', 'end']
def stamp(st, name):
    if not OPT['stamps']: return
    if OPT['stamps'] == 3 and name not in ('start', 'kvst', 'opost', 'hst', 'g3end', 'end'): return
    if OPT['stamps'] == 4 and name in ('pre', 'w1s', 'prepiss', 'w1flag', 'kv0', 'kv1', 'kv2', 'kv3', 'q_a', 'q_b', 'q_c', 'q_d', 'w1a', 'w1b', 'w1st', 'w1w', 'w1d', 'colsum', 'q_e', 'q_f', 'g4t0'): return
    i = len(STAMPS); STAMPS.append(name)
    if OPT['stamps'] == 4:
        assert i < 32
        st.s_memtime(s(sTM, 2)); st.s_waitcnt('lgkmcnt(0)'); st.v_writelane_b32(v(vSTAMP), s(sTM), 32 + i)
    st.comment('stamp %d %s' % (i, name))
    (st.s_memrealtime if OPT['stamps'] >= 2 else st.s_memtime)(s(sTM, 2))
    st.s_waitcnt('lgkmcnt(0)')
    st.v_writelane_b32(v(vSTAMP), s(sTM), i)

def post(st, kind):
    st.s_lshl_b32(s(sT), s(sR), 11)
    st.s_lshl_b32(s(sT + 1), s(sC), 7)
    st.s_add_u32(s(sT), s(sT), s(sT + 1))
    st.s_add_u32(s(sT), s(sT), WS_FLAGS + kind * 32768)
    st.buffer_store_dwordx2(v(vNON, 2), v(vPOST), srd(S_WS), s(sT), mods='offen sc1')

npoll = [0]
def poll(st, voff, ssoff, tmp):
    n = npoll[0]; npoll[0] += 1
    t = '''s_cmp_lg_u32 s{w}, 0
    s_cbranch_scc1 L_pd{n}
    s_mov_b32 s{c}, {lim}
L_pl{n}:
    buffer_load_dwordx2 v[{t}:{t1}], v{vo}, s[{ws}:{ws3}], s{so} offen sc1
    s_waitcnt vmcnt(0)
    v_cmp_ne_u64 vcc, s[{n0}:{n1}], v[{t}:{t1}]
    s_cbranch_vccz L_pd{n}
    s_sub_u32 s{c}, s{c}, 1
    s_cbranch_scc0 L_pl{n}
L_pd{n}:'''.format(w=sW, n=n, c=sCNT, lim=OPT['spin'], t=tmp, t1=tmp + 1, vo=voff, ws=S_WS, ws3=S_WS + 3, so=ssoff, n0=sN, n1=sN + 1)
    st.raw(t, uses=[v(voff)], defs=[v(tmp, 2)])
def poll_row(st, kind, tmp):
    st.s_lshl_b32(s(sT), s(sR), 11); st.s_add_u32(s(sT), s(sT), WS_FLAGS + kind * 32768)
    poll(st, vFR, sT, tmp)

def allreduce_groups(st, x, t, op):
    st.v_mov_b32(v(t), v(x))
    st.v_permlane32_swap_b32(v(x), v(t))
    getattr(st, op)(v(x), v(x), v(t))
    st.v_mov_b32(v(t), v(x))
    st.v_permlane16_swap_b32(v(x), v(t))
    getattr(st, op)(v(x), v(x), v(t))

MF = 'v_mfma_f32_16x16x32_bf16'
def mfma(st, d, A, B, first=False):
    getattr(st, MF)(d, A, B, '0' if first else d)

def wg_slot(st, mul, base):
    st.s_lshl_b32(s(sT), s(sR), 4); st.s_add_u32(s(sT), s(sT), s(sC))
    st.s_lshl_b32(s(sT), s(sT), 2); st.s_add_u32(s(sT), s(sT), s(sW))
    st.s_mul_i32(s(sT), s(sT), mul)
    st.s_add_u32(s(sT), s(sT), base)

def dump(st, regs):
    st.waitvm(); st.waitlds()
    wg_slot(st, 32768, WS_DBG)
    for q, r in enumerate(regs):
        st.buffer_store_dwordx4(r, v(vL16), srd(S_WS), s(sT), mods='offen')
        st.s_add_u32(s(sT), s(sT), 1024)

def finish(st):
    if OPT['stamps']:
        st.waitvm()
        stamp(st, 'end')
        wg_slot(st, 256, WS_STAMP)
        st.v_lshlrev_b32(v(t1), 2, v(vLANE))
        st.buffer_store_dword(v(vSTAMP), v(t1), srd(S_WS), s(sT), mods='offen')
    if OPT.get('dbg'):
        st.s_load_dwordx2(s(sT + 2, 2), s(0, 2), 72)
        st.s_memrealtime(s(sTM, 2))
        st.s_waitcnt('lgkmcnt(0)')
        st.s_sub_u32(s(sTM), s(sTM), s(101))
        st.v_writelane_b32(v(vSTAMP), s(sTM), 63)
        st.v_readlane_b32(s(sT), v(vSTAMP), 0)
        st.s_nop(1)
        st.v_subrev_u32(v(t0), s(sT), v(vSTAMP))
        st.v_writelane_b32(v(t0), s(sTM), 0)
        sel = [0] + [STAMPS.index(n) for n in OPT_DBG]
        st.v_mov_b32(v(t1), OOB)
        for q, i in enumerate(sel): st.v_writelane_b32(v(t1), 4 * q, i)
        st.s_lshl_b32(s(sT), s(sR), 4); st.s_add_u32(s(sT), s(sT), s(sC)); st.s_lshl_b32(s(sT), s(sT), 2); st.s_add_u32(s(sT), s(sT), s(sW))
        st.s_mov_b32(s(S_PHI), s(sT + 2)); st.s_mov_b32(s(S_PHI + 1), s(sT + 3)); st.s_mov_b32(s(S_PHI + 2), 64); st.s_mov_b32(s(S_PHI + 3), 0x20000)
        st.s_cmp_lg_u32(s(sT), (5 * 16 + 3) * 4)
        st.s_cbranch_scc1('L_nodbg')
        st.buffer_store_dword(v(t0), v(t1), srd(S_PHI), 0, mods='offen')
        st.label('L_nodbg')
    st.s_or_b32(s(sT), s(sR), s(sC))
    st.s_cmp_lg_u32(s(sT), 0)
    st.s_cbranch_scc1('L_end')
    st.buffer_store_dwordx2(v(vNON, 2), v(vPOST), srd(S_WS), 0, mods='offen')
    st.label('L_end')
    st.s_endpgm()
    ins = finalize(st, True)
    hdr = open('sequential_preLN__linear_kernel_hedgehog__glu_gated_geglu__prompt.s.ref').read().split('\n')
    hdr = [l for l in hdr if l.startswith(';') and '@launch' not in l]
    txt = '\n'.join(hdr) + '\n' + HEADER.format(grid=256, lds=163840, k=KNAME) + render(ins) + FOOTER.format(k=KNAME, nv=512, ao=256)
    open(sys.argv[1], 'w').write(txt)
    open(sys.argv[1] + '.stamps', 'w').write('\n'.join(STAMPS))
    sys.exit(0)

def div_small(st, q, x, d):
    mul, sh = {10: (205, 11), 80: (205, 14), 5: (205, 10), 6: (171, 10), 12: (171, 11), 48: (171, 13), 3: (171, 9)}[d]
    st.v_mul_u32_u24(v(q), mul, v(x)); st.v_lshrrev_b32(v(q), sh, v(q))
for d_, lim in ((10, 512), (80, 320), (5, 256), (6, 192), (12, 512), (48, 192), (3, 8)):
    mul, sh = {10: (205, 11), 80: (205, 14), 5: (205, 10), 6: (171, 10), 12: (171, 11), 48: (171, 13), 3: (171, 9)}[d_]
    assert all((x * mul) >> sh == x // d_ for x in range(lim)), d_

vW1D = 18; vW1A = 21; vP3D = 26; vP4D = 28; vXW = 30; vXRd = 34; vKV2 = 38; vL16b = 17
vWP = 56; vWA = 58; vONE = 60; vAF = 64; vACC = 104; vGR = 164
vST = 180
vE = 184
vEA = 248
aPHI = 160; aCSQ = 240
sRHO = 3
def acc(X, col): return vACC + (X * 3 + col) * 4
def xf(ks, tt): return a(32 * (ks >> 2) + 16 * tt + 4 * (ks & 3), 4)

k.s_load_dwordx16(s(4, 16), s(0, 2), 0)
k.s_load_dwordx4(s(20, 4), s(0, 2), 64)
k.s_load_dwordx2(s(24, 2), s(0, 2), 80)
k.s_cmp_ge_u32(s(2), 256)
k.s_cbranch_scc1('L_end')
if OPT['stamps']: k.v_mov_b32(v(vSTAMP), 0)
if OPT['map'] == 0:
    k.s_bfe_u32(s(sT), s(2), 0x20001)
    k.s_lshl_b32(s(sT), s(sT), 2)
    k.s_bfe_u32(s(sT + 1), s(2), 0x20003)
    k.s_add_u32(s(sR), s(sT), s(sT + 1))
    k.s_and_b32(s(sT), s(2), 1)
    k.s_lshl_b32(s(sT), s(sT), 3)
    k.s_lshr_b32(s(sT + 2), s(2), 5)
    k.s_add_u32(s(sC), s(sT), s(sT + 2))
else:
    k.s_and_b32(s(sT), s(2), 7)
    k.s_lshl_b32(s(sT), s(sT), 1)
    k.s_bfe_u32(s(sT + 1), s(2), 0x10003)
    k.s_add_u32(s(sR), s(sT), s(sT + 1))
    k.s_lshr_b32(s(sC), s(2), 4)
    k.s_and_b32(s(sT + 2), s(sC), 7)
k.s_mov_b32(s(sCQ), s(sC))
k.s_lshr_b32(s(sM), s(sC), 1)
k.s_and_b32(s(sP), s(sC), 1)
if OPT['rot']:
    k.s_sub_u32(s(sT), s(sT + 2), 5)
    k.s_cselect_b32(s(sRHO), s(sT + 2), s(sT))
else:
    k.s_mov_b32(s(sRHO), 0)
def chunk(st, slot, dst, tmp):
    st.s_add_u32(s(dst), s(sRHO), slot)
    st.s_sub_u32(s(tmp), s(dst), 5)
    st.s_cselect_b32(s(dst), s(dst), s(tmp))
k.v_lshrrev_b32(v(t0), 6, v(vTID))
k.v_readfirstlane_b32(s(sW), v(t0))
k.v_and_b32(v(vLANE), 63, v(vTID))
k.v_lshlrev_b32(v(vL16), 4, v(vLANE))
k.v_lshrrev_b32(v(vG), 4, v(vLANE))
k.v_and_b32(v(vJ), 15, v(vLANE))
if OPT['ipf0']:
    if OPT['ipf']:
        k.raw('''s_getpc_b64 s[%d:%d]
L_pc:
        s_sub_u32 s%d, s%d, L_pc-%s
        s_subb_u32 s%d, s%d, 0''' % (sT + 4, sT + 5, sT + 4, sT + 4, KNAME, sT + 5, sT + 5))
        k.s_lshr_b32(s(sT + 6), s(2), 3)
        k.s_lshl_b32(s(sT + 6), s(sT + 6), 2); k.s_add_u32(s(sT + 6), s(sT + 6), s(sW)); k.s_mul_i32(s(sT + 6), s(sT + 6), OPT['ipf'] * 128)
        k.v_min_u32(v(t0), OPT['ipf'] - 1, v(vLANE))
        k.v_lshlrev_b32(v(t0), 7, v(t0))
        k.v_add_u32(v(t0), s(sT + 6), v(t0))
        k.v_min_u32(v(t0), 'L_end-%s' % KNAME, v(t0))
        k.v_mov_b32(v(vAF + 31), s(sT + 5))
        k.v_add_co_u32(v(vAF + 30), 'vcc', s(sT + 4), v(t0))
        k.v_addc_co_u32(v(vAF + 31), 'vcc', 0, v(vAF + 31), 'vcc')
        k.global_load_dword(v(vAF + 29), v(vAF + 30, 2), 'off')
k.s_mul_i32(s(sT), s(sW), 192)
k.s_movk_i32(s(sT + 1), 3840); k.s_movk_i32(s(sT + 4), 1200)
for e in range(3):
    k.v_add_u32(v(t0), s(sT), v(vLANE))
    if e: k.v_add_u32(v(t0), 64 * e, v(t0))
    k.v_mul_u32_u24(v(t1), 4370, v(t0)); k.v_lshrrev_b32(v(t1), 16, v(t1))
    k.v_mul_u32_u24(v(t2), 15, v(t1)); k.v_sub_u32(v(t0), v(t0), v(t2))
    k.v_lshlrev_b32(v(t2), 4, v(t0))
    k.v_mad_u32_u24(v(vW1D + e), v(t1), s(sT + 1), v(t2))
    k.v_mul_u32_u24(v(t0), 52, v(t0)); k.v_lshrrev_b32(v(t0), 8, v(t0))
    k.v_mad_u32_u24(v(vW1D + e), v(t0), s(sT + 4), v(vW1D + e))
    if e: k.v_subrev_u32(v(vW1D + e), 1024 * e, v(vW1D + e))
assert all((x * 4370) >> 16 == x // 15 for x in range(768)) and all((x * 52) >> 8 == x // 5 for x in range(15))
k.v_xor_b32(v(t0), v(vJ), v(vG))
k.v_lshlrev_b32(v(t0), 4, v(t0))
k.v_mul_u32_u24(v(t1), 1280, v(vG))
for n in range(4):
    k.v_xor_b32(v(vXW + n), 64 * n, v(t0))
    k.v_add_u32(v(vXW + n), v(vXW + n), v(t1))
    if n: k.v_add_u32(v(vXW + n), n * 4096, v(vXW + n))
k.s_lshl_b32(s(sT), s(sR), 7)
k.s_lshl_b32(s(sT + 1), s(sW), 5)
k.s_add_u32(s(sT), s(sT), s(sT + 1))
k.s_mul_i32(s(sXO), s(sT), 1280)
k.s_lshl_b32(s(sXO + 1), s(sW), 13)
k.s_mul_i32(s(sA), s(sR), 40 * 3840)
k.s_mul_i32(s(sT), s(sC), 80)
k.s_add_u32(s(sA), s(sA), s(sT))
k.s_mul_i32(s(sB), s(sW), 3072)
k.s_add_u32('m0', s(sB), L_W1S)
k.s_mul_i32(s(sT + 2), s(sC), 1600)
k.s_waitcnt('lgkmcnt(0)')
def mksrd(st, b, p, size):
    st.s_mov_b32(s(b), s(p)); st.s_mov_b32(s(b + 1), s(p + 1)); st.s_mov_b32(s(b + 2), size); st.s_mov_b32(s(b + 3), 0x20000)
mksrd(k, S_W1, 6, 2457600)
if OPT.get('dbg'):
    k.s_memrealtime(s(sTM, 2)); k.s_waitcnt('lgkmcnt(0)'); k.s_mov_b32(s(101), s(sTM))
stamp(k, 'start')
for e in range(3): k.buffer_load_dwordx4(v(vW1D + e), srd(S_W1), s(sA), mods='offen offset:%d%s lds' % (e * 1024, ' nt' if OPT['nt'] & 1 else ''), tag='W1S')
if not OPT['ipf0']:
    if OPT['ipf']:
        k.raw('''s_getpc_b64 s[%d:%d]
L_pc:
        s_sub_u32 s%d, s%d, L_pc-%s
        s_subb_u32 s%d, s%d, 0''' % (sT + 4, sT + 5, sT + 4, sT + 4, KNAME, sT + 5, sT + 5))
        k.s_lshr_b32(s(sT + 6), s(2), 3)
        k.s_lshl_b32(s(sT + 6), s(sT + 6), 2); k.s_add_u32(s(sT + 6), s(sT + 6), s(sW)); k.s_mul_i32(s(sT + 6), s(sT + 6), OPT['ipf'] * 128)
        k.v_min_u32(v(t0), OPT['ipf'] - 1, v(vLANE))
        k.v_lshlrev_b32(v(t0), 7, v(t0))
        k.v_add_u32(v(t0), s(sT + 6), v(t0))
        k.v_min_u32(v(t0), 'L_end-%s' % KNAME, v(t0))
        k.v_mov_b32(v(vAF + 31), s(sT + 5))
        k.v_add_co_u32(v(vAF + 30), 'vcc', s(sT + 4), v(t0))
        k.v_addc_co_u32(v(vAF + 31), 'vcc', 0, v(vAF + 31), 'vcc')
        k.global_load_dword(v(vAF + 29), v(vAF + 30, 2), 'off')
mksrd(k, S_X, 4, 2621440)
XSLOT = [0, 32768, 65536, 102400, 0]
KVPOS = [40960, 61440, 81920, 0, 20480]
def issue_x(st, sg, tts=(0, 1)):
    chunk(st, sg, sE, sF)
    st.s_lshl_b32(s(sE), s(sE), 8)
    st.s_add_u32(s(sE), s(sE), s(sXO))
    for tt in tts:
        if tt: st.s_add_u32(s(sE), s(sE), 16 * 1280)
        st.s_add_u32('m0', s(sXO + 1), L_XST + XSLOT[sg] + tt * 4096)
        for n in range(4):
            st.buffer_load_dwordx4(v(vXW + n), srd(S_X), s(sE), mods='offen offset:%d%s lds' % (n * 1024, ' nt' if (OPT['nt'] & 4 and sg == 0) else ''), tag='x%d' % sg)
k.s_load_dwordx2(s(sN, 2), s(24, 2), 0)
if OPT['stl']:
    k.s_lshl_b32(s(sT + 4), s(sW), 21)
    for i in range(4):
        if i: k.s_add_u32(s(sT + 4 + i), s(sT + 4), i << 23)
        k.s_load_dword(s(101), s(24, 2), s(sT + 4 + i), untracked=True)
    if OPT['stl'] > 1:
        for p in (10, 14, 16, 18, 20): k.s_load_dword(s(101), s(p, 2), 0, untracked=True)
mksrd(k, S_PHI, 8, 25600)
k.v_lshlrev_b32(v(vWA), 3, v(vTID))
k.v_cmp_gt_u32('vcc', 200, v(vTID))
k.v_mov_b32(v(t1), OOB)
k.v_cndmask_b32(v(vWA), v(t1), v(vWA), 'vcc')
k.buffer_load_dwordx2(v(vWP, 2), v(vWA), srd(S_PHI), s(sT + 2), mods='offen')
mksrd(k, S_WS, 24, WS_SIZE)
mksrd(k, S_WG, 14, 1966080); mksrd(k, S_WU, 16, 1966080); mksrd(k, S_WD, 18, 1966080); mksrd(k, S_WO, 10, 819200); mksrd(k, S_OUT, 20, 2621440)
for i in range(4): k.v_mov_b32(v(vAF + i), 0)
k.v_lshlrev_b32(v(t0), 4, v(vTID))
k.v_add_u32(v(t0), L_PHI, v(t0))
for i in range(2): k.ds_write_b128(v(t0), v(vAF, 4), mods='offset:%d' % (i * 4096))
k.v_cmp_gt_u32('vcc', 128, v(vTID))
k.s_and_saveexec_b64(s(sT, 2), 'vcc')
k.ds_write_b128(v(t0), v(vAF, 4), mods='offset:8192')
k.s_mov_b64('exec', s(sT, 2))
k.v_bfe_u32(v(vR4), v(vLANE), 2, 2)
k.v_and_b32(v(vCC), 3, v(vLANE))
k.s_mov_b32(s(sONE_LO), 0x00003f80); k.s_mov_b32(s(sONE_HI), 0x3f800000); k.s_mov_b32(s(sONES), 0x3f803f80)
oE, oO, sE_, sO_, mE, bE, bO, pE, pO = [sV + i for i in range(9)]
k.s_lshl_b32(s(sT), s(sW), 3)
k.s_lshr_b32(s(oE), 0x20C87850, s(sT)); k.s_and_b32(s(oE), s(oE), 0xff)
k.s_lshr_b32(s(oO), 0x2800A070, s(sT)); k.s_and_b32(s(oO), s(oO), 0xff)
k.s_lshr_b32(s(sE_), 0x28080808, s(sT)); k.s_and_b32(s(sE_), s(sE_), 0xff)
k.s_lshr_b32(s(sO_), 0x08080828, s(sT)); k.s_and_b32(s(sO_), s(sO_), 0xff)
k.s_lshr_b32(s(mE), 0x01030303, s(sT)); k.s_and_b32(s(mE), s(mE), 0xff)
k.s_mul_i32(s(sT + 1), s(sC), 102400); k.s_add_u32(s(sT + 1), s(sT + 1), WS_W1K)
k.s_mul_i32(s(sT + 2), s(sC), 61440); k.s_add_u32(s(sT + 2), s(sT + 2), WS_W1Q - 5120)
k.s_lshl_b32(s(sT + 3), s(sW), 11)
k.s_movk_i32(s(sT + 4), 3072)
k.s_cmp_lt_u32(s(sW), 3)
k.s_cselect_b32(s(bE), s(sT + 1), s(sT + 2)); k.s_cselect_b32(s(pE), 5120, s(sT + 4))
k.s_cmp_lt_u32(s(sW), 2)
k.s_cselect_b32(s(bO), s(sT + 1), s(sT + 2)); k.s_cselect_b32(s(pO), 5120, s(sT + 4))
k.s_add_u32(s(bE), s(bE), s(sT + 3)); k.s_add_u32(s(bO), s(bO), s(sT + 3)); k.s_add_u32(s(bO), s(bO), 1024)
y0, y1, y2 = vAF + 4, vAF + 5, vAF + 6
k.v_and_b32(v(y0), s(mE), v(vCC)); k.v_mul_u32_u24(v(y0), s(sE_), v(y0)); k.v_add_u32(v(y0), s(oE), v(y0))
k.v_mul_u32_u24(v(y1), s(sO_), v(vCC)); k.v_add_u32(v(y1), s(oO), v(y1))
k.v_lshl_add_u32(v(t0), v(vG), 3, v(vR4)); k.v_mul_u32_u24(v(t0), 240, v(t0)); k.v_add_u32(v(t0), L_W1S, v(t0))
k.v_add_u32(v(vW1A), v(t0), v(y0)); k.v_add_u32(v(vW1A + 1), v(t0), v(y1))
k.v_and_b32(v(t1), 1, v(vG))
k.v_cmp_eq_u32('vcc', 1, v(t1))
k.v_mul_u32_u24(v(t0), 240, v(vR4)); k.v_add_u32(v(t0), L_W1S + 32 * 240, v(t0))
k.v_cndmask_b32(v(y0), v(y0), v(y1), 'vcc')
k.v_add_u32(v(vW1A + 2), v(t0), v(y0))
vW1O = 40
k.s_mul_i32(s(sT), s(sR), 5)
k.v_add_u32(v(t0), s(sT), v(vG))
k.v_lshrrev_b32(v(t2), 2, v(t0)); k.v_and_b32(v(t0), 3, v(t0)); k.v_lshlrev_b32(v(t0), 8, v(t0)); k.v_lshl_add_u32(v(t0), v(vJ), 4, v(t0))
k.v_mad_u32_u24(v(vW1O), v(t2), s(pE), v(t0)); k.v_mad_u32_u24(v(vW1O + 1), v(t2), s(pO), v(t0))
k.s_add_u32(s(sT), s(sT), 4); k.s_lshr_b32(s(sT + 1), s(sT), 2); k.s_and_b32(s(sT), s(sT), 3); k.s_lshl_b32(s(sT), s(sT), 8)
k.s_mul_i32(s(sT + 2), s(sT + 1), s(pE)); k.s_add_u32(s(sT + 2), s(sT + 2), s(bE)); k.s_add_u32(s(sT + 2), s(sT + 2), s(sT))
k.s_mul_i32(s(sT + 3), s(sT + 1), s(pO)); k.s_add_u32(s(sT + 3), s(sT + 3), s(bO)); k.s_add_u32(s(sT + 3), s(sT + 3), s(sT))
k.v_mov_b32(v(t0), s(sT + 2)); k.v_mov_b32(v(t2), s(sT + 3))
k.v_cndmask_b32(v(t0), v(t0), v(t2), 'vcc')
k.v_lshl_add_u32(v(t0), v(vJ), 4, v(t0))
k.v_mov_b32(v(t2), OOB)
k.v_cmp_gt_u32('vcc', 2, v(vG))
k.v_cndmask_b32(v(vW1O + 2), v(t2), v(t0), 'vcc')
k.v_lshrrev_b32(v(t0), 1, v(vG)); k.v_lshlrev_b32(v(t0), 10, v(t0)); k.v_lshl_add_u32(v(t0), v(vJ), 4, v(t0))
k.v_cmp_eq_u32('vcc', 0, v(t1))
k.v_cndmask_b32(v(vW1O + 3), v(t2), v(t0), 'vcc')
k.s_lshl_b32(s(sD), s(sC), 13); k.s_lshl_b32(s(sT), s(sW), 11); k.s_add_u32(s(sD), s(sD), s(sT))
k.s_lshr_b32(s(sT), s(sR), 2); k.s_lshl_b32(s(sT), s(sT), 8); k.s_add_u32(s(sD), s(sD), s(sT))
k.s_and_b32(s(sT), s(sR), 3); k.s_lshl_b32(s(sT), s(sT), 2); k.s_add_u32(s(sD), s(sD), s(sT)); k.s_add_u32(s(sD), s(sD), WS_CS)
x0, x1 = vAF + 4, vAF + 5
div_small(k, t0, vTID, 5)
k.v_mul_u32_u24(v(t1), 5, v(t0)); k.v_sub_u32(v(t1), v(vTID), v(t1))
k.v_lshlrev_b32(v(vWA), 11, v(t1))
k.v_cmp_lt_u32('vcc', 19, v(t0))
k.v_cndmask_b32(v(t1), 0, 1, 'vcc')
k.v_mul_u32_u24(v(t2), 20, v(t1)); k.v_sub_u32(v(t0), v(t0), v(t2))
k.v_lshl_add_u32(v(vWA), v(t1), 6, v(vWA))
k.v_lshrrev_b32(v(x0), 2, v(t0)); k.v_lshlrev_b32(v(x0), 8, v(x0))
k.v_and_b32(v(x1), 3, v(t0)); k.v_lshl_add_u32(v(x0), v(x1), 1, v(x0))
k.v_mul_u32_u24(v(t2), 1032, v(t1)); k.v_add_u32(v(x0), v(x0), v(t2))
k.v_lshlrev_b32(v(x1), 1, v(x1)); k.v_lshl_add_u32(v(x1), v(t1), 8, v(x1)); k.v_add_u32(v(x1), 8, v(x1))
k.v_cmp_lt_u32('vcc', 15, v(t0))
k.v_cndmask_b32(v(x0), v(x0), v(x1), 'vcc')
k.v_add_u32(v(vWA), v(vWA), v(x0))
k.v_add_u32(v(vWA), L_PHI, v(vWA))

k.v_cmp_ne_u32('vcc', 0, v(vTID))
k.v_mov_b32(v(t1), OOB)
k.v_cndmask_b32(v(vPOST), 0, v(t1), 'vcc')
def wphi_scatter(st, d):
    st.v_cmp_gt_u32('vcc', 200, v(vTID))
    st.s_and_saveexec_b64(s(sT, 2), 'vcc')
    st.ds_write_b16(v(vWA), v(d))
    st.ds_write_b16_d16_hi(v(vWA), v(d), mods='offset:16')
    st.ds_write_b16(v(vWA), v(d + 1), mods='offset:32')
    st.ds_write_b16_d16_hi(v(vWA), v(d + 1), mods='offset:48')
    st.s_mov_b64('exec', s(sT, 2))
def wphi_read(st):
    st.v_add_u32(v(t0), L_PHI, v(vL16))
    st.v_xor_b32(v(t1), 128, v(t0))
    for p in range(2):
        for i in range(10):
            st.ds_read_b128(a(aPHI + (p * 10 + i) * 4, 4), v(t0 + p), mods='offset:%d' % (i * 1024))
def prep_offsets(st):
    for e in range(2):
        st.s_lshl_b32(s(sT), s(sW), 7)
        st.v_add_u32(v(t0), s(sT), v(vLANE))
        if e: st.v_add_u32(v(t0), 64, v(t0))
        div_small(st, t1, t0, 12)
        st.v_mul_u32_u24(v(t2), 12, v(t1)); st.v_sub_u32(v(t2), v(t0), v(t2))
        st.v_mul_u32_u24(v(vP3D + e), 3072, v(t1))
        st.v_lshl_add_u32(v(vP3D + e), v(t2), 4, v(vP3D + e))
        div_small(st, t1, t0, 10)
        st.v_mul_u32_u24(v(t2), 10, v(t1)); st.v_sub_u32(v(t2), v(t0), v(t2))
        st.v_mul_u32_u24(v(vP4D + e), 1280, v(t1))
        st.v_lshl_add_u32(v(vP4D + e), v(t2), 4, v(vP4D + e))
def issue_prep(st, i, es=(0, 1)):
    a0, a1, a2 = sE, sF, sCc
    st.s_lshl_b32(s(a2), s(sW), 11)
    if i < 2:
        st.s_mul_i32(s(a0), s(sR), 40 * 3072); st.s_mul_i32(s(a1), s(sC), 192)
    else:
        if i == 2: st.s_mul_i32(s(a0), s(sR), 40 * 1280)
        else: st.s_lshl_b32(s(a0), s(sR), 1); st.s_add_u32(s(a0), s(a0), s(sP)); st.s_mul_i32(s(a0), s(a0), 48 * 1280)
        st.s_mul_i32(s(a1), s(sM), 160)
    st.s_add_u32(s(a0), s(a0), s(a1))
    S_, L_, vo = [(S_WG, L_PG, vP3D), (S_WU, L_PU, vP3D), (S_WO, L_P2, vP4D), (S_WD, L_P4, vP4D)][i]
    for e in es:
        st.s_add_u32('m0', s(a2), L_ + e * 1024)
        st.buffer_load_dwordx4(v(vo + e), srd(S_), s(a0), mods='offen%s lds' % (' nt' if OPT['nt'] & 2 else ''), tag='prep%d' % i)
def gram(st, sg):
    for tt in range(2):
        for q in range(4):
            ks = 4 * sg + q
            mfma(st, v(vGR + 4 * tt, 4), xf(ks, tt), xf(ks, tt), ks == 0)
            mfma(st, v(vGR + 8 + 4 * tt, 4), v(vONE, 4), xf(ks, tt), ks == 0)
def ln_stats(st):
    for tt in range(2):
        q_, m_, u_ = vE, vE + 1, vE + 2
        G = vGR + 4 * tt
        st.v_cmp_eq_u32('vcc', 1, v(vCC)); st.v_mul_f32(v(m_), s(sINV640), v(vGR + 8 + 4 * tt)); st.v_cndmask_b32(v(q_), v(G), v(G + 1), 'vcc')
        st.v_cmp_eq_u32('vcc', 2, v(vCC)); st.v_sub_f32(v(vST + 2 * tt), 0, v(m_)); st.v_cndmask_b32(v(q_), v(q_), v(G + 2), 'vcc')
        st.v_cmp_eq_u32('vcc', 3, v(vCC)); st.v_cndmask_b32(v(q_), v(q_), v(G + 3), 'vcc')
        st.v_cmp_eq_u32('vcc', v(vR4), v(vG)); st.v_cndmask_b32(v(q_), 0, v(q_), 'vcc')
        allreduce_groups(st, q_, u_, 'v_add_f32')
        st.v_mul_f32(v(q_), s(sINV640), v(q_))
        st.v_fma_f32(v(q_), '-' + v(m_), v(m_), v(q_))
        st.v_max_f32(v(q_), 0, v(q_))
        st.v_add_f32(v(q_), s(sEPS), v(q_))
        st.v_rsq_f32(v(vST + 2 * tt + 1), v(q_))

vVA, vK1A, vFA, vKA, vKB, vPS = vEA, vEA + 1, vEA + 2, vEA + 3, vEA + 4, vEA + 6
def epi_addrs(st):
    b0, b1, b2, b3, b4, b5 = sT + 2, sT + 3, sT + 4, sT + 5, sT + 6, sT + 7
    st.s_mul_i32(s(b0), s(sW), 9216)
    st.s_add_u32(s(b0), s(b0), L_FV)
    st.v_mul_u32_u24(v(t0), 288, v(vJ))
    st.v_add_u32(v(t0), s(b0), v(t0))
    st.v_lshl_add_u32(v(vVA), v(vG), 3, v(t0))
    st.v_and_b32(v(t1), 1, v(vG)); st.v_mul_u32_u24(v(t1), 48, v(t1))
    st.v_lshrrev_b32(v(t2), 1, v(vG)); st.v_lshlrev_b32(v(t2), 3, v(t2))
    st.v_sub_u32(v(t1), v(t1), v(t2))
    st.v_add_u32(v(vK1A), v(t0), v(t1))
    st.v_lshrrev_b32(v(t1), 1, v(vG)); st.v_mul_u32_u24(v(t1), 16 * 288, v(t1))
    st.v_and_b32(v(t2), 1, v(vG)); st.v_mul_u32_u24(v(t2), 80, v(t2))
    st.v_add3_u32(v(vFA), v(t0), v(t1), v(t2))
    st.s_lshr_b32(s(b0), s(sW), 1)
    st.s_and_b32(s(b1), s(sW), 1)
    st.v_lshl_add_u32(v(t0), v(vG), 2, v(vR4))
    st.v_mul_u32_u24(v(t0), 288, v(t0))
    st.s_mul_i32(s(b2), s(b0), 80); st.s_add_u32(s(b2), s(b2), L_FV)
    st.v_lshl_add_u32(v(vKA), v(vCC), 3, v(t0))
    st.v_add_u32(v(vKA), s(b2), v(vKA))
    st.s_mul_i32(s(b2), s(b0), 48); st.s_lshl_b32(s(b3), s(b1), 5)
    st.s_add_u32(s(b2), s(b2), s(b3)); st.s_add_u32(s(b2), s(b2), L_FV + 160)
    st.s_mul_i32(s(b3), s(b1), -2); st.s_add_u32(s(b3), s(b3), 3)
    st.v_min_u32(v(t1), s(b3), v(vCC))
    st.v_lshl_add_u32(v(vKB), v(t1), 3, v(t0))
    st.v_add_u32(v(vKB), s(b2), v(vKB))
    st.s_mul_i32(s(b2), s(b1), -176); st.s_add_u32(s(b2), s(b2), 256)
    st.s_mul_i32(s(b3), s(b1), -11); st.s_add_u32(s(b3), s(b3), 16)
    st.s_mul_i32(s(b4), s(b1), 1280)
    st.s_mul_i32(s(b5), s(b0), 1792)
    st.s_add_u32(s(b4), s(b4), s(b5))
    st.v_mul_u32_u24(v(t0), s(b2), v(vG))
    st.v_lshlrev_b32(v(t1), 4, v(vJ))
    st.v_add3_u32(v(vPS), v(t0), v(t1), s(b4))
    st.s_lshl_b32(s(b2), s(b2), 2); st.s_add_u32(s(b4), s(b4), s(b2))
    st.v_lshl_add_u32(v(t0), v(vG), 3, v(t1))
    st.v_add_u32(v(vPS + 1), s(b4), v(t0))
    st.v_mov_b32(v(t2), OOB)
    st.v_cmp_gt_u32('vcc', s(b3), v(vJ))
    st.v_cndmask_b32(v(vPS), v(t2), v(vPS), 'vcc')
    st.v_cndmask_b32(v(vPS + 1), v(t2), v(vPS + 1), 'vcc')
    st.v_cmp_gt_u32('vcc', 2, v(vG))
    st.v_cndmask_b32(v(vPS + 1), v(t2), v(vPS + 1), 'vcc')

vPD = 124
PA = list(range(vE + 36, vE + 50))
def prep_addrs3(pr):
    pr.v_and_b32(v(t0), 1, v(vCC)); pr.v_lshlrev_b32(v(t0), 13, v(t0))
    pr.v_lshrrev_b32(v(t1), 1, v(vCC)); pr.v_lshl_add_u32(v(t0), v(t1), 3, v(t0))
    pr.s_mul_i32(s(sT), s(sW), 48); pr.s_add_u32(s(sT), s(sT), L_PG)
    pr.v_add_u32(v(t0), s(sT), v(t0))
    pr.v_lshrrev_b32(v(t1), 1, v(vG)); pr.v_mul_u32_u24(v(t1), 20, v(t1))
    pr.v_and_b32(v(t2), 1, v(vG)); pr.v_lshl_add_u32(v(t1), v(t2), 3, v(t1))
    pr.v_add_u32(v(t1), v(t1), v(vR4))
    pr.v_mul_u32_u24(v(t1), 192, v(t1))
    pr.v_add_u32(v(PA[0]), v(t0), v(t1))
    pr.v_mul_u32_u24(v(t1), 192, v(vR4))
    pr.v_min_u32(v(t2), 2, v(vG))
    pr.v_lshl_add_u32(v(t1), v(t2), 4, v(t1))
    pr.v_add_u32(v(PA[1]), v(t0), v(t1))
    pr.v_lshrrev_b32(v(t0), 1, v(vR4)); pr.v_lshlrev_b32(v(t0), 3, v(t0))
    pr.v_lshrrev_b32(v(t1), 1, v(vCC)); pr.v_lshl_add_u32(v(t0), v(t1), 2, v(t0))
    pr.v_and_b32(v(t1), 1, v(vR4)); pr.v_lshl_add_u32(v(t0), v(t1), 1, v(t0))
    pr.v_and_b32(v(t1), 1, v(vCC)); pr.v_add_u32(v(t0), v(t0), v(t1))
    pr.v_lshlrev_b32(v(t0), 4, v(t0))
    pr.v_lshl_add_u32(v(PA[2]), v(vG), 8, v(t0))
    pr.v_mul_u32_u24(v(t1), 20480, v(vG))
    pr.v_add_u32(v(t1), v(t1), v(t0))
    pr.v_mov_b32(v(t2), OOB)
    pr.v_cmp_gt_u32('vcc', 3, v(vG))
    pr.v_cndmask_b32(v(PA[3]), v(t2), v(t1), 'vcc')
def piece_addrs(pr, which, e, base):
    y0, y1, y2, y3 = PA[base], PA[base + 1], PA[base + 2], PA[13]
    if which == 4:
        pr.s_lshl_b32(s(sT), s(sW), 3); pr.s_add_u32(s(sT), s(sT), 4 * e); lim = 30
    else:
        pr.s_lshl_b32(s(sT), s(sW), 2); pr.s_lshl_b32(s(sT + 1), s(sP), 4); pr.s_add_u32(s(sT), s(sT), s(sT + 1)); lim = 25
    pr.v_add_u32(v(t0), s(sT), v(vG))
    pr.v_cmp_gt_u32('vcc', lim, v(t0))
    pr.v_min_u32(v(t0), lim - 1, v(t0))
    div_small(pr, t1, t0, 5)
    pr.v_mul_u32_u24(v(t2), 5, v(t1)); pr.v_sub_u32(v(t2), v(t0), v(t2))
    pr.v_mul_u32_u24(v(y2), 40, v(vCC)); pr.v_lshl_add_u32(v(y2), v(t2), 3, v(y2))
    if which == 4:
        div_small(pr, y0, t1, 3)
        pr.v_mul_u32_u24(v(y1), 3, v(y0)); pr.v_sub_u32(v(y1), v(t1), v(y1))
        pr.v_mul_u32_u24(v(y0), 24, v(y0))
        pr.v_and_b32(v(y3), 1, v(vR4)); pr.v_add_u32(v(y0), v(y0), v(y3))
        pr.v_lshrrev_b32(v(y3), 1, v(vR4))
        pr.v_lshl_add_u32(v(y0), v(y1), 1, v(y0))
        pr.v_mul_u32_u24(v(y1), 6, v(y1)); pr.v_subrev_u32(v(y1), 10, v(y1))
        pr.v_mul_i32_i24(v(y1), v(y1), v(y3))
        pr.v_add3_u32(v(y1), v(y1), v(y0), 16)
        pr.v_lshl_add_u32(v(y0), v(y3), 3, v(y0))
        L_ = L_P4
    else:
        pr.v_lshrrev_b32(v(y0), 1, v(t1)); pr.v_mul_u32_u24(v(y0), 20, v(y0))
        pr.v_and_b32(v(y1), 1, v(t1)); pr.v_lshl_add_u32(v(y0), v(y1), 3, v(y0))
        pr.v_cmp_eq_u32(s(sT + 2, 2), 4, v(t1))
        pr.v_cndmask_b32(v(y0), v(y0), 16, s(sT + 2, 2))
        pr.v_cndmask_b32(v(y1), 4, 20, s(sT + 2, 2))
        pr.v_add_u32(v(y0), v(y0), v(vR4))
        pr.v_add_u32(v(y1), v(y1), v(y0))
        L_ = L_P2
    pr.v_add_u32(v(y2), L_, v(y2))
    pr.s_movk_i32(s(sT + 4), 160)
    pr.v_mad_u32_u24(v(y0), v(y0), s(sT + 4), v(y2))
    pr.v_mad_u32_u24(v(y1), v(y1), s(sT + 4), v(y2))
    if which == 4:
        pr.s_lshl_b32(s(sT), s(sR), 1); pr.s_add_u32(s(sT), s(sT), s(sP)); pr.s_mul_i32(s(sT), s(sT), 6)
    else:
        pr.s_mul_i32(s(sT), s(sR), 5)
    pr.v_add_u32(v(t1), s(sT), v(t1))
    pr.v_lshrrev_b32(v(y2), 2, v(t1)); pr.v_mul_u32_u24(v(y2), 5120, v(y2))
    pr.v_and_b32(v(t1), 3, v(t1)); pr.v_lshl_add_u32(v(y2), v(t1), 8, v(y2))
    pr.v_lshl_add_u32(v(y2), v(t2), 10, v(y2))
    pr.v_lshl_add_u32(v(y2), v(vJ), 4, v(y2))
    pr.v_mov_b32(v(t0), OOB)
    pr.v_cndmask_b32(v(y2), v(t0), v(y2), 'vcc')
def prep_reads(pr, part, D):
    if part == 0:
        for t in range(3):
            for i in range(2): pr.ds_read_b64_tr_b16(v(D + 4 * t + 2 * i, 2), v(PA[0]), mods='offset:%d' % (768 * i + 16 * t))
        for i in range(2): pr.ds_read_b64_tr_b16(v(D + 12 + 2 * i, 2), v(PA[1]), mods='offset:%d' % (16 * 192 + 3840 * i))
    elif part == 2:
        for i in range(2): pr.ds_read_b64_tr_b16(v(D + 2 * i, 2), v(PA[10 + i]))
    else:
        for p in range(2):
            for i in range(2): pr.ds_read_b64_tr_b16(v(D + 4 * p + 2 * i, 2), v(PA[4 + 3 * p + i]))
def prep_stores(pr, part, D):
    b0, b1 = sE, sF
    if part == 0:
        pr.s_mul_i32(s(b0), s(sC), 245760); pr.s_mul_i32(s(b1), s(sW), 61440); pr.s_add_u32(s(b0), s(b0), s(b1))
        pr.s_mul_i32(s(b1), s(sR), 1280); pr.s_add_u32(s(b0), s(b0), s(b1)); pr.s_add_u32(s(b0), s(b0), WS_W3)
        pr.buffer_store_dwordx4(v(D + 12, 4), v(PA[3]), srd(S_WS), s(b0), mods='offen offset:1024 sc1')
        for t in range(3):
            if t: pr.s_add_u32(s(b0), s(b0), 20480)
            pr.buffer_store_dwordx4(v(D + 4 * t, 4), v(PA[2]), srd(S_WS), s(b0), mods='offen sc1')
    elif part == 2:
        pr.s_mul_i32(s(b1), s(sM), 102400); pr.s_add_u32(s(b1), s(b1), WS_W2)
        pr.buffer_store_dwordx4(v(D, 4), v(PA[12]), srd(S_WS), s(b1), mods='offen sc1', tag='prepstW2')
    else:
        pr.s_mul_i32(s(b1), s(sM), 245760); pr.s_add_u32(s(b1), s(b1), WS_W4)
        for p in range(2): pr.buffer_store_dwordx4(v(D + 4 * p, 4), v(PA[6 + 3 * p]), srd(S_WS), s(b1), mods='offen sc1', tag='prepst2')


def flag_issue(st, dst, voff, ssoff):
    st.buffer_load_dwordx2(v(dst, 2), v(voff), srd(S_WS), s(ssoff), mods='offen sc1')
def flag_check(st, dst, voff, ssoff):
    q = npoll[0]; npoll[0] += 1
    t = '''v_cmp_ne_u64 vcc, s[{n0}:{n1}], v[{t}:{t1}]
    s_cbranch_vccz L_pd{n}
    s_mov_b32 s{c}, {lim}
L_pl{n}:
    buffer_load_dwordx2 v[{t}:{t1}], v{vo}, s[{ws}:{ws3}], s{so} offen sc1
    s_waitcnt vmcnt(0)
    v_cmp_ne_u64 vcc, s[{n0}:{n1}], v[{t}:{t1}]
    s_cbranch_vccz L_pd{n}
    s_sub_u32 s{c}, s{c}, 1
    s_cbranch_scc0 L_pl{n}
L_pd{n}:'''.format(n=q, c=sCNT, lim=OPT['spin'], t=dst, t1=dst + 1, vo=voff, ws=S_WS, ws3=S_WS + 3, so=ssoff, n0=sN, n1=sN + 1)
    st.raw(t, uses=[v(voff), v(dst, 2)], defs=[v(dst, 2)])
sL2E, sINV640, sEPS, sK1, sK3, sEPS6 = sK, sK + 1, sK + 2, sK + 3, sK + 4, sK + 5
vSX = vACC
def stats_load(st):
    st.s_lshl_b32(s(sV + 9), s(sR), 7); st.s_lshl_b32(s(sV + 10), s(sC), 3); st.s_add_u32(s(sV + 9), s(sV + 9), s(sV + 10))
    st.s_lshl_b32(s(sV + 10), s(sW), 1); st.s_add_u32(s(sSTK), s(sV + 9), s(sV + 10))
    st.s_mul_i32(s(sV + 9), s(sSTK), 1280)
    st.v_mov_b32(v(vSX + 20), OOB)
    st.v_cmp_gt_u32(s(sV + 7, 2), 32, v(vLANE))
    st.v_cndmask_b32(v(vSX + 20), v(vSX + 20), v(vL16), s(sV + 7, 2))
    for e in range(3): st.buffer_load_dwordx4(v(vSX + 4 * e, 4), v(vL16 if e < 2 else vSX + 20), srd(S_X), s(sV + 9), mods='offen offset:%d' % (e * 1024))
def stats_compute(st):
    A = vSX + 12
    for i in range(6): st.v_mov_b32(v(A + i), 0)
    for i in range(4):
        for e in range(3):
            st.v_dot2_f32_bf16(v(A + 2 * e), v(vSX + 4 * e + i), s(sONES), v(A + 2 * e))
            st.v_dot2_f32_bf16(v(A + 2 * e + 1), v(vSX + 4 * e + i), v(vSX + 4 * e + i), v(A + 2 * e + 1))
    st.v_cmp_eq_u32('vcc', 0, v(vG))
    for i in range(2):
        st.v_cndmask_b32(v(A + 6 + i), 0, v(A + 2 + i), 'vcc')
        st.v_cndmask_b32(v(A + 2 + i), v(A + 2 + i), 0, 'vcc')
    for i in range(2):
        st.v_add_f32(v(A + i), v(A + i), v(A + 6 + i))
        st.v_add_f32(v(A + 4 + i), v(A + 4 + i), v(A + 2 + i))
    for i in range(2): st.v_permlane32_swap_b32(v(A + i), v(A + 4 + i))
    for i in range(2): st.v_add_f32(v(A + i), v(A + i), v(A + 4 + i))
    for i in range(2): st.v_mov_b32(v(A + 2 + i), v(A + i))
    for i in range(2): st.v_permlane16_swap_b32(v(A + i), v(A + 2 + i))
    for i in range(2): st.v_add_f32(v(A + i), v(A + i), v(A + 2 + i))
    for sh in (8, 4, 2, 1):
        for i in range(2): st.v_add_f32_dpp(v(A + i), v(A + i), v(A + i), mods='row_ror:%d row_mask:0xf bank_mask:0xf' % sh)
    st.v_mul_f32(v(A), s(sINV640), v(A))
    st.v_mul_f32(v(A + 1), s(sINV640), v(A + 1))
    st.v_fma_f32(v(A + 1), '-' + v(A), v(A), v(A + 1))
    st.v_max_f32(v(A + 1), 0, v(A + 1))
    st.v_add_f32(v(A + 1), s(sEPS), v(A + 1))
    st.v_sub_f32(v(A), 0, v(A))
    st.v_rsq_f32(v(A + 2), v(A + 1))
    st.v_mov_b32(v(A + 1), s(sN)); st.v_mov_b32(v(A + 3), s(sTG))
    st.v_lshrrev_b32(v(vSX + 20), 1, v(vLANE))
    st.v_and_b32(v(vSX + 21), 31, v(vLANE))
    st.v_mov_b32(v(vSX + 22), OOB)
    st.v_cmp_eq_u32('vcc', 0, v(vSX + 21))
    st.s_lshl_b32(s(sV + 9), s(sSTK), 4); st.s_add_u32(s(sV + 9), s(sV + 9), WS_XST)
    st.v_cndmask_b32(v(vSX + 20), v(vSX + 22), v(vSX + 20), 'vcc')
    st.buffer_store_dwordx4(v(A, 4), v(vSX + 20), srd(S_WS), s(sV + 9), mods='offen sc1', tag='xst')
sSTK = sXO + 2; sTG = sXO + 6
vOAd = 44; vPOI = 48; sOS = sXO + 7
def o_addrs(st):
    if OPT['tagB']:
        for i in range(4): st.v_mov_b32(v(vPOI + i), -1)
    st.v_lshrrev_b32(v(vOAd), 1, v(vG)); st.v_mul_u32_u24(v(vOAd), 20480, v(vOAd))
    st.v_lshl_add_u32(v(vOAd), v(vJ), 4, v(vOAd))
    st.v_and_b32(v(vOAd + 2), 1, v(vG))
    st.v_lshl_add_u32(v(vOAd + 1), v(vOAd + 2), 3, v(vOAd))
    st.s_mul_i32(s(sOS), s(sR), 163840); st.s_mul_i32(s(sT + 6), s(sW), 40960); st.s_add_u32(s(sOS), s(sOS), s(sT + 6))
    st.s_mul_i32(s(sT + 6), s(sCQ), 1280); st.s_add_u32(s(sOS), s(sOS), s(sT + 6)); st.s_add_u32(s(sOS), s(sOS), WS_O)
    st.v_lshl_add_u32(v(vOAd), v(vOAd + 2), 9, v(vOAd))
def o_store(st, A, B, C, tag):
    st.buffer_store_dwordx4(v(A, 4), v(vOAd), srd(S_WS), s(sOS), mods='offen sc1')
    st.buffer_store_dwordx4(v(B, 4), v(vOAd), srd(S_WS), s(sOS), mods='offen offset:256 sc1')
    st.buffer_store_dwordx2(v(C, 2), v(vOAd + 1), srd(S_WS), s(sOS), mods='offen offset:1024 sc1', tag=tag)
def x_read(st, sg):
    for tt in range(2):
        for n in range(4):
            off = XSLOT[sg] + tt * 4096
            ad = vXRd + n
            if off > 65535: st.v_add_u32(v(vE + n), 65536, v(ad)); ad = vE + n; off -= 65536
            st.ds_read_b128(a(32 * sg + 16 * tt + 4 * n, 4), v(ad), mods='offset:%d' % off, tag='xr%d' % sg)
if OPT['tlb']:
    k.v_lshlrev_b32(v(t0), OPT['tlb'], v(vLANE))
    k.v_mov_b32(v(t1), OOB)
    k.v_cmp_gt_u32('vcc', min(64, (30 << 20) >> OPT['tlb']), v(vLANE))
    k.v_cndmask_b32(v(t0), v(t1), v(t0), 'vcc')
    for i, S_ in enumerate((S_WS, S_WG, S_WU, S_WD, S_WO, S_OUT)):
        k.buffer_load_dword(v(vAF + 24 + i), v(t0), srd(S_), 0, mods='offen nt')
prep_offsets(k)
stamp(k, 'pre')
if OPT['x0e']: issue_x(k, 0, (0,) if OPT['x0e'] >= 3 else (0, 1))
k.waitvm('W1S')
k.waitlds()
k.s_add_u32(s(sN), s(sN), 1); k.s_addc_u32(s(sN + 1), s(sN + 1), 0)
k.v_mov_b32(v(vNON), s(sN)); k.v_mov_b32(v(vNON + 1), s(sN + 1))
k.s_mul_i32(s(sTG), s(sN), 0x9E3779B1); k.s_add_u32(s(sTG), s(sTG), s(sN + 1))
k.s_barrier()
stamp(k, 'w1s')
vW1V = vAF + 8
for p in range(3):
    for i in range(2): k.ds_read_b64_tr_b16(v(vW1V + 4 * p + 2 * i, 2), v(vW1A + p), mods='offset:%d' % (960 * i))
k.buffer_store_dwordx4(v(vW1V, 4), v(vW1O), srd(S_WS), s(bE), mods='offen sc1')
k.buffer_store_dwordx4(v(vW1V + 4, 4), v(vW1O + 1), srd(S_WS), s(bO), mods='offen sc1')
k.buffer_store_dwordx4(v(vW1V + 8, 4), v(vW1O + 2), srd(S_WS), 0, mods='offen sc1')
cE, cO, c2 = vAF + 20, vAF + 21, vAF + 22
for p, d in enumerate((cE, cO, c2)): k.v_mov_b32(v(d), 0)
for i in range(4):
    for p, d in enumerate((cE, cO, c2)): k.v_dot2_f32_bf16(v(d), v(vW1V + 4 * p + i), s(sONES), v(d))
k.v_cmp_eq_u32('vcc', 0, v(vG)); k.v_cmp_eq_u32(s(sT, 2), 1, v(vG))
k.v_cndmask_b32(v(t0), 0, v(c2), 'vcc'); k.v_cndmask_b32(v(t1), 0, v(c2), s(sT, 2))
k.v_add_f32(v(cE), v(cE), v(t0)); k.v_add_f32(v(cO), v(cO), v(t1))
k.v_permlane32_swap_b32(v(cE), v(cO))
k.v_add_f32(v(cE), v(cE), v(cO))
k.v_mov_b32(v(cO), v(cE))
k.v_permlane16_swap_b32(v(cE), v(cO))
k.v_add_f32(v(cE), v(cE), v(cO))
k.v_cvt_pk_bf16_f32(v(cO), v(cE), v(cE))
k.v_lshlrev_b32(v(cO), 16, v(cO))
k.v_sub_f32(v(cO), v(cE), v(cO))
k.v_cvt_pk_bf16_f32(v(cO), v(cE), v(cO))
k.buffer_store_dword(v(cO), v(vW1O + 3), srd(S_WS), s(sD), mods='offen sc1', tag='w1st')
stamp(k, 'w1st')
wphi_scatter(k, vWP)
u = Stream()
for i in range(4): u.v_mov_b32(v(vONE + i), 0x3f803f80)
u.v_lshlrev_b32(v(vFR), 7, v(vJ))
u.v_lshlrev_b32(v(vFC), 11, v(vJ))
u.v_mul_u32_u24(v(vXRO), 1280, v(vJ))
u.v_mul_u32_u24(v(t0), 40, v(vG))
u.v_add_u32(v(vXRO), v(vXRO), v(t0))
u.s_add_u32(s(sT), s(sXO + 1), L_XST)
u.v_xor_b32(v(t0), v(vJ), v(vG))
u.v_lshlrev_b32(v(t0), 4, v(t0))
u.v_lshl_add_u32(v(t2), v(vJ), 8, v(t0))
for n in range(4):
    u.v_xor_b32(v(vXRd + n), 64 * n, v(t2))
    u.v_add_u32(v(vXRd + n), s(sT), v(vXRd + n))
u.v_add_u32(v(vL16b), 4096, v(vL16))
u.v_add_u32(v(vKV2), 61440, v(vL16))
u.v_add_u32(v(vKV2 + 1), L_Q, v(vL16))
sL2E, sINV640, sEPS, sK1, sK3, sEPS6 = sK, sK + 1, sK + 2, sK + 3, sK + 4, sK + 5
sL2Ep = 10
u.s_mov_b32(s(sL2E), f32(LOG2E)); u.s_mov_b32(s(sINV640), f32(1.0 / 640)); u.s_mov_b32(s(sEPS), f32(1e-5))
GK1 = -2.0 * math.sqrt(2.0 / math.pi) * LOG2E
u.s_mov_b32(s(sK1), f32(GK1)); u.s_mov_b32(s(sK3), f32(GK1 * 0.044715)); u.s_mov_b32(s(sEPS6), f32(1e-6))
u.s_mov_b32(s(sL2Ep), f32(LOG2E)); u.s_mov_b32(s(sL2Ep + 1), f32(-LOG2E))
f_ = Stream()
if OPT['x0e'] == 3: issue_x(f_, 0, (1,))
elif OPT['x0e'] == 4: issue_x(f_, 0, (1,)); issue_x(f_, 1, (0,))
elif OPT['x0e'] != 2: issue_x(f_, 1 if OPT['x0e'] else 0)
k.add(weave(u, [(f_, 0, None, 'vmem')], anchor='any'))
stamp(k, 'w1w')
k.waitvm('w1st')
stamp(k, 'w1d')
k.waitlds()
k.s_barrier()
post(k, F_W1)
stamp(k, 'w1post')

u = Stream()
o_addrs(u)
prep_addrs3(u); piece_addrs(u, 2, 0, 10); piece_addrs(u, 4, 0, 4); piece_addrs(u, 4, 1, 7); epi_addrs(u)
f_ = Stream()
if OPT['w2e'] == 1: issue_prep(f_, 2)
if OPT['x0e'] == 4: issue_x(f_, 1, (1,))
elif OPT['x0e'] != 1: issue_x(f_, 1)
issue_x(f_, 2); stats_load(f_)
if OPT['x3e']: issue_x(f_, 3)
k.add(weave(u, [(f_, 0, None, 'vmem')], anchor='any'))
stamp(k, 'prepiss')
sKV, sKVt, sQs, sQt, sFW = sV, sV + 1, sV + 2, sV + 3, sV + 8
k.s_mul_i32(s(sB), s(sW), 5120); k.s_mul_i32(s(sA), s(sW), 3072)
k.s_mul_i32(s(sKV), s(sC), 102400); k.s_add_u32(s(sKV), s(sKV), s(sB)); k.s_add_u32(s(sKV), s(sKV), WS_W1K)
k.s_mul_i32(s(sQs), s(sC), 61440); k.s_add_u32(s(sQs), s(sQs), s(sA)); k.s_add_u32(s(sQs), s(sQs), WS_W1Q)
k.s_lshl_b32(s(sD), s(sC), 13); k.s_lshl_b32(s(sCc), s(sW), 11); k.s_add_u32(s(sD), s(sD), s(sCc)); k.s_add_u32(s(sD), s(sD), WS_CS)
k.s_lshl_b32(s(sFW), s(sC), 7); k.s_add_u32(s(sFW), s(sFW), WS_FLAGS + F_W1 * 32768)
vF0 = 18
def issue_kv(st, sg, lo=0, hi=5):
    if lo == 0:
        chunk(st, sg, sKVt, sT + 7)
        st.s_mul_i32(s(sKVt), s(sKVt), 20480); st.s_add_u32(s(sKVt), s(sKVt), s(sKV))
    for n in range(lo, hi):
        if n % 4 == 0 or n == lo: st.s_add_u32('m0', s(sB), KVPOS[sg] + (n & 4) * 1024)
        st.buffer_load_dwordx4(v(vL16 if n < 4 else vL16b), srd(S_WS), s(sKVt), mods='offen offset:%d sc1 lds' % ((n & 3) * 1024), tag='W%d' % sg)
def issue_q(st, lo, hi):
    for ch in range(lo, hi):
        chunk(st, ch, sQt, sT + 7)
        st.s_mul_i32(s(sQt), s(sQt), 12288); st.s_add_u32(s(sQt), s(sQt), s(sQs))
        st.s_add_u32('m0', s(sA), L_Q + ch * 12288)
        for n in range(3):
            st.buffer_load_dwordx4(v(vL16), srd(S_WS), s(sQt), mods='offen offset:%d sc1 lds' % (n * 1024), tag='Q%d' % ch)
flag_issue(k, vF0, vFC, sFW)
if OPT['tagB'] == 3: o_store(k, vPOI, vPOI, vPOI, 'poiO')
for sg in range(3): k.waitvm('x%d' % sg); x_read(k, sg)
k.waitlds(); k.s_barrier()
stamp(k, 'w1a'); flag_check(k, vF0, vFC, sFW); stamp(k, 'w1b')
issue_kv(k, 0)
issue_kv(k, 1)
stats_compute(k)
wphi_read(k)
if OPT['tagB'] == 1: o_store(k, vPOI, vPOI, vPOI, 'poiO')
issue_x(k, 4 if OPT['x3e'] else 3)
if OPT['tagB'] == 2: o_store(k, vPOI, vPOI, vPOI, 'poiO')
k.waitvm('W0')
k.s_barrier()
stamp(k, 'kvgo')

vF1, vF2, vFA1, vF3, vPLO, vT16, vKR = 18, 20, 22, 24, 30, 31, 32
sW2s, sW2l, sW2t, sW3, sW3t, sPL, sFP, sFK = sV + 4, sV + 5, sV + 6, sV + 7, sXO + 3, sXO + 4, sV + 9, sV + 10
def q_setup(st):
    st.v_bfe_u32(v(vFA1), v(vLANE), 4, 1)
    st.v_lshl_add_u32(v(vFA1), v(vFA1), 7, v(vFC))
    st.s_lshl_b32(s(sFP), s(sM), 8); st.s_add_u32(s(sFP), s(sFP), WS_FLAGS + F_PREP * 32768)
    st.s_lshl_b32(s(sFK), s(sCQ), 7); st.s_add_u32(s(sFK), s(sFK), WS_FLAGS + F_KV * 32768)
    st.v_and_b32(v(vKR), 1, v(vG)); st.v_mul_u32_u24(v(vKR), 1856, v(vKR))
    st.s_lshl_b32(s(sW2l), s(sW), 12)
    st.s_mul_i32(s(sW2s), s(sM), 102400); st.s_add_u32(s(sW2s), s(sW2s), WS_W2)
    st.v_lshl_add_u32(v(vKR), v(vCC), 4, v(vKR))
    st.s_mul_i32(s(sW3), s(sC), 245760); st.s_mul_i32(s(sW3t), s(sW), 61440); st.s_add_u32(s(sW3), s(sW3), s(sW3t))
    st.v_mov_b32(v(t1), L_ZERO - L_KVR)
    st.s_add_u32(s(sW3), s(sW3), WS_W3)
    st.v_cmp_eq_u32('vcc', v(vR4), v(vG))
    st.s_mul_i32(s(sPL), s(sCQ), 16 * 3584); st.s_add_u32(s(sPL), s(sPL), WS_PART)
    st.v_lshlrev_b32(v(vT16), 4, v(vTID))
    st.v_cndmask_b32(v(vKR), v(t1), v(vKR), 'vcc')
    st.v_mov_b32(v(t1), OOB)
    st.v_cmp_gt_u32('vcc', 224, v(vTID))
    st.v_add_u32(v(vKR), L_KVR, v(vKR))
    st.v_cndmask_b32(v(vPLO), v(t1), v(vT16), 'vcc')
    st.v_cmp_lt_u32('vcc', 111, v(vTID))
    st.v_add_u32(v(vT16), L_KVR, v(vT16))
    st.v_add_u32(v(t1), 64, v(vT16))
    st.v_cndmask_b32(v(vT16), v(vT16), v(t1), 'vcc')
W2ORD = list(range(8)) + list(range(16, 25)) + list(range(8, 16))
def issue_w2(st, lo, hi):
    last = None
    for i in W2ORD[lo:hi]:
        if (i >> 2) != last:
            last = i >> 2
            if i < 24: st.s_add_u32(s(sW2t), s(sW2l), last * 16384)
            else: st.s_lshl_b32(s(sW2t), s(sW), 10); st.s_add_u32(s(sW2t), s(sW2t), 98304)
            st.s_add_u32('m0', s(sW2t), L_W2)
            st.s_add_u32(s(sW2t), s(sW2t), s(sW2s))
        st.buffer_load_dwordx4(v(vL16), srd(S_WS), s(sW2t), mods='offen offset:%d sc1 lds' % ((i & 3) * 1024), tag='W2')
def issue_w3(st, lst):
    last = None
    for i in lst:
        if (i >> 2) != last:
            last = i >> 2; st.s_add_u32(s(sW3t), s(sW3), last * 4096)
        st.buffer_load_dwordx4(a(4 * i, 4), v(vL16), srd(S_WS), s(sW3t), mods='offen offset:%d sc1' % ((i & 3) * 1024))
vSL = vGR; vSA = vGR + 8
def stats_check(st):
    t = '''s_mov_b32 s{c}, {lim}
L_sc:
    v_cmp_ne_u32 vcc, s{n}, v{a1}
    v_cmp_ne_u32 s[{p}:{p1}], s{n}, v{b1}
    s_or_b64 vcc, vcc, s[{p}:{p1}]
    v_cmp_ne_u32 s[{p}:{p1}], s{g}, v{a3}
    s_or_b64 vcc, vcc, s[{p}:{p1}]
    v_cmp_ne_u32 s[{p}:{p1}], s{g}, v{b3}
    s_or_b64 vcc, vcc, s[{p}:{p1}]
    s_cbranch_scc0 L_sd
    buffer_load_dwordx4 v[{a0}:{a3}], v{ad}, s[{ws}:{ws3}], s{so} offen sc1
    buffer_load_dwordx4 v[{b0}:{b3}], v{ad}, s[{ws}:{ws3}], s{so} offen offset:256 sc1
    s_waitcnt vmcnt(0)
    s_sub_u32 s{c}, s{c}, 1
    s_cbranch_scc0 L_sc
L_sd:'''.format(c=sCNT, lim=OPT['spin'], n=sN, g=sTG, p=sT + 4, p1=sT + 5, a0=vSL, a1=vSL + 1, a3=vSL + 3, b0=vSL + 4, b1=vSL + 5, b3=vSL + 7,
               ad=vSA, ws=S_WS, ws3=S_WS + 3, so=sV + 8)
    st.raw(t, uses=[v(vSL, 8), v(vSA)], defs=[v(vSL, 8)])
    for tt in range(2):
        st.v_mov_b32(v(vST + 2 * tt), v(vSL + 4 * tt)); st.v_mov_b32(v(vST + 2 * tt + 1), v(vSL + 4 * tt + 2))
def sent_issue(st, dst, voff, ssoff):
    st.buffer_load_dwordx4(v(dst, 4), v(voff), srd(S_WS), s(ssoff), mods='offen sc1')
def sent_check(st, dst, voff, ssoff):
    q = npoll[0]; npoll[0] += 1
    t = '''s_mov_b32 s{c}, {lim}
L_pl{n}:
    v_max_u32 v{t}, v{t}, v{t2}
    v_cmp_eq_u32 vcc, -1, v{t}
    s_cbranch_vccz L_pd{n}
    buffer_load_dwordx4 v[{t}:{t3}], v{vo}, s[{ws}:{ws3}], s{so} offen sc1
    s_waitcnt vmcnt(0)
    s_sub_u32 s{c}, s{c}, 1
    s_cbranch_scc0 L_pl{n}
L_pd{n}:'''.format(n=q, c=sCNT, lim=OPT['spin'], t=dst, t2=dst + 2, t3=dst + 3, vo=voff, ws=S_WS, ws3=S_WS + 3, so=ssoff)
    st.raw(t, uses=[v(voff), v(dst, 4)], defs=[v(dst, 4)])
def redo_check(st, vm, label):
    q = npoll[0]; npoll[0] += 1
    t = '''v_cmp_eq_u32 vcc, -1, v{m}
    s_cbranch_vccz L_pd{n}
    s_sub_u32 s{c}, s{c}, 1
    s_cbranch_scc1 L_pd{n}
    s_waitcnt vmcnt(0) lgkmcnt(0)
    s_nop 15
    s_branch {l}
L_pd{n}:'''.format(n=q, m=vm, c=sRC, l=label)
    st.raw(t, uses=[v(vm)])
sRC = 101
def kv_reads(st, ks):
    for X in range(5):
        off = KVPOS[ks >> 2] + (ks & 3) * 5120 + X * 1024
        st.ds_read_b128(v(vAF + (ks & 1) * 20 + X * 4, 4), v(vL16 if off < 61440 else vKV2), mods='offset:%d' % (L_KV + (off if off < 61440 else off - 61440)))
kv_reads(k, 0)
for sg in range(5):
    m_ = Stream()
    for q in range(4):
        ks = 4 * sg + q
        mm = Stream()
        for X in range(5):
            A = v(vAF + (q & 1) * 20 + X * 4, 4)
            mfma(mm, v(acc(X, 0), 4), A, xf(ks, 0), ks == 0)
            mfma(mm, v(acc(X, 1), 4), A, xf(ks, 1), ks == 0)
        ff = Stream()
        if ks < 19: kv_reads(ff, ks + 1)
        mm = weave(mm, [(ff, 0, 10)])
        if q == 2 and sg < 4:
            mm.waitvm('W%d' % (sg + 1))
            if sg == 2: mm.waitvm('CSF')
            if sg == 1: mm.waitvm('prepstW2')
            mm.waitlds()
            mm.s_barrier()
            if sg == 1: post(mm, F_PREP2)
        m_.add(mm)
    fills = []
    f1 = Stream()
    if sg == 0 and OPT['x3e']:
        issue_kv(f1, 2)
        f6 = Stream(); x_read(f6, 3); f6.waitvm('x4'); x_read(f6, 4); fills.append((f6, 0, 29))
        f7 = Stream(); issue_kv(f7, 3, 0, 3); fills.append((f7, 31, None, 'vmem'))
    if sg == 1 and OPT['x3e']:
        f1.s_add_u32('m0', s(sCc), L_CSF)
        for n in range(2): f1.buffer_load_dwordx4(v(vL16), srd(S_WS), s(sD), mods='offen offset:%d sc1 lds' % (n * 1024), tag='CSF')
        issue_kv(f1, 3, 3, 5)
        issue_kv(f1, 4)
    if sg == 2 and OPT['x3e']: issue_q(f1, 0, 3)
    if sg == 0 and not OPT['x3e']:
        issue_x(f1, 4)
        f6 = Stream(); f6.waitvm('x3'); x_read(f6, 3); fills.append((f6, 12, 28))
        f7 = Stream(); issue_kv(f7, 2, 0, 3); fills.append((f7, 29, None, 'vmem'))
    if sg == 1 and not OPT['x3e']:
        issue_kv(f1, 2, 3, 5)
        f1.s_add_u32('m0', s(sCc), L_CSF)
        for n in range(2): f1.buffer_load_dwordx4(v(vL16), srd(S_WS), s(sD), mods='offen offset:%d sc1 lds' % (n * 1024), tag='CSF')
        if not OPT['ql']: issue_q(f1, 0, 1)
        f6 = Stream(); f6.waitvm('x4'); x_read(f6, 4); fills.append((f6, 4, 20))
        f7 = Stream(); issue_kv(f7, 3, 0, 4); fills.append((f7, 31, None, 'vmem'))
    if sg == 2 and not OPT['x3e']:
        issue_kv(f1, 3, 4, 5); issue_kv(f1, 4)
        if not OPT['ql']: issue_q(f1, 1, 2)
    if sg == 3:
        if not OPT['ql']: issue_q(f1, 3 if OPT['x3e'] else 2, OPT['qe'])
        f7 = Stream(); issue_prep(f7, 0); issue_prep(f7, 1)
        if OPT['ql']: issue_prep(f7, 3)
        fills.append((f7, OPT['pat'], None, 'vmem'))
    if sg == 4 and not OPT['ql']: issue_prep(f1, 3)
    fills.append((f1, 0, (28 if (sg == 0 or (sg == 1 and not OPT['x3e'])) else OPT['pat'] - 9 if sg == 3 else 10 if sg == 4 else None), 'vmem'))
    if sg == 3:
        f4 = Stream()
        f4.v_add_u32(v(t0), L_CSF, v(vL16))
        for X in range(5): f4.ds_read_b128(v(vE + 4 + 4 * X, 4), v(t0), mods='offset:%d' % (X * 1024))
        for X in range(3): f4.ds_read_b128(a(aCSQ + 4 * X, 4), v(t0), mods='offset:%d' % ((5 + X) * 1024))
        fills.append((f4, 0, 28))
    if sg == 0:
        f5 = Stream(); prep_reads(f5, 2, vE + 24); fills.append((f5, 0, 4))
        f5 = Stream(); prep_stores(f5, 2, vE + 24); fills.append((f5, 5, 6, 'vmem'))
    if OPT['tagB'] >= 4 and sg == OPT['tagB'] - 4:
        f8 = Stream(); o_store(f8, vPOI, vPOI, vPOI, 'poiO'); fills.append((f8, 6, 36, 'vmem'))
    if sg == 2:
        f4 = Stream(); q_setup(f4); fills.append((f4, 0, None))
    if sg == 3:
        f4 = Stream(); f4.s_add_u32(s(sD), s(sFP), (F_PREP2 - F_PREP) * 32768); flag_issue(f4, vF3, vFA1, sD)
        f4.s_lshl_b32(s(sV + 8), s(sR), 11); f4.s_lshl_b32(s(sT + 3), s(sW), 9); f4.s_add_u32(s(sV + 8), s(sV + 8), s(sT + 3)); f4.s_add_u32(s(sV + 8), s(sV + 8), WS_XST)
        f4.v_lshlrev_b32(v(vSA), 4, v(vJ))
        for tt in range(2): f4.buffer_load_dwordx4(v(vSL + 4 * tt, 4), v(vSA), srd(S_WS), s(sV + 8), mods='offen offset:%d sc1' % (256 * tt))
        fills.append((f4, OPT['pat'] - 8, OPT['pat'] - 1, 'vmem'))
    if sg == 4:
        f4 = Stream(); stats_check(f4); fills.append((f4, 20, None))
    if sg == 4:
        for X in range(5): mfma(m_, v(acc(X, 2), 4), v(vE + 4 + 4 * X, 4), v(vONE, 4), True)
    m_ = pack(m_, fills); print('kv stage', sg, 'est', m_.est)
    k.add(m_)
    if sg < 4: stamp(k, 'kv%d' % sg)
stamp(k, 'kvgemm')

def ln_pack(st, X, tt, dst, pk=True):
    A = acc(X, tt); C = acc(X, 2); S = v(vST + 2 * tt, 2)
    if pk:
        for h in range(2):
            st.v_pk_fma_f32(v(A + 2 * h, 2), v(C + 2 * h, 2), S, v(A + 2 * h, 2), mods='op_sel_hi:[1,0,1]')
        for h in range(2):
            st.v_pk_mul_f32(v(A + 2 * h, 2), v(A + 2 * h, 2), S, mods='op_sel:[0,1] op_sel_hi:[1,1]')
    else:
        for i in range(4): st.v_fmac_f32(v(A + i), v(C + i), v(vST + 2 * tt))
        for i in range(4): st.v_mul_f32(v(A + i), v(A + i), v(vST + 2 * tt + 1))
    for h in range(2):
        st.v_cvt_pk_bf16_f32(v(dst + h), v(A + 2 * h), v(A + 2 * h + 1))

vBK = vE + 4
vP = vE + 16
vEP = vACC
vMX = vE + 56
vPK = vAF
def feature_map(st):
    for tt in range(2):
        for ks in range(2):
            for ft in range(5):
                mfma(st, v(vP + 4 * ft, 4), a(aPHI + (tt * 10 + ft * 2 + ks) * 4, 4), v(vBK + 6 * tt + 2 * ks, 4), tt == 0 and ks == 0)
def softmax2(st, order, write=False):
    mx, mn, sp, sn = vMX, vMX + 1, vMX + 2, vMX + 4
    st.v_max3_f32(v(mx), v(vP), v(vP + 1), v(vP + 2))
    st.v_min3_f32(v(mn), v(vP), v(vP + 1), v(vP + 2))
    for i in range(3, 19, 2):
        st.v_max3_f32(v(mx), v(mx), v(vP + i), v(vP + i + 1))
        st.v_min3_f32(v(mn), v(mn), v(vP + i), v(vP + i + 1))
    st.v_max_f32(v(mx), v(mx), v(vP + 19))
    st.v_min_f32(v(mn), v(mn), v(vP + 19))
    st.v_mul_f32(v(mx), s(sL2Ep + 1), v(mx))
    st.v_mul_f32(v(mn), s(sL2Ep), v(mn))
    for i in range(0, 20, 2):
        st.v_pk_fma_f32(v(vEP + i, 2), v(vP + i, 2), s(sL2Ep, 2), v(mx, 2), mods='op_sel_hi:[1,0,0]')
        st.v_pk_fma_f32(v(vP + i, 2), v(vP + i, 2), s(sL2Ep, 2), v(mx, 2), mods='op_sel:[0,1,1] op_sel_hi:[1,1,1]')
    for i in range(20):
        st.v_exp_f32(v(vEP + i), v(vEP + i))
        st.v_exp_f32(v(vP + i), v(vP + i))
    st.v_pk_add_f32(v(sp, 2), v(vEP, 2), v(vEP + 2, 2))
    st.v_pk_add_f32(v(sn, 2), v(vP, 2), v(vP + 2, 2))
    for i in range(4, 20, 2):
        st.v_pk_add_f32(v(sp, 2), v(sp, 2), v(vEP + i, 2))
        st.v_pk_add_f32(v(sn, 2), v(sn, 2), v(vP + i, 2))
    st.v_add_f32(v(sp), v(sp), v(sp + 1))
    st.v_add_f32(v(sn), v(sn), v(sn + 1))
    st.v_rcp_f32(v(sp), v(sp))
    st.v_rcp_f32(v(sn), v(sn))
    def wr(q):
        if write: st.ds_write_b128(v(vFA), v(vPK + 4 * q, 4), mods='offset:%d' % (16 * q))
    for i in range(0, 20, 2): st.v_pk_mul_f32(v(vEP + i, 2), v(vEP + i, 2), v(sp, 2), mods='op_sel_hi:[1,0]')
    for i in range(10):
        st.v_cvt_pk_bf16_f32(v(vPK + order[i]), v(vEP + 2 * i), v(vEP + 2 * i + 1))
        if i == 3: wr(0)
    for i in range(0, 20, 2):
        st.v_pk_mul_f32(v(vP + i, 2), v(vP + i, 2), v(sn, 2), mods='op_sel_hi:[1,0]')
        if i == 6: wr(1)
    for i in range(10):
        st.v_cvt_pk_bf16_f32(v(vPK + order[10 + i]), v(vP + 2 * i), v(vP + 2 * i + 1))
        if i == 2: wr(2)
    wr(3); wr(4)

m_ = Stream()
for tt in range(2):
    for X in range(3): ln_pack(m_, X, tt, vBK + 6 * tt + 2 * X)
k.add(m_)
vVP = vAF + 20; vK1 = vAF + 30
m_ = Stream(); feature_map(m_)
f_ = Stream()
f_.v_cmp_lt_u32('vcc', 1, v(vG))
f_.v_mov_b32(v(t1), 0x3f80)
for tt in range(2):
    f_.v_cndmask_b32(v(vK1 + 2 * tt), v(t1), v(vBK + 6 * tt + 2), 'vcc')
    f_.v_cndmask_b32(v(vK1 + 2 * tt + 1), 0, v(vBK + 6 * tt + 3), 'vcc')
    f_.ds_write_b64(v(vK1A), v(vK1 + 2 * tt, 2), mods='offset:%d' % (200 + tt * 16 * 288))
for tt in range(2):
    for h in range(2):
        ln_pack(f_, 3 + h, tt, vVP + 4 * tt + 2 * h, pk=False)
        f_.ds_write_b64(v(vVA), v(vVP + 4 * tt + 2 * h, 2), mods='offset:%d' % (160 + 48 * h + tt * 16 * 288))
k.add(pack(m_, [(f_, 0, None)]))
m_ = Stream(); softmax2(m_, list(range(20)), True)
f_ = Stream()
if OPT['ql']: issue_q(f_, 0, OPT['qe'])
k.add(weave(m_, [(f_, OPT['qlat'], 165, 'vmem')], anchor='any'))
if OPT['stop'] == 1:
    dump(k, [v(vBK, 4), v(vBK + 4, 4), v(vBK + 8, 4), v(vVP, 4), v(vVP + 4, 4), v(vST, 4)] + [v(vPK + 4 * i, 4) for i in range(5)])
    finish(k)
k.waitvm('Q%d' % (min(OPT['qe'], 2) - 1 if OPT['ql'] else OPT['qe'] - 1))
if OPT['pe']: k.waitvm('prep3')
k.waitlds()
k.s_barrier()
stamp(k, 'phik')
vKVA = vACC; vKVB = vACC + 48; vKVD = vE + 4
def kvm_reads(st, ks):
    off = 32 * ks * 288
    for i in range(2):
        st.ds_read_b64_tr_b16(v(vKVB + 4 * ks + 2 * i, 2), v(vKB), mods='offset:%d' % (off + 16 * i * 288))
    for ft in range(3):
        for i in range(2):
            st.ds_read_b64_tr_b16(v(vKVA + (ks * 3 + ft) * 4 + 2 * i, 2), v(vKA), mods='offset:%d' % (off + 16 * i * 288 + 32 * ft))
kvm_reads(k, 0); kvm_reads(k, 1)
k.s_lshl_b32(s(sT), s(sC), 4); k.s_add_u32(s(sT), s(sT), s(sR)); k.s_mul_i32(s(sT), s(sT), 3584)
k.s_add_u32(s(sT), s(sT), WS_PART)
m_ = Stream()
for ks in range(4):
    for ft in range(3):
        mfma(m_, v(vKVD + 4 * ft, 4), v(vKVA + (ks * 3 + ft) * 4, 4), v(vKVB + 4 * ks, 4), ks == 0)
f_ = Stream(); kvm_reads(f_, 2); kvm_reads(f_, 3)
k.add(weave(m_, [(f_, 0, 6)]))
vKVP = vE + 16
for i in range(6): k.v_cvt_pk_bf16_f32(v(vKVP + i), v(vKVD + 2 * i), v(vKVD + 2 * i + 1))
k.buffer_store_dwordx4(v(vKVP, 4), v(vPS), srd(S_WS), s(sT), mods='offen sc1')
k.buffer_store_dwordx2(v(vKVP + 4, 2), v(vPS + 1), srd(S_WS), s(sT), mods='offen sc1', tag='part')
stamp(k, 'kvst')

def qbuf(b, X): return vAF + b * 12 + X * 4
def q_reads(st, ks):
    for X in range(3): st.ds_read_b128(v(qbuf(ks & 1, X), 4), v(vKV2 + 1), mods='offset:%d' % (ks * 3072 + X * 1024))
PLQ = [88 + 4 * i for i in range(4)] + [140 + 4 * i for i in range(10)] + [248, 252]
def issue_part(st):
    for r_ in range(16):
        if r_: st.s_add_u32(s(sPL), s(sPL), 3584)
        st.buffer_load_dwordx4(v(PLQ[r_], 4), v(vPLO), srd(S_WS), s(sPL), mods='offen sc1')
q_reads(k, 0)
m_ = Stream()
for X in range(3): mfma(m_, v(acc(X, 2), 4), a(aCSQ + 4 * X, 4), v(vONE, 4), True)
for ks in range(20):
    mm = Stream()
    for X in range(3):
        A = v(qbuf(ks & 1, X), 4)
        mfma(mm, v(acc(X, 0), 4), A, xf(ks, 0), ks == 0)
        mfma(mm, v(acc(X, 1), 4), A, xf(ks, 1), ks == 0)
    ff = Stream()
    if ks < 19: q_reads(ff, ks + 1)
    m_.add(weave(mm, [(ff, 0, 6)]))
QP = OPT['qpost']
assert QP >= 3 + 6 * 4
fp = Stream(); stamp(fp, 'q_a'); fp.waitvm('part' if OPT['qe'] > 2 else 'Q2'); stamp(fp, 'q_b'); fp.s_barrier(); post(fp, F_KV)
NW3 = 0
W3ORD = [t * 20 + 4 * b_ + j_ for b_ in range(5) for t in range(3) for j_ in range(4)]
QP2 = OPT['qpost2']
fr = Stream(); prep_reads(fr, 0, vE + 4); prep_reads(fr, 1, vE + 24)
fs = Stream(); prep_stores(fs, 0, vE + 4); prep_stores(fs, 1, vE + 24)
fc = Stream()
vCA, vCD = vE + 32, vE + 52
for t in range(4):
    fc.v_cmp_eq_u32(s(sT + 4, 2), t if t < 3 else v(vG), v(vR4))
    for i in range(4): fc.v_cndmask_b32(v(vCA + i), 0, v(vONE), s(sT + 4, 2))
    mfma(fc, v(vCD, 4), v(vCA, 4), v(vE + 4 + 4 * t, 4), t == 0)
fc.v_lshlrev_b32(v(t0), 8, v(vG)); fc.v_mul_u32_u24(v(t0), 3, v(t0)); fc.v_add_u32(v(t0), v(t0), v(PA[2]))
fc.v_mov_b32(v(t1), OOB)
fc.v_cmp_gt_u32(s(sT + 4, 2), 3, v(vG))
fc.s_mul_i32(s(sE), s(sC), 12288); fc.s_mul_i32(s(sF), s(sW), 3072); fc.s_add_u32(s(sE), s(sE), s(sF))
fc.v_cndmask_b32(v(t0), v(t1), v(t0), s(sT + 4, 2))
fc.s_lshr_b32(s(sF), s(sR), 2); fc.s_lshl_b32(s(sF), s(sF), 8); fc.s_add_u32(s(sE), s(sE), s(sF))
fc.v_cvt_pk_bf16_f32(v(vCD + 1), v(vCD), v(vCD))
fc.s_and_b32(s(sF), s(sR), 3); fc.s_lshl_b32(s(sF), s(sF), 2); fc.s_add_u32(s(sE), s(sE), s(sF))
fc.v_lshlrev_b32(v(vCD + 1), 16, v(vCD + 1))
fc.v_sub_f32(v(vCD + 1), v(vCD), v(vCD + 1))
fc.v_cvt_pk_bf16_f32(v(vCD + 1), v(vCD), v(vCD + 1))
fc.s_add_u32(s(sE), s(sE), WS_CS3)
fc.buffer_store_dword(v(vCD + 1), v(t0), srd(S_WS), s(sE), mods='offen sc1', tag='prepst3')
fq = Stream(); stamp(fq, 'q_c'); fq.waitvm('prepst3'); stamp(fq, 'q_d'); fq.s_barrier(); post(fq, F_PREP)
f2 = Stream(); flag_check(f2, vF3, vFA1, sD); issue_w2(f2, 0, OPT['w2q'])
f4 = Stream(); flag_issue(f4, vF2, vFC, sFK)
fqq = Stream(); issue_q(fqq, OPT['qe'], 5)
fb3 = Stream(); fb3.waitvm('Q3'); fb3.s_barrier()
fb4 = Stream(); fb4.waitvm('Q4'); fb4.s_barrier()
fz = Stream()
for i in range(2): fz.v_mov_b32(v(52 + i), 0)
for i in range(2): fz.ds_write_b64(v(vT16), v(52, 2), mods='offset:%d' % (L_ZERO - L_KVR + 8 * i))
PB = 0 if OPT['pe'] else QP + 1
fl = [(fqq, 0, 34, 'vmem'), (fb3, 67, 68, 'vmem'), (fb4, 91, 92, 'vmem'), (fp, QP, QP + 1, 'vmem'), (fr, PB, PB + 9), (fs, PB + 10, PB + 10 + OPT['psl'], 'vmem'),
      (fc, PB + 11 + OPT['psl'], PB + 33 + OPT['psl']), (f2, OPT['w2at'], 122, 'vmem'), (fz, 100, 120)]
if OPT['pe']: fl.append((fq, OPT['pe'], OPT['pe'] + 1, 'vmem')); fq = Stream()
m_ = pack(m_, fl)
f4b = f4
print('q gemm est', m_.est)
k.add(m_)
stamp(k, 'qgemm')
m_ = Stream()
for tt in range(2):
    for X in range(3): ln_pack(m_, X, tt, vBK + 6 * tt + 2 * X)
feature_map(m_)
order = [0] * 20
for s_ in range(4):
    order[2 * s_] = 4 * s_; order[2 * s_ + 1] = 4 * s_ + 1; order[8 + 2 * s_] = 4 * s_ + 2; order[9 + 2 * s_] = 4 * s_ + 3
for i in range(16, 20): order[i] = i
softmax2(m_, order)
f5 = Stream(); stamp(f5, 'q_e'); flag_check(f5, vF2, vFC, sFK); stamp(f5, 'q_f'); issue_part(f5)
N2 = min(25, OPT['w2q'] + OPT['w2s'])
f6 = Stream(); issue_w2(f6, OPT['w2q'], N2)
if OPT['w3u']: flag_issue(f6, vF1, vFA1, sFP)
k.add(weave(m_, [(f5, OPT['qpl'], OPT['qpl'] + OPT['qpn'], 'vmem'), (f6, OPT['qpl'] + OPT['qpn'] + 2, None, 'vmem'), (f4b, OPT['qpl'] - 60, OPT['qpl'] - 59, 'vmem'), (fq, QP2, QP2 + 1, 'vmem')], anchor='any'))
stamp(k, 'phiq')
if OPT['stop'] == 2:
    k.waitvm(); k.s_barrier()
    dump(k, [v(vPK + 4 * i, 4) for i in range(5)])
    finish(k)

vSUM = vE
m_ = Stream()
for r_ in range(16):
    for i in range(4):
        if r_ == 0:
            m_.v_lshlrev_b32(v(vSUM + 2 * i), 16, v(PLQ[0] + i))
            m_.v_and_b32(v(vSUM + 2 * i + 1), 0xffff0000, v(PLQ[0] + i))
        else:
            m_.v_dot2_f32_bf16(v(vSUM + 2 * i), v(PLQ[r_] + i), s(sONE_LO), v(vSUM + 2 * i))
            m_.v_dot2_f32_bf16(v(vSUM + 2 * i + 1), v(PLQ[r_] + i), s(sONE_HI), v(vSUM + 2 * i + 1))
N3 = min(25, N2 + OPT['w2u'])
f_ = Stream(); issue_w2(f_, N2, N3); N2 = N3
if OPT['w3u']: flag_check(f_, vF1, vFA1, sFP); issue_w3(f_, W3ORD[:OPT['w3u']]); NW3 = OPT['w3u']
else: flag_issue(f_, vF1, vFA1, sFP)
if OPT['tagB']:
    f_.s_lshl_b32(s(sD), s(sR), 11); f_.s_add_u32(s(sD), s(sD), WS_FLAGS + F_KV * 32768); flag_issue(f_, vF3, vFR, sD)
k.add(weave(m_, [(f_, OPT['w2uat'], None, 'vmem')], anchor='any'))
vOA = 104
for i in range(4): k.v_cvt_pk_bf16_f32(v(vSUM + 8 + i), v(vSUM + 2 * i), v(vSUM + 2 * i + 1))
k.ds_write_b128(v(vT16), v(vSUM + 8, 4))
k.waitlds()
k.s_barrier()
stamp(k, 'kvsum')
vOD = 224
vOP = 84
TORD = (5, 0, 1, 2, 3, 4)
def oread(st, n):
    s_, t = n // 6, TORD[n % 6]
    off = 256 * s_ + 64 * t if t < 4 else 1280 + 64 * (t - 4) + 80 * s_
    st.ds_read_b128(v(vOA + n * 4, 4), v(vKR), mods='offset:%d' % off)
for n in range(8): oread(k, n)
m_ = Stream()
for n in range(30):
    mfma(m_, v(vOD + 4 * TORD[n % 6], 4), v(vOA + n * 4, 4), v(vPK + 4 * (n // 6), 4), n < 6)
    if n + 8 < 30: oread(m_, n + 8)
N3 = min(25, N2 + OPT['w2o'])
f_ = Stream(); issue_w2(f_, N2, N3); N2 = N3
if OPT['w3o']:
    if not OPT['w3u']: flag_check(f_, vF1, vFA1, sFP)
    issue_w3(f_, W3ORD[NW3:NW3 + OPT['w3o']]); NW3 += OPT['w3o']
k.add(pack(m_, [(f_, 0, 26, 'vmem')]))
k.v_add_f32(v(vOD + 20), s(sEPS6), v(vOD + 20))
k.v_rcp_f32(v(vOD + 20), v(vOD + 20))
for i in range(10): k.v_pk_mul_f32(v(vOD + 2 * i, 2), v(vOD + 2 * i, 2), v(vOD + 20, 2), mods='op_sel_hi:[1,0]')
for i in range(10): k.v_cvt_pk_bf16_f32(v(vOP + i), v(vOD + 2 * i), v(vOD + 2 * i + 1))
if OPT['tagB']:
    for i in range(0, 10, 2): k.v_min_u32(v(vOP + i), -2, v(vOP + i))
o_store(k, vOP, vOP + 4, vOP + 8, 'ost')
stamp(k, 'ost')
vH = 18
vXRES = 252 - 10 * 0 - 0 if False else 28
vOF = 40
vA2 = 120
vD2 = 152
vA2P = 172
k.s_lshl_b32(s(sE), s(sW), 1); k.s_add_u32(s(sE), s(sE), s(sP))
k.s_lshl_b32(s(sT), s(sR), 3); k.s_add_u32(s(sF), s(sT), s(sE))
k.s_mul_i32(s(sXR), s(sF), 16 * 1280)
k.s_mul_i32(s(sT), s(sM), 160); k.s_add_u32(s(sXR), s(sXR), s(sT))
vXD = vD2 + 16
for e in range(3):
    k.v_add_u32(v(t0), 64 * e, v(vLANE)); div_small(k, t1, t0, 10)
    k.v_mul_u32_u24(v(t2), 10, v(t1)); k.v_sub_u32(v(t2), v(t0), v(t2))
    k.v_mul_u32_u24(v(vXD + e), 1280, v(t1)); k.v_lshl_add_u32(v(vXD + e), v(t2), 4, v(vXD + e))
    if e: k.v_subrev_u32(v(vXD + e), 1024 * e, v(vXD + e))
if OPT['tagB']: flag_check(k, vF3, vFR, sD)
else:
    k.waitvm('ost')
    k.s_barrier()
    post(k, F_O)
issue_w2(k, N2, 25)
k.s_mul_i32(s(sT + 2), s(sW), 3072)
k.s_add_u32('m0', s(sT + 2), L_XR)
for e in range(3): k.buffer_load_dwordx4(v(vXD + e), srd(S_X), s(sXR), mods='offen offset:%d lds' % (e * 1024), tag='xr')
k.v_mul_u32_u24(v(vXD), 160, v(vJ)); k.v_mul_u32_u24(v(t0), 40, v(vG)); k.v_add3_u32(v(vXD), v(vXD), v(t0), s(sT + 2))
k.v_add_u32(v(vXD), L_XR, v(vXD))
if OPT['tagD']:
    for i in range(4): k.v_mov_b32(v(vD2 + 8 + i), -1)
    k.v_mov_b32(v(t2), OOB)
    k.v_cmp_gt_u32('vcc', 3, v(vG))
    k.v_cndmask_b32(v(vD2 + 12), v(t2), v(vL16), 'vcc')
    k.s_mul_i32(s(sT + 4), s(sR), 8 * 49152); k.s_mul_i32(s(sT + 5), s(sC), 3072); k.s_add_u32(s(sT + 4), s(sT + 4), s(sT + 5))
    k.s_mul_i32(s(sT + 5), s(sW), 768); k.s_add_u32(s(sT + 4), s(sT + 4), s(sT + 5)); k.s_add_u32(s(sT + 4), s(sT + 4), WS_HH + 6 * 49152)
    k.buffer_store_dwordx4(v(vD2 + 8, 4), v(vD2 + 12), srd(S_WS), s(sT + 4), mods='offen sc1')
    k.s_add_u32(s(sT + 4), s(sT + 4), 49152)
    k.buffer_store_dwordx4(v(vD2 + 8, 4), v(vD2 + 12), srd(S_WS), s(sT + 4), mods='offen sc1')
stamp(k, 'opost')
if OPT['stop'] == 3: finish(k)

W3A = min(60, NW3 + OPT['w3a']); W3B = min(60, W3A + OPT['w3b'])
k.v_add_u32(v(t0), L_W2, v(vL16))
k.v_add_u32(v(t1), L_W2 + 61440, v(vL16))
k.v_mov_b32(v(38), v(vXD))
A2S = [vA2P + 4 * i for i in range(21)] + [vA2 + 4 * i for i in range(8)]
def a2read(st, i):
    st.ds_read_b128(v(A2S[i % 29], 4), v(t0 if i < 60 else t1), mods='offset:%d' % ((i if i < 60 else i - 60) * 1024))
if not OPT['w3o']: flag_check(k, vF1, vFA1, sFP)
k.s_mul_i32(s(sV), s(sF), 20480); k.s_add_u32(s(sV), s(sV), WS_O)
if OPT['asy']:
    k.s_lshl_b32(s(sV + 1), s(sR), 11); k.s_add_u32(s(sV + 1), s(sV + 1), WS_FLAGS + F_O * 32768)
    issue_w3(k, W3ORD[NW3:NW3 + 4])
    k.waitvm('xr'); k.s_barrier()
    issue_w3(k, W3ORD[NW3 + 4:W3A])
    if OPT['tagB']:
        k.v_mul_u32_u24(v(vD2 + 4), 1280, v(vJ)); k.v_lshl_add_u32(v(vD2 + 4), v(vG), 6, v(vD2 + 4)); k.v_add_u32(v(vD2 + 4), 1024, v(vD2 + 4))
        sent_issue(k, vD2, vD2 + 4, sV)
    else: flag_issue(k, vD2, vFR, sV + 1)
    issue_w3(k, W3ORD[W3A:W3A + OPT['w3a2']]); W3A += OPT['w3a2']; W3B = min(60, W3A + OPT['w3b'])
    for q in range(5): k.ds_read_b64(v(vXRES + 2 * q, 2), v(38), mods='offset:%d' % (8 * q))
    if OPT['tagB']:
        k.s_mov_b32(s(sRC), 64)
        sent_check(k, vD2, vD2 + 4, sV)
    else:
        for i in range(29): a2read(k, i)
        flag_check(k, vD2, vFR, sV + 1)
else:
    issue_w3(k, W3ORD[NW3:W3A])
    k.waitvm('xr')
    poll_row(k, F_O, vD2)
    k.s_barrier()
stamp(k, 'oflag')
def issue_o(st, lo, hi):
    for i in range(lo, hi):
        if i % 4 == 0 or i == lo: st.s_add_u32(s(sV + 1), s(sV), (i & ~3) * 1024)
        st.buffer_load_dwordx4(v(vOF + 4 * i, 4), v(vL16), srd(S_WS), s(sV + 1), mods='offen offset:%d sc1' % ((i % 4) * 1024))
if OPT['tagB']: k.label('L_g2')
issue_o(k, 0, 10)
if OPT['tagB']:
    for i in range(29): a2read(k, i)
if not OPT['asy']:
    for i in range(29): a2read(k, i)
    for q in range(5): k.ds_read_b64(v(vXRES + 2 * q, 2), v(38), mods='offset:%d' % (8 * q))
vHA = 36
for i in range(10):
    k.v_lshlrev_b32(v(vD2 + 2 * i), 16, v(vXRES + i)); k.v_and_b32(v(vD2 + 2 * i + 1), 0xffff0000, v(vXRES + i))
k.v_lshrrev_b32(v(vHA), 1, v(vG)); k.v_mul_u32_u24(v(vHA), 1280, v(vHA))
k.v_lshl_add_u32(v(vHA), v(vJ), 4, v(vHA))
k.v_and_b32(v(vHA + 2), 1, v(vG))
k.v_lshl_add_u32(v(vHA + 1), v(vHA + 2), 3, v(vHA))
k.v_lshl_add_u32(v(vHA), v(vHA + 2), 9, v(vHA))
k.v_lshrrev_b32(v(vHA - 1), 1, v(vG)); k.v_lshlrev_b32(v(vHA - 1), 2, v(vHA - 1))
k.v_lshl_add_u32(v(vHA - 1), v(vJ), 3, v(vHA - 1))
k.v_cmp_eq_u32('vcc', 0, v(vHA + 2))
k.v_mov_b32(v(vHA + 2), OOB)
k.v_cndmask_b32(v(vHA - 1), v(vHA + 2), v(vHA - 1), 'vcc')
k.s_mul_i32(s(sT + 2), s(sF), 20480); k.s_mul_i32(s(sT + 1), s(sM), 2560); k.s_add_u32(s(sT + 2), s(sT + 2), s(sT + 1))
k.s_add_u32(s(sT + 2), s(sT + 2), WS_H)
k.s_lshl_b32(s(sT + 3), s(sF), 10); k.s_lshl_b32(s(sT + 1), s(sM), 7); k.s_add_u32(s(sT + 3), s(sT + 3), s(sT + 1))
k.s_add_u32(s(sT + 3), s(sT + 3), WS_HST)
m_ = Stream()
nxt = 29
for i in range(100):
    ks, t = divmod(i, 5)
    mfma(m_, v(vD2 + 4 * t, 4), v(A2S[i % 29], 4), v(vOF + 4 * ks, 4), False)
    if OPT['tagB'] and i % 4 == 1 and i // 4 < 20 and False: pass
    if nxt < 100 and i % 4 != 3 - 0 and nxt - 29 <= i: a2read(m_, nxt); nxt += 1
    elif nxt < 100 and nxt - i <= 10: a2read(m_, nxt); nxt += 1
assert nxt == 100
if OPT['tagB']:
    mk = Stream(); cnt = 0
    for x in m_.l:
        mk.l.append(x)
        if x.cls == 'mfma':
            if cnt % 5 == 1:
                q = cnt // 5
                if q == 0: mk.v_max_u32(v(39), v(vOF), v(vOF + 2))
                else: mk.v_max3_u32(v(39), v(39), v(vOF + 4 * q), v(vOF + 4 * q + 2))
            cnt += 1
    for n in range(len(mk.l) - 1):
        if mk.l[n].cls == 'valu' and mk.l[n + 1].cls == 'ldsr': mk.l[n], mk.l[n + 1] = mk.l[n + 1], mk.l[n]
    m_ = mk
f1 = Stream(); issue_o(f1, 10, 20)
f2 = Stream(); issue_w3(f2, W3ORD[W3A:W3B])
m_ = pack(m_, [(f1, 0, 40, 'vmem'), (f2, 44, OPT['g2e'], 'vmem')]); print('gemm2 est', m_.est)
k.add(m_)
if OPT['tagB']: redo_check(k, 39, 'L_g2')
stamp(k, 'gemm2')
for i in range(10): k.v_cvt_pk_bf16_f32(v(vH + i), v(vD2 + 2 * i), v(vD2 + 2 * i + 1))
def h_store(st, unt):
    st.buffer_store_dwordx4(v(vH, 4), v(vHA), srd(S_WS), s(sT + 2), mods='offen sc1', untracked=unt)
    st.buffer_store_dwordx4(v(vH + 4, 4), v(vHA), srd(S_WS), s(sT + 2), mods='offen offset:256 sc1', untracked=unt)
    st.buffer_store_dwordx2(v(vH + 8, 2), v(vHA + 1), srd(S_WS), s(sT + 2), mods='offen offset:1024 sc1', tag='hdat', untracked=unt)
if OPT['h0'] == 2:
    k.s_cmp_lg_u32(s(sW), 0); k.s_cbranch_scc1('L_h1'); k.cond_begin(); h_store(k, True); k.cond_end(); k.label('L_h1')
else: h_store(k, False)
sS, sQ, sY = vD2, vD2 + 1, vD2 + 2
k.v_mov_b32(v(sS), 0); k.v_mov_b32(v(sQ), 0)
for i in range(10):
    k.v_dot2_f32_bf16(v(sS), v(vH + i), s(sONES), v(sS))
    k.v_dot2_f32_bf16(v(sQ), v(vH + i), v(vH + i), v(sQ))
k.v_permlane32_swap_b32(v(sS), v(sQ))
k.v_add_f32(v(sS), v(sS), v(sQ))
k.v_mov_b32(v(sY), v(sS))
k.v_permlane16_swap_b32(v(sS), v(sY))
k.v_add_f32(v(sS), v(sS), v(sY))
if OPT['h0'] == 2:
    k.s_cmp_eq_u32(s(sW), 0); k.s_cbranch_scc1('L_h2'); h_store(k, False); k.label('L_h2'); k.s_nop(1)
k.buffer_store_dword(v(sS), v(vHA - 1), srd(S_WS), s(sT + 3), mods='offen sc1', tag='hst')
stamp(k, 'hst')

vL8 = 111
vCS = 28
vD3 = 40
vB3 = 64
vS3 = 88
vG3 = 92
vFL = 104
vRA = 108
vW4 = 112
sW4, sW4t, sW4l, sHs, sHl, sHt, sHS, sHH, sHHt, sHL, sHLt, sFH, sFHt = sB, sV, sXO, sXO + 1, sXO + 2, sV + 1, sV + 2, sD, sV + 4, sXO + 5, sV + 5, sXO + 4, sV + 6
k.s_mul_i32(s(sW4), s(sM), 245760); k.s_mul_i32(s(sT + 1), s(sW), 61440); k.s_add_u32(s(sW4), s(sW4), s(sT + 1))
k.s_add_u32(s(sW4), s(sW4), WS_W4)
k.s_mul_i32(s(sW4l), s(sW), 24576)
def issue_w4(st, lo, hi):
    for i in range(lo, hi):
        if i % 4 == 0 or i == lo: st.s_add_u32(s(sW4t), s(sW4), (i & ~3) * 1024)
        if i < 36:
            st.buffer_load_dwordx4(v(vW4 + 4 * i, 4), v(vL16), srd(S_WS), s(sW4t), mods='offen offset:%d sc1' % ((i & 3) * 1024))
        else:
            if i % 4 == 0 or i == lo: st.s_add_u32('m0', s(sW4l), L_W4 + ((i - 36) & ~3) * 1024)
            st.buffer_load_dwordx4(v(vL16), srd(S_WS), s(sW4t), mods='offen offset:%d sc1 lds' % ((i & 3) * 1024), tag='W4')
W3C = min(60, W3B + OPT['w3c']); W3E = 60 - OPT['w3t']
k.s_mul_i32(s(sT + 2), s(sC), 12288); k.s_mul_i32(s(sT + 3), s(sW), 3072); k.s_add_u32(s(sT + 2), s(sT + 2), s(sT + 3))
k.s_add_u32(s(sT + 2), s(sT + 2), WS_CS3)
issue_w3(k, W3ORD[W3B:W3C])
for i in range(4): k.v_mov_b32(v(vB3 + i), 0x3f803f80)
if OPT['h0']: k.waitvm('hdat'); post(k, F_H0)
k.waitvm('hst'); k.waitlds(); k.s_barrier(); post(k, F_H)
W4A = OPT['w4a']
stamp(k, 'hpost')
for t in range(3): k.buffer_load_dwordx4(v(vD3 + 4 * t, 4), v(vL16), srd(S_WS), s(sT + 2), mods='offen offset:%d sc1' % (t * 1024))
W3D = max(W3C, W3E - OPT['w3c2']) if OPT['asy'] else W3E
issue_w3(k, W3ORD[W3C:W3D])
for t in range(3): mfma(k, v(vCS + 4 * t, 4), v(vD3 + 4 * t, 4), v(vB3, 4), True)
stamp(k, 'colsum')
if OPT['stop'] == 4: finish(k)
k.s_mul_i32(s(sHl), s(sW), 5120)
k.s_mul_i32(s(sHs), s(sR), 163840); k.s_add_u32(s(sHs), s(sHs), s(sHl))
k.s_add_u32(s(sHs), s(sHs), WS_H)
k.v_lshlrev_b32(v(t0), 9, v(vG))
k.v_lshl_add_u32(v(t0), v(vJ), 3, v(t0))
k.s_lshl_b32(s(sHS), s(sR), 13); k.s_lshl_b32(s(sT + 1), s(sW), 11); k.s_add_u32(s(sHS), s(sHS), s(sT + 1))
k.s_add_u32(s(sHS), s(sHS), WS_HST)
k.v_add_u32(v(vRA), L_RING, v(vL16))
k.v_lshrrev_b32(v(vL8), 1, v(vL16))
k.v_lshlrev_b32(v(vRA + 1), 4, v(vJ)); k.v_add_u32(v(vRA + 1), L_ST, v(vRA + 1))
k.v_mov_b32(v(t2), OOB)
k.v_cmp_gt_u32('vcc', 3, v(vG))
k.v_cndmask_b32(v(vRA + 2), v(t2), v(vL16), 'vcc')
k.s_mul_i32(s(sHH), s(sR), 8 * 49152); k.s_mul_i32(s(sT), s(sC), 3072); k.s_add_u32(s(sHH), s(sHH), s(sT))
k.s_mul_i32(s(sT), s(sW), 768); k.s_add_u32(s(sHH), s(sHH), s(sT)); k.s_add_u32(s(sHH), s(sHH), WS_HH)
k.s_lshl_b32(s(sT), s(sR), 3); k.s_add_u32(s(sT), s(sT), s(sP)); k.s_mul_i32(s(sHL), s(sT), 49152)
k.s_mul_i32(s(sT), s(sW), 12288); k.s_add_u32(s(sHL), s(sHL), s(sT)); k.s_add_u32(s(sHL), s(sHL), WS_HH)
k.s_lshl_b32(s(sFH), s(sR), 11); k.s_add_u32(s(sFH), s(sFH), WS_FLAGS + F_HH * 32768)
if OPT['asy']:
    k.s_lshl_b32(s(sV + 6), s(sR), 11); k.s_add_u32(s(sV + 6), s(sV + 6), WS_FLAGS + (F_H0 if OPT['h0'] else F_H) * 32768)
    flag_issue(k, vG3, vFR, sV + 6)
    issue_w3(k, W3ORD[W3D:W3E])
    issue_w4(k, 0, W4A)
    flag_check(k, vG3, vFR, sV + 6)
else:
    issue_w4(k, 0, W4A)
    poll_row(k, F_H, vG3)
    k.s_barrier()
if OPT.get('slp'): k.s_sleep(OPT['slp'])
stamp(k, 'hflag')
def issue_h(st, T):
    for i in range(5):
        if i % 4 == 0: st.s_add_u32('m0', s(sHl), L_RING + (T % 3) * 20480 + (i & 4) * 1024)
        if i % 4 == 0: st.s_add_u32(s(sHt), s(sHs), T * 20480 + i * 1024)
        st.buffer_load_dwordx4(v(vL16), srd(S_WS), s(sHt), mods='offen offset:%d sc1 lds' % ((i & 3) * 1024), tag='h%d' % T)
issue_h(k, 0)
issue_w3(k, W3ORD[W3E:W3E + 4])
issue_h(k, 1)
def stats3_load(st):
    for i in range(4): st.buffer_load_dwordx2(v(vG3 + 2 * i, 2), v(t0), srd(S_WS), s(sHS), mods='offen offset:%d sc1' % (128 * i))
if OPT['h0']:
    k.s_add_u32(s(sV + 6), s(sV + 6), (F_H - F_H0) * 32768); flag_issue(k, vFL, vFR, sV + 6)
else: stats3_load(k)
def stats3(st):
    st.v_add_f32(v(vG3), v(vG3), v(vG3 + 2)); st.v_add_f32(v(vG3 + 1), v(vG3 + 1), v(vG3 + 3))
    st.v_add_f32(v(vG3 + 4), v(vG3 + 4), v(vG3 + 6)); st.v_add_f32(v(vG3 + 5), v(vG3 + 5), v(vG3 + 7))
    st.v_add_f32(v(vG3), v(vG3), v(vG3 + 4)); st.v_add_f32(v(vG3 + 1), v(vG3 + 1), v(vG3 + 5))
    st.v_mov_b32(v(vG3 + 2), v(vG3)); st.v_mov_b32(v(vG3 + 3), v(vG3 + 1))
    st.v_lshrrev_b32(v(t0), 1, v(vG)); st.v_lshlrev_b32(v(t0), 8, v(t0))
    for i in range(2): st.v_permlane16_swap_b32(v(vG3 + i), v(vG3 + 2 + i))
    for i in range(2): st.v_add_f32(v(vG3 + i), v(vG3 + i), v(vG3 + 2 + i))
    st.v_mul_f32(v(vG3), s(sINV640), v(vG3))
    st.v_mul_f32(v(vG3 + 1), s(sINV640), v(vG3 + 1))
    st.v_fma_f32(v(vG3 + 1), '-' + v(vG3), v(vG3), v(vG3 + 1))
    st.v_max_f32(v(vG3 + 1), 0, v(vG3 + 1))
    st.v_add_f32(v(vG3 + 7), s(sEPS), v(vG3 + 1))
    st.v_sub_f32(v(vG3 + 4), 0, v(vG3))
    st.v_rsq_f32(v(vG3 + 2), v(vG3 + 7))
    st.v_lshl_add_u32(v(t0), v(vJ), 4, v(t0))
    st.v_mul_f32(v(vG3 + 5), s(sK1), v(vG3 + 2))
    st.v_mul_f32(v(vG3 + 3), v(vG3 + 2), v(vG3 + 2))
    st.v_mul_f32(v(vG3 + 6), s(sK3), v(vG3 + 2))
    st.v_mul_f32(v(vG3 + 6), v(vG3 + 6), v(vG3 + 3))
    st.s_lshl_b32(s(sT), s(sW), 9); st.s_add_u32(s(sT), s(sT), L_ST)
    st.v_add_u32(v(t0), s(sT), v(t0))
    st.ds_write_b128(v(t0), v(vG3 + 4, 4))
def epi3(st, T):
    D = vD3 + 12 * (T & 1)
    nm, c1, c3, vr = v(vS3), v(vS3 + 1), v(vS3 + 2), v(vS3 + 3)
    for t in range(3):
        for e in range(2):
            g_, u_ = D + 4 * t + e, D + 4 * t + 2 + e
            x = vG3 + 4 + e
            st.v_fmac_f32(v(g_), nm, v(vCS + 4 * t + e))
            st.v_fmac_f32(v(u_), nm, v(vCS + 4 * t + 2 + e))
            st.v_mul_f32(v(x), v(g_), v(g_))
            st.v_mul_f32(v(u_), v(g_), v(u_))
            st.v_fma_f32(v(x), v(x), c3, c1)
            st.v_mul_f32(v(x), v(x), v(g_))
            st.v_exp_f32(v(x), v(x))
        for e in range(2):
            x = vG3 + 4 + e
            st.v_fma_f32(v(x), v(x), vr, vr)
            st.v_rcp_f32(v(x), v(x))
        for e in range(2):
            u_ = D + 4 * t + 2 + e
            st.v_mul_f32(v(u_), v(u_), v(vG3 + 4 + e))
        st.v_cvt_pk_bf16_f32(v(vG3 + t), v(D + 4 * t + 2), v(D + 4 * t + 3))
        st.v_mov_b32(v(vG3 + 6 + t), v(vG3 + t))
    ta, tb, tc = vG3 + 6, vG3 + 7, vG3 + 8
    st.v_permlane16_swap_b32(v(ta), v(tb))
    st.v_permlane16_swap_b32(v(tc), v(vG3 + 3))
    st.s_add_u32(s(sHHt), s(sHH), T * 49152)
    if OPT['tagD'] and T >= 6: st.v_min_u32(v(vG3), -2, v(vG3)); st.v_min_u32(v(vG3 + 2), -2, v(vG3 + 2))
    st.v_permlane32_swap_b32(v(tb), v(vG3 + 3))
    st.buffer_store_dwordx4(v(vG3, 4), v(vRA + 2), srd(S_WS), s(sHHt), mods='offen sc1', tag='hh%d' % T)
def hhbuf(i, q): return a(80 * (i % 3) + 4 * q, 4)
def issue_hh(st, i, lo=0, hi=12):
    for q in range(lo, hi):
        if q % 4 == 0 or q == lo: st.s_add_u32(s(sHLt), s(sHL), i * 2 * 49152 + (q & ~3) * 1024)
        st.buffer_load_dwordx4(hhbuf(i, q), v(vL16), srd(S_WS), s(sHLt), mods='offen offset:%d sc1' % ((q & 3) * 1024))
def hflag_issue(st, n):
    st.s_add_u32(s(sFHt), s(sFH), n * 32768); flag_issue(st, vFL + 2 * (n & 1), vFR, sFHt)
def hflag_check(st, n):
    st.s_add_u32(s(sFHt), s(sFH), n * 32768); flag_check(st, vFL + 2 * (n & 1), vFR, sFHt)

W4L = OPT['w4l']
rem = W4L - W4A
w4sched = [W4A, W4A + OPT['w40']] + [W4A + OPT['w40'] + ((rem - OPT['w40']) * i) // 6 for i in range(1, 7)] + [W4L]
NB = 6
def b3read(st, T, ks):
    n = T * 20 + ks
    st.ds_read_b128(v(vB3 + 4 * (n % NB), 4), v(vRA), mods='offset:%d' % ((T % 3) * 20480 + ks * 1024), tag='b%d' % n)
k.waitvm('h0')
k.s_barrier()
for ks in range(4): b3read(k, 0, ks)
if OPT['h0']: flag_check(k, vFL, vFR, sV + 6); stats3_load(k)
for T in range(8):
    stamp(k, 'g3t%d' % T)
    m_ = Stream()
    if T > 0: m_.ds_read_b128(v(vS3, 4), v(vRA + 1), mods='offset:%d' % ((T - 1) * 256))
    for ks in range(20):
        n = T * 20 + ks
        if ks == 14 and T < 7:
            m_.waitvm('h%d' % (T + 1))
            if T == 5: m_.waitvm('hh3')
            if T == 0: m_.waitlds()
            m_.s_barrier()
            if T == 5: post(m_, F_HH)
        for t in range(3):
            mfma(m_, v(vD3 + 12 * (T & 1) + 4 * t, 4), a((t * 20 + ks) * 4, 4), v(vB3 + 4 * (n % NB), 4), ks == 0)
            if t == 0 and n + 4 < 160: b3read(m_, (n + 4) // 20, (n + 4) % 20)
            if t == 2 and ks % 2 == 1 and n + 2 < 160: m_.waitlds('b%d' % (n + 2))
        if ks == 8 and T == 7:
            m_.waitvm('hh5'); m_.s_barrier(); post(m_, F_HH + 1)
    fh = Stream()
    if T <= 5: issue_h(fh, T + 2)
    fv = Stream()
    if T == 0: issue_w3(fv, W3ORD[W3E + 4:60])
    if not OPT.get('now4'): issue_w4(fv, w4sched[T], w4sched[T + 1])
    fe = Stream()
    if T > 0 and OPT.get('noe'):
        fe.s_add_u32(s(sHHt), s(sHH), (T - 1) * 49152); fe.buffer_store_dwordx4(v(vG3, 4), v(vRA + 2), srd(S_WS), s(sHHt), mods='offen sc1', tag='hh%d' % (T - 1))
    elif T > 0: epi3(fe, T - 1)
    else: stats3(fe)
    fills = [(fv, 0, 40, 'vmem'), (fh, 43, 60, 'vmem'), (fe, 2 if T else (24 if OPT['h0'] else 12), 56 if T else 41)]
    if T == 7:
        f1 = Stream(); hflag_issue(f1, 0); fills.append((f1, 0, 1, 'vmem'))
        f2 = Stream(); hflag_check(f2, 0); issue_hh(f2, 0, 0, 9); fills.append((f2, 28, 60, 'vmem'))
    m_ = pack(m_, fills); print('g3 tile', T, 'est', m_.est)
    k.add(m_)
stamp(k, 'g3end')
def w4a(i): return a(80 * ((i - 36) // 8) + 48 + 4 * ((i - 36) % 8), 4)
k.ds_read_b128(v(vS3, 4), v(vRA + 1), mods='offset:%d' % (7 * 256))
k.v_add_u32(v(t0), s(sW4l), v(vL16))
k.waitvm('W4')
if OPT['stop'] == 5:
    epi3(k, 7); k.waitvm('hh7'); k.waitlds(); k.s_barrier(); post(k, F_HH + 2); finish(k)

vD4 = [64, 40]
def w4frag(i): return v(vW4 + 4 * i, 4) if i < 36 else w4a(i)
vRW = 84; vRR = 85; vOW = 86; vOR = 87; vOS = 88
QS = W4L // 5
def seg4(st, i, lo, hi):
    for q in range(lo, hi):
        for t in range(5): mfma(st, v(vD4[i & 1] + 4 * t, 4), w4frag(q * 5 + t), hhbuf(i, q), q == 0)
def red_write(st, i):
    for t in range(10): st.ds_write_b64(v(vRW), v(vD4[i & 1] + 2 * t, 2), mods='offset:%d' % (L_RED + i * 20480 + t * 512))
def issue_w4r(st, lo, hi):
    for i in range(lo, hi):
        if i % 4 == 0 or i == lo: st.s_add_u32(s(sW4t), s(sW4), (i & ~3) * 1024)
        st.buffer_load_dwordx4(w4a(i), v(vL16), srd(S_WS), s(sW4t), mods='offen offset:%d sc1' % ((i & 3) * 1024))
m_ = Stream(); seg4(m_, 0, 0, QS); seg4(m_, 1, 0, QS); seg4(m_, 0, QS, 12); seg4(m_, 1, QS, 12)
fe = Stream(); epi3(fe, 7)
fw = Stream()
for n in range(36, W4L): fw.ds_read_b128(w4a(n), v(t0), mods='offset:%d' % (L_W4 + (n - 36) * 1024))
fw.s_mul_i32(s(sT + 2), s(sW), 5120)
fw.v_add_u32(v(vRW), s(sT + 2), v(vL8))
fw.s_mul_i32(s(sT + 2), s(sW), 20480)
fw.v_add_u32(v(vRR), s(sT + 2), v(vL8))
fv = Stream()
if QS <= 9:
    issue_hh(fv, 1, 0, QS); issue_w4r(fv, W4L, W4L + 5); hflag_issue(fv, 1); issue_hh(fv, 0, 9, 12); issue_w4r(fv, W4L + 5, 60); issue_hh(fv, 1, QS, 12)
else:
    issue_hh(fv, 0, 9, 12); issue_hh(fv, 1, 0, 6); hflag_issue(fv, 1); issue_hh(fv, 1, 6, QS); issue_w4r(fv, W4L, 60); issue_hh(fv, 1, QS, 12)
fv2 = Stream(); hflag_check(fv2, 1); issue_hh(fv2, 2, 0, OPT['h2a'])
fp = Stream()
if OPT['tagD']: fp.waitlds(); fp.s_barrier()
else: fp.waitvm('hh7'); fp.waitlds(); fp.s_barrier(); post(fp, F_HH + 2)
fr0 = Stream(); red_write(fr0, 0)
e1 = OPT['v4end']
m_ = pack(m_, [(fe, 0, OPT['e7end']), (fw, 8, 34 + (W4L - 45) // 2), (fv, 0, e1, 'vmem'), (fp, OPT['p4post'], OPT['p4post'] + 1, 'vmem'), (fv2, e1, 120, 'vmem'),
               (fr0, 120 - 5 * (12 - QS) + 2 if QS < 12 else 64, 120 if QS < 12 else 110, 'vmem1')])
print('g4 tiles 0,1 est', m_.est)
stamp(k, 'g4t0'); k.add(m_)
if OPT['fin']:
    L_HS = L_RING; L_OI = L_RING + 10240
    vFR_, vFH, vFW, vFW2, vFS, vFO, vFD = 85, 86, 87, 88, 89, 90, 28
    sOB = sXO + 1
    fa = Stream()
    fa.s_mul_i32(s(sT + 2), s(sW), 2560); fa.s_add_u32(s(sT + 2), s(sT + 2), L_HS)
    fa.v_lshrrev_b32(v(t0), 1, v(vL8)); fa.v_add_u32(v(t1), s(sT + 2), v(t0))
    for q in range(10): fa.ds_write_b32(v(t1), v(vH + q), mods='offset:%d' % (q * 256))
    fa.s_lshl_b32(s(sT + 2), s(sW), 9)
    fa.v_add_u32(v(vFR_), s(sT + 2), v(vL8))
    fa.s_lshl_b32(s(sT + 2), s(sW), 8); fa.s_add_u32(s(sT + 2), s(sT + 2), L_HS)
    fa.v_add_u32(v(vFH), s(sT + 2), v(t0))
    fa.s_lshl_b32(s(sT + 2), s(sW), 2); fa.s_add_u32(s(sT + 2), s(sT + 2), L_OI)
    fa.v_mul_u32_u24(v(vFW), 160, v(vJ)); fa.v_mul_u32_u24(v(t0), 40, v(vG)); fa.v_add3_u32(v(vFW), v(vFW), v(t0), s(sT + 2))
    fa.s_cmp_lt_u32(s(sW), 2); fa.s_cselect_b32(s(sT + 2), 0, 16384)
    fa.v_add_u32(v(vFW2), s(sT + 2), v(vFW))
    fa.s_lshl_b32(s(sT + 2), s(sW), 6)
    fa.v_add_u32(v(t0), s(sT + 2), v(vLANE)); div_small(fa, t1, t0, 10)
    fa.v_lshlrev_b32(v(vFS), 4, v(t0)); fa.v_add_u32(v(vFS), L_OI, v(vFS))
    fa.v_mul_u32_u24(v(t2), 10, v(t1)); fa.v_sub_u32(v(t2), v(t0), v(t2))
    fa.v_mul_u32_u24(v(vFO), 1280, v(t1)); fa.v_lshl_add_u32(v(vFO), v(t2), 4, v(vFO))
    fa.v_mov_b32(v(t1), OOB); fa.s_movk_i32(s(sT + 2), 160)
    fa.v_cmp_gt_u32(s(sT + 4, 2), s(sT + 2), v(t0))
    fa.s_mul_i32(s(sT + 2), s(sW), 2 * 16 * 1280); fa.s_sub_u32(s(sOB), s(sXR), s(sT + 2))
    fa.v_cndmask_b32(v(vFO), v(t1), v(vFO), s(sT + 4, 2))
    FD = list(range(28, 40)) + list(range(92, 104))
    def fin_tile(st, i, pk=False):
        hi = i * 20480 > 40000
        for q in range(3):
            for sl in range(4):
                off = L_RED + i * 20480 + sl * 5120 + q * 2048
                r = FD[8 * q + 2 * sl]
                if off > 65535: st.ds_read_b64(v(r, 2), v(vFR2), mods='offset:%d' % (off - 61440))
                else: st.ds_read_b64(v(r, 2), v(vFR_), mods='offset:%d' % off)
            st.ds_read_b32(v(60 + q), v(vFH), mods='offset:%d' % (i * 2560 + q * 1024))
        for q in range(3):
            r = FD[8 * q:8 * q + 8:2]
            for e in range(2): st.v_add_f32(v(r[0] + e), v(r[0] + e), v(r[1] + e))
            for e in range(2): st.v_add_f32(v(r[2] + e), v(r[2] + e), v(r[3] + e))
            st.v_lshlrev_b32(v(r[1]), 16, v(60 + q)); st.v_and_b32(v(r[1] + 1), 0xffff0000, v(60 + q))
            for e in range(2): st.v_add_f32(v(r[0] + e), v(r[0] + e), v(r[2] + e))
            for e in range(2): st.v_add_f32(v(r[0] + e), v(r[0] + e), v(r[1] + e))
            st.v_cvt_pk_bf16_f32(v(r[0]), v(r[0]), v(r[0] + 1))
            st.ds_write_b32(v(vFW if q < 2 else vFW2), v(r[0]), mods='offset:%d' % (i * 2560 + q * 16))
    vFR2 = 91
    def out_tile(st, i, d):
        st.ds_read_b128(v(d, 4), v(vFS), mods='offset:%d' % (i * 2560))
        st.s_add_u32(s(sT + 3), s(sOB), i * 2 * 16 * 1280)
        st.buffer_store_dwordx4(v(d, 4), v(vFO), srd(S_OUT), s(sT + 3), mods='offen sc1')
    def bar():
        x = Stream(); x.waitlds(); x.s_barrier(); return x
    m_ = Stream(); seg4(m_, 2, 0, 12)
    fv = Stream(); issue_hh(fv, 2, OPT['h2a'], 12); hflag_issue(fv, 2)
    fv2 = Stream(); hflag_check(fv2, 2); issue_hh(fv2, 3, 0, OPT['h3a'])
    fr1 = Stream(); red_write(fr1, 1)
    ff = Stream(); fin_tile(ff, 0)
    fa.v_add_u32(v(vFR2), 61440, v(vFR_))
    m_ = pack(m_, [(fv, 0, OPT['f2at'], 'vmem'), (fv2, OPT['f2ck'], 60, 'vmem'), (fr1, 3, 26, 'vmem1'), (fa, 0, 26), (bar(), 27, 28, 'vmem'), (ff, 28, 60)])
    print('g4 tile 2 est', m_.est)
    stamp(k, 'g4t2'); k.add(m_)
    m_ = Stream(); seg4(m_, 3, 0, 12)
    fv = Stream(); issue_hh(fv, 3, OPT['h3a'], 12)
    fr2 = Stream(); red_write(fr2, 2)
    ff = Stream(); fin_tile(ff, 1)
    fg = Stream(); fin_tile(fg, 2)
    fo = Stream(); out_tile(fo, 0, 108); out_tile(fo, 1, 108)
    m_ = pack(m_, [(fv, 0, 4 * (12 - OPT['h3a']), 'vmem'), (fr2, 3, 28, 'vmem1'), (ff, 0, 28), (bar(), 29, 30, 'vmem'), (fg, 30, 60), (fo, 32, 56, 'vmem')])
    print('g4 tile 3 est', m_.est)
    stamp(k, 'g4t3'); k.add(m_)
    k.v_add_u32(v(vRW), 3 * 20480, v(vRW))
    for t in range(10): k.ds_write_b64(v(vRW), v(vD4[1] + 2 * t, 2), mods='offset:%d' % (L_RED + t * 512))
    k.waitlds()
    k.s_barrier()
    stamp(k, 'g4end')
    f_ = Stream(); fin_tile(f_, 3)
    o_ = Stream(); out_tile(o_, 2, 108)
    k.add(weave(f_, [(o_, 14, 15, 'vmem')], anchor='any'))
    k.waitlds()
    k.s_barrier()
    out_tile(k, 3, 108)
    finish(k)
m_ = Stream(); seg4(m_, 2, 0, 12)
fv = Stream(); issue_hh(fv, 2, OPT['h2a'], 12)
fv2 = Stream()
vSN = 92; vMX4 = 97
if OPT['tagD']:
    k.v_mul_u32_u24(v(vSN + 4), 768, v(vJ)); k.v_mul_u32_u24(v(t0), 192, v(vG)); k.v_add_u32(v(vSN + 4), v(vSN + 4), v(t0))
    k.s_add_u32(s(sFHt), s(sHL), 6 * 49152)
    k.s_mov_b32(s(sRC), 64)
    sent_issue(fv, vSN, vSN + 4, sFHt); sent_check(fv2, vSN, vSN + 4, sFHt)
else:
    hflag_issue(fv, 2); hflag_check(fv2, 2)
issue_hh(fv2, 3, 0, OPT['h3a'])
fr1 = Stream(); red_write(fr1, 1)
fa = Stream()
fa.s_mul_i32(s(sT + 2), s(sW), 3072); fa.s_add_u32(s(sT + 2), s(sT + 2), L_RING)
fa.v_mul_u32_u24(v(vOW), 160, v(vJ)); fa.v_mul_u32_u24(v(t0), 40, v(vG)); fa.v_add3_u32(v(vOW), v(vOW), v(t0), s(sT + 2))
fa.v_add_u32(v(vOR), s(sT + 2), v(vL16))
for e in range(3):
    fa.v_add_u32(v(t0), 64 * e, v(vLANE)); div_small(fa, t1, t0, 10)
    fa.v_mul_u32_u24(v(t2), 10, v(t1)); fa.v_sub_u32(v(t2), v(t0), v(t2))
    fa.v_mul_u32_u24(v(vOS + e), 1280, v(t1)); fa.v_lshl_add_u32(v(vOS + e), v(t2), 4, v(vOS + e))
fa.v_mov_b32(v(t0), OOB)
fa.v_cmp_gt_u32(s(sT + 4, 2), 32, v(vLANE))
fa.v_cndmask_b32(v(vOS + 2), v(t0), v(vOS + 2), s(sT + 4, 2))
m_ = pack(m_, [(fv, 0, OPT['f2at'], 'vmem'), (fv2, OPT['f2ck'], 60, 'vmem'), (fr1, 4, 50, 'vmem1'), (fa, 0, None)])
stamp(k, 'g4t2'); k.add(m_)
m_ = Stream(); seg4(m_, 3, 0, 12)
fv = Stream(); issue_hh(fv, 3, OPT['h3a'], 12)
fr2 = Stream(); red_write(fr2, 2)
def hh_verify(st):
    for q in range(12):
        r0 = 80 * (3 % 3) + 4 * q
        st.v_accvgpr_read_b32(v(vSN), a(r0)); st.v_accvgpr_read_b32(v(vSN + 1), a(r0 + 2))
        if q == 0: st.v_max_u32(v(vMX4), v(vSN), v(vSN + 1))
        else: st.v_max3_u32(v(vMX4), v(vMX4), v(vSN), v(vSN + 1))
if OPT['tagD']:
    mk = Stream(); cnt = 0; hv = Stream(); hh_verify(hv)
    for x in m_.l:
        mk.l.append(x); cnt += 1
        if cnt % 5 in (1, 2, 3): mk.l.append(hv.l[3 * (cnt // 5) + cnt % 5 - 1])
    m_ = mk
m_ = pack(m_, [(fv, 0, 4 * (12 - OPT['h3a']), 'vmem'), (fr2, 4, 50, 'vmem1')])
stamp(k, 'g4t3'); k.add(m_)
if OPT['tagD']:
    redo_check(k, vMX4, 'L_r3')
    k.s_branch('L_r3d')
    k.label('L_r3')
    k.cond_begin()
    issue_hh(k, 3); k.waitvm(); seg4(k, 3, 0, 12); hh_verify(k); redo_check(k, vMX4, 'L_r3')
    k.s_nop(7)
    k.cond_end()
    k.label('L_r3d')
k.v_add_u32(v(vRW), 3 * 20480, v(vRW))
for t in range(10): k.ds_write_b64(v(vRW), v(vD4[1] + 2 * t, 2), mods='offset:%d' % (L_RED + t * 512))
k.waitlds()
k.s_barrier()
stamp(k, 'g4end')
vR2 = 112
for sl in range(4):
    for t in range(10): k.ds_read_b64(v(vR2 + 20 * sl + 2 * t, 2), v(vRR), mods='offset:%d' % (L_RED + sl * 5120 + t * 512))
for q in range(10):
    k.v_pk_add_f32(v(vR2 + 2 * q, 2), v(vR2 + 2 * q, 2), v(vR2 + 20 + 2 * q, 2))
for q in range(10):
    k.v_dot2_f32_bf16(v(vR2 + 2 * q), v(vH + q), s(sONE_LO), v(vR2 + 2 * q))
    k.v_dot2_f32_bf16(v(vR2 + 2 * q + 1), v(vH + q), s(sONE_HI), v(vR2 + 2 * q + 1))
for q in range(10):
    k.v_pk_add_f32(v(vR2 + 40 + 2 * q, 2), v(vR2 + 40 + 2 * q, 2), v(vR2 + 60 + 2 * q, 2))
for q in range(10):
    k.v_pk_add_f32(v(vR2 + 2 * q, 2), v(vR2 + 2 * q, 2), v(vR2 + 40 + 2 * q, 2))
for q in range(10): k.v_cvt_pk_bf16_f32(v(40 + q), v(vR2 + 2 * q), v(vR2 + 2 * q + 1))
if OPT['cst']:
    for q in range(5): k.ds_write_b64(v(vOW), v(40 + 2 * q, 2), mods='offset:%d' % (8 * q))
    for e in range(3): k.ds_read_b128(v(52 + 4 * e, 4), v(vOR), mods='offset:%d' % (1024 * e))
    for e in range(3): k.buffer_store_dwordx4(v(52 + 4 * e, 4), v(vOS + e), srd(S_OUT), s(sXR), mods='offen' + ['', ' sc1', ' nt', ' sc0 sc1', ' sc1 nt'][OPT['ost']])
else:
    k.buffer_store_dwordx4(v(40, 4), v(vXRO), srd(S_OUT), s(sXR), mods='offen')
    k.buffer_store_dwordx4(v(44, 4), v(vXRO), srd(S_OUT), s(sXR), mods='offen offset:16')
    k.buffer_store_dwordx2(v(48, 2), v(vXRO), srd(S_OUT), s(sXR), mods='offen offset:32')
finish(k)
```

```python
import re

REG_RE = re.compile(r'^(-|abs\()?([vas])(\d+)\)?$')
RNG_RE = re.compile(r'^(-)?([vas])\[(\d+):(\d+)\]$')

def regs_of(op):
    op = op.strip()
    m = REG_RE.match(op)
    if m: return {(m.group(2), int(m.group(3)))}
    m = RNG_RE.match(op)
    if m: return {(m.group(2), i) for i in range(int(m.group(3)), int(m.group(4)) + 1)}
    if op == 'vcc': return {('s', 'vcc')}
    if op == 'exec': return {('s', 'exec')}
    if op == 'm0': return {('s', 'm0')}
    return set()

def R(kind, base, n=1):
    return "%s%d" % (kind, base) if n == 1 else "%s[%d:%d]" % (kind, base, base + n - 1)
def v(b, n=1): return R('v', b, n)
def a(b, n=1): return R('a', b, n)
def s(b, n=1): return R('s', b, n)

TRANS = ('v_exp_f32', 'v_log_f32', 'v_rcp_f32', 'v_rsq_f32', 'v_sqrt_f32', 'v_sin_f32', 'v_cos_f32', 'v_rcp_iflag_f32')

class Inst:
    __slots__ = ('mn', 'ops', 'mods', 'defs', 'uses', 'cls', 'tag', 'cmt', 'untracked', 'text')
    def __init__(self, mn, ops, mods='', tag=None, cmt=None, untracked=False):
        self.mn = mn; self.ops = [str(o) for o in ops]; self.mods = mods; self.tag = tag; self.cmt = cmt
        self.untracked = untracked; self.text = None
        self.classify()
    def classify(self):
        mn, ops = self.mn, self.ops
        D = lambda idx: set().union(*[regs_of(ops[i]) for i in idx]) if idx else set()
        n = len(ops); allx = list(range(n))
        if mn.startswith('v_mfma'):
            self.cls = 'mfma'; self.defs = D([0]); self.uses = D([1, 2, 3])
        elif mn.startswith('v_cmp'):
            self.cls = 'valu'; self.defs = D([0]); self.uses = D(allx[1:])
        elif mn.startswith('v_permlane') and 'swap' in mn:
            self.cls = 'valu'; self.defs = D([0, 1]); self.uses = D([0, 1])
        elif mn.startswith(('v_add_co', 'v_addc_co')):
            self.cls = 'valu'; self.defs = D([0, 1]); self.uses = D(allx[2:])
        elif mn.startswith(('v_fmac', 'v_dot2c', 'v_pk_fmac')):
            self.cls = 'valu'; self.defs = D([0]); self.uses = D(allx)
        elif mn.startswith('v_'):
            self.cls = 'valu'; self.defs = D([0]); self.uses = D(allx[1:])
            if '_dpp' in mn: self.uses |= D([0])
            if mn == 'v_cndmask_b32' and n == 3: self.uses |= {('s', 'vcc')}
        elif mn.startswith(('ds_read', 'ds_bpermute', 'ds_swizzle', 'ds_permute')):
            self.cls = 'ldsr'; self.defs = D([0]); self.uses = D(allx[1:])
        elif mn.startswith('ds_write'):
            self.cls = 'ldsw'; self.defs = set(); self.uses = D(allx)
        elif mn.startswith(('buffer_load', 'global_load')):
            if ' lds' in ' ' + self.mods or '_lds_' in mn:
                self.cls = 'dma'; self.defs = set(); self.uses = D(allx) | {('s', 'm0')}
            else:
                self.cls = 'vload'; self.defs = D([0]); self.uses = D(allx[1:])
        elif mn.startswith(('buffer_store', 'global_store', 'buffer_atomic', 'global_atomic')):
            self.cls = 'vstore'; self.defs = set(); self.uses = D(allx)
        elif mn.startswith(('s_load', 's_memtime', 's_memrealtime')):
            self.cls = 'smem'; self.defs = D([0]); self.uses = D(allx[1:])
        elif mn in ('s_waitcnt', 's_nop', 's_barrier', 's_endpgm', 's_sleep', 's_setprio', 'label', 'raw', 'waitvm', 'waitlds', 'comment', 'cond_begin', 'cond_end') or mn.startswith(('s_cbranch', 's_branch')):
            self.cls = 'ctl'; self.defs = set(); self.uses = set()
        elif mn.startswith('s_cmp'):
            self.cls = 'salu'; self.defs = set(); self.uses = D(allx)
        elif mn.startswith('s_'):
            self.cls = 'salu'; self.defs = D([0]); self.uses = D(allx[1:])
            if 'saveexec' in mn: self.defs |= {('s', 'exec')}
        else:
            raise ValueError('unknown mnemonic ' + mn)
    def __str__(self):
        if self.mn == 'label': return self.ops[0] + ':'
        if self.mn == 'raw': return self.text
        if self.mn == 'comment': return '; ' + self.text
        t = self.mn + (' ' + ', '.join(self.ops) if self.ops else '') + (' ' + self.mods if self.mods else '')
        if self.cmt: t += '   ; ' + self.cmt
        return t

class Stream:
    def __init__(self): self.l = []
    def __getattr__(self, mn):
        if mn.startswith('__'): raise AttributeError(mn)
        def f(*ops, mods='', tag=None, cmt=None, untracked=False):
            i = Inst(mn, ops, mods, tag, cmt, untracked); self.l.append(i); return i
        return f
    def add(self, other):
        self.l.extend(other.l if isinstance(other, Stream) else other); return self
    def label(self, name): self.l.append(Inst('label', [name]))
    def comment(self, t):
        i = Inst('comment', []); i.text = t; self.l.append(i)
    def raw(self, text, uses=(), defs=(), drains_vm=False):
        i = Inst('raw', []); i.text = text
        i.uses = set().union(*[regs_of(o) for o in uses]) if uses else set()
        i.defs = set().union(*[regs_of(o) for o in defs]) if defs else set()
        self.l.append(i); return i
    def waitvm(self, tag=None):
        i = Inst('waitvm', []); i.tag = tag; self.l.append(i)
    def waitlds(self, tag=None):
        i = Inst('waitlds', []); i.tag = tag; self.l.append(i)
    def cond_begin(self): self.l.append(Inst('cond_begin', []))
    def cond_end(self): self.l.append(Inst('cond_end', []))
    def __len__(self): return len(self.l)

def merge(main, fill, start=0, per=None, end_pad=0):
    out = Stream()
    nm = sum(1 for i in main.l if i.cls == 'mfma')
    slots = max(1, nm - start - end_pad)
    f = list(fill.l); nf = len(f); k = 0; seen = 0
    for i in main.l:
        out.l.append(i)
        if i.cls == 'mfma':
            seen += 1
            if seen > start:
                want = min(nf, -(-(nf * (seen - start)) // slots)) if per is None else min(nf, per * (seen - start))
                while k < want:
                    out.l.append(f[k]); k += 1
    out.l.extend(f[k:])
    return out

MFMA_PASS = {'v_mfma_f32_16x16x32_bf16': 4, 'v_mfma_f32_32x32x16_bf16': 8}
def mfma_lat(p, kind):
    return {'c_part': {4: 6, 8: 10}, 'ab': {4: 8, 8: 12}, 'other': {4: 8, 8: 12}, 'war_c': {4: 3, 8: 7}}[kind][p]

WAIT_AGE = 7
def insert_waits(lst):
    out = []; vmq = []; ldq = []; cond = None
    nmf = 0
    def do_wait(vm=None, lg=None, ext=False):
        nonlocal vmq, ldq
        if ext and lg is not None:
            while lg > 0 and nmf - ldq[len(ldq) - lg][3] >= WAIT_AGE: lg -= 1
        parts = []
        if vm is not None:
            vm = min(vm, 63)
            if len(vmq) > vm:
                parts.append('vmcnt(%d)' % vm); vmq = vmq[len(vmq) - vm:] if vm else []
        if lg is not None:
            if any(x[2] for x in ldq): lg = 0
            lg = min(lg, 15)
            if len(ldq) > lg:
                parts.append('lgkmcnt(%d)' % lg); ldq = ldq[len(ldq) - lg:] if lg else []
        if parts:
            w = Inst('s_waitcnt', [' '.join(parts)]); w.tag = 'auto'; out.append(w)
    for i in lst:
        if i.mn == 'cond_begin':
            cond = (list(vmq), list(ldq)); out.append(i); continue
        if i.mn == 'cond_end':
            vq0, lq0 = cond; cond = None
            ids0 = set(id(x) for x in vq0) | set(id(x) for x in lq0)
            for x in vmq + ldq:
                assert id(x) in ids0 or not x[0], 'load issued inside a conditional block still outstanding at its end'
            vmq = vq0; ldq = lq0; out.append(i); continue
        if i.mn == 'waitvm':
            if i.tag is None: do_wait(vm=0)
            else:
                idx = [k for k, x in enumerate(vmq) if x[1] == i.tag]
                if idx: do_wait(vm=len(vmq) - 1 - idx[-1])
            continue
        if i.mn == 'waitlds':
            if i.tag is None: do_wait(lg=0)
            else:
                idx = [k for k, x in enumerate(ldq) if x[1] == i.tag]
                if idx: do_wait(lg=len(ldq) - 1 - idx[-1])
            continue
        if i.mn == 's_waitcnt':
            t = i.ops[0]
            m = re.search(r'vmcnt\((\d+)\)', t)
            if m:
                n = int(m.group(1)); vmq = vmq[len(vmq) - n:] if n and len(vmq) > n else ([] if n == 0 else vmq)
            m = re.search(r'lgkmcnt\((\d+)\)', t)
            if m:
                n = int(m.group(1)); ldq = ldq[len(ldq) - n:] if n and len(ldq) > n else ([] if n == 0 else ldq)
            out.append(i); continue
        touched = i.uses | i.defs
        vm = lg = None
        for k, x in enumerate(vmq):
            if x[0] & touched: vm = len(vmq) - 1 - k
        for k, x in enumerate(ldq):
            if x[0] & touched: lg = len(ldq) - 1 - k
        if vm is not None or lg is not None: do_wait(vm, lg, i.cls == 'mfma')
        out.append(i)
        if i.cls == 'mfma': nmf += 1
        if not i.untracked:
            if i.cls in ('vload', 'vstore', 'dma'): vmq.append((i.defs, i.tag))
            elif i.cls in ('ldsr', 'ldsw'): ldq.append((i.defs, i.tag, False, nmf))
            elif i.cls == 'smem': ldq.append((i.defs, i.tag, True, nmf))
    return out

def hoist_waits(lst):
    out = list(lst)
    k = 1
    while k < len(out) - 1:
        w = out[k]
        if w.mn == 's_waitcnt' and w.tag == 'auto' and out[k + 1].cls == 'mfma' and 'vmcnt' not in w.ops[0]:
            n = int(re.search(r'lgkmcnt\((\d+)\)', w.ops[0]).group(1))
            j = k - 1; skipped = 0; ok = True; nvalu = 0
            while j >= 0 and out[j].cls != 'mfma':
                c = out[j].cls
                if c in ('ldsr', 'ldsw'): skipped += 1
                elif c == 'valu': nvalu += 1
                elif c in ('salu', 'vload', 'vstore', 'dma'): pass
                else: ok = False; break
                j -= 1
            if ok and j >= 0 and j < k - 1 and nvalu and n - skipped >= 0 and out[j + 1].cls == 'valu':
                del out[k]
                w2 = Inst('s_waitcnt', ['lgkmcnt(%d)' % (n - skipped)]); w2.tag = 'hoisted'
                out.insert(j + 1, w2)
        k += 1
    return out

def insert_nops(lst):
    out = []
    pos = 0
    last_valu_w = {}; last_trans_w = {}; last_mfma_w = {}; last_mfma_c = {}; last_store_data = {}; last_dot_w = {}
    last_salu_m0 = -100
    nnop = 0
    def emit(i):
        nonlocal pos
        out.append(i)
        if i.mn in ('label', 'comment'): return
        if i.mn == 's_nop': pos += int(i.ops[0]) + 1
        else: pos += 1
    cond = None
    for i in lst:
        if i.mn == 'cond_begin':
            cond = pos; continue
        if i.mn == 'cond_end':
            p0 = cond; cond = None
            delta = pos - p0
            for d in (last_valu_w, last_trans_w, last_store_data):
                for r in d:
                    if d[r] < p0: d[r] += delta
            for d in (last_mfma_w, last_mfma_c, last_dot_w):
                for r in d:
                    if d[r][0] < p0: d[r] = (d[r][0] + delta,) + tuple(d[r][1:])
            if last_salu_m0 < p0: last_salu_m0 += delta
            continue
        if i.mn in ('label', 'comment', 's_waitcnt'):
            emit(i); continue
        touched = i.uses | i.defs
        need = 0
        def req(p, n):
            nonlocal need
            need = max(need, p + n + 1 - pos)
        for r in touched:
            if r in last_dot_w:
                dp, dm = last_dot_w[r]
                if i.mn == dm and r not in (regs_of(i.ops[1]) | regs_of(i.ops[2])): pass
                else: req(dp, 3)
        is_valu = i.cls == 'valu'; is_mem = i.cls in ('ldsr', 'ldsw', 'vload', 'vstore', 'dma')
        raw_blk = i.mn == 'raw'
        if i.cls == 'mfma':
            cset = regs_of(i.ops[3]); ab = regs_of(i.ops[1]) | regs_of(i.ops[2]); p = MFMA_PASS[i.mn]
            for r in i.uses:
                if r in last_valu_w: req(last_valu_w[r], 2)
            for r in ab:
                if r in last_mfma_w: req(last_mfma_w[r][0], mfma_lat(last_mfma_w[r][1], 'ab'))
            for r in cset | i.defs:
                if r in last_mfma_w:
                    w = last_mfma_w[r]
                    if r in cset and w[2] == cset and w[1] == p: pass
                    else: req(w[0], mfma_lat(w[1], 'c_part'))
        else:
            for r in touched:
                if r in last_mfma_w and (is_valu or is_mem or raw_blk): req(last_mfma_w[r][0], mfma_lat(last_mfma_w[r][1], 'other'))
            if is_valu or raw_blk:
                for r in i.defs:
                    if r in last_mfma_c: req(last_mfma_c[r][0], mfma_lat(last_mfma_c[r][1], 'war_c'))
                    if r in last_store_data: req(last_store_data[r], 2)
                for r in i.uses:
                    if r in last_trans_w: req(last_trans_w[r], 1)
                    if r in last_valu_w:
                        if r[0] == 's': req(last_valu_w[r], 4 if 'lane' in i.mn else 2)
                        elif i.mn.startswith(('v_readfirstlane', 'v_readlane')): req(last_valu_w[r], 1)
                        elif i.mn.startswith('v_permlane') or '_dpp' in i.mn or raw_blk: req(last_valu_w[r], 2)
            if is_mem:
                for r in i.uses:
                    if r in last_trans_w: req(last_trans_w[r], 1)
                    if r[0] == 's' and r in last_valu_w: req(last_valu_w[r], 5)
                for r in i.defs:
                    if r in last_store_data: req(last_store_data[r], 1)
                if i.cls == 'dma': req(last_salu_m0, 1)
            if i.cls == 'salu':
                for r in i.uses:
                    if r in last_valu_w: req(last_valu_w[r], 1)
        while need > 0:
            n = min(need, 16); emit(Inst('s_nop', [n - 1])); need -= n; nnop += n
        p0 = pos
        emit(i)
        for r in i.defs: last_dot_w.pop(r, None)
        if i.mn.startswith('v_dot'):
            for r in i.defs: last_dot_w[r] = (p0, i.mn)
        if i.cls == 'mfma':
            p = MFMA_PASS[i.mn]
            for r in i.defs: last_mfma_w[r] = (p0, p, frozenset(i.defs)); last_valu_w.pop(r, None)
            for r in regs_of(i.ops[3]): last_mfma_c[r] = (p0, p)
        elif is_valu or raw_blk:
            for r in i.defs:
                last_valu_w[r] = p0; last_mfma_w.pop(r, None)
                if i.mn in TRANS: last_trans_w[r] = p0
                else: last_trans_w.pop(r, None)
        elif i.cls == 'salu':
            for r in i.defs:
                last_valu_w.pop(r, None)
                if r == ('s', 'm0'): last_salu_m0 = p0
        if i.cls in ('vstore', 'ldsw') and re.search(r'x3|x4|b96|b128', i.mn):
            dat = regs_of(i.ops[0]) if i.mn.startswith('buffer') else regs_of(i.ops[1])
            for r in dat: last_store_data[r] = p0
        if i.cls in ('vload', 'ldsr'):
            for r in i.defs: last_valu_w.pop(r, None); last_mfma_w.pop(r, None); last_trans_w.pop(r, None)
    return out, nnop

def finalize(stream, verbose=False):
    l = insert_waits(stream.l)
    l = hoist_waits(l)
    l, nnop = insert_nops(l)
    if verbose: print('finalize: %d insts, %d nop states, %d waits' % (len(l), nnop, sum(1 for i in l if i.mn == 's_waitcnt')))
    return l

def render(insts):
    return '\n'.join(('' if i.mn == 'label' else '    ') + str(i) for i in insts) + '\n'

HEADER = '''; @launch grid=({grid},1,1) block=(256,1,1) lds={lds}
.amdgcn_target "amdgcn-amd-amdhsa--gfx950"
.text
.globl {k}
.p2align 8
.type {k},@function
{k}:
'''
FOOTER = '''.section .rodata,"a"
.p2align 6
.amdhsa_kernel {k}
  .amdhsa_next_free_vgpr {nv}
  .amdhsa_next_free_sgpr 102
  .amdhsa_accum_offset {ao}
  .amdhsa_group_segment_fixed_size 0
  .amdhsa_kernarg_size 88
  .amdhsa_user_sgpr_count 2
  .amdhsa_user_sgpr_kernarg_segment_ptr 1
  .amdhsa_system_sgpr_workgroup_id_x 1
.end_amdhsa_kernel
'''
KNAME = "sequential_preLN__linear_kernel_hedgehog__glu_gated_geglu__prompt_kernel"

def groups_of(st, mode='single'):
    out = []; cur = []
    for i in st.l:
        cur.append(i)
        if mode in ('single', 'vmem1'):
            if i.cls != 'salu' and i.mn not in ('comment', 'waitvm', 'waitlds'): out.append(cur); cur = []
        else:
            if i.cls in ('vload', 'vstore', 'dma'): out.append(cur); cur = []
    if cur:
        if out: out[-1].extend(cur)
        else: out.append(cur)
    return out

def weave(main, fills, anchor='mfma'):
    isanch = (lambda i: i.cls == 'mfma') if anchor == 'mfma' else (lambda i: i.cls in ('valu', 'mfma', 'ldsr', 'ldsw'))
    na = sum(1 for i in main.l if isanch(i))
    at = {}
    tail = []
    for f in fills:
        st, lo, hi = f[0], f[1], f[2]
        mode = f[3] if len(f) > 3 else 'single'
        gs = groups_of(st, mode)
        if hi is None or hi > na: hi = na
        if lo < 0: lo = na + lo
        n = len(gs)
        for q, g in enumerate(gs):
            if hi <= lo: tail.append(g); continue
            idx = lo + (q * (hi - lo)) // n
            at.setdefault(idx, []).append(g)
    out = Stream(); seen = 0
    for i in main.l:
        out.l.append(i)
        if isanch(i):
            for g in at.get(seen, []): out.l.extend(g)
            seen += 1
    for g in tail: out.l.extend(g)
    return out


def icost(i):
    if i.mn in ('comment', 'label', 'cond_begin', 'cond_end'): return 0
    if i.cls == 'valu':
        if i.mn in TRANS or i.mn.startswith('v_permlane'): return 8
        return 4
    if i.cls == 'ldsr': return 8
    if i.cls == 'ldsw': return 52 if '128' in i.mn else 24
    if i.cls in ('vload', 'vstore', 'dma'): return 14
    if i.mn in ('raw', 's_barrier'): return 12
    return 4
def gap_time(insts):
    t = 4
    for i in insts:
        if i.cls == 'valu': t = max(t, 8)
        t += icost(i)
    return t

def pack(main, fills, early=2.0, late=3.0):
    marks = insert_waits(main.l)
    needw = []; prevw = False
    for i in marks:
        if i.cls == 'mfma': needw.append(prevw); prevw = False
        elif i.mn == 's_waitcnt': prevw = True
    pre = []; gaps = []
    for i in main.l:
        if i.cls == 'mfma': gaps.append([i, []])
        elif gaps: gaps[-1][1].append(i)
        else: pre.append(i)
    na = len(gaps)
    sts = []
    for f in fills:
        st, lo, hi = f[0], f[1], f[2]
        mode = f[3] if len(f) > 3 else 'single'
        gs = groups_of(st, mode)
        if hi is None or hi > na: hi = na
        n = len(gs)
        sts.append(dict(gs=gs, pos=[lo + q * (hi - lo) / max(n, 1) for q in range(n)], k=0, strict=(mode in ('vmem', 'vmem1')), lo=lo, hi=hi))
    out = Stream(); out.l.extend(pre)
    W = Inst('s_waitcnt', ['lgkmcnt(0)'])
    over = 0
    for g, (mf, pinned) in enumerate(gaps):
        budget = 16 if MFMA_PASS[mf.mn] == 4 else 32
        head = []; tail = []
        resv = [W] if (g + 1 < na and needw[g + 1] and not any(x.mn in ('waitlds', 'waitvm') for x in pinned)) else []
        valu_from = set()
        def total(h, t): return gap_time(resv + pinned + h + t)
        progress = True
        while progress:
            progress = False
            cands = sorted((st['pos'][st['k']], n_) for n_, st in enumerate(sts) if st['k'] < len(st['gs']))
            for p, n_ in cands:
                st = sts[n_]; grp = st['gs'][st['k']]
                if g < st['lo']: continue
                if st['strict']:
                    if p > g: continue
                    force = True
                else:
                    if p > g + early: continue
                    force = p <= g - late or g >= st['hi'] - 1 and p <= g
                isv = any(x.cls == 'valu' for x in grp)
                h2, t2 = (head, tail + grp) if (isv or n_ in valu_from) else (head + grp, tail)
                if force or total(h2, t2) <= budget:
                    head, tail = h2, t2
                    if isv: valu_from.add(n_)
                    st['k'] += 1; progress = True
                    break
        over += max(0, total(head, tail) - budget)
        out.l.append(mf); out.l.extend(pinned); out.l.extend(head); out.l.extend(tail)
    for st in sts:
        for grp in st['gs'][st['k']:]:
            out.l.extend(grp); over += sum(icost(x) for x in grp)
    out.est = na * (16 if MFMA_PASS[gaps[0][0].mn] == 4 else 32) + over
    return out

def seq_time(mf, insts):
    t = 4; hist = [mf]
    for i in insts:
        if i.mn in ('comment', 'label'): continue
        need = 0
        if i.cls in ('valu', 'vstore', 'ldsw', 'vload', 'dma', 'ldsr', 'mfma'):
            for d, p in enumerate(reversed(hist[-3:])):
                if p.cls != 'valu' or not (p.defs & i.uses): continue
                req = 0
                if p.mn in TRANS: req = 1
                if i.mn.startswith('v_permlane') or i.cls == 'mfma': req = 2
                if any(r[0] == 's' for r in p.defs & i.uses): req = 2
                need = max(need, req - d)
            if i.cls == 'dma' and hist[-1].cls == 'salu' and ('s', 'm0') in hist[-1].defs: need = max(need, 1)
        t += 4 * need
        if i.cls == 'valu': t = max(t, 8)
        t += 8 if i.cls == 'mfma' else icost(i)
        hist.append(i)
    return t

SPLIT_SALU = True
def pack2(main, fills, slack=2.5, beam=3000):
    marks = insert_waits(main.l)
    needw = []; prevw = False
    for i in marks:
        if i.cls == 'mfma': needw.append(prevw); prevw = False
        elif i.mn == 's_waitcnt': prevw = True
    pre = []; gaps = []
    for i in main.l:
        if i.cls == 'mfma': gaps.append([i, []])
        elif gaps: gaps[-1][1].append(i)
        else: pre.append(i)
    na = len(gaps)
    sts = []
    for f in fills:
        st, lo, hi = f[0], f[1], f[2]
        mode = f[3] if len(f) > 3 else 'single'
        gs = groups_of(st, mode)
        if not gs: continue
        if hi is None or hi > na: hi = na
        n = len(gs); strict = mode in ('vmem', 'vmem1')
        pos = [lo + q * (hi - lo) / n for q in range(n)]
        sl = min(slack, (hi - lo) / n / 2.0) if strict else None
        if strict: win = [(max(lo, p - sl), min(hi - 1, max(p + sl, lo))) for p in pos]
        else: win = [(lo, hi - 1)] * n
        win = [(int(-(-a // 1)) if a == int(a) else int(a), int(b + 0.999) if strict else b) for a, b in win]
        win = [(max(lo, a), max(min(hi - 1, b), max(lo, a))) for a, b in win]
        if mode == 'vmem' and SPLIT_SALU:
            g2 = []; w2 = []; prev = lo
            for g, w in zip(gs, win):
                n0 = 0
                while n0 < len(g) - 1 and g[n0].cls == 'salu' and not any(x.mn.startswith(('s_cmp', 's_sub_u32', 's_cselect')) for x in g[n0:n0 + 1]): n0 += 1
                if any(x.cls != 'salu' for x in g[:-1]): n0 = 0
                for x in g[:n0]: g2.append([x]); w2.append((prev, w[1]))
                g2.append(g[n0:]); w2.append(w); prev = w[0]
            gs, win = g2, w2
        sts.append(dict(gs=gs, win=win, strict=strict, isv=[any(x.cls in ('valu', 'mfma') for x in g) for g in gs]))
    W = Inst('s_waitcnt', ['lgkmcnt(0)'])
    def build(g, take):
        head = []; tail = []
        for s_, (k0, k1) in enumerate(take):
            seen = False
            for q in range(k0, k1):
                if sts[s_]['isv'][q] or seen: tail += sts[s_]['gs'][q]; seen = True
                else: head += sts[s_]['gs'][q]
        return head + tail
    import itertools
    cur = {tuple([0] * len(sts)): (0, None)}
    layers = []
    for g, (mf, pinned) in enumerate(gaps):
        budget = 16 if MFMA_PASS[mf.mn] == 4 else 32
        resv = [W] if (g + 1 < na and needw[g + 1] and not any(x.mn in ('waitlds', 'waitvm') for x in pinned)) else []
        nxt = {}
        for key, (cost, _) in cur.items():
            opts = []
            for s_, st in enumerate(sts):
                k0 = key[s_]; n = len(st['gs']); lo_ = k0
                while lo_ < n and st['win'][lo_][1] <= g: lo_ += 1
                hi_ = lo_
                mx = k0 + (2 if st['strict'] else 3)
                while hi_ < n and hi_ < mx and st['win'][hi_][0] <= g: hi_ += 1
                opts.append(range(lo_, max(lo_, hi_) + 1))
            for comb in itertools.product(*opts):
                ins = build(g, list(zip(key, comb)))
                c = cost + max(budget, seq_time(mf, resv + pinned + ins))
                if comb not in nxt or c < nxt[comb][0]: nxt[comb] = (c, key)
        if len(nxt) > beam:
            def score(kv):
                rem = sum(sum(icost(x) for grp in st['gs'][kv[0][s_]:] for x in grp) for s_, st in enumerate(sts))
                return kv[1][0] + max(0, rem - (na - g - 1) * 8)
            nxt = dict(sorted(nxt.items(), key=score)[:beam])
        layers.append(nxt); cur = nxt
    def left(key): return sum(sum(icost(x) for grp in st['gs'][key[s_]:] for x in grp) for s_, st in enumerate(sts))
    key = min(cur, key=lambda q: cur[q][0] + left(q)); est = cur[key][0] + left(key)
    final = key; path = []
    for g in range(na - 1, -1, -1):
        prev = layers[g][key][1]; path.append((prev, key)); key = prev
    path.reverse()
    out = Stream(); out.l.extend(pre)
    for g, (mf, pinned) in enumerate(gaps):
        out.l.append(mf); out.l.extend(pinned); out.l.extend(build(g, list(zip(*path[g]))))
    for s_, st in enumerate(sts):
        for grp in st['gs'][final[s_]:]: out.l.extend(grp)
    out.est = est
    return out
pack_greedy = pack
pack = pack2
```

```python
import sys, math, struct
from asmgen import *

OPT = dict(stop=99, stamps=0, cqx=0, spin=100000, rot=1, w2d=3, mc=0, rot4=0, pack=0, tl2=0, stl=0, tlb=0, x3e=1, fin=0, h0=0, g2e=88, ql=0, qlat=0, nt=3, ipf0=1, pe=0, w3u=0, tagD=0, h3a=8, tagB=0, fx3=1, qe=4, pat=30, ost=1, asy=1, w3a2=6, w3c2=6, map=0, ipf=3, w2e=3, x0e=1, w1ck=3, ckat=8, qpost=36, psl=14, w2at=70, qpost2=80, w2q=10, qpl=90, qpn=90, w2s=4, w2u=5, w2uat=40, w2o=3, w3o=3, w3a=6, w3b=11, w3c=4, w3t=12, w40=0, w4a=0, e7end=26, p4post=56, cst=1, w4l=60, v4end=74, h2a=10, f2at=8, f2ck=30)
for a_ in sys.argv[2:]:
    kk, vv = a_.split('='); OPT[kk] = int(vv)

def f32(x): return '0x%08x' % struct.unpack('<I', struct.pack('<f', x))[0]
LOG2E = 1.4426950408889634
OOB = 0x40000000

WS_FLAGS = 4096
F_PREP, F_KV, F_O, F_H, F_HH, F_W1, F_PREP2, F_H0 = 0, 1, 2, 3, 4, 7, 8, 2 + 7
if OPT['pack']:
    F_W1, F_PREP2, F_H0 = 7, 8, 2
    WS_W1K = 0x4A000; WS_CS = 0x1E0000
    WS_W1Q = 0x200000; WS_PART = 0x2F0000; WS_XST = 0x3D0000; WS_HST = 0x3E0000
    WS_W2 = 0x400000; WS_CS3 = 0x4C8000; WS_W3 = 0x500000; WS_O = 0x8C0000; WS_H = 0xB40000
    WS_W4 = 0xDC0000; WS_HH = 0xFA0000; WS_STAMP = 0x1700000
else:
    WS_STAMP = 0x1700000
    WS_PART = 0x80000
    WS_O = 0x200000
    WS_H = 0x500000
    WS_HST = 0x780000
    WS_HH = 0x800000
    WS_W2 = 0x1000000
    WS_W3 = 0x1100000
    WS_W4 = 0x1500000
    WS_W1K = 0x1800000
    WS_W1Q = 0x1A00000
    WS_CS = 0x1B00000
    WS_CS3 = 0x1C00000
    WS_XST = 0x1D00000
WS_DBG = 0x2000000
WS_SIZE = 0x4000000

L_XST = 0; L_W1S = 118784
L_PG = 40960; L_PU = 49152; L_P4 = 57344; L_P2 = 135168; L_PHI = 143360
L_KV = 0; L_Q = 102400; L_CSF = 153600 + 2048; L_FV = 65536
L_KVR = 102400; L_ZERO = 106624
L_XR = 114688
L_W2 = 0; L_RING = 102400; L_MX = 0
L_W4 = 2048; L_ST = 100352; L_RED = 0

S_X, S_W1, S_WS, S_WG, S_WU, S_WD, S_WO, S_OUT, S_PHI = 28, 32, 36, 40, 44, 48, 52, 56, 60
sR, sC, sCQ, sW, sM, sP = 64, 65, 66, 67, 68, 69
sN = 70
sT = 72
sXO = 80
sA, sB, sCc, sD = 88, 89, 90, 91
sONE_LO, sONE_HI, sONES = 92, 93, 94
sCNT = 95
sTM = 96
sXR = 98
sE, sF = 99, 100
sK = 4
sCH = 12
sV = 17
def srd(b): return s(b, 4)

vTID, vL16, vG, vJ, vSTAMP, vPOST, vFR, vFC, vNON, vXRO = 0, 1, 2, 3, 4, 5, 6, 7, 8, 10
t0, t1, t2 = 11, 12, 13
vR4, vCC, vLANE = 14, 15, 16

k = Stream()
STAMPS = []
OPT_DBG = ['w1s', 'w1post', 'prepiss', 'w1b', 'kvgo', 'kvgemm', 'kvst', 'qgemm', 'phiq', 'ost', 'oflag', 'hst', 'g3t0', 'g3end', 'end']
def stamp(st, name):
    if not OPT['stamps']: return
    if OPT['stamps'] == 3 and name not in ('start', 'kvst', 'opost', 'hst', 'g3end', 'end'): return
    if OPT['stamps'] == 4 and name in ('pre', 'w1s', 'prepiss', 'w1flag', 'kv0', 'kv1', 'kv2', 'kv3', 'q_a', 'q_b', 'q_c', 'q_d', 'w1a', 'w1b', 'w1st', 'w1w', 'w1d', 'colsum', 'q_e', 'q_f', 'g4t0'): return
    i = len(STAMPS); STAMPS.append(name)
    if OPT['stamps'] == 4:
        assert i < 32
        st.s_memtime(s(sTM, 2)); st.s_waitcnt('lgkmcnt(0)'); st.v_writelane_b32(v(vSTAMP), s(sTM), 32 + i)
    st.comment('stamp %d %s' % (i, name))
    (st.s_memrealtime if OPT['stamps'] >= 2 else st.s_memtime)(s(sTM, 2))
    st.s_waitcnt('lgkmcnt(0)')
    st.v_writelane_b32(v(vSTAMP), s(sTM), i)

def post(st, kind):
    st.s_lshl_b32(s(sT), s(sR), 11)
    st.s_lshl_b32(s(sT + 1), s(sC), 7)
    st.s_add_u32(s(sT), s(sT), s(sT + 1))
    st.s_add_u32(s(sT), s(sT), WS_FLAGS + kind * 32768)
    st.buffer_store_dwordx2(v(vNON, 2), v(vPOST), srd(S_WS), s(sT), mods='offen sc1')

npoll = [0]
def poll(st, voff, ssoff, tmp):
    n = npoll[0]; npoll[0] += 1
    t = '''s_cmp_lg_u32 s{w}, 0
    s_cbranch_scc1 L_pd{n}
    s_mov_b32 s{c}, {lim}
L_pl{n}:
    buffer_load_dwordx2 v[{t}:{t1}], v{vo}, s[{ws}:{ws3}], s{so} offen sc1
    s_waitcnt vmcnt(0)
    v_cmp_ne_u64 vcc, s[{n0}:{n1}], v[{t}:{t1}]
    s_cbranch_vccz L_pd{n}
    s_sub_u32 s{c}, s{c}, 1
    s_cbranch_scc0 L_pl{n}
L_pd{n}:'''.format(w=sW, n=n, c=sCNT, lim=OPT['spin'], t=tmp, t1=tmp + 1, vo=voff, ws=S_WS, ws3=S_WS + 3, so=ssoff, n0=sN, n1=sN + 1)
    st.raw(t, uses=[v(voff)], defs=[v(tmp, 2)])
def poll_row(st, kind, tmp):
    st.s_lshl_b32(s(sT), s(sR), 11); st.s_add_u32(s(sT), s(sT), WS_FLAGS + kind * 32768)
    poll(st, vFR, sT, tmp)

def allreduce_groups(st, x, t, op):
    st.v_mov_b32(v(t), v(x))
    st.v_permlane32_swap_b32(v(x), v(t))
    getattr(st, op)(v(x), v(x), v(t))
    st.v_mov_b32(v(t), v(x))
    st.v_permlane16_swap_b32(v(x), v(t))
    getattr(st, op)(v(x), v(x), v(t))

MF = 'v_mfma_f32_16x16x32_bf16'
def mfma(st, d, A, B, first=False):
    getattr(st, MF)(d, A, B, '0' if first else d)

def wg_slot(st, mul, base):
    st.s_lshl_b32(s(sT), s(sR), 4); st.s_add_u32(s(sT), s(sT), s(sC))
    st.s_lshl_b32(s(sT), s(sT), 2); st.s_add_u32(s(sT), s(sT), s(sW))
    st.s_mul_i32(s(sT), s(sT), mul)
    st.s_add_u32(s(sT), s(sT), base)

def dump(st, regs):
    st.waitvm(); st.waitlds()
    wg_slot(st, 32768, WS_DBG)
    for q, r in enumerate(regs):
        st.buffer_store_dwordx4(r, v(vL16), srd(S_WS), s(sT), mods='offen')
        st.s_add_u32(s(sT), s(sT), 1024)

def finish(st):
    if OPT['stamps']:
        st.waitvm()
        stamp(st, 'end')
        wg_slot(st, 256, WS_STAMP)
        st.v_lshlrev_b32(v(t1), 2, v(vLANE))
        st.buffer_store_dword(v(vSTAMP), v(t1), srd(S_WS), s(sT), mods='offen')
    if OPT.get('dbg'):
        st.s_load_dwordx2(s(sT + 2, 2), s(0, 2), 72)
        st.s_memrealtime(s(sTM, 2))
        st.s_waitcnt('lgkmcnt(0)')
        st.s_sub_u32(s(sTM), s(sTM), s(101))
        st.v_writelane_b32(v(vSTAMP), s(sTM), 63)
        st.v_readlane_b32(s(sT), v(vSTAMP), 0)
        st.s_nop(1)
        st.v_subrev_u32(v(t0), s(sT), v(vSTAMP))
        st.v_writelane_b32(v(t0), s(sTM), 0)
        sel = [0] + [STAMPS.index(n) for n in OPT_DBG]
        st.v_mov_b32(v(t1), OOB)
        for q, i in enumerate(sel): st.v_writelane_b32(v(t1), 4 * q, i)
        st.s_lshl_b32(s(sT), s(sR), 4); st.s_add_u32(s(sT), s(sT), s(sC)); st.s_lshl_b32(s(sT), s(sT), 2); st.s_add_u32(s(sT), s(sT), s(sW))
        st.s_mov_b32(s(S_PHI), s(sT + 2)); st.s_mov_b32(s(S_PHI + 1), s(sT + 3)); st.s_mov_b32(s(S_PHI + 2), 64); st.s_mov_b32(s(S_PHI + 3), 0x20000)
        st.s_cmp_lg_u32(s(sT), (5 * 16 + 3) * 4)
        st.s_cbranch_scc1('L_nodbg')
        st.buffer_store_dword(v(t0), v(t1), srd(S_PHI), 0, mods='offen')
        st.label('L_nodbg')
    st.s_or_b32(s(sT), s(sR), s(sC))
    st.s_cmp_lg_u32(s(sT), 0)
    st.s_cbranch_scc1('L_end')
    st.buffer_store_dwordx2(v(vNON, 2), v(vPOST), srd(S_WS), 0, mods='offen')
    st.label('L_end')
    st.s_endpgm()
    ins = finalize(st, True)
    hdr = open('sequential_preLN__linear_kernel_hedgehog__glu_gated_geglu__prompt.s.ref').read().split('\n')
    hdr = [l for l in hdr if l.startswith(';') and '@launch' not in l]
    txt = '\n'.join(hdr) + '\n' + HEADER.format(grid=256, lds=163840, k=KNAME) + render(ins) + FOOTER.format(k=KNAME, nv=512, ao=256)
    open(sys.argv[1], 'w').write(txt)
    open(sys.argv[1] + '.stamps', 'w').write('\n'.join(STAMPS))
    sys.exit(0)

def div_small(st, q, x, d):
    mul, sh = {10: (205, 11), 80: (205, 14), 5: (205, 10), 6: (171, 10), 12: (171, 11), 48: (171, 13), 3: (171, 9)}[d]
    st.v_mul_u32_u24(v(q), mul, v(x)); st.v_lshrrev_b32(v(q), sh, v(q))
for d_, lim in ((10, 512), (80, 320), (5, 256), (6, 192), (12, 512), (48, 192), (3, 8)):
    mul, sh = {10: (205, 11), 80: (205, 14), 5: (205, 10), 6: (171, 10), 12: (171, 11), 48: (171, 13), 3: (171, 9)}[d_]
    assert all((x * mul) >> sh == x // d_ for x in range(lim)), d_

vW1D = 18; vW1A = 21; vP3D = 26; vP4D = 28; vXW = 30; vXRd = 34; vKV2 = 38; vL16b = 17
vWP = 56; vWA = 58; vONE = 60; vAF = 64; vACC = 104; vGR = 164
vST = 180
vE = 184
vEA = 248
aPHI = 160; aCSQ = 240
sRHO = 3
def acc(X, col): return vACC + (X * 3 + col) * 4
def xf(ks, tt): return a(32 * (ks >> 2) + 16 * tt + 4 * (ks & 3), 4)

k.s_load_dwordx16(s(4, 16), s(0, 2), 0)
k.s_load_dwordx4(s(20, 4), s(0, 2), 64)
k.s_load_dwordx2(s(24, 2), s(0, 2), 80)
k.s_cmp_ge_u32(s(2), 256)
k.s_cbranch_scc1('L_end')
if OPT['stamps']: k.v_mov_b32(v(vSTAMP), 0)
if OPT['map'] == 0:
    k.s_bfe_u32(s(sT), s(2), 0x20001)
    k.s_lshl_b32(s(sT), s(sT), 2)
    k.s_bfe_u32(s(sT + 1), s(2), 0x20003)
    k.s_add_u32(s(sR), s(sT), s(sT + 1))
    k.s_and_b32(s(sT), s(2), 1)
    k.s_lshl_b32(s(sT), s(sT), 3)
    k.s_lshr_b32(s(sT + 2), s(2), 5)
    k.s_add_u32(s(sC), s(sT), s(sT + 2))
else:
    k.s_and_b32(s(sT), s(2), 7)
    k.s_lshl_b32(s(sT), s(sT), 1)
    k.s_bfe_u32(s(sT + 1), s(2), 0x10003)
    k.s_add_u32(s(sR), s(sT), s(sT + 1))
    k.s_lshr_b32(s(sC), s(2), 4)
    k.s_and_b32(s(sT + 2), s(sC), 7)
k.s_mov_b32(s(sCQ), s(sC))
k.s_lshr_b32(s(sM), s(sC), 1)
k.s_and_b32(s(sP), s(sC), 1)
if OPT['rot']:
    k.s_sub_u32(s(sT), s(sT + 2), 5)
    k.s_cselect_b32(s(sRHO), s(sT + 2), s(sT))
else:
    k.s_mov_b32(s(sRHO), 0)
def chunk(st, slot, dst, tmp):
    st.s_add_u32(s(dst), s(sRHO), slot)
    st.s_sub_u32(s(tmp), s(dst), 5)
    st.s_cselect_b32(s(dst), s(dst), s(tmp))
k.v_lshrrev_b32(v(t0), 6, v(vTID))
k.v_readfirstlane_b32(s(sW), v(t0))
k.v_and_b32(v(vLANE), 63, v(vTID))
k.v_lshlrev_b32(v(vL16), 4, v(vLANE))
k.v_lshrrev_b32(v(vG), 4, v(vLANE))
k.v_and_b32(v(vJ), 15, v(vLANE))
if OPT['ipf0']:
    if OPT['ipf']:
        k.raw('''s_getpc_b64 s[%d:%d]
L_pc:
        s_sub_u32 s%d, s%d, L_pc-%s
        s_subb_u32 s%d, s%d, 0''' % (sT + 4, sT + 5, sT + 4, sT + 4, KNAME, sT + 5, sT + 5))
        k.s_lshr_b32(s(sT + 6), s(2), 3)
        k.s_lshl_b32(s(sT + 6), s(sT + 6), 2); k.s_add_u32(s(sT + 6), s(sT + 6), s(sW)); k.s_mul_i32(s(sT + 6), s(sT + 6), OPT['ipf'] * 128)
        k.v_min_u32(v(t0), OPT['ipf'] - 1, v(vLANE))
        k.v_lshlrev_b32(v(t0), 7, v(t0))
        k.v_add_u32(v(t0), s(sT + 6), v(t0))
        k.v_min_u32(v(t0), 'L_end-%s' % KNAME, v(t0))
        k.v_mov_b32(v(vAF + 31), s(sT + 5))
        k.v_add_co_u32(v(vAF + 30), 'vcc', s(sT + 4), v(t0))
        k.v_addc_co_u32(v(vAF + 31), 'vcc', 0, v(vAF + 31), 'vcc')
        k.global_load_dword(v(vAF + 29), v(vAF + 30, 2), 'off')
k.s_mul_i32(s(sT), s(sW), 192)
k.s_movk_i32(s(sT + 1), 3840); k.s_movk_i32(s(sT + 4), 1200)
for e in range(3):
    k.v_add_u32(v(t0), s(sT), v(vLANE))
    if e: k.v_add_u32(v(t0), 64 * e, v(t0))
    k.v_mul_u32_u24(v(t1), 4370, v(t0)); k.v_lshrrev_b32(v(t1), 16, v(t1))
    k.v_mul_u32_u24(v(t2), 15, v(t1)); k.v_sub_u32(v(t0), v(t0), v(t2))
    k.v_lshlrev_b32(v(t2), 4, v(t0))
    k.v_mad_u32_u24(v(vW1D + e), v(t1), s(sT + 1), v(t2))
    k.v_mul_u32_u24(v(t0), 52, v(t0)); k.v_lshrrev_b32(v(t0), 8, v(t0))
    k.v_mad_u32_u24(v(vW1D + e), v(t0), s(sT + 4), v(vW1D + e))
    if e: k.v_subrev_u32(v(vW1D + e), 1024 * e, v(vW1D + e))
assert all((x * 4370) >> 16 == x // 15 for x in range(768)) and all((x * 52) >> 8 == x // 5 for x in range(15))
k.v_xor_b32(v(t0), v(vJ), v(vG))
k.v_lshlrev_b32(v(t0), 4, v(t0))
k.v_mul_u32_u24(v(t1), 1280, v(vG))
for n in range(4):
    k.v_xor_b32(v(vXW + n), 64 * n, v(t0))
    k.v_add_u32(v(vXW + n), v(vXW + n), v(t1))
    if n: k.v_add_u32(v(vXW + n), n * 4096, v(vXW + n))
k.s_lshl_b32(s(sT), s(sR), 7)
k.s_lshl_b32(s(sT + 1), s(sW), 5)
k.s_add_u32(s(sT), s(sT), s(sT + 1))
k.s_mul_i32(s(sXO), s(sT), 1280)
k.s_lshl_b32(s(sXO + 1), s(sW), 13)
k.s_mul_i32(s(sA), s(sR), 40 * 3840)
k.s_mul_i32(s(sT), s(sC), 80)
k.s_add_u32(s(sA), s(sA), s(sT))
k.s_mul_i32(s(sB), s(sW), 3072)
k.s_add_u32('m0', s(sB), L_W1S)
k.s_mul_i32(s(sT + 2), s(sC), 1600)
k.s_waitcnt('lgkmcnt(0)')
def mksrd(st, b, p, size):
    st.s_mov_b32(s(b), s(p)); st.s_mov_b32(s(b + 1), s(p + 1)); st.s_mov_b32(s(b + 2), size); st.s_mov_b32(s(b + 3), 0x20000)
mksrd(k, S_W1, 6, 2457600)
if OPT.get('dbg'):
    k.s_memrealtime(s(sTM, 2)); k.s_waitcnt('lgkmcnt(0)'); k.s_mov_b32(s(101), s(sTM))
stamp(k, 'start')
for e in range(3): k.buffer_load_dwordx4(v(vW1D + e), srd(S_W1), s(sA), mods='offen offset:%d%s lds' % (e * 1024, ' nt' if OPT['nt'] & 1 else ''), tag='W1S')
if not OPT['ipf0']:
    if OPT['ipf']:
        k.raw('''s_getpc_b64 s[%d:%d]
L_pc:
        s_sub_u32 s%d, s%d, L_pc-%s
        s_subb_u32 s%d, s%d, 0''' % (sT + 4, sT + 5, sT + 4, sT + 4, KNAME, sT + 5, sT + 5))
        k.s_lshr_b32(s(sT + 6), s(2), 3)
        k.s_lshl_b32(s(sT + 6), s(sT + 6), 2); k.s_add_u32(s(sT + 6), s(sT + 6), s(sW)); k.s_mul_i32(s(sT + 6), s(sT + 6), OPT['ipf'] * 128)
        k.v_min_u32(v(t0), OPT['ipf'] - 1, v(vLANE))
        k.v_lshlrev_b32(v(t0), 7, v(t0))
        k.v_add_u32(v(t0), s(sT + 6), v(t0))
        k.v_min_u32(v(t0), 'L_end-%s' % KNAME, v(t0))
        k.v_mov_b32(v(vAF + 31), s(sT + 5))
        k.v_add_co_u32(v(vAF + 30), 'vcc', s(sT + 4), v(t0))
        k.v_addc_co_u32(v(vAF + 31), 'vcc', 0, v(vAF + 31), 'vcc')
        k.global_load_dword(v(vAF + 29), v(vAF + 30, 2), 'off')
mksrd(k, S_X, 4, 2621440)
XSLOT = [0, 32768, 65536, 102400, 0]
KVPOS = [40960, 61440, 81920, 0, 20480]
def issue_x(st, sg, tts=(0, 1)):
    chunk(st, sg, sE, sF)
    st.s_lshl_b32(s(sE), s(sE), 8)
    st.s_add_u32(s(sE), s(sE), s(sXO))
    for tt in tts:
        if tt: st.s_add_u32(s(sE), s(sE), 16 * 1280)
        st.s_add_u32('m0', s(sXO + 1), L_XST + XSLOT[sg] + tt * 4096)
        for n in range(4):
            st.buffer_load_dwordx4(v(vXW + n), srd(S_X), s(sE), mods='offen offset:%d%s lds' % (n * 1024, ' nt' if (OPT['nt'] & 4 and sg == 0) else ''), tag='x%d' % sg)
k.s_load_dwordx2(s(sN, 2), s(24, 2), 0)
if OPT['stl']:
    k.s_lshl_b32(s(sT + 4), s(sW), 21)
    for i in range(4):
        if i: k.s_add_u32(s(sT + 4 + i), s(sT + 4), i << 23)
        k.s_load_dword(s(101), s(24, 2), s(sT + 4 + i), untracked=True)
    if OPT['stl'] > 1:
        for p in (10, 14, 16, 18, 20): k.s_load_dword(s(101), s(p, 2), 0, untracked=True)
mksrd(k, S_PHI, 8, 25600)
k.v_lshlrev_b32(v(vWA), 3, v(vTID))
k.v_cmp_gt_u32('vcc', 200, v(vTID))
k.v_mov_b32(v(t1), OOB)
k.v_cndmask_b32(v(vWA), v(t1), v(vWA), 'vcc')
k.buffer_load_dwordx2(v(vWP, 2), v(vWA), srd(S_PHI), s(sT + 2), mods='offen')
mksrd(k, S_WS, 24, WS_SIZE)
mksrd(k, S_WG, 14, 1966080); mksrd(k, S_WU, 16, 1966080); mksrd(k, S_WD, 18, 1966080); mksrd(k, S_WO, 10, 819200); mksrd(k, S_OUT, 20, 2621440)
for i in range(4): k.v_mov_b32(v(vAF + i), 0)
k.v_lshlrev_b32(v(t0), 4, v(vTID))
k.v_add_u32(v(t0), L_PHI, v(t0))
for i in range(2): k.ds_write_b128(v(t0), v(vAF, 4), mods='offset:%d' % (i * 4096))
k.v_cmp_gt_u32('vcc', 128, v(vTID))
k.s_and_saveexec_b64(s(sT, 2), 'vcc')
k.ds_write_b128(v(t0), v(vAF, 4), mods='offset:8192')
k.s_mov_b64('exec', s(sT, 2))
k.v_bfe_u32(v(vR4), v(vLANE), 2, 2)
k.v_and_b32(v(vCC), 3, v(vLANE))
k.s_mov_b32(s(sONE_LO), 0x00003f80); k.s_mov_b32(s(sONE_HI), 0x3f800000); k.s_mov_b32(s(sONES), 0x3f803f80)
oE, oO, sE_, sO_, mE, bE, bO, pE, pO = [sV + i for i in range(9)]
k.s_lshl_b32(s(sT), s(sW), 3)
k.s_lshr_b32(s(oE), 0x20C87850, s(sT)); k.s_and_b32(s(oE), s(oE), 0xff)
k.s_lshr_b32(s(oO), 0x2800A070, s(sT)); k.s_and_b32(s(oO), s(oO), 0xff)
k.s_lshr_b32(s(sE_), 0x28080808, s(sT)); k.s_and_b32(s(sE_), s(sE_), 0xff)
k.s_lshr_b32(s(sO_), 0x08080828, s(sT)); k.s_and_b32(s(sO_), s(sO_), 0xff)
k.s_lshr_b32(s(mE), 0x01030303, s(sT)); k.s_and_b32(s(mE), s(mE), 0xff)
k.s_mul_i32(s(sT + 1), s(sC), 102400); k.s_add_u32(s(sT + 1), s(sT + 1), WS_W1K)
k.s_mul_i32(s(sT + 2), s(sC), 61440); k.s_add_u32(s(sT + 2), s(sT + 2), WS_W1Q - 5120)
k.s_lshl_b32(s(sT + 3), s(sW), 11)
k.s_movk_i32(s(sT + 4), 3072)
k.s_cmp_lt_u32(s(sW), 3)
k.s_cselect_b32(s(bE), s(sT + 1), s(sT + 2)); k.s_cselect_b32(s(pE), 5120, s(sT + 4))
k.s_cmp_lt_u32(s(sW), 2)
k.s_cselect_b32(s(bO), s(sT + 1), s(sT + 2)); k.s_cselect_b32(s(pO), 5120, s(sT + 4))
k.s_add_u32(s(bE), s(bE), s(sT + 3)); k.s_add_u32(s(bO), s(bO), s(sT + 3)); k.s_add_u32(s(bO), s(bO), 1024)
y0, y1, y2 = vAF + 4, vAF + 5, vAF + 6
k.v_and_b32(v(y0), s(mE), v(vCC)); k.v_mul_u32_u24(v(y0), s(sE_), v(y0)); k.v_add_u32(v(y0), s(oE), v(y0))
k.v_mul_u32_u24(v(y1), s(sO_), v(vCC)); k.v_add_u32(v(y1), s(oO), v(y1))
k.v_lshl_add_u32(v(t0), v(vG), 3, v(vR4)); k.v_mul_u32_u24(v(t0), 240, v(t0)); k.v_add_u32(v(t0), L_W1S, v(t0))
k.v_add_u32(v(vW1A), v(t0), v(y0)); k.v_add_u32(v(vW1A + 1), v(t0), v(y1))
k.v_and_b32(v(t1), 1, v(vG))
k.v_cmp_eq_u32('vcc', 1, v(t1))
k.v_mul_u32_u24(v(t0), 240, v(vR4)); k.v_add_u32(v(t0), L_W1S + 32 * 240, v(t0))
k.v_cndmask_b32(v(y0), v(y0), v(y1), 'vcc')
k.v_add_u32(v(vW1A + 2), v(t0), v(y0))
vW1O = 40
k.s_mul_i32(s(sT), s(sR), 5)
k.v_add_u32(v(t0), s(sT), v(vG))
k.v_lshrrev_b32(v(t2), 2, v(t0)); k.v_and_b32(v(t0), 3, v(t0)); k.v_lshlrev_b32(v(t0), 8, v(t0)); k.v_lshl_add_u32(v(t0), v(vJ), 4, v(t0))
k.v_mad_u32_u24(v(vW1O), v(t2), s(pE), v(t0)); k.v_mad_u32_u24(v(vW1O + 1), v(t2), s(pO), v(t0))
k.s_add_u32(s(sT), s(sT), 4); k.s_lshr_b32(s(sT + 1), s(sT), 2); k.s_and_b32(s(sT), s(sT), 3); k.s_lshl_b32(s(sT), s(sT), 8)
k.s_mul_i32(s(sT + 2), s(sT + 1), s(pE)); k.s_add_u32(s(sT + 2), s(sT + 2), s(bE)); k.s_add_u32(s(sT + 2), s(sT + 2), s(sT))
k.s_mul_i32(s(sT + 3), s(sT + 1), s(pO)); k.s_add_u32(s(sT + 3), s(sT + 3), s(bO)); k.s_add_u32(s(sT + 3), s(sT + 3), s(sT))
k.v_mov_b32(v(t0), s(sT + 2)); k.v_mov_b32(v(t2), s(sT + 3))
k.v_cndmask_b32(v(t0), v(t0), v(t2), 'vcc')
k.v_lshl_add_u32(v(t0), v(vJ), 4, v(t0))
k.v_mov_b32(v(t2), OOB)
k.v_cmp_gt_u32('vcc', 2, v(vG))
k.v_cndmask_b32(v(vW1O + 2), v(t2), v(t0), 'vcc')
k.v_lshrrev_b32(v(t0), 1, v(vG)); k.v_lshlrev_b32(v(t0), 10, v(t0)); k.v_lshl_add_u32(v(t0), v(vJ), 4, v(t0))
k.v_cmp_eq_u32('vcc', 0, v(t1))
k.v_cndmask_b32(v(vW1O + 3), v(t2), v(t0), 'vcc')
k.s_lshl_b32(s(sD), s(sC), 13); k.s_lshl_b32(s(sT), s(sW), 11); k.s_add_u32(s(sD), s(sD), s(sT))
k.s_lshr_b32(s(sT), s(sR), 2); k.s_lshl_b32(s(sT), s(sT), 8); k.s_add_u32(s(sD), s(sD), s(sT))
k.s_and_b32(s(sT), s(sR), 3); k.s_lshl_b32(s(sT), s(sT), 2); k.s_add_u32(s(sD), s(sD), s(sT)); k.s_add_u32(s(sD), s(sD), WS_CS)
x0, x1 = vAF + 4, vAF + 5
div_small(k, t0, vTID, 5)
k.v_mul_u32_u24(v(t1), 5, v(t0)); k.v_sub_u32(v(t1), v(vTID), v(t1))
k.v_lshlrev_b32(v(vWA), 11, v(t1))
k.v_cmp_lt_u32('vcc', 19, v(t0))
k.v_cndmask_b32(v(t1), 0, 1, 'vcc')
k.v_mul_u32_u24(v(t2), 20, v(t1)); k.v_sub_u32(v(t0), v(t0), v(t2))
k.v_lshl_add_u32(v(vWA), v(t1), 6, v(vWA))
k.v_lshrrev_b32(v(x0), 2, v(t0)); k.v_lshlrev_b32(v(x0), 8, v(x0))
k.v_and_b32(v(x1), 3, v(t0)); k.v_lshl_add_u32(v(x0), v(x1), 1, v(x0))
k.v_mul_u32_u24(v(t2), 1032, v(t1)); k.v_add_u32(v(x0), v(x0), v(t2))
k.v_lshlrev_b32(v(x1), 1, v(x1)); k.v_lshl_add_u32(v(x1), v(t1), 8, v(x1)); k.v_add_u32(v(x1), 8, v(x1))
k.v_cmp_lt_u32('vcc', 15, v(t0))
k.v_cndmask_b32(v(x0), v(x0), v(x1), 'vcc')
k.v_add_u32(v(vWA), v(vWA), v(x0))
k.v_add_u32(v(vWA), L_PHI, v(vWA))

k.v_cmp_ne_u32('vcc', 0, v(vTID))
k.v_mov_b32(v(t1), OOB)
k.v_cndmask_b32(v(vPOST), 0, v(t1), 'vcc')
def wphi_scatter(st, d):
    st.v_cmp_gt_u32('vcc', 200, v(vTID))
    st.s_and_saveexec_b64(s(sT, 2), 'vcc')
    st.ds_write_b16(v(vWA), v(d))
    st.ds_write_b16_d16_hi(v(vWA), v(d), mods='offset:16')
    st.ds_write_b16(v(vWA), v(d + 1), mods='offset:32')
    st.ds_write_b16_d16_hi(v(vWA), v(d + 1), mods='offset:48')
    st.s_mov_b64('exec', s(sT, 2))
def wphi_read(st):
    st.v_add_u32(v(t0), L_PHI, v(vL16))
    st.v_xor_b32(v(t1), 128, v(t0))
    for p in range(2):
        for i in range(10):
            st.ds_read_b128(a(aPHI + (p * 10 + i) * 4, 4), v(t0 + p), mods='offset:%d' % (i * 1024))
def prep_offsets(st):
    for e in range(2):
        st.s_lshl_b32(s(sT), s(sW), 7)
        st.v_add_u32(v(t0), s(sT), v(vLANE))
        if e: st.v_add_u32(v(t0), 64, v(t0))
        div_small(st, t1, t0, 12)
        st.v_mul_u32_u24(v(t2), 12, v(t1)); st.v_sub_u32(v(t2), v(t0), v(t2))
        st.v_mul_u32_u24(v(vP3D + e), 3072, v(t1))
        st.v_lshl_add_u32(v(vP3D + e), v(t2), 4, v(vP3D + e))
        div_small(st, t1, t0, 10)
        st.v_mul_u32_u24(v(t2), 10, v(t1)); st.v_sub_u32(v(t2), v(t0), v(t2))
        st.v_mul_u32_u24(v(vP4D + e), 1280, v(t1))
        st.v_lshl_add_u32(v(vP4D + e), v(t2), 4, v(vP4D + e))
def issue_prep(st, i, es=(0, 1)):
    a0, a1, a2 = sE, sF, sCc
    st.s_lshl_b32(s(a2), s(sW), 11)
    if i < 2:
        st.s_mul_i32(s(a0), s(sR), 40 * 3072); st.s_mul_i32(s(a1), s(sC), 192)
    else:
        if i == 2: st.s_mul_i32(s(a0), s(sR), 40 * 1280)
        else: st.s_lshl_b32(s(a0), s(sR), 1); st.s_add_u32(s(a0), s(a0), s(sP)); st.s_mul_i32(s(a0), s(a0), 48 * 1280)
        st.s_mul_i32(s(a1), s(sM), 160)
    st.s_add_u32(s(a0), s(a0), s(a1))
    S_, L_, vo = [(S_WG, L_PG, vP3D), (S_WU, L_PU, vP3D), (S_WO, L_P2, vP4D), (S_WD, L_P4, vP4D)][i]
    for e in es:
        st.s_add_u32('m0', s(a2), L_ + e * 1024)
        st.buffer_load_dwordx4(v(vo + e), srd(S_), s(a0), mods='offen%s lds' % (' nt' if OPT['nt'] & 2 else ''), tag='prep%d' % i)
def gram(st, sg):
    for tt in range(2):
        for q in range(4):
            ks = 4 * sg + q
            mfma(st, v(vGR + 4 * tt, 4), xf(ks, tt), xf(ks, tt), ks == 0)
            mfma(st, v(vGR + 8 + 4 * tt, 4), v(vONE, 4), xf(ks, tt), ks == 0)
def ln_stats(st):
    for tt in range(2):
        q_, m_, u_ = vE, vE + 1, vE + 2
        G = vGR + 4 * tt
        st.v_cmp_eq_u32('vcc', 1, v(vCC)); st.v_mul_f32(v(m_), s(sINV640), v(vGR + 8 + 4 * tt)); st.v_cndmask_b32(v(q_), v(G), v(G + 1), 'vcc')
        st.v_cmp_eq_u32('vcc', 2, v(vCC)); st.v_sub_f32(v(vST + 2 * tt), 0, v(m_)); st.v_cndmask_b32(v(q_), v(q_), v(G + 2), 'vcc')
        st.v_cmp_eq_u32('vcc', 3, v(vCC)); st.v_cndmask_b32(v(q_), v(q_), v(G + 3), 'vcc')
        st.v_cmp_eq_u32('vcc', v(vR4), v(vG)); st.v_cndmask_b32(v(q_), 0, v(q_), 'vcc')
        allreduce_groups(st, q_, u_, 'v_add_f32')
        st.v_mul_f32(v(q_), s(sINV640), v(q_))
        st.v_fma_f32(v(q_), '-' + v(m_), v(m_), v(q_))
        st.v_max_f32(v(q_), 0, v(q_))
        st.v_add_f32(v(q_), s(sEPS), v(q_))
        st.v_rsq_f32(v(vST + 2 * tt + 1), v(q_))

vVA, vK1A, vFA, vKA, vKB, vPS = vEA, vEA + 1, vEA + 2, vEA + 3, vEA + 4, vEA + 6
def epi_addrs(st):
    b0, b1, b2, b3, b4, b5 = sT + 2, sT + 3, sT + 4, sT + 5, sT + 6, sT + 7
    st.s_mul_i32(s(b0), s(sW), 9216)
    st.s_add_u32(s(b0), s(b0), L_FV)
    st.v_mul_u32_u24(v(t0), 288, v(vJ))
    st.v_add_u32(v(t0), s(b0), v(t0))
    st.v_lshl_add_u32(v(vVA), v(vG), 3, v(t0))
    st.v_and_b32(v(t1), 1, v(vG)); st.v_mul_u32_u24(v(t1), 48, v(t1))
    st.v_lshrrev_b32(v(t2), 1, v(vG)); st.v_lshlrev_b32(v(t2), 3, v(t2))
    st.v_sub_u32(v(t1), v(t1), v(t2))
    st.v_add_u32(v(vK1A), v(t0), v(t1))
    st.v_lshrrev_b32(v(t1), 1, v(vG)); st.v_mul_u32_u24(v(t1), 16 * 288, v(t1))
    st.v_and_b32(v(t2), 1, v(vG)); st.v_mul_u32_u24(v(t2), 80, v(t2))
    st.v_add3_u32(v(vFA), v(t0), v(t1), v(t2))
    st.s_lshr_b32(s(b0), s(sW), 1)
    st.s_and_b32(s(b1), s(sW), 1)
    st.v_lshl_add_u32(v(t0), v(vG), 2, v(vR4))
    st.v_mul_u32_u24(v(t0), 288, v(t0))
    st.s_mul_i32(s(b2), s(b0), 80); st.s_add_u32(s(b2), s(b2), L_FV)
    st.v_lshl_add_u32(v(vKA), v(vCC), 3, v(t0))
    st.v_add_u32(v(vKA), s(b2), v(vKA))
    st.s_mul_i32(s(b2), s(b0), 48); st.s_lshl_b32(s(b3), s(b1), 5)
    st.s_add_u32(s(b2), s(b2), s(b3)); st.s_add_u32(s(b2), s(b2), L_FV + 160)
    st.s_mul_i32(s(b3), s(b1), -2); st.s_add_u32(s(b3), s(b3), 3)
    st.v_min_u32(v(t1), s(b3), v(vCC))
    st.v_lshl_add_u32(v(vKB), v(t1), 3, v(t0))
    st.v_add_u32(v(vKB), s(b2), v(vKB))
    st.s_mul_i32(s(b2), s(b1), -176); st.s_add_u32(s(b2), s(b2), 256)
    st.s_mul_i32(s(b3), s(b1), -11); st.s_add_u32(s(b3), s(b3), 16)
    st.s_mul_i32(s(b4), s(b1), 1280)
    st.s_mul_i32(s(b5), s(b0), 1792)
    st.s_add_u32(s(b4), s(b4), s(b5))
    st.v_mul_u32_u24(v(t0), s(b2), v(vG))
    st.v_lshlrev_b32(v(t1), 4, v(vJ))
    st.v_add3_u32(v(vPS), v(t0), v(t1), s(b4))
    st.s_lshl_b32(s(b2), s(b2), 2); st.s_add_u32(s(b4), s(b4), s(b2))
    st.v_lshl_add_u32(v(t0), v(vG), 3, v(t1))
    st.v_add_u32(v(vPS + 1), s(b4), v(t0))
    st.v_mov_b32(v(t2), OOB)
    st.v_cmp_gt_u32('vcc', s(b3), v(vJ))
    st.v_cndmask_b32(v(vPS), v(t2), v(vPS), 'vcc')
    st.v_cndmask_b32(v(vPS + 1), v(t2), v(vPS + 1), 'vcc')
    st.v_cmp_gt_u32('vcc', 2, v(vG))
    st.v_cndmask_b32(v(vPS + 1), v(t2), v(vPS + 1), 'vcc')

vPD = 124
PA = list(range(vE + 36, vE + 50))
def prep_addrs3(pr):
    pr.v_and_b32(v(t0), 1, v(vCC)); pr.v_lshlrev_b32(v(t0), 13, v(t0))
    pr.v_lshrrev_b32(v(t1), 1, v(vCC)); pr.v_lshl_add_u32(v(t0), v(t1), 3, v(t0))
    pr.s_mul_i32(s(sT), s(sW), 48); pr.s_add_u32(s(sT), s(sT), L_PG)
    pr.v_add_u32(v(t0), s(sT), v(t0))
    pr.v_lshrrev_b32(v(t1), 1, v(vG)); pr.v_mul_u32_u24(v(t1), 20, v(t1))
    pr.v_and_b32(v(t2), 1, v(vG)); pr.v_lshl_add_u32(v(t1), v(t2), 3, v(t1))
    pr.v_add_u32(v(t1), v(t1), v(vR4))
    pr.v_mul_u32_u24(v(t1), 192, v(t1))
    pr.v_add_u32(v(PA[0]), v(t0), v(t1))
    pr.v_mul_u32_u24(v(t1), 192, v(vR4))
    pr.v_min_u32(v(t2), 2, v(vG))
    pr.v_lshl_add_u32(v(t1), v(t2), 4, v(t1))
    pr.v_add_u32(v(PA[1]), v(t0), v(t1))
    pr.v_lshrrev_b32(v(t0), 1, v(vR4)); pr.v_lshlrev_b32(v(t0), 3, v(t0))
    pr.v_lshrrev_b32(v(t1), 1, v(vCC)); pr.v_lshl_add_u32(v(t0), v(t1), 2, v(t0))
    pr.v_and_b32(v(t1), 1, v(vR4)); pr.v_lshl_add_u32(v(t0), v(t1), 1, v(t0))
    pr.v_and_b32(v(t1), 1, v(vCC)); pr.v_add_u32(v(t0), v(t0), v(t1))
    pr.v_lshlrev_b32(v(t0), 4, v(t0))
    pr.v_lshl_add_u32(v(PA[2]), v(vG), 8, v(t0))
    pr.v_mul_u32_u24(v(t1), 20480, v(vG))
    pr.v_add_u32(v(t1), v(t1), v(t0))
    pr.v_mov_b32(v(t2), OOB)
    pr.v_cmp_gt_u32('vcc', 3, v(vG))
    pr.v_cndmask_b32(v(PA[3]), v(t2), v(t1), 'vcc')
def piece_addrs(pr, which, e, base):
    y0, y1, y2, y3 = PA[base], PA[base + 1], PA[base + 2], PA[13]
    if which == 4:
        pr.s_lshl_b32(s(sT), s(sW), 3); pr.s_add_u32(s(sT), s(sT), 4 * e); lim = 30
    else:
        pr.s_lshl_b32(s(sT), s(sW), 2); pr.s_lshl_b32(s(sT + 1), s(sP), 4); pr.s_add_u32(s(sT), s(sT), s(sT + 1)); lim = 25
    pr.v_add_u32(v(t0), s(sT), v(vG))
    pr.v_cmp_gt_u32('vcc', lim, v(t0))
    pr.v_min_u32(v(t0), lim - 1, v(t0))
    div_small(pr, t1, t0, 5)
    pr.v_mul_u32_u24(v(t2), 5, v(t1)); pr.v_sub_u32(v(t2), v(t0), v(t2))
    pr.v_mul_u32_u24(v(y2), 40, v(vCC)); pr.v_lshl_add_u32(v(y2), v(t2), 3, v(y2))
    if which == 4:
        div_small(pr, y0, t1, 3)
        pr.v_mul_u32_u24(v(y1), 3, v(y0)); pr.v_sub_u32(v(y1), v(t1), v(y1))
        pr.v_mul_u32_u24(v(y0), 24, v(y0))
        pr.v_and_b32(v(y3), 1, v(vR4)); pr.v_add_u32(v(y0), v(y0), v(y3))
        pr.v_lshrrev_b32(v(y3), 1, v(vR4))
        pr.v_lshlrev_b32(v(y3), 2, v(y3))
        pr.v_cmp_eq_u32(s(sT + 2, 2), 2, v(y1))
        pr.v_lshlrev_b32(v(y1), 1, v(y1))
        pr.v_cndmask_b32(v(y1), v(y1), -8, s(sT + 2, 2))
        pr.v_add3_u32(v(y0), v(y0), v(y1), 12)
        pr.v_cndmask_b32(v(y1), 4, -2, s(sT + 2, 2))
        pr.v_add3_u32(v(y1), v(y1), v(y0), v(y3))
        pr.v_sub_u32(v(y0), v(y0), v(y3))
        L_ = L_P4
    else:
        pr.v_lshrrev_b32(v(y0), 1, v(t1)); pr.v_mul_u32_u24(v(y0), 20, v(y0))
        pr.v_and_b32(v(y1), 1, v(t1)); pr.v_lshl_add_u32(v(y0), v(y1), 3, v(y0))
        pr.v_cmp_eq_u32(s(sT + 2, 2), 4, v(t1))
        pr.v_cndmask_b32(v(y0), v(y0), 16, s(sT + 2, 2))
        pr.v_cndmask_b32(v(y1), 4, 20, s(sT + 2, 2))
        pr.v_add_u32(v(y0), v(y0), v(vR4))
        pr.v_add_u32(v(y1), v(y1), v(y0))
        L_ = L_P2
    pr.v_add_u32(v(y2), L_, v(y2))
    pr.s_movk_i32(s(sT + 4), 160)
    pr.v_mad_u32_u24(v(y0), v(y0), s(sT + 4), v(y2))
    pr.v_mad_u32_u24(v(y1), v(y1), s(sT + 4), v(y2))
    if which == 4:
        pr.s_lshl_b32(s(sT), s(sR), 1); pr.s_add_u32(s(sT), s(sT), s(sP)); pr.s_mul_i32(s(sT), s(sT), 6)
    else:
        pr.s_mul_i32(s(sT), s(sR), 5)
    pr.v_add_u32(v(t1), s(sT), v(t1))
    pr.v_lshrrev_b32(v(y2), 2, v(t1)); pr.v_mul_u32_u24(v(y2), 5120, v(y2))
    pr.v_and_b32(v(t1), 3, v(t1)); pr.v_lshl_add_u32(v(y2), v(t1), 8, v(y2))
    pr.v_lshl_add_u32(v(y2), v(t2), 10, v(y2))
    pr.v_lshl_add_u32(v(y2), v(vJ), 4, v(y2))
    pr.v_mov_b32(v(t0), OOB)
    pr.v_cndmask_b32(v(y2), v(t0), v(y2), 'vcc')
def prep_reads(pr, part, D):
    if part == 0:
        for t in range(3):
            for i in range(2): pr.ds_read_b64_tr_b16(v(D + 4 * t + 2 * i, 2), v(PA[0]), mods='offset:%d' % (768 * i + 16 * t))
        for i in range(2): pr.ds_read_b64_tr_b16(v(D + 12 + 2 * i, 2), v(PA[1]), mods='offset:%d' % (16 * 192 + 3840 * i))
    elif part == 2:
        for i in range(2): pr.ds_read_b64_tr_b16(v(D + 2 * i, 2), v(PA[10 + i]))
    else:
        for p in range(2):
            for i in range(2): pr.ds_read_b64_tr_b16(v(D + 4 * p + 2 * i, 2), v(PA[4 + 3 * p + i]))
def prep_stores(pr, part, D):
    b0, b1 = sE, sF
    if part == 0:
        pr.s_mul_i32(s(b0), s(sC), 245760); pr.s_mul_i32(s(b1), s(sW), 61440); pr.s_add_u32(s(b0), s(b0), s(b1))
        pr.s_mul_i32(s(b1), s(sR), 1280); pr.s_add_u32(s(b0), s(b0), s(b1)); pr.s_add_u32(s(b0), s(b0), WS_W3)
        pr.buffer_store_dwordx4(v(D + 12, 4), v(PA[3]), srd(S_WS), s(b0), mods='offen offset:1024 sc1')
        for t in range(3):
            if t: pr.s_add_u32(s(b0), s(b0), 20480)
            pr.buffer_store_dwordx4(v(D + 4 * t, 4), v(PA[2]), srd(S_WS), s(b0), mods='offen sc1')
    elif part == 2:
        pr.s_mul_i32(s(b1), s(sM), 102400); pr.s_add_u32(s(b1), s(b1), WS_W2)
        pr.buffer_store_dwordx4(v(D, 4), v(PA[12]), srd(S_WS), s(b1), mods='offen sc1', tag='prepstW2')
    else:
        pr.s_mul_i32(s(b1), s(sM), 245760); pr.s_add_u32(s(b1), s(b1), WS_W4)
        for p in range(2): pr.buffer_store_dwordx4(v(D + 4 * p, 4), v(PA[6 + 3 * p]), srd(S_WS), s(b1), mods='offen sc1', tag='prepst2')


def flag_issue(st, dst, voff, ssoff):
    st.buffer_load_dwordx2(v(dst, 2), v(voff), srd(S_WS), s(ssoff), mods='offen sc1')
def flag_check(st, dst, voff, ssoff):
    q = npoll[0]; npoll[0] += 1
    t = '''v_cmp_ne_u64 vcc, s[{n0}:{n1}], v[{t}:{t1}]
    s_cbranch_vccz L_pd{n}
    s_mov_b32 s{c}, {lim}
L_pl{n}:
    buffer_load_dwordx2 v[{t}:{t1}], v{vo}, s[{ws}:{ws3}], s{so} offen sc1
    s_waitcnt vmcnt(0)
    v_cmp_ne_u64 vcc, s[{n0}:{n1}], v[{t}:{t1}]
    s_cbranch_vccz L_pd{n}
    s_sub_u32 s{c}, s{c}, 1
    s_cbranch_scc0 L_pl{n}
L_pd{n}:'''.format(n=q, c=sCNT, lim=OPT['spin'], t=dst, t1=dst + 1, vo=voff, ws=S_WS, ws3=S_WS + 3, so=ssoff, n0=sN, n1=sN + 1)
    st.raw(t, uses=[v(voff), v(dst, 2)], defs=[v(dst, 2)])
sL2E, sINV640, sEPS, sK1, sK3, sEPS6 = sK, sK + 1, sK + 2, sK + 3, sK + 4, sK + 5
vSX = vACC
def stats_load(st):
    st.s_lshl_b32(s(sV + 9), s(sR), 7); st.s_lshl_b32(s(sV + 10), s(sC), 3); st.s_add_u32(s(sV + 9), s(sV + 9), s(sV + 10))
    st.s_lshl_b32(s(sV + 10), s(sW), 1); st.s_add_u32(s(sSTK), s(sV + 9), s(sV + 10))
    st.s_mul_i32(s(sV + 9), s(sSTK), 1280)
    st.v_mov_b32(v(vSX + 20), OOB)
    st.v_cmp_gt_u32(s(sV + 7, 2), 32, v(vLANE))
    st.v_cndmask_b32(v(vSX + 20), v(vSX + 20), v(vL16), s(sV + 7, 2))
    for e in range(3): st.buffer_load_dwordx4(v(vSX + 4 * e, 4), v(vL16 if e < 2 else vSX + 20), srd(S_X), s(sV + 9), mods='offen offset:%d' % (e * 1024))
def stats_compute(st):
    A = vSX + 12
    for i in range(6): st.v_mov_b32(v(A + i), 0)
    for i in range(4):
        for e in range(3):
            st.v_dot2_f32_bf16(v(A + 2 * e), v(vSX + 4 * e + i), s(sONES), v(A + 2 * e))
            st.v_dot2_f32_bf16(v(A + 2 * e + 1), v(vSX + 4 * e + i), v(vSX + 4 * e + i), v(A + 2 * e + 1))
    st.v_cmp_eq_u32('vcc', 0, v(vG))
    for i in range(2):
        st.v_cndmask_b32(v(A + 6 + i), 0, v(A + 2 + i), 'vcc')
        st.v_cndmask_b32(v(A + 2 + i), v(A + 2 + i), 0, 'vcc')
    for i in range(2):
        st.v_add_f32(v(A + i), v(A + i), v(A + 6 + i))
        st.v_add_f32(v(A + 4 + i), v(A + 4 + i), v(A + 2 + i))
    for i in range(2): st.v_permlane32_swap_b32(v(A + i), v(A + 4 + i))
    for i in range(2): st.v_add_f32(v(A + i), v(A + i), v(A + 4 + i))
    for i in range(2): st.v_mov_b32(v(A + 2 + i), v(A + i))
    for i in range(2): st.v_permlane16_swap_b32(v(A + i), v(A + 2 + i))
    for i in range(2): st.v_add_f32(v(A + i), v(A + i), v(A + 2 + i))
    for sh in (8, 4, 2, 1):
        for i in range(2): st.v_add_f32_dpp(v(A + i), v(A + i), v(A + i), mods='row_ror:%d row_mask:0xf bank_mask:0xf' % sh)
    st.v_mul_f32(v(A), s(sINV640), v(A))
    st.v_mul_f32(v(A + 1), s(sINV640), v(A + 1))
    st.v_fma_f32(v(A + 1), '-' + v(A), v(A), v(A + 1))
    st.v_max_f32(v(A + 1), 0, v(A + 1))
    st.v_add_f32(v(A + 1), s(sEPS), v(A + 1))
    st.v_sub_f32(v(A), 0, v(A))
    st.v_rsq_f32(v(A + 2), v(A + 1))
    st.v_mov_b32(v(A + 1), s(sN)); st.v_mov_b32(v(A + 3), s(sTG))
    st.v_lshrrev_b32(v(vSX + 20), 1, v(vLANE))
    st.v_and_b32(v(vSX + 21), 31, v(vLANE))
    st.v_mov_b32(v(vSX + 22), OOB)
    st.v_cmp_eq_u32('vcc', 0, v(vSX + 21))
    st.s_lshl_b32(s(sV + 9), s(sSTK), 4); st.s_add_u32(s(sV + 9), s(sV + 9), WS_XST)
    st.v_cndmask_b32(v(vSX + 20), v(vSX + 22), v(vSX + 20), 'vcc')
    st.buffer_store_dwordx4(v(A, 4), v(vSX + 20), srd(S_WS), s(sV + 9), mods='offen sc1', tag='xst')
sSTK = sXO + 2; sTG = sXO + 6
vOAd = 44; vPOI = 48; sOS = sXO + 7
def o_addrs(st):
    if OPT['tagB']:
        for i in range(4): st.v_mov_b32(v(vPOI + i), -1)
    st.v_lshrrev_b32(v(vOAd), 1, v(vG)); st.v_mul_u32_u24(v(vOAd), 20480, v(vOAd))
    st.v_lshl_add_u32(v(vOAd), v(vJ), 4, v(vOAd))
    st.v_and_b32(v(vOAd + 2), 1, v(vG))
    st.v_lshl_add_u32(v(vOAd + 1), v(vOAd + 2), 3, v(vOAd))
    st.s_mul_i32(s(sOS), s(sR), 163840); st.s_mul_i32(s(sT + 6), s(sW), 40960); st.s_add_u32(s(sOS), s(sOS), s(sT + 6))
    st.s_mul_i32(s(sT + 6), s(sCQ), 1280); st.s_add_u32(s(sOS), s(sOS), s(sT + 6)); st.s_add_u32(s(sOS), s(sOS), WS_O)
    st.v_lshl_add_u32(v(vOAd), v(vOAd + 2), 9, v(vOAd))
def o_store(st, A, B, C, tag):
    st.buffer_store_dwordx4(v(A, 4), v(vOAd), srd(S_WS), s(sOS), mods='offen sc1')
    st.buffer_store_dwordx4(v(B, 4), v(vOAd), srd(S_WS), s(sOS), mods='offen offset:256 sc1')
    st.buffer_store_dwordx2(v(C, 2), v(vOAd + 1), srd(S_WS), s(sOS), mods='offen offset:1024 sc1', tag=tag)
def x_read(st, sg):
    for tt in range(2):
        for n in range(4):
            off = XSLOT[sg] + tt * 4096
            ad = vXRd + n
            if off > 65535: st.v_add_u32(v(vE + n), 65536, v(ad)); ad = vE + n; off -= 65536
            st.ds_read_b128(a(32 * sg + 16 * tt + 4 * n, 4), v(ad), mods='offset:%d' % off, tag='xr%d' % sg)
if OPT['tlb']:
    k.v_lshlrev_b32(v(t0), OPT['tlb'], v(vLANE))
    k.v_mov_b32(v(t1), OOB)
    k.v_cmp_gt_u32('vcc', min(64, (30 << 20) >> OPT['tlb']), v(vLANE))
    k.v_cndmask_b32(v(t0), v(t1), v(t0), 'vcc')
    for i, S_ in enumerate((S_WS, S_WG, S_WU, S_WD, S_WO, S_OUT)):
        k.buffer_load_dword(v(vAF + 24 + i), v(t0), srd(S_), 0, mods='offen nt')
prep_offsets(k)
stamp(k, 'pre')
if OPT['x0e']: issue_x(k, 0, (0,) if OPT['x0e'] >= 3 else (0, 1))
if OPT['w2e'] == 2: issue_prep(k, 2)
k.waitvm('W1S')
k.waitlds()
k.s_add_u32(s(sN), s(sN), 1); k.s_addc_u32(s(sN + 1), s(sN + 1), 0)
k.v_mov_b32(v(vNON), s(sN)); k.v_mov_b32(v(vNON + 1), s(sN + 1))
k.s_mul_i32(s(sTG), s(sN), 0x9E3779B1); k.s_add_u32(s(sTG), s(sTG), s(sN + 1))
k.s_barrier()
stamp(k, 'w1s')
vW1V = vAF + 8
for p in range(3):
    for i in range(2): k.ds_read_b64_tr_b16(v(vW1V + 4 * p + 2 * i, 2), v(vW1A + p), mods='offset:%d' % (960 * i))
k.buffer_store_dwordx4(v(vW1V, 4), v(vW1O), srd(S_WS), s(bE), mods='offen sc1')
k.buffer_store_dwordx4(v(vW1V + 4, 4), v(vW1O + 1), srd(S_WS), s(bO), mods='offen sc1')
k.buffer_store_dwordx4(v(vW1V + 8, 4), v(vW1O + 2), srd(S_WS), 0, mods='offen sc1')
cE, cO, c2 = vAF + 20, vAF + 21, vAF + 22
for p, d in enumerate((cE, cO, c2)): k.v_mov_b32(v(d), 0)
for i in range(4):
    for p, d in enumerate((cE, cO, c2)): k.v_dot2_f32_bf16(v(d), v(vW1V + 4 * p + i), s(sONES), v(d))
k.v_cmp_eq_u32('vcc', 0, v(vG)); k.v_cmp_eq_u32(s(sT, 2), 1, v(vG))
k.v_cndmask_b32(v(t0), 0, v(c2), 'vcc'); k.v_cndmask_b32(v(t1), 0, v(c2), s(sT, 2))
k.v_add_f32(v(cE), v(cE), v(t0)); k.v_add_f32(v(cO), v(cO), v(t1))
k.v_permlane32_swap_b32(v(cE), v(cO))
k.v_add_f32(v(cE), v(cE), v(cO))
k.v_mov_b32(v(cO), v(cE))
k.v_permlane16_swap_b32(v(cE), v(cO))
k.v_add_f32(v(cE), v(cE), v(cO))
k.v_cvt_pk_bf16_f32(v(cO), v(cE), v(cE))
k.v_lshlrev_b32(v(cO), 16, v(cO))
k.v_sub_f32(v(cO), v(cE), v(cO))
k.v_cvt_pk_bf16_f32(v(cO), v(cE), v(cO))
k.buffer_store_dword(v(cO), v(vW1O + 3), srd(S_WS), s(sD), mods='offen sc1', tag='w1st')
stamp(k, 'w1st')
wphi_scatter(k, vWP)
u = Stream()
for i in range(4): u.v_mov_b32(v(vONE + i), 0x3f803f80)
u.v_lshlrev_b32(v(vFR), 7, v(vJ))
u.v_lshlrev_b32(v(vFC), 11, v(vJ))
u.v_mul_u32_u24(v(vXRO), 1280, v(vJ))
u.v_mul_u32_u24(v(t0), 40, v(vG))
u.v_add_u32(v(vXRO), v(vXRO), v(t0))
u.s_add_u32(s(sT), s(sXO + 1), L_XST)
u.v_xor_b32(v(t0), v(vJ), v(vG))
u.v_lshlrev_b32(v(t0), 4, v(t0))
u.v_lshl_add_u32(v(t2), v(vJ), 8, v(t0))
for n in range(4):
    u.v_xor_b32(v(vXRd + n), 64 * n, v(t2))
    u.v_add_u32(v(vXRd + n), s(sT), v(vXRd + n))
u.v_add_u32(v(vL16b), 4096, v(vL16))
u.v_add_u32(v(vKV2), 61440, v(vL16))
u.v_add_u32(v(vKV2 + 1), L_Q, v(vL16))
sL2E, sINV640, sEPS, sK1, sK3, sEPS6 = sK, sK + 1, sK + 2, sK + 3, sK + 4, sK + 5
sL2Ep = 10
u.s_mov_b32(s(sL2E), f32(LOG2E)); u.s_mov_b32(s(sINV640), f32(1.0 / 640)); u.s_mov_b32(s(sEPS), f32(1e-5))
GK1 = -2.0 * math.sqrt(2.0 / math.pi) * LOG2E
u.s_mov_b32(s(sK1), f32(GK1)); u.s_mov_b32(s(sK3), f32(GK1 * 0.044715)); u.s_mov_b32(s(sEPS6), f32(1e-6))
u.s_mov_b32(s(sL2Ep), f32(LOG2E)); u.s_mov_b32(s(sL2Ep + 1), f32(-LOG2E))
f_ = Stream()
if OPT['x0e'] == 3: issue_x(f_, 0, (1,))
elif OPT['x0e'] == 4: issue_x(f_, 0, (1,)); issue_x(f_, 1, (0,))
elif OPT['x0e'] != 2: issue_x(f_, 1 if OPT['x0e'] else 0)
k.add(weave(u, [(f_, 0, None, 'vmem')], anchor='any'))
stamp(k, 'w1w')
k.waitvm('w1st')
stamp(k, 'w1d')
k.waitlds()
k.s_barrier()
post(k, F_W1)
stamp(k, 'w1post')

u = Stream()
o_addrs(u)
prep_addrs3(u); piece_addrs(u, 2, 0, 10); piece_addrs(u, 4, 0, 4); piece_addrs(u, 4, 1, 7); epi_addrs(u)
f_ = Stream()
if OPT['w2e'] == 1: issue_prep(f_, 2)
if OPT['x0e'] == 4: issue_x(f_, 1, (1,))
elif OPT['x0e'] != 1: issue_x(f_, 1)
issue_x(f_, 2); stats_load(f_)
if OPT['w2e'] == 3: issue_prep(f_, 2)
if OPT['x3e']: issue_x(f_, 3)
k.add(weave(u, [(f_, 0, None, 'vmem')], anchor='any'))
stamp(k, 'prepiss')
sKV, sKVt, sQs, sQt, sFW = sV, sV + 1, sV + 2, sV + 3, sV + 8
k.s_mul_i32(s(sB), s(sW), 5120); k.s_mul_i32(s(sA), s(sW), 3072)
k.s_mul_i32(s(sKV), s(sC), 102400); k.s_add_u32(s(sKV), s(sKV), s(sB)); k.s_add_u32(s(sKV), s(sKV), WS_W1K)
k.s_mul_i32(s(sQs), s(sC), 61440); k.s_add_u32(s(sQs), s(sQs), s(sA)); k.s_add_u32(s(sQs), s(sQs), WS_W1Q)
k.s_lshl_b32(s(sD), s(sC), 13); k.s_lshl_b32(s(sCc), s(sW), 11); k.s_add_u32(s(sD), s(sD), s(sCc)); k.s_add_u32(s(sD), s(sD), WS_CS)
k.s_lshl_b32(s(sFW), s(sC), 7); k.s_add_u32(s(sFW), s(sFW), WS_FLAGS + F_W1 * 32768)
vF0 = 18
def issue_kv(st, sg, lo=0, hi=5):
    if lo == 0:
        chunk(st, sg, sKVt, sT + 7)
        st.s_mul_i32(s(sKVt), s(sKVt), 20480); st.s_add_u32(s(sKVt), s(sKVt), s(sKV))
    for n in range(lo, hi):
        if n % 4 == 0 or n == lo: st.s_add_u32('m0', s(sB), KVPOS[sg] + (n & 4) * 1024)
        st.buffer_load_dwordx4(v(vL16 if n < 4 else vL16b), srd(S_WS), s(sKVt), mods='offen offset:%d sc1 lds' % ((n & 3) * 1024), tag='W%d' % sg)
def issue_q(st, lo, hi):
    for ch in range(lo, hi):
        chunk(st, ch, sQt, sT + 7)
        st.s_mul_i32(s(sQt), s(sQt), 12288); st.s_add_u32(s(sQt), s(sQt), s(sQs))
        st.s_add_u32('m0', s(sA), L_Q + ch * 12288)
        for n in range(3):
            st.buffer_load_dwordx4(v(vL16), srd(S_WS), s(sQt), mods='offen offset:%d sc1 lds' % (n * 1024), tag='Q%d' % ch)
flag_issue(k, vF0, vFC, sFW)
if OPT['tagB'] == 3: o_store(k, vPOI, vPOI, vPOI, 'poiO')
for sg in range(3): k.waitvm('x%d' % sg); x_read(k, sg)
k.waitlds(); k.s_barrier()
stamp(k, 'w1a'); flag_check(k, vF0, vFC, sFW); stamp(k, 'w1b')
issue_kv(k, 0)
issue_kv(k, 1)
stats_compute(k)
wphi_read(k)
if OPT['tagB'] == 1: o_store(k, vPOI, vPOI, vPOI, 'poiO')
issue_x(k, 4 if OPT['x3e'] else 3)
if OPT['tagB'] == 2: o_store(k, vPOI, vPOI, vPOI, 'poiO')
k.waitvm('W0')
k.s_barrier()
stamp(k, 'kvgo')

vF1, vF2, vFA1, vF3, vPLO, vT16, vKR = 18, 20, 22, 24, 30, 31, 32
sW2s, sW2l, sW2t, sW3, sW3t, sPL, sFP, sFK = sV + 4, sV + 5, sV + 6, sV + 7, sXO + 3, sXO + 4, sV + 9, sV + 10
def q_setup(st):
    st.v_bfe_u32(v(vFA1), v(vLANE), 4, 1)
    st.v_lshl_add_u32(v(vFA1), v(vFA1), 7, v(vFC))
    st.s_lshl_b32(s(sFP), s(sM), 8); st.s_add_u32(s(sFP), s(sFP), WS_FLAGS + F_PREP * 32768)
    st.s_lshl_b32(s(sFK), s(sCQ), 7); st.s_add_u32(s(sFK), s(sFK), WS_FLAGS + F_KV * 32768)
    st.v_and_b32(v(vKR), 1, v(vG)); st.v_mul_u32_u24(v(vKR), 1856, v(vKR))
    st.s_lshl_b32(s(sW2l), s(sW), 12)
    st.s_mul_i32(s(sW2s), s(sM), 102400); st.s_add_u32(s(sW2s), s(sW2s), WS_W2)
    st.v_lshl_add_u32(v(vKR), v(vCC), 4, v(vKR))
    st.s_mul_i32(s(sW3), s(sC), 245760); st.s_mul_i32(s(sW3t), s(sW), 61440); st.s_add_u32(s(sW3), s(sW3), s(sW3t))
    st.v_mov_b32(v(t1), L_ZERO - L_KVR)
    st.s_add_u32(s(sW3), s(sW3), WS_W3)
    st.v_cmp_eq_u32('vcc', v(vR4), v(vG))
    st.s_mul_i32(s(sPL), s(sCQ), 16 * 3584); st.s_add_u32(s(sPL), s(sPL), WS_PART)
    st.v_lshlrev_b32(v(vT16), 4, v(vTID))
    st.v_cndmask_b32(v(vKR), v(t1), v(vKR), 'vcc')
    st.v_mov_b32(v(t1), OOB)
    st.v_cmp_gt_u32('vcc', 224, v(vTID))
    st.v_add_u32(v(vKR), L_KVR, v(vKR))
    st.v_cndmask_b32(v(vPLO), v(t1), v(vT16), 'vcc')
    st.v_cmp_lt_u32('vcc', 111, v(vTID))
    st.v_add_u32(v(vT16), L_KVR, v(vT16))
    st.v_add_u32(v(t1), 64, v(vT16))
    st.v_cndmask_b32(v(vT16), v(vT16), v(t1), 'vcc')
W2ORD = list(range(8)) + list(range(16, 25)) + list(range(8, 16))
def issue_w2(st, lo, hi):
    last = None
    for i in W2ORD[lo:hi]:
        if (i >> 2) != last:
            last = i >> 2
            if i < 24: st.s_add_u32(s(sW2t), s(sW2l), last * 16384)
            else: st.s_lshl_b32(s(sW2t), s(sW), 10); st.s_add_u32(s(sW2t), s(sW2t), 98304)
            st.s_add_u32('m0', s(sW2t), L_W2)
            st.s_add_u32(s(sW2t), s(sW2t), s(sW2s))
        st.buffer_load_dwordx4(v(vL16), srd(S_WS), s(sW2t), mods='offen offset:%d sc1 lds' % ((i & 3) * 1024), tag='W2')
def issue_w3(st, lst):
    last = None
    for i in lst:
        if (i >> 2) != last:
            last = i >> 2; st.s_add_u32(s(sW3t), s(sW3), last * 4096)
        st.buffer_load_dwordx4(a(4 * i, 4), v(vL16), srd(S_WS), s(sW3t), mods='offen offset:%d sc1' % ((i & 3) * 1024))
vSL = vGR; vSA = vGR + 8
def stats_check(st):
    t = '''s_mov_b32 s{c}, {lim}
L_sc:
    v_cmp_ne_u32 vcc, s{n}, v{a1}
    v_cmp_ne_u32 s[{p}:{p1}], s{n}, v{b1}
    s_or_b64 vcc, vcc, s[{p}:{p1}]
    v_cmp_ne_u32 s[{p}:{p1}], s{g}, v{a3}
    s_or_b64 vcc, vcc, s[{p}:{p1}]
    v_cmp_ne_u32 s[{p}:{p1}], s{g}, v{b3}
    s_or_b64 vcc, vcc, s[{p}:{p1}]
    s_cbranch_scc0 L_sd
    buffer_load_dwordx4 v[{a0}:{a3}], v{ad}, s[{ws}:{ws3}], s{so} offen sc1
    buffer_load_dwordx4 v[{b0}:{b3}], v{ad}, s[{ws}:{ws3}], s{so} offen offset:256 sc1
    s_waitcnt vmcnt(0)
    s_sub_u32 s{c}, s{c}, 1
    s_cbranch_scc0 L_sc
L_sd:'''.format(c=sCNT, lim=OPT['spin'], n=sN, g=sTG, p=sT + 4, p1=sT + 5, a0=vSL, a1=vSL + 1, a3=vSL + 3, b0=vSL + 4, b1=vSL + 5, b3=vSL + 7,
               ad=vSA, ws=S_WS, ws3=S_WS + 3, so=sV + 8)
    st.raw(t, uses=[v(vSL, 8), v(vSA)], defs=[v(vSL, 8)])
    for tt in range(2):
        st.v_mov_b32(v(vST + 2 * tt), v(vSL + 4 * tt)); st.v_mov_b32(v(vST + 2 * tt + 1), v(vSL + 4 * tt + 2))
def sent_issue(st, dst, voff, ssoff):
    st.buffer_load_dwordx4(v(dst, 4), v(voff), srd(S_WS), s(ssoff), mods='offen sc1')
def sent_check(st, dst, voff, ssoff):
    q = npoll[0]; npoll[0] += 1
    t = '''s_mov_b32 s{c}, {lim}
L_pl{n}:
    v_max_u32 v{t}, v{t}, v{t2}
    v_cmp_eq_u32 vcc, -1, v{t}
    s_cbranch_vccz L_pd{n}
    buffer_load_dwordx4 v[{t}:{t3}], v{vo}, s[{ws}:{ws3}], s{so} offen sc1
    s_waitcnt vmcnt(0)
    s_sub_u32 s{c}, s{c}, 1
    s_cbranch_scc0 L_pl{n}
L_pd{n}:'''.format(n=q, c=sCNT, lim=OPT['spin'], t=dst, t2=dst + 2, t3=dst + 3, vo=voff, ws=S_WS, ws3=S_WS + 3, so=ssoff)
    st.raw(t, uses=[v(voff), v(dst, 4)], defs=[v(dst, 4)])
def redo_check(st, vm, label):
    q = npoll[0]; npoll[0] += 1
    t = '''v_cmp_eq_u32 vcc, -1, v{m}
    s_cbranch_vccz L_pd{n}
    s_sub_u32 s{c}, s{c}, 1
    s_cbranch_scc1 L_pd{n}
    s_waitcnt vmcnt(0) lgkmcnt(0)
    s_nop 15
    s_branch {l}
L_pd{n}:'''.format(n=q, m=vm, c=sRC, l=label)
    st.raw(t, uses=[v(vm)])
sRC = 101
def kv_reads(st, ks):
    for X in range(5):
        off = KVPOS[ks >> 2] + (ks & 3) * 5120 + X * 1024
        st.ds_read_b128(v(vAF + (ks & 1) * 20 + X * 4, 4), v(vL16 if off < 61440 else vKV2), mods='offset:%d' % (L_KV + (off if off < 61440 else off - 61440)))
kv_reads(k, 0)
for sg in range(5):
    m_ = Stream()
    for q in range(4):
        ks = 4 * sg + q
        mm = Stream()
        for X in range(5):
            A = v(vAF + (q & 1) * 20 + X * 4, 4)
            mfma(mm, v(acc(X, 0), 4), A, xf(ks, 0), ks == 0)
            mfma(mm, v(acc(X, 1), 4), A, xf(ks, 1), ks == 0)
        ff = Stream()
        if ks < 19: kv_reads(ff, ks + 1)
        mm = weave(mm, [(ff, 0, 10)])
        if q == 2 and sg < 4:
            mm.waitvm('W%d' % (sg + 1))
            if sg == 2: mm.waitvm('CSF')
            if sg == 1: mm.waitvm('prepstW2')
            mm.waitlds()
            mm.s_barrier()
            if sg == 1: post(mm, F_PREP2)
        m_.add(mm)
    fills = []
    f1 = Stream()
    if sg == 0 and OPT['x3e']:
        issue_kv(f1, 2)
        f6 = Stream(); x_read(f6, 3); f6.waitvm('x4'); x_read(f6, 4); fills.append((f6, 0, 29))
        f7 = Stream(); issue_kv(f7, 3, 0, 3); fills.append((f7, 31, None, 'vmem'))
    if sg == 1 and OPT['x3e']:
        f1.s_add_u32('m0', s(sCc), L_CSF)
        for n in range(2): f1.buffer_load_dwordx4(v(vL16), srd(S_WS), s(sD), mods='offen offset:%d sc1 lds' % (n * 1024), tag='CSF')
        issue_kv(f1, 3, 3, 5)
        issue_kv(f1, 4)
    if sg == 2 and OPT['x3e']: issue_q(f1, 0, 3)
    if sg == 0 and not OPT['x3e']:
        issue_x(f1, 4)
        f6 = Stream(); f6.waitvm('x3'); x_read(f6, 3); fills.append((f6, 12, 28))
        f7 = Stream(); issue_kv(f7, 2, 0, 3); fills.append((f7, 29, None, 'vmem'))
    if sg == 1 and not OPT['x3e']:
        issue_kv(f1, 2, 3, 5)
        f1.s_add_u32('m0', s(sCc), L_CSF)
        for n in range(2): f1.buffer_load_dwordx4(v(vL16), srd(S_WS), s(sD), mods='offen offset:%d sc1 lds' % (n * 1024), tag='CSF')
        if not OPT['ql']: issue_q(f1, 0, 1)
        f6 = Stream(); f6.waitvm('x4'); x_read(f6, 4); fills.append((f6, 4, 20))
        f7 = Stream(); issue_kv(f7, 3, 0, 4); fills.append((f7, 31, None, 'vmem'))
    if sg == 2 and not OPT['x3e']:
        issue_kv(f1, 3, 4, 5); issue_kv(f1, 4)
        if not OPT['ql']: issue_q(f1, 1, 2)
    if sg == 3:
        if not OPT['ql']: issue_q(f1, 3 if OPT['x3e'] else 2, OPT['qe'])
        f7 = Stream(); issue_prep(f7, 0); issue_prep(f7, 1)
        if OPT['ql']: issue_prep(f7, 3)
        fills.append((f7, OPT['pat'], None, 'vmem'))
    if sg == 4 and not OPT['ql']: issue_prep(f1, 3)
    if sg == 4 and OPT['tl2']:
        f1.v_lshlrev_b32(v(54), 20, v(vLANE)); f1.v_min_u32(v(54), 23 << 20, v(54))
        f1.buffer_load_dword(v(55), v(54), srd(S_WS), 0, mods='offen sc1')
        f1.buffer_load_dword(v(55), v(54), srd(S_OUT), 0, mods='offen sc1')
    fills.append((f1, 0, (28 if (sg == 0 or (sg == 1 and not OPT['x3e'])) else OPT['pat'] - 9 if sg == 3 else 10 if sg == 4 else None), 'vmem'))
    if sg == 3:
        f4 = Stream()
        f4.v_add_u32(v(t0), L_CSF, v(vL16))
        for X in range(5): f4.ds_read_b128(v(vE + 4 + 4 * X, 4), v(t0), mods='offset:%d' % (X * 1024))
        for X in range(3): f4.ds_read_b128(a(aCSQ + 4 * X, 4), v(t0), mods='offset:%d' % ((5 + X) * 1024))
        fills.append((f4, 0, 28))
    if sg == 0:
        f5 = Stream(); prep_reads(f5, 2, vE + 24); fills.append((f5, 0, 4))
        f5 = Stream(); prep_stores(f5, 2, vE + 24); fills.append((f5, 5, 6, 'vmem'))
    if OPT['tagB'] >= 4 and sg == OPT['tagB'] - 4:
        f8 = Stream(); o_store(f8, vPOI, vPOI, vPOI, 'poiO'); fills.append((f8, 6, 36, 'vmem'))
    if sg == 2:
        f4 = Stream(); q_setup(f4); fills.append((f4, 0, None))
    if sg == 3:
        f4 = Stream(); f4.s_add_u32(s(sD), s(sFP), (F_PREP2 - F_PREP) * 32768); flag_issue(f4, vF3, vFA1, sD)
        f4.s_lshl_b32(s(sV + 8), s(sR), 11); f4.s_lshl_b32(s(sT + 3), s(sW), 9); f4.s_add_u32(s(sV + 8), s(sV + 8), s(sT + 3)); f4.s_add_u32(s(sV + 8), s(sV + 8), WS_XST)
        f4.v_lshlrev_b32(v(vSA), 4, v(vJ))
        for tt in range(2): f4.buffer_load_dwordx4(v(vSL + 4 * tt, 4), v(vSA), srd(S_WS), s(sV + 8), mods='offen offset:%d sc1' % (256 * tt))
        fills.append((f4, OPT['pat'] - 8, OPT['pat'] - 1, 'vmem'))
    if sg == 4:
        f4 = Stream(); stats_check(f4); fills.append((f4, 20, None))
    if sg == 4:
        for X in range(5): mfma(m_, v(acc(X, 2), 4), v(vE + 4 + 4 * X, 4), v(vONE, 4), True)
    m_ = pack(m_, fills); print('kv stage', sg, 'est', m_.est)
    k.add(m_)
    if sg < 4: stamp(k, 'kv%d' % sg)
stamp(k, 'kvgemm')

def ln_pack(st, X, tt, dst, pk=True):
    A = acc(X, tt); C = acc(X, 2); S = v(vST + 2 * tt, 2)
    if pk:
        for h in range(2):
            st.v_pk_fma_f32(v(A + 2 * h, 2), v(C + 2 * h, 2), S, v(A + 2 * h, 2), mods='op_sel_hi:[1,0,1]')
        for h in range(2):
            st.v_pk_mul_f32(v(A + 2 * h, 2), v(A + 2 * h, 2), S, mods='op_sel:[0,1] op_sel_hi:[1,1]')
    else:
        for i in range(4): st.v_fmac_f32(v(A + i), v(C + i), v(vST + 2 * tt))
        for i in range(4): st.v_mul_f32(v(A + i), v(A + i), v(vST + 2 * tt + 1))
    for h in range(2):
        st.v_cvt_pk_bf16_f32(v(dst + h), v(A + 2 * h), v(A + 2 * h + 1))

vBK = vE + 4
vP = vE + 16
vEP = vACC
vMX = vE + 56
vPK = vAF
def feature_map(st):
    for tt in range(2):
        for ks in range(2):
            for ft in range(5):
                mfma(st, v(vP + 4 * ft, 4), a(aPHI + (tt * 10 + ft * 2 + ks) * 4, 4), v(vBK + 6 * tt + 2 * ks, 4), tt == 0 and ks == 0)
def softmax2(st, order, write=False):
    mx, mn, sp, sn = vMX, vMX + 1, vMX + 2, vMX + 4
    st.v_max3_f32(v(mx), v(vP), v(vP + 1), v(vP + 2))
    st.v_min3_f32(v(mn), v(vP), v(vP + 1), v(vP + 2))
    for i in range(3, 19, 2):
        st.v_max3_f32(v(mx), v(mx), v(vP + i), v(vP + i + 1))
        st.v_min3_f32(v(mn), v(mn), v(vP + i), v(vP + i + 1))
    st.v_max_f32(v(mx), v(mx), v(vP + 19))
    st.v_min_f32(v(mn), v(mn), v(vP + 19))
    st.v_mul_f32(v(mx), s(sL2Ep + 1), v(mx))
    st.v_mul_f32(v(mn), s(sL2Ep), v(mn))
    for i in range(0, 20, 2):
        st.v_pk_fma_f32(v(vEP + i, 2), v(vP + i, 2), s(sL2Ep, 2), v(mx, 2), mods='op_sel_hi:[1,0,0]')
        st.v_pk_fma_f32(v(vP + i, 2), v(vP + i, 2), s(sL2Ep, 2), v(mx, 2), mods='op_sel:[0,1,1] op_sel_hi:[1,1,1]')
    for i in range(20):
        st.v_exp_f32(v(vEP + i), v(vEP + i))
        st.v_exp_f32(v(vP + i), v(vP + i))
    st.v_pk_add_f32(v(sp, 2), v(vEP, 2), v(vEP + 2, 2))
    st.v_pk_add_f32(v(sn, 2), v(vP, 2), v(vP + 2, 2))
    for i in range(4, 20, 2):
        st.v_pk_add_f32(v(sp, 2), v(sp, 2), v(vEP + i, 2))
        st.v_pk_add_f32(v(sn, 2), v(sn, 2), v(vP + i, 2))
    st.v_add_f32(v(sp), v(sp), v(sp + 1))
    st.v_add_f32(v(sn), v(sn), v(sn + 1))
    st.v_rcp_f32(v(sp), v(sp))
    st.v_rcp_f32(v(sn), v(sn))
    def wr(q):
        if write: st.ds_write_b128(v(vFA), v(vPK + 4 * q, 4), mods='offset:%d' % (16 * q))
    for i in range(0, 20, 2): st.v_pk_mul_f32(v(vEP + i, 2), v(vEP + i, 2), v(sp, 2), mods='op_sel_hi:[1,0]')
    for i in range(10):
        st.v_cvt_pk_bf16_f32(v(vPK + order[i]), v(vEP + 2 * i), v(vEP + 2 * i + 1))
        if i == 3: wr(0)
    for i in range(0, 20, 2):
        st.v_pk_mul_f32(v(vP + i, 2), v(vP + i, 2), v(sn, 2), mods='op_sel_hi:[1,0]')
        if i == 6: wr(1)
    for i in range(10):
        st.v_cvt_pk_bf16_f32(v(vPK + order[10 + i]), v(vP + 2 * i), v(vP + 2 * i + 1))
        if i == 2: wr(2)
    wr(3); wr(4)

m_ = Stream()
for tt in range(2):
    for X in range(3): ln_pack(m_, X, tt, vBK + 6 * tt + 2 * X)
k.add(m_)
vVP = vAF + 20; vK1 = vAF + 30
m_ = Stream(); feature_map(m_)
f_ = Stream()
f_.v_cmp_lt_u32('vcc', 1, v(vG))
f_.v_mov_b32(v(t1), 0x3f80)
for tt in range(2):
    f_.v_cndmask_b32(v(vK1 + 2 * tt), v(t1), v(vBK + 6 * tt + 2), 'vcc')
    f_.v_cndmask_b32(v(vK1 + 2 * tt + 1), 0, v(vBK + 6 * tt + 3), 'vcc')
    f_.ds_write_b64(v(vK1A), v(vK1 + 2 * tt, 2), mods='offset:%d' % (200 + tt * 16 * 288))
for tt in range(2):
    for h in range(2):
        ln_pack(f_, 3 + h, tt, vVP + 4 * tt + 2 * h, pk=False)
        f_.ds_write_b64(v(vVA), v(vVP + 4 * tt + 2 * h, 2), mods='offset:%d' % (160 + 48 * h + tt * 16 * 288))
k.add(pack(m_, [(f_, 0, None)]))
m_ = Stream(); softmax2(m_, list(range(20)), True)
f_ = Stream()
if OPT['ql']: issue_q(f_, 0, OPT['qe'])
k.add(weave(m_, [(f_, OPT['qlat'], 165, 'vmem')], anchor='any'))
if OPT['stop'] == 1:
    dump(k, [v(vBK, 4), v(vBK + 4, 4), v(vBK + 8, 4), v(vVP, 4), v(vVP + 4, 4), v(vST, 4)] + [v(vPK + 4 * i, 4) for i in range(5)])
    finish(k)
k.waitvm('Q%d' % (min(OPT['qe'], 2) - 1 if OPT['ql'] else OPT['qe'] - 1))
if OPT['pe']: k.waitvm('prep3')
k.waitlds()
k.s_barrier()
stamp(k, 'phik')
vKVA = vACC; vKVB = vACC + 48; vKVD = vE + 4
def kvm_reads(st, ks):
    off = 32 * ks * 288
    for i in range(2):
        st.ds_read_b64_tr_b16(v(vKVB + 4 * ks + 2 * i, 2), v(vKB), mods='offset:%d' % (off + 16 * i * 288))
    for ft in range(3):
        for i in range(2):
            st.ds_read_b64_tr_b16(v(vKVA + (ks * 3 + ft) * 4 + 2 * i, 2), v(vKA), mods='offset:%d' % (off + 16 * i * 288 + 32 * ft))
kvm_reads(k, 0); kvm_reads(k, 1)
k.s_lshl_b32(s(sT), s(sC), 4); k.s_add_u32(s(sT), s(sT), s(sR)); k.s_mul_i32(s(sT), s(sT), 3584)
k.s_add_u32(s(sT), s(sT), WS_PART)
m_ = Stream()
for ks in range(4):
    for ft in range(3):
        mfma(m_, v(vKVD + 4 * ft, 4), v(vKVA + (ks * 3 + ft) * 4, 4), v(vKVB + 4 * ks, 4), ks == 0)
f_ = Stream(); kvm_reads(f_, 2); kvm_reads(f_, 3)
k.add(weave(m_, [(f_, 0, 6)]))
vKVP = vE + 16
for i in range(6): k.v_cvt_pk_bf16_f32(v(vKVP + i), v(vKVD + 2 * i), v(vKVD + 2 * i + 1))
k.buffer_store_dwordx4(v(vKVP, 4), v(vPS), srd(S_WS), s(sT), mods='offen sc1')
k.buffer_store_dwordx2(v(vKVP + 4, 2), v(vPS + 1), srd(S_WS), s(sT), mods='offen sc1', tag='part')
stamp(k, 'kvst')

def qbuf(b, X): return vAF + b * 12 + X * 4
def q_reads(st, ks):
    for X in range(3): st.ds_read_b128(v(qbuf(ks & 1, X), 4), v(vKV2 + 1), mods='offset:%d' % (ks * 3072 + X * 1024))
PLQ = [88 + 4 * i for i in range(4)] + [140 + 4 * i for i in range(10)] + [248, 252]
def issue_part(st):
    for r_ in range(16):
        if r_: st.s_add_u32(s(sPL), s(sPL), 3584)
        st.buffer_load_dwordx4(v(PLQ[r_], 4), v(vPLO), srd(S_WS), s(sPL), mods='offen sc1')
q_reads(k, 0)
m_ = Stream()
for X in range(3): mfma(m_, v(acc(X, 2), 4), a(aCSQ + 4 * X, 4), v(vONE, 4), True)
for ks in range(20):
    mm = Stream()
    for X in range(3):
        A = v(qbuf(ks & 1, X), 4)
        mfma(mm, v(acc(X, 0), 4), A, xf(ks, 0), ks == 0)
        mfma(mm, v(acc(X, 1), 4), A, xf(ks, 1), ks == 0)
    ff = Stream()
    if ks < 19: q_reads(ff, ks + 1)
    m_.add(weave(mm, [(ff, 0, 6)]))
QP = OPT['qpost']
assert QP >= 3 + 6 * 4
fp = Stream(); stamp(fp, 'q_a'); fp.waitvm('part' if OPT['qe'] > 2 else 'Q2'); stamp(fp, 'q_b'); fp.s_barrier(); post(fp, F_KV)
NW3 = 0
W3ORD = [t * 20 + 4 * b_ + j_ for b_ in range(5) for t in range(3) for j_ in range(4)]
QP2 = OPT['qpost2']
fr = Stream(); prep_reads(fr, 0, vE + 4); prep_reads(fr, 1, vE + 24)
fs = Stream(); prep_stores(fs, 0, vE + 4); prep_stores(fs, 1, vE + 24)
fc = Stream()
vCA, vCD = vE + 32, vE + 52
for t in range(4):
    fc.v_cmp_eq_u32(s(sT + 4, 2), t if t < 3 else v(vG), v(vR4))
    for i in range(4): fc.v_cndmask_b32(v(vCA + i), 0, v(vONE), s(sT + 4, 2))
    mfma(fc, v(vCD, 4), v(vCA, 4), v(vE + 4 + 4 * t, 4), t == 0)
fc.v_lshlrev_b32(v(t0), 8, v(vG)); fc.v_mul_u32_u24(v(t0), 3, v(t0)); fc.v_add_u32(v(t0), v(t0), v(PA[2]))
fc.v_mov_b32(v(t1), OOB)
fc.v_cmp_gt_u32(s(sT + 4, 2), 3, v(vG))
fc.s_mul_i32(s(sE), s(sC), 12288); fc.s_mul_i32(s(sF), s(sW), 3072); fc.s_add_u32(s(sE), s(sE), s(sF))
fc.v_cndmask_b32(v(t0), v(t1), v(t0), s(sT + 4, 2))
fc.s_lshr_b32(s(sF), s(sR), 2); fc.s_lshl_b32(s(sF), s(sF), 8); fc.s_add_u32(s(sE), s(sE), s(sF))
fc.v_cvt_pk_bf16_f32(v(vCD + 1), v(vCD), v(vCD))
fc.s_and_b32(s(sF), s(sR), 3); fc.s_lshl_b32(s(sF), s(sF), 2); fc.s_add_u32(s(sE), s(sE), s(sF))
fc.v_lshlrev_b32(v(vCD + 1), 16, v(vCD + 1))
fc.v_sub_f32(v(vCD + 1), v(vCD), v(vCD + 1))
fc.v_cvt_pk_bf16_f32(v(vCD + 1), v(vCD), v(vCD + 1))
fc.s_add_u32(s(sE), s(sE), WS_CS3)
fc.buffer_store_dword(v(vCD + 1), v(t0), srd(S_WS), s(sE), mods='offen sc1', tag='prepst3')
fq = Stream(); stamp(fq, 'q_c'); fq.waitvm('prepst3'); stamp(fq, 'q_d'); fq.s_barrier(); post(fq, F_PREP)
f2 = Stream(); flag_check(f2, vF3, vFA1, sD); issue_w2(f2, 0, OPT['w2q'])
f4 = Stream(); flag_issue(f4, vF2, vFC, sFK)
fqq = Stream(); issue_q(fqq, OPT['qe'], 5)
fb3 = Stream(); fb3.waitvm('Q3'); fb3.s_barrier()
fb4 = Stream(); fb4.waitvm('Q4'); fb4.s_barrier()
fz = Stream()
for i in range(2): fz.v_mov_b32(v(52 + i), 0)
for i in range(2): fz.ds_write_b64(v(vT16), v(52, 2), mods='offset:%d' % (L_ZERO - L_KVR + 8 * i))
PB = 0 if OPT['pe'] else QP + 1
fl = [(fqq, 0, 34, 'vmem'), (fb3, 67, 68, 'vmem'), (fb4, 91, 92, 'vmem'), (fp, QP, QP + 1, 'vmem'), (fr, PB, PB + 9), (fs, PB + 10, PB + 10 + OPT['psl'], 'vmem'),
      (fc, PB + 11 + OPT['psl'], PB + 33 + OPT['psl']), (f2, OPT['w2at'], 122, 'vmem'), (fz, 100, 120)]
if OPT['pe']: fl.append((fq, OPT['pe'], OPT['pe'] + 1, 'vmem')); fq = Stream()
m_ = pack(m_, fl)
f4b = f4
print('q gemm est', m_.est)
k.add(m_)
stamp(k, 'qgemm')
m_ = Stream()
for tt in range(2):
    for X in range(3): ln_pack(m_, X, tt, vBK + 6 * tt + 2 * X)
feature_map(m_)
order = [0] * 20
for s_ in range(4):
    order[2 * s_] = 4 * s_; order[2 * s_ + 1] = 4 * s_ + 1; order[8 + 2 * s_] = 4 * s_ + 2; order[9 + 2 * s_] = 4 * s_ + 3
for i in range(16, 20): order[i] = i
softmax2(m_, order)
f5 = Stream(); stamp(f5, 'q_e'); flag_check(f5, vF2, vFC, sFK); stamp(f5, 'q_f'); issue_part(f5)
N2 = min(25, OPT['w2q'] + OPT['w2s'])
f6 = Stream(); issue_w2(f6, OPT['w2q'], N2)
if OPT['w3u']: flag_issue(f6, vF1, vFA1, sFP)
k.add(weave(m_, [(f5, OPT['qpl'], OPT['qpl'] + OPT['qpn'], 'vmem'), (f6, OPT['qpl'] + OPT['qpn'] + 2, None, 'vmem'), (f4b, OPT['qpl'] - 60, OPT['qpl'] - 59, 'vmem'), (fq, QP2, QP2 + 1, 'vmem')], anchor='any'))
stamp(k, 'phiq')
if OPT['stop'] == 2:
    k.waitvm(); k.s_barrier()
    dump(k, [v(vPK + 4 * i, 4) for i in range(5)])
    finish(k)

vSUM = vE
m_ = Stream()
for r_ in range(16):
    for i in range(4):
        if r_ == 0:
            m_.v_lshlrev_b32(v(vSUM + 2 * i), 16, v(PLQ[0] + i))
            m_.v_and_b32(v(vSUM + 2 * i + 1), 0xffff0000, v(PLQ[0] + i))
        else:
            m_.v_dot2_f32_bf16(v(vSUM + 2 * i), v(PLQ[r_] + i), s(sONE_LO), v(vSUM + 2 * i))
            m_.v_dot2_f32_bf16(v(vSUM + 2 * i + 1), v(PLQ[r_] + i), s(sONE_HI), v(vSUM + 2 * i + 1))
N3 = min(25, N2 + OPT['w2u'])
f_ = Stream(); issue_w2(f_, N2, N3); N2 = N3
if OPT['w3u']: flag_check(f_, vF1, vFA1, sFP); issue_w3(f_, W3ORD[:OPT['w3u']]); NW3 = OPT['w3u']
else: flag_issue(f_, vF1, vFA1, sFP)
if OPT['tagB']:
    f_.s_lshl_b32(s(sD), s(sR), 11); f_.s_add_u32(s(sD), s(sD), WS_FLAGS + F_KV * 32768); flag_issue(f_, vF3, vFR, sD)
k.add(weave(m_, [(f_, OPT['w2uat'], None, 'vmem')], anchor='any'))
vOA = 104
for i in range(4): k.v_cvt_pk_bf16_f32(v(vSUM + 8 + i), v(vSUM + 2 * i), v(vSUM + 2 * i + 1))
k.ds_write_b128(v(vT16), v(vSUM + 8, 4))
k.waitlds()
k.s_barrier()
stamp(k, 'kvsum')
vOD = 224
vOP = 84
TORD = (5, 0, 1, 2, 3, 4)
def oread(st, n):
    s_, t = n // 6, TORD[n % 6]
    off = 256 * s_ + 64 * t if t < 4 else 1280 + 64 * (t - 4) + 80 * s_
    st.ds_read_b128(v(vOA + n * 4, 4), v(vKR), mods='offset:%d' % off)
for n in range(8): oread(k, n)
m_ = Stream()
for n in range(30):
    mfma(m_, v(vOD + 4 * TORD[n % 6], 4), v(vOA + n * 4, 4), v(vPK + 4 * (n // 6), 4), n < 6)
    if n + 8 < 30: oread(m_, n + 8)
N3 = min(25, N2 + OPT['w2o'])
f_ = Stream(); issue_w2(f_, N2, N3); N2 = N3
if OPT['w3o']:
    if not OPT['w3u']: flag_check(f_, vF1, vFA1, sFP)
    issue_w3(f_, W3ORD[NW3:NW3 + OPT['w3o']]); NW3 += OPT['w3o']
k.add(pack(m_, [(f_, 0, 26, 'vmem')]))
k.v_add_f32(v(vOD + 20), s(sEPS6), v(vOD + 20))
k.v_rcp_f32(v(vOD + 20), v(vOD + 20))
for i in range(10): k.v_pk_mul_f32(v(vOD + 2 * i, 2), v(vOD + 2 * i, 2), v(vOD + 20, 2), mods='op_sel_hi:[1,0]')
for i in range(10): k.v_cvt_pk_bf16_f32(v(vOP + i), v(vOD + 2 * i), v(vOD + 2 * i + 1))
if OPT['tagB']:
    for i in range(0, 10, 2): k.v_min_u32(v(vOP + i), -2, v(vOP + i))
o_store(k, vOP, vOP + 4, vOP + 8, 'ost')
stamp(k, 'ost')
vH = 18
vXRES = 252 - 10 * 0 - 0 if False else 28
vOF = 40
vA2 = 120
vD2 = 152
vA2P = 172
k.s_lshl_b32(s(sE), s(sW), 1); k.s_add_u32(s(sE), s(sE), s(sP))
k.s_lshl_b32(s(sT), s(sR), 3); k.s_add_u32(s(sF), s(sT), s(sE))
k.s_mul_i32(s(sXR), s(sF), 16 * 1280)
k.s_mul_i32(s(sT), s(sM), 160); k.s_add_u32(s(sXR), s(sXR), s(sT))
vXD = vD2 + 16
for e in range(3):
    k.v_add_u32(v(t0), 64 * e, v(vLANE)); div_small(k, t1, t0, 10)
    k.v_mul_u32_u24(v(t2), 10, v(t1)); k.v_sub_u32(v(t2), v(t0), v(t2))
    k.v_mul_u32_u24(v(vXD + e), 1280, v(t1)); k.v_lshl_add_u32(v(vXD + e), v(t2), 4, v(vXD + e))
    if e: k.v_subrev_u32(v(vXD + e), 1024 * e, v(vXD + e))
N3 = min(25, N2 + OPT['w2d']); issue_w2(k, N2, N3); N2 = N3
if OPT['tagB']: flag_check(k, vF3, vFR, sD)
else:
    k.waitvm('ost')
    k.s_barrier()
    post(k, F_O)
issue_w2(k, N2, 25)
k.s_mul_i32(s(sT + 2), s(sW), 3072)
k.s_add_u32('m0', s(sT + 2), L_XR)
for e in range(3): k.buffer_load_dwordx4(v(vXD + e), srd(S_X), s(sXR), mods='offen offset:%d lds' % (e * 1024), tag='xr')
k.v_mul_u32_u24(v(vXD), 160, v(vJ)); k.v_mul_u32_u24(v(t0), 40, v(vG)); k.v_add3_u32(v(vXD), v(vXD), v(t0), s(sT + 2))
k.v_add_u32(v(vXD), L_XR, v(vXD))
if OPT['tagD']:
    for i in range(4): k.v_mov_b32(v(vD2 + 8 + i), -1)
    k.v_mov_b32(v(t2), OOB)
    k.v_cmp_gt_u32('vcc', 3, v(vG))
    k.v_cndmask_b32(v(vD2 + 12), v(t2), v(vL16), 'vcc')
    k.s_mul_i32(s(sT + 4), s(sR), 8 * 49152); k.s_mul_i32(s(sT + 5), s(sC), 3072); k.s_add_u32(s(sT + 4), s(sT + 4), s(sT + 5))
    k.s_mul_i32(s(sT + 5), s(sW), 768); k.s_add_u32(s(sT + 4), s(sT + 4), s(sT + 5)); k.s_add_u32(s(sT + 4), s(sT + 4), WS_HH + 6 * 49152)
    k.buffer_store_dwordx4(v(vD2 + 8, 4), v(vD2 + 12), srd(S_WS), s(sT + 4), mods='offen sc1')
    k.s_add_u32(s(sT + 4), s(sT + 4), 49152)
    k.buffer_store_dwordx4(v(vD2 + 8, 4), v(vD2 + 12), srd(S_WS), s(sT + 4), mods='offen sc1')
stamp(k, 'opost')
if OPT['stop'] == 3: finish(k)

W3A = min(60, NW3 + OPT['w3a']); W3B = min(60, W3A + OPT['w3b'])
k.v_add_u32(v(t0), L_W2, v(vL16))
k.v_add_u32(v(t1), L_W2 + 61440, v(vL16))
k.v_mov_b32(v(38), v(vXD))
A2S = [vA2P + 4 * i for i in range(21)] + [vA2 + 4 * i for i in range(8)]
def a2read(st, i):
    st.ds_read_b128(v(A2S[i % 29], 4), v(t0 if i < 60 else t1), mods='offset:%d' % ((i if i < 60 else i - 60) * 1024))
if not OPT['w3o']: flag_check(k, vF1, vFA1, sFP)
k.s_mul_i32(s(sV), s(sF), 20480); k.s_add_u32(s(sV), s(sV), WS_O)
if OPT['asy']:
    k.s_lshl_b32(s(sV + 1), s(sR), 11); k.s_add_u32(s(sV + 1), s(sV + 1), WS_FLAGS + F_O * 32768)
    issue_w3(k, W3ORD[NW3:NW3 + 4])
    k.waitvm('xr'); k.s_barrier()
    issue_w3(k, W3ORD[NW3 + 4:W3A])
    if OPT['tagB']:
        k.v_mul_u32_u24(v(vD2 + 4), 1280, v(vJ)); k.v_lshl_add_u32(v(vD2 + 4), v(vG), 6, v(vD2 + 4)); k.v_add_u32(v(vD2 + 4), 1024, v(vD2 + 4))
        sent_issue(k, vD2, vD2 + 4, sV)
    else: flag_issue(k, vD2, vFR, sV + 1)
    issue_w3(k, W3ORD[W3A:W3A + OPT['w3a2']]); W3A += OPT['w3a2']; W3B = min(60, W3A + OPT['w3b'])
    for q in range(5): k.ds_read_b64(v(vXRES + 2 * q, 2), v(38), mods='offset:%d' % (8 * q))
    if OPT['tagB']:
        k.s_mov_b32(s(sRC), 64)
        sent_check(k, vD2, vD2 + 4, sV)
    else:
        for i in range(29): a2read(k, i)
        flag_check(k, vD2, vFR, sV + 1)
else:
    issue_w3(k, W3ORD[NW3:W3A])
    k.waitvm('xr')
    poll_row(k, F_O, vD2)
    k.s_barrier()
stamp(k, 'oflag')
def issue_o(st, lo, hi):
    for i in range(lo, hi):
        if i % 4 == 0 or i == lo: st.s_add_u32(s(sV + 1), s(sV), (i & ~3) * 1024)
        st.buffer_load_dwordx4(v(vOF + 4 * i, 4), v(vL16), srd(S_WS), s(sV + 1), mods='offen offset:%d sc1' % ((i % 4) * 1024))
if OPT['tagB']: k.label('L_g2')
issue_o(k, 0, 10)
if OPT['tagB']:
    for i in range(29): a2read(k, i)
if not OPT['asy']:
    for i in range(29): a2read(k, i)
    for q in range(5): k.ds_read_b64(v(vXRES + 2 * q, 2), v(38), mods='offset:%d' % (8 * q))
vHA = 36
for i in range(10):
    k.v_lshlrev_b32(v(vD2 + 2 * i), 16, v(vXRES + i)); k.v_and_b32(v(vD2 + 2 * i + 1), 0xffff0000, v(vXRES + i))
k.v_lshrrev_b32(v(vHA), 1, v(vG)); k.v_mul_u32_u24(v(vHA), 1280, v(vHA))
k.v_lshl_add_u32(v(vHA), v(vJ), 4, v(vHA))
k.v_and_b32(v(vHA + 2), 1, v(vG))
k.v_lshl_add_u32(v(vHA + 1), v(vHA + 2), 3, v(vHA))
k.v_lshl_add_u32(v(vHA), v(vHA + 2), 9, v(vHA))
k.v_lshrrev_b32(v(vHA - 1), 1, v(vG)); k.v_lshlrev_b32(v(vHA - 1), 2, v(vHA - 1))
k.v_lshl_add_u32(v(vHA - 1), v(vJ), 3, v(vHA - 1))
k.v_cmp_eq_u32('vcc', 0, v(vHA + 2))
k.v_mov_b32(v(vHA + 2), OOB)
k.v_cndmask_b32(v(vHA - 1), v(vHA + 2), v(vHA - 1), 'vcc')
k.s_mul_i32(s(sT + 2), s(sF), 20480); k.s_mul_i32(s(sT + 1), s(sM), 2560); k.s_add_u32(s(sT + 2), s(sT + 2), s(sT + 1))
k.s_add_u32(s(sT + 2), s(sT + 2), WS_H)
k.s_lshl_b32(s(sT + 3), s(sF), 10); k.s_lshl_b32(s(sT + 1), s(sM), 7); k.s_add_u32(s(sT + 3), s(sT + 3), s(sT + 1))
k.s_add_u32(s(sT + 3), s(sT + 3), WS_HST)
m_ = Stream()
nxt = 29
for i in range(100):
    ks, t = divmod(i, 5)
    mfma(m_, v(vD2 + 4 * t, 4), v(A2S[i % 29], 4), v(vOF + 4 * ks, 4), False)
    if OPT['tagB'] and i % 4 == 1 and i // 4 < 20 and False: pass
    if nxt < 100 and i % 4 != 3 - 0 and nxt - 29 <= i: a2read(m_, nxt); nxt += 1
    elif nxt < 100 and nxt - i <= 10: a2read(m_, nxt); nxt += 1
assert nxt == 100
if OPT['tagB']:
    mk = Stream(); cnt = 0
    for x in m_.l:
        mk.l.append(x)
        if x.cls == 'mfma':
            if cnt % 5 == 1:
                q = cnt // 5
                if q == 0: mk.v_max_u32(v(39), v(vOF), v(vOF + 2))
                else: mk.v_max3_u32(v(39), v(39), v(vOF + 4 * q), v(vOF + 4 * q + 2))
            cnt += 1
    for n in range(len(mk.l) - 1):
        if mk.l[n].cls == 'valu' and mk.l[n + 1].cls == 'ldsr': mk.l[n], mk.l[n + 1] = mk.l[n + 1], mk.l[n]
    m_ = mk
f1 = Stream(); issue_o(f1, 10, 20)
f2 = Stream(); issue_w3(f2, W3ORD[W3A:W3B])
m_ = pack(m_, [(f1, 0, 40, 'vmem'), (f2, 44, OPT['g2e'], 'vmem')]); print('gemm2 est', m_.est)
k.add(m_)
if OPT['tagB']: redo_check(k, 39, 'L_g2')
stamp(k, 'gemm2')
for i in range(10): k.v_cvt_pk_bf16_f32(v(vH + i), v(vD2 + 2 * i), v(vD2 + 2 * i + 1))
def h_store(st, unt):
    st.buffer_store_dwordx4(v(vH, 4), v(vHA), srd(S_WS), s(sT + 2), mods='offen sc1', untracked=unt)
    st.buffer_store_dwordx4(v(vH + 4, 4), v(vHA), srd(S_WS), s(sT + 2), mods='offen offset:256 sc1', untracked=unt)
    st.buffer_store_dwordx2(v(vH + 8, 2), v(vHA + 1), srd(S_WS), s(sT + 2), mods='offen offset:1024 sc1', tag='hdat', untracked=unt)
if OPT['h0'] == 2:
    k.s_cmp_lg_u32(s(sW), 0); k.s_cbranch_scc1('L_h1'); k.cond_begin(); h_store(k, True); k.cond_end(); k.label('L_h1')
else: h_store(k, False)
sS, sQ, sY = vD2, vD2 + 1, vD2 + 2
k.v_mov_b32(v(sS), 0); k.v_mov_b32(v(sQ), 0)
for i in range(10):
    k.v_dot2_f32_bf16(v(sS), v(vH + i), s(sONES), v(sS))
    k.v_dot2_f32_bf16(v(sQ), v(vH + i), v(vH + i), v(sQ))
k.v_permlane32_swap_b32(v(sS), v(sQ))
k.v_add_f32(v(sS), v(sS), v(sQ))
k.v_mov_b32(v(sY), v(sS))
k.v_permlane16_swap_b32(v(sS), v(sY))
k.v_add_f32(v(sS), v(sS), v(sY))
if OPT['h0'] == 2:
    k.s_cmp_eq_u32(s(sW), 0); k.s_cbranch_scc1('L_h2'); h_store(k, False); k.label('L_h2'); k.s_nop(1)
k.buffer_store_dword(v(sS), v(vHA - 1), srd(S_WS), s(sT + 3), mods='offen sc1', tag='hst')
stamp(k, 'hst')

vL8 = 111
vCS = 28
vD3 = 40
vB3 = 64
vS3 = 88
vG3 = 92
vFL = 104
vRA = 108
vW4 = 112
sW4, sW4t, sW4l, sHs, sHl, sHt, sHS, sHH, sHHt, sHL, sHLt, sFH, sFHt = sB, sV, sXO, sXO + 1, sXO + 2, sV + 1, sV + 2, sD, sV + 4, sXO + 5, sV + 5, sXO + 4, sV + 6
k.s_mul_i32(s(sW4), s(sM), 245760); k.s_mul_i32(s(sT + 1), s(sW), 61440); k.s_add_u32(s(sW4), s(sW4), s(sT + 1))
k.s_add_u32(s(sW4), s(sW4), WS_W4)
k.s_mul_i32(s(sW4l), s(sW), 24576)
sR4 = 12
if OPT['rot4'] == 1: k.s_mov_b32(s(sT), s(sR))
elif OPT['rot4'] == 2: k.s_add_u32(s(sT), s(sR), s(sM))
elif OPT['rot4'] == 3: k.s_lshl_b32(s(sT), s(sP), 1)
else: k.s_mov_b32(s(sT), 0)
for q in range(4):
    k.s_add_u32(s(sR4 + q), s(sT), q); k.s_and_b32(s(sR4 + q), s(sR4 + q), 3); k.s_mul_i32(s(sR4 + q), s(sR4 + q), 3072)
def w4base(st, i, first):
    q, j = divmod(i, 15)
    if j == 0 or first:
        st.s_mul_i32(s(sW4t), s(sR4 + q), 5); st.s_add_u32(s(sW4t), s(sW4t), s(sW4))
        if j & ~3: st.s_add_u32(s(sW4t), s(sW4t), (j & ~3) * 1024)
    elif j % 4 == 0: st.s_add_u32(s(sW4t), s(sW4t), 4096)
    return j & 3
def issue_w4(st, lo, hi):
    for i in range(lo, hi):
        o = w4base(st, i, i == lo)
        if i < 36:
            st.buffer_load_dwordx4(v(vW4 + 4 * i, 4), v(vL16), srd(S_WS), s(sW4t), mods='offen offset:%d sc1' % (o * 1024))
        else:
            if o == 0 or i == lo or i == 36: st.s_add_u32('m0', s(sW4l), L_W4 + (i - 36 - o) * 1024)
            st.buffer_load_dwordx4(v(vL16), srd(S_WS), s(sW4t), mods='offen offset:%d sc1 lds' % (o * 1024), tag='W4')
W3C = min(60, W3B + OPT['w3c']); W3E = 60 - OPT['w3t']
k.s_mul_i32(s(sT + 2), s(sC), 12288); k.s_mul_i32(s(sT + 3), s(sW), 3072); k.s_add_u32(s(sT + 2), s(sT + 2), s(sT + 3))
k.s_add_u32(s(sT + 2), s(sT + 2), WS_CS3)
issue_w3(k, W3ORD[W3B:W3C])
for i in range(4): k.v_mov_b32(v(vB3 + i), 0x3f803f80)
if OPT['h0']: k.waitvm('hdat'); post(k, F_H0)
k.waitvm('hst'); k.waitlds(); k.s_barrier(); post(k, F_H)
W4A = OPT['w4a']
stamp(k, 'hpost')
for t in range(3): k.buffer_load_dwordx4(v(vD3 + 4 * t, 4), v(vL16), srd(S_WS), s(sT + 2), mods='offen offset:%d sc1' % (t * 1024))
W3D = max(W3C, W3E - OPT['w3c2']) if OPT['asy'] else W3E
issue_w3(k, W3ORD[W3C:W3D])
vBX = 100
if OPT['mc']:
    for t in range(3): mfma(k, v(vD3 + 12 + 4 * t, 4), v(vB3, 4), v(vD3 + 4 * t, 4), True)
    k.v_cmp_eq_u32('vcc', 0, v(vG))
    k.v_mov_b32(v(vBX + 2), 0); k.v_mov_b32(v(vBX + 3), 0)
    for t in range(3):
        c_, d_ = vD3 + 12 + 4 * t, vCS + 4 * t
        k.v_cvt_pk_bf16_f32(v(d_ + 1), v(c_), 0)
        k.v_lshlrev_b32(v(d_), 16, v(d_ + 1))
        k.v_sub_f32(v(d_), v(c_), v(d_))
        k.v_cvt_pk_bf16_f32(v(d_), v(c_), v(d_))
        k.v_cndmask_b32(v(d_), 0, v(d_), 'vcc'); k.v_cndmask_b32(v(d_ + 1), 0, v(d_ + 1), 'vcc')
        k.v_mov_b32(v(d_ + 2), 0); k.v_mov_b32(v(d_ + 3), 0)
else:
    for t in range(3): mfma(k, v(vCS + 4 * t, 4), v(vD3 + 4 * t, 4), v(vB3, 4), True)
stamp(k, 'colsum')
if OPT['stop'] == 4: finish(k)
k.s_mul_i32(s(sHl), s(sW), 5120)
k.s_mul_i32(s(sHs), s(sR), 163840); k.s_add_u32(s(sHs), s(sHs), s(sHl))
k.s_add_u32(s(sHs), s(sHs), WS_H)
k.v_lshlrev_b32(v(t0), 9, v(vG))
k.v_lshl_add_u32(v(t0), v(vJ), 3, v(t0))
k.s_lshl_b32(s(sHS), s(sR), 13); k.s_lshl_b32(s(sT + 1), s(sW), 11); k.s_add_u32(s(sHS), s(sHS), s(sT + 1))
k.s_add_u32(s(sHS), s(sHS), WS_HST)
k.v_add_u32(v(vRA), L_RING, v(vL16))
k.v_lshrrev_b32(v(vL8), 1, v(vL16))
vMA = 17
k.v_lshlrev_b32(v(vMA), 3, v(vJ)); k.v_add_u32(v(vMA), L_MX, v(vMA))
k.v_lshlrev_b32(v(vRA + 1), 4, v(vJ)); k.v_add_u32(v(vRA + 1), L_ST, v(vRA + 1))
k.v_mov_b32(v(t2), OOB)
k.v_cmp_gt_u32('vcc', 3, v(vG))
k.v_cndmask_b32(v(vRA + 2), v(t2), v(vL16), 'vcc')
k.s_mul_i32(s(sHH), s(sR), 8 * 49152); k.s_mul_i32(s(sT), s(sC), 3072); k.s_add_u32(s(sHH), s(sHH), s(sT))
k.s_mul_i32(s(sT), s(sW), 768); k.s_add_u32(s(sHH), s(sHH), s(sT)); k.s_add_u32(s(sHH), s(sHH), WS_HH)
k.s_lshl_b32(s(sT), s(sR), 3); k.s_add_u32(s(sT), s(sT), s(sP)); k.s_mul_i32(s(sHL), s(sT), 49152)
k.s_mul_i32(s(sT), s(sW), 12288); k.s_add_u32(s(sHL), s(sHL), s(sT)); k.s_add_u32(s(sHL), s(sHL), WS_HH)
k.s_lshl_b32(s(sFH), s(sR), 11); k.s_add_u32(s(sFH), s(sFH), WS_FLAGS + F_HH * 32768)
if OPT['asy']:
    k.s_lshl_b32(s(sV + 6), s(sR), 11); k.s_add_u32(s(sV + 6), s(sV + 6), WS_FLAGS + (F_H0 if OPT['h0'] else F_H) * 32768)
    flag_issue(k, vG3, vFR, sV + 6)
    issue_w3(k, W3ORD[W3D:W3E])
    issue_w4(k, 0, W4A)
    flag_check(k, vG3, vFR, sV + 6)
else:
    issue_w4(k, 0, W4A)
    poll_row(k, F_H, vG3)
    k.s_barrier()
if OPT.get('slp'): k.s_sleep(OPT['slp'])
stamp(k, 'hflag')
def issue_h(st, T):
    for i in range(5):
        if i % 4 == 0: st.s_add_u32('m0', s(sHl), L_RING + (T % 3) * 20480 + (i & 4) * 1024)
        if i % 4 == 0: st.s_add_u32(s(sHt), s(sHs), T * 20480 + i * 1024)
        st.buffer_load_dwordx4(v(vL16), srd(S_WS), s(sHt), mods='offen offset:%d sc1 lds' % ((i & 3) * 1024), tag='h%d' % T)
issue_h(k, 0)
issue_w3(k, W3ORD[W3E:W3E + 4])
issue_h(k, 1)
def stats3_load(st):
    for i in range(4): st.buffer_load_dwordx2(v(vG3 + 2 * i, 2), v(t0), srd(S_WS), s(sHS), mods='offen offset:%d sc1' % (128 * i))
if OPT['h0']:
    k.s_add_u32(s(sV + 6), s(sV + 6), (F_H - F_H0) * 32768); flag_issue(k, vFL, vFR, sV + 6)
else: stats3_load(k)
def stats3(st):
    st.v_add_f32(v(vG3), v(vG3), v(vG3 + 2)); st.v_add_f32(v(vG3 + 1), v(vG3 + 1), v(vG3 + 3))
    st.v_add_f32(v(vG3 + 4), v(vG3 + 4), v(vG3 + 6)); st.v_add_f32(v(vG3 + 5), v(vG3 + 5), v(vG3 + 7))
    st.v_add_f32(v(vG3), v(vG3), v(vG3 + 4)); st.v_add_f32(v(vG3 + 1), v(vG3 + 1), v(vG3 + 5))
    st.v_mov_b32(v(vG3 + 2), v(vG3)); st.v_mov_b32(v(vG3 + 3), v(vG3 + 1))
    st.v_lshrrev_b32(v(t0), 1, v(vG)); st.v_lshlrev_b32(v(t0), 8, v(t0))
    for i in range(2): st.v_permlane16_swap_b32(v(vG3 + i), v(vG3 + 2 + i))
    for i in range(2): st.v_add_f32(v(vG3 + i), v(vG3 + i), v(vG3 + 2 + i))
    st.v_mul_f32(v(vG3), s(sINV640), v(vG3))
    st.v_mul_f32(v(vG3 + 1), s(sINV640), v(vG3 + 1))
    st.v_fma_f32(v(vG3 + 1), '-' + v(vG3), v(vG3), v(vG3 + 1))
    st.v_max_f32(v(vG3 + 1), 0, v(vG3 + 1))
    st.v_add_f32(v(vG3 + 7), s(sEPS), v(vG3 + 1))
    st.v_sub_f32(v(vG3 + 4), 0, v(vG3))
    st.v_rsq_f32(v(vG3 + 2), v(vG3 + 7))
    st.v_lshl_add_u32(v(t0), v(vJ), 4, v(t0))
    st.v_mul_f32(v(vG3 + 5), s(sK1), v(vG3 + 2))
    st.v_mul_f32(v(vG3 + 3), v(vG3 + 2), v(vG3 + 2))
    st.v_mul_f32(v(vG3 + 6), s(sK3), v(vG3 + 2))
    st.v_mul_f32(v(vG3 + 6), v(vG3 + 6), v(vG3 + 3))
    st.s_lshl_b32(s(sT), s(sW), 9); st.s_add_u32(s(sT), s(sT), L_ST)
    st.v_add_u32(v(t0), s(sT), v(t0))
    st.ds_write_b128(v(t0), v(vG3 + 4, 4))
    if OPT['mc']:
        st.v_cvt_pk_bf16_f32(v(vG3), v(vG3 + 4), v(vG3 + 4))
        st.v_lshlrev_b32(v(vG3 + 1), 16, v(vG3))
        st.v_sub_f32(v(vG3 + 1), v(vG3 + 4), v(vG3 + 1))
        st.v_lshrrev_b32(v(t0), 1, v(t0))
        st.v_cvt_pk_bf16_f32(v(vG3 + 1), v(vG3 + 1), 0)
        st.v_subrev_u32(v(t0), L_ST // 2, v(t0))
        st.ds_write_b64(v(t0), v(vG3, 2), mods='offset:%d' % L_MX)
def epi3(st, T):
    D = vD3 + 12 * (T & 1)
    nm, c1, c3, vr = v(vS3), v(vS3 + 1), v(vS3 + 2), v(vS3 + 3)
    for t in range(3):
        for e in range(2):
            g_, u_ = D + 4 * t + e, D + 4 * t + 2 + e
            x = vG3 + 4 + e
            if not OPT['mc']:
                st.v_fmac_f32(v(g_), nm, v(vCS + 4 * t + e))
                st.v_fmac_f32(v(u_), nm, v(vCS + 4 * t + 2 + e))
            st.v_mul_f32(v(x), v(g_), v(g_))
            st.v_mul_f32(v(u_), v(g_), v(u_))
            st.v_fma_f32(v(x), v(x), c3, c1)
            st.v_mul_f32(v(x), v(x), v(g_))
            st.v_exp_f32(v(x), v(x))
        for e in range(2):
            x = vG3 + 4 + e
            st.v_fma_f32(v(x), v(x), vr, vr)
            st.v_rcp_f32(v(x), v(x))
        for e in range(2):
            u_ = D + 4 * t + 2 + e
            st.v_mul_f32(v(u_), v(u_), v(vG3 + 4 + e))
        st.v_cvt_pk_bf16_f32(v(vG3 + t), v(D + 4 * t + 2), v(D + 4 * t + 3))
        if t == 0: st.v_permlane16_swap_b32(v(vG3), v(vG3 + 3))
        if t == 1: st.v_permlane32_swap_b32(v(vG3 + 1), v(vG3))
    st.s_add_u32(s(sHHt), s(sHH), T * 49152)
    st.v_permlane32_swap_b32(v(vG3 + 2), v(vG3 + 3))
    st.buffer_store_dwordx4(v(vG3, 4), v(vRA + 2), srd(S_WS), s(sHHt), mods='offen sc1', tag='hh%d' % T)
def hhbuf(i, q): return a(80 * (i % 3) + 4 * q, 4)
def issue_hh(st, i, lo=0, hi=12):
    for q in range(lo, hi):
        if q % 3 == 0 or q == lo:
            st.s_add_u32(s(sHLt), s(sHL), s(sR4 + q // 3))
            if i: st.s_add_u32(s(sHLt), s(sHLt), i * 2 * 49152)
        st.buffer_load_dwordx4(hhbuf(i, q), v(vL16), srd(S_WS), s(sHLt), mods='offen offset:%d sc1' % ((q % 3) * 1024))
def hflag_issue(st, n):
    st.s_add_u32(s(sFHt), s(sFH), n * 32768); flag_issue(st, vFL + 2 * (n & 1), vFR, sFHt)
def hflag_check(st, n):
    st.s_add_u32(s(sFHt), s(sFH), n * 32768); flag_check(st, vFL + 2 * (n & 1), vFR, sFHt)

W4L = OPT['w4l']
rem = W4L - W4A
w4sched = [W4A, W4A + OPT['w40']] + [W4A + OPT['w40'] + ((rem - OPT['w40']) * i) // 6 for i in range(1, 7)] + [W4L]
NB = 6
def b3read(st, T, ks):
    n = T * 20 + ks
    st.ds_read_b128(v(vB3 + 4 * (n % NB), 4), v(vRA), mods='offset:%d' % ((T % 3) * 20480 + ks * 1024), tag='b%d' % n)
k.waitvm('h0')
k.s_barrier()
for ks in range(4): b3read(k, 0, ks)
if OPT['h0']: flag_check(k, vFL, vFR, sV + 6); stats3_load(k)
for T in range(8):
    stamp(k, 'g3t%d' % T)
    m_ = Stream()
    if T > 0: m_.ds_read_b128(v(vS3, 4), v(vRA + 1), mods='offset:%d' % ((T - 1) * 256))
    for ks in range(20):
        n = T * 20 + ks
        if ks == 14 and T < 7:
            m_.waitvm('h%d' % (T + 1))
            if T == 5: m_.waitvm('hh3')
            if T == 0: m_.waitlds()
            m_.s_barrier()
            if T == 5: post(m_, F_HH)
        for t in range(3):
            mfma(m_, v(vD3 + 12 * (T & 1) + 4 * t, 4), a((t * 20 + ks) * 4, 4), v(vB3 + 4 * (n % NB), 4), ks == 0)
            if t == 0 and n + 4 < 160: b3read(m_, (n + 4) // 20, (n + 4) % 20)
            if t == 2 and ks % 2 == 1 and n + 2 < 160: m_.waitlds('b%d' % (n + 2))
        if OPT['mc'] and ks == 15: m_.ds_read_b64(v(vBX, 2), v(vMA), mods='offset:%d' % (T * 128))
        if OPT['mc'] and ks == 19:
            for t in range(3): mfma(m_, v(vD3 + 12 * (T & 1) + 4 * t, 4), v(vCS + 4 * t, 4), v(vBX, 4), False)
        if ks == 8 and T == 7:
            m_.waitvm('hh5'); m_.s_barrier(); post(m_, F_HH + 1)
    fh = Stream()
    if T <= 5: issue_h(fh, T + 2)
    fv = Stream()
    if T == 0: issue_w3(fv, W3ORD[W3E + 4:60])
    if not OPT.get('now4'): issue_w4(fv, w4sched[T], w4sched[T + 1])
    fe = Stream()
    if T > 0 and OPT.get('noe'):
        fe.s_add_u32(s(sHHt), s(sHH), (T - 1) * 49152); fe.buffer_store_dwordx4(v(vG3, 4), v(vRA + 2), srd(S_WS), s(sHHt), mods='offen sc1', tag='hh%d' % (T - 1))
    elif T > 0: epi3(fe, T - 1)
    else: stats3(fe)
    fills = [(fv, 0, 40, 'vmem'), (fh, 43, None, 'vmem'), (fe, 2 if T else (24 if OPT['h0'] else 12), (59 if OPT['mc'] else 56) if T else 41)]
    if T == 7:
        f1 = Stream(); hflag_issue(f1, 0); fills.append((f1, 0, 1, 'vmem'))
        f2 = Stream(); hflag_check(f2, 0); issue_hh(f2, 0, 0, 9); fills.append((f2, 28, 60, 'vmem'))
    m_ = pack(m_, fills); print('g3 tile', T, 'est', m_.est)
    k.add(m_)
stamp(k, 'g3end')
def w4a(i): return a(80 * ((i - 36) // 8) + 48 + 4 * ((i - 36) % 8), 4)
k.ds_read_b128(v(vS3, 4), v(vRA + 1), mods='offset:%d' % (7 * 256))
k.v_add_u32(v(t0), s(sW4l), v(vL16))
k.waitvm('W4')
if OPT['stop'] == 5:
    epi3(k, 7); k.waitvm('hh7'); k.waitlds(); k.s_barrier(); post(k, F_HH + 2); finish(k)

vD4 = [64, 40]
def w4frag(i): return v(vW4 + 4 * i, 4) if i < 36 else w4a(i)
vRW = 84; vRR = 85; vOW = 86; vOR = 87; vOS = 88
QS = W4L // 5
def seg4(st, i, lo, hi):
    for q in range(lo, hi):
        for t in range(5): mfma(st, v(vD4[i & 1] + 4 * t, 4), w4frag(q * 5 + t), hhbuf(i, q), q == 0)
def red_write(st, i):
    for t in range(10): st.ds_write_b64(v(vRW), v(vD4[i & 1] + 2 * t, 2), mods='offset:%d' % (L_RED + i * 20480 + t * 512))
def issue_w4r(st, lo, hi):
    for i in range(lo, hi):
        if i % 4 == 0 or i == lo: st.s_add_u32(s(sW4t), s(sW4), (i & ~3) * 1024)
        st.buffer_load_dwordx4(w4a(i), v(vL16), srd(S_WS), s(sW4t), mods='offen offset:%d sc1' % ((i & 3) * 1024))
m_ = Stream(); seg4(m_, 0, 0, QS); seg4(m_, 1, 0, QS); seg4(m_, 0, QS, 12); seg4(m_, 1, QS, 12)
fe = Stream(); epi3(fe, 7)
fw = Stream()
for n in range(36, W4L): fw.ds_read_b128(w4a(n), v(t0), mods='offset:%d' % (L_W4 + (n - 36) * 1024))
fw.s_mul_i32(s(sT + 2), s(sW), 5120)
fw.v_add_u32(v(vRW), s(sT + 2), v(vL8))
fw.s_mul_i32(s(sT + 2), s(sW), 20480)
fw.v_add_u32(v(vRR), s(sT + 2), v(vL8))
fv = Stream()
if QS <= 9:
    issue_hh(fv, 1, 0, QS); issue_w4r(fv, W4L, W4L + 5); hflag_issue(fv, 1); issue_hh(fv, 0, 9, 12); issue_w4r(fv, W4L + 5, 60); issue_hh(fv, 1, QS, 12)
else:
    issue_hh(fv, 0, 9, 12); issue_hh(fv, 1, 0, 6); hflag_issue(fv, 1); issue_hh(fv, 1, 6, QS); issue_w4r(fv, W4L, 60); issue_hh(fv, 1, QS, 12)
fv2 = Stream(); hflag_check(fv2, 1); issue_hh(fv2, 2, 0, OPT['h2a'])
fp = Stream()
if OPT['tagD']: fp.waitlds(); fp.s_barrier()
else: fp.waitvm('hh7'); fp.waitlds(); fp.s_barrier(); post(fp, F_HH + 2)
fr0 = Stream(); red_write(fr0, 0)
e1 = OPT['v4end']
m_ = pack(m_, [(fe, 0, OPT['e7end']), (fw, 8, 34 + (W4L - 45) // 2), (fv, 0, e1, 'vmem'), (fp, OPT['p4post'], OPT['p4post'] + 1, 'vmem'), (fv2, e1, 120, 'vmem'),
               (fr0, 120 - 5 * (12 - QS) + 2 if QS < 12 else 64, 120 if QS < 12 else 110, 'vmem1')])
print('g4 tiles 0,1 est', m_.est)
stamp(k, 'g4t0'); k.add(m_)
if OPT['fin']:
    L_HS = L_RING; L_OI = L_RING + 10240
    vFR_, vFH, vFW, vFW2, vFS, vFO, vFD = 85, 86, 87, 88, 89, 90, 28
    sOB = sXO + 1
    fa = Stream()
    fa.s_mul_i32(s(sT + 2), s(sW), 2560); fa.s_add_u32(s(sT + 2), s(sT + 2), L_HS)
    fa.v_lshrrev_b32(v(t0), 1, v(vL8)); fa.v_add_u32(v(t1), s(sT + 2), v(t0))
    for q in range(10): fa.ds_write_b32(v(t1), v(vH + q), mods='offset:%d' % (q * 256))
    fa.s_lshl_b32(s(sT + 2), s(sW), 9)
    fa.v_add_u32(v(vFR_), s(sT + 2), v(vL8))
    fa.s_lshl_b32(s(sT + 2), s(sW), 8); fa.s_add_u32(s(sT + 2), s(sT + 2), L_HS)
    fa.v_add_u32(v(vFH), s(sT + 2), v(t0))
    fa.s_lshl_b32(s(sT + 2), s(sW), 2); fa.s_add_u32(s(sT + 2), s(sT + 2), L_OI)
    fa.v_mul_u32_u24(v(vFW), 160, v(vJ)); fa.v_mul_u32_u24(v(t0), 40, v(vG)); fa.v_add3_u32(v(vFW), v(vFW), v(t0), s(sT + 2))
    fa.s_cmp_lt_u32(s(sW), 2); fa.s_cselect_b32(s(sT + 2), 0, 16384)
    fa.v_add_u32(v(vFW2), s(sT + 2), v(vFW))
    fa.s_lshl_b32(s(sT + 2), s(sW), 6)
    fa.v_add_u32(v(t0), s(sT + 2), v(vLANE)); div_small(fa, t1, t0, 10)
    fa.v_lshlrev_b32(v(vFS), 4, v(t0)); fa.v_add_u32(v(vFS), L_OI, v(vFS))
    fa.v_mul_u32_u24(v(t2), 10, v(t1)); fa.v_sub_u32(v(t2), v(t0), v(t2))
    fa.v_mul_u32_u24(v(vFO), 1280, v(t1)); fa.v_lshl_add_u32(v(vFO), v(t2), 4, v(vFO))
    fa.v_mov_b32(v(t1), OOB); fa.s_movk_i32(s(sT + 2), 160)
    fa.v_cmp_gt_u32(s(sT + 4, 2), s(sT + 2), v(t0))
    fa.s_mul_i32(s(sT + 2), s(sW), 2 * 16 * 1280); fa.s_sub_u32(s(sOB), s(sXR), s(sT + 2))
    fa.v_cndmask_b32(v(vFO), v(t1), v(vFO), s(sT + 4, 2))
    FD = list(range(28, 40)) + list(range(92, 104))
    def fin_tile(st, i, pk=False):
        hi = i * 20480 > 40000
        for q in range(3):
            for sl in range(4):
                off = L_RED + i * 20480 + sl * 5120 + q * 2048
                r = FD[8 * q + 2 * sl]
                if off > 65535: st.ds_read_b64(v(r, 2), v(vFR2), mods='offset:%d' % (off - 61440))
                else: st.ds_read_b64(v(r, 2), v(vFR_), mods='offset:%d' % off)
            st.ds_read_b32(v(60 + q), v(vFH), mods='offset:%d' % (i * 2560 + q * 1024))
        for q in range(3):
            r = FD[8 * q:8 * q + 8:2]
            for e in range(2): st.v_add_f32(v(r[0] + e), v(r[0] + e), v(r[1] + e))
            for e in range(2): st.v_add_f32(v(r[2] + e), v(r[2] + e), v(r[3] + e))
            st.v_lshlrev_b32(v(r[1]), 16, v(60 + q)); st.v_and_b32(v(r[1] + 1), 0xffff0000, v(60 + q))
            for e in range(2): st.v_add_f32(v(r[0] + e), v(r[0] + e), v(r[2] + e))
            for e in range(2): st.v_add_f32(v(r[0] + e), v(r[0] + e), v(r[1] + e))
            st.v_cvt_pk_bf16_f32(v(r[0]), v(r[0]), v(r[0] + 1))
            st.ds_write_b32(v(vFW if q < 2 else vFW2), v(r[0]), mods='offset:%d' % (i * 2560 + q * 16))
    vFR2 = 91
    def out_tile(st, i, d):
        st.ds_read_b128(v(d, 4), v(vFS), mods='offset:%d' % (i * 2560))
        st.s_add_u32(s(sT + 3), s(sOB), i * 2 * 16 * 1280)
        st.buffer_store_dwordx4(v(d, 4), v(vFO), srd(S_OUT), s(sT + 3), mods='offen sc1')
    def bar():
        x = Stream(); x.waitlds(); x.s_barrier(); return x
    m_ = Stream(); seg4(m_, 2, 0, 12)
    fv = Stream(); issue_hh(fv, 2, OPT['h2a'], 12); hflag_issue(fv, 2)
    fv2 = Stream(); hflag_check(fv2, 2); issue_hh(fv2, 3, 0, OPT['h3a'])
    fr1 = Stream(); red_write(fr1, 1)
    ff = Stream(); fin_tile(ff, 0)
    fa.v_add_u32(v(vFR2), 61440, v(vFR_))
    m_ = pack(m_, [(fv, 0, OPT['f2at'], 'vmem'), (fv2, OPT['f2ck'], 60, 'vmem'), (fr1, 3, 26, 'vmem1'), (fa, 0, 26), (bar(), 27, 28, 'vmem'), (ff, 28, 60)])
    print('g4 tile 2 est', m_.est)
    stamp(k, 'g4t2'); k.add(m_)
    m_ = Stream(); seg4(m_, 3, 0, 12)
    fv = Stream(); issue_hh(fv, 3, OPT['h3a'], 12)
    fr2 = Stream(); red_write(fr2, 2)
    ff = Stream(); fin_tile(ff, 1)
    fg = Stream(); fin_tile(fg, 2)
    fo = Stream(); out_tile(fo, 0, 108); out_tile(fo, 1, 108)
    m_ = pack(m_, [(fv, 0, 4 * (12 - OPT['h3a']), 'vmem'), (fr2, 3, 28, 'vmem1'), (ff, 0, 28), (bar(), 29, 30, 'vmem'), (fg, 30, 60), (fo, 32, 56, 'vmem')])
    print('g4 tile 3 est', m_.est)
    stamp(k, 'g4t3'); k.add(m_)
    k.v_add_u32(v(vRW), 3 * 20480, v(vRW))
    for t in range(10): k.ds_write_b64(v(vRW), v(vD4[1] + 2 * t, 2), mods='offset:%d' % (L_RED + t * 512))
    k.waitlds()
    k.s_barrier()
    stamp(k, 'g4end')
    f_ = Stream(); fin_tile(f_, 3)
    o_ = Stream(); out_tile(o_, 2, 108)
    k.add(weave(f_, [(o_, 14, 15, 'vmem')], anchor='any'))
    k.waitlds()
    k.s_barrier()
    out_tile(k, 3, 108)
    finish(k)
m_ = Stream(); seg4(m_, 2, 0, 12)
fv = Stream(); issue_hh(fv, 2, OPT['h2a'], 12)
fv2 = Stream()
vSN = 92; vMX4 = 97
if OPT['tagD']:
    k.v_mul_u32_u24(v(vSN + 4), 768, v(vJ)); k.v_mul_u32_u24(v(t0), 192, v(vG)); k.v_add_u32(v(vSN + 4), v(vSN + 4), v(t0))
    k.s_add_u32(s(sFHt), s(sHL), 6 * 49152)
    k.s_mov_b32(s(sRC), 64)
    sent_issue(fv, vSN, vSN + 4, sFHt); sent_check(fv2, vSN, vSN + 4, sFHt)
else:
    hflag_issue(fv, 2); hflag_check(fv2, 2)
issue_hh(fv2, 3, 0, OPT['h3a'])
fr1 = Stream(); red_write(fr1, 1)
fa = Stream()
fa.s_mul_i32(s(sT + 2), s(sW), 3072); fa.s_add_u32(s(sT + 2), s(sT + 2), L_RING)
fa.v_mul_u32_u24(v(vOW), 160, v(vJ)); fa.v_mul_u32_u24(v(t0), 40, v(vG)); fa.v_add3_u32(v(vOW), v(vOW), v(t0), s(sT + 2))
fa.v_add_u32(v(vOR), s(sT + 2), v(vL16))
for e in range(3):
    fa.v_add_u32(v(t0), 64 * e, v(vLANE)); div_small(fa, t1, t0, 10)
    fa.v_mul_u32_u24(v(t2), 10, v(t1)); fa.v_sub_u32(v(t2), v(t0), v(t2))
    fa.v_mul_u32_u24(v(vOS + e), 1280, v(t1)); fa.v_lshl_add_u32(v(vOS + e), v(t2), 4, v(vOS + e))
fa.v_mov_b32(v(t0), OOB)
fa.v_cmp_gt_u32(s(sT + 4, 2), 32, v(vLANE))
fa.v_cndmask_b32(v(vOS + 2), v(t0), v(vOS + 2), s(sT + 4, 2))
m_ = pack(m_, [(fv, 0, OPT['f2at'], 'vmem'), (fv2, OPT['f2ck'], 60, 'vmem'), (fr1, 4, 50, 'vmem1'), (fa, 0, None)])
stamp(k, 'g4t2'); k.add(m_)
m_ = Stream(); seg4(m_, 3, 0, 12)
fv = Stream(); issue_hh(fv, 3, OPT['h3a'], 12)
fr2 = Stream(); red_write(fr2, 2)
def hh_verify(st):
    for q in range(12):
        r0 = 80 * (3 % 3) + 4 * q
        st.v_accvgpr_read_b32(v(vSN), a(r0)); st.v_accvgpr_read_b32(v(vSN + 1), a(r0 + 2))
        if q == 0: st.v_max_u32(v(vMX4), v(vSN), v(vSN + 1))
        else: st.v_max3_u32(v(vMX4), v(vMX4), v(vSN), v(vSN + 1))
if OPT['tagD']:
    mk = Stream(); cnt = 0; hv = Stream(); hh_verify(hv)
    for x in m_.l:
        mk.l.append(x); cnt += 1
        if cnt % 5 in (1, 2, 3): mk.l.append(hv.l[3 * (cnt // 5) + cnt % 5 - 1])
    m_ = mk
m_ = pack(m_, [(fv, 0, 4 * (12 - OPT['h3a']), 'vmem'), (fr2, 4, 50, 'vmem1')])
stamp(k, 'g4t3'); k.add(m_)
if OPT['tagD']:
    redo_check(k, vMX4, 'L_r3')
    k.s_branch('L_r3d')
    k.label('L_r3')
    k.cond_begin()
    issue_hh(k, 3); k.waitvm(); seg4(k, 3, 0, 12); hh_verify(k); redo_check(k, vMX4, 'L_r3')
    k.s_nop(7)
    k.cond_end()
    k.label('L_r3d')
k.v_add_u32(v(vRW), 3 * 20480, v(vRW))
for t in range(10): k.ds_write_b64(v(vRW), v(vD4[1] + 2 * t, 2), mods='offset:%d' % (L_RED + t * 512))
k.waitlds()
k.s_barrier()
stamp(k, 'g4end')
vR2 = 112
for sl in range(4):
    for t in range(10): k.ds_read_b64(v(vR2 + 20 * sl + 2 * t, 2), v(vRR), mods='offset:%d' % (L_RED + sl * 5120 + t * 512))
for q in range(10):
    k.v_pk_add_f32(v(vR2 + 2 * q, 2), v(vR2 + 2 * q, 2), v(vR2 + 20 + 2 * q, 2))
for q in range(10):
    k.v_dot2_f32_bf16(v(vR2 + 2 * q), v(vH + q), s(sONE_LO), v(vR2 + 2 * q))
    k.v_dot2_f32_bf16(v(vR2 + 2 * q + 1), v(vH + q), s(sONE_HI), v(vR2 + 2 * q + 1))
for q in range(10):
    k.v_pk_add_f32(v(vR2 + 40 + 2 * q, 2), v(vR2 + 40 + 2 * q, 2), v(vR2 + 60 + 2 * q, 2))
for q in range(10):
    k.v_pk_add_f32(v(vR2 + 2 * q, 2), v(vR2 + 2 * q, 2), v(vR2 + 40 + 2 * q, 2))
for q in range(10): k.v_cvt_pk_bf16_f32(v(40 + q), v(vR2 + 2 * q), v(vR2 + 2 * q + 1))
if OPT['cst']:
    for q in range(5): k.ds_write_b64(v(vOW), v(40 + 2 * q, 2), mods='offset:%d' % (8 * q))
    for e in range(3): k.ds_read_b128(v(52 + 4 * e, 4), v(vOR), mods='offset:%d' % (1024 * e))
    for e in range(3): k.buffer_store_dwordx4(v(52 + 4 * e, 4), v(vOS + e), srd(S_OUT), s(sXR), mods='offen' + ['', ' sc1', ' nt', ' sc0 sc1', ' sc1 nt'][OPT['ost']])
else:
    k.buffer_store_dwordx4(v(40, 4), v(vXRO), srd(S_OUT), s(sXR), mods='offen')
    k.buffer_store_dwordx4(v(44, 4), v(vXRO), srd(S_OUT), s(sXR), mods='offen offset:16')
    k.buffer_store_dwordx2(v(48, 2), v(vXRO), srd(S_OUT), s(sXR), mods='offen offset:32')
finish(k)
```

```python
import re

REG_RE = re.compile(r'^(-|abs\()?([vas])(\d+)\)?$')
RNG_RE = re.compile(r'^(-)?([vas])\[(\d+):(\d+)\]$')

def regs_of(op):
    op = op.strip()
    m = REG_RE.match(op)
    if m: return {(m.group(2), int(m.group(3)))}
    m = RNG_RE.match(op)
    if m: return {(m.group(2), i) for i in range(int(m.group(3)), int(m.group(4)) + 1)}
    if op == 'vcc': return {('s', 'vcc')}
    if op == 'exec': return {('s', 'exec')}
    if op == 'm0': return {('s', 'm0')}
    return set()

def R(kind, base, n=1):
    return "%s%d" % (kind, base) if n == 1 else "%s[%d:%d]" % (kind, base, base + n - 1)
def v(b, n=1): return R('v', b, n)
def a(b, n=1): return R('a', b, n)
def s(b, n=1): return R('s', b, n)

TRANS = ('v_exp_f32', 'v_log_f32', 'v_rcp_f32', 'v_rsq_f32', 'v_sqrt_f32', 'v_sin_f32', 'v_cos_f32', 'v_rcp_iflag_f32')

class Inst:
    __slots__ = ('mn', 'ops', 'mods', 'defs', 'uses', 'cls', 'tag', 'cmt', 'untracked', 'text')
    def __init__(self, mn, ops, mods='', tag=None, cmt=None, untracked=False):
        self.mn = mn; self.ops = [str(o) for o in ops]; self.mods = mods; self.tag = tag; self.cmt = cmt
        self.untracked = untracked; self.text = None
        self.classify()
    def classify(self):
        mn, ops = self.mn, self.ops
        D = lambda idx: set().union(*[regs_of(ops[i]) for i in idx]) if idx else set()
        n = len(ops); allx = list(range(n))
        if mn.startswith('v_mfma'):
            self.cls = 'mfma'; self.defs = D([0]); self.uses = D([1, 2, 3])
        elif mn.startswith('v_cmp'):
            self.cls = 'valu'; self.defs = D([0]); self.uses = D(allx[1:])
        elif mn.startswith('v_permlane') and 'swap' in mn:
            self.cls = 'valu'; self.defs = D([0, 1]); self.uses = D([0, 1])
        elif mn.startswith(('v_add_co', 'v_addc_co')):
            self.cls = 'valu'; self.defs = D([0, 1]); self.uses = D(allx[2:])
        elif mn.startswith(('v_fmac', 'v_dot2c', 'v_pk_fmac')):
            self.cls = 'valu'; self.defs = D([0]); self.uses = D(allx)
        elif mn.startswith('v_'):
            self.cls = 'valu'; self.defs = D([0]); self.uses = D(allx[1:])
            if '_dpp' in mn: self.uses |= D([0])
            if mn == 'v_cndmask_b32' and n == 3: self.uses |= {('s', 'vcc')}
        elif mn.startswith(('ds_read', 'ds_bpermute', 'ds_swizzle', 'ds_permute')):
            self.cls = 'ldsr'; self.defs = D([0]); self.uses = D(allx[1:])
        elif mn.startswith('ds_write'):
            self.cls = 'ldsw'; self.defs = set(); self.uses = D(allx)
        elif mn.startswith(('buffer_load', 'global_load')):
            if ' lds' in ' ' + self.mods or '_lds_' in mn:
                self.cls = 'dma'; self.defs = set(); self.uses = D(allx) | {('s', 'm0')}
            else:
                self.cls = 'vload'; self.defs = D([0]); self.uses = D(allx[1:])
        elif mn.startswith(('buffer_store', 'global_store', 'buffer_atomic', 'global_atomic')):
            self.cls = 'vstore'; self.defs = set(); self.uses = D(allx)
        elif mn.startswith(('s_load', 's_memtime', 's_memrealtime')):
            self.cls = 'smem'; self.defs = D([0]); self.uses = D(allx[1:])
        elif mn in ('s_waitcnt', 's_nop', 's_barrier', 's_endpgm', 's_sleep', 's_setprio', 'label', 'raw', 'waitvm', 'waitlds', 'comment', 'cond_begin', 'cond_end') or mn.startswith(('s_cbranch', 's_branch')):
            self.cls = 'ctl'; self.defs = set(); self.uses = set()
        elif mn.startswith('s_cmp'):
            self.cls = 'salu'; self.defs = set(); self.uses = D(allx)
        elif mn.startswith('s_'):
            self.cls = 'salu'; self.defs = D([0]); self.uses = D(allx[1:])
            if 'saveexec' in mn: self.defs |= {('s', 'exec')}
        else:
            raise ValueError('unknown mnemonic ' + mn)
    def __str__(self):
        if self.mn == 'label': return self.ops[0] + ':'
        if self.mn == 'raw': return self.text
        if self.mn == 'comment': return '; ' + self.text
        t = self.mn + (' ' + ', '.join(self.ops) if self.ops else '') + (' ' + self.mods if self.mods else '')
        if self.cmt: t += '   ; ' + self.cmt
        return t

class Stream:
    def __init__(self): self.l = []
    def __getattr__(self, mn):
        if mn.startswith('__'): raise AttributeError(mn)
        def f(*ops, mods='', tag=None, cmt=None, untracked=False):
            i = Inst(mn, ops, mods, tag, cmt, untracked); self.l.append(i); return i
        return f
    def add(self, other):
        self.l.extend(other.l if isinstance(other, Stream) else other); return self
    def label(self, name): self.l.append(Inst('label', [name]))
    def comment(self, t):
        i = Inst('comment', []); i.text = t; self.l.append(i)
    def raw(self, text, uses=(), defs=(), drains_vm=False):
        i = Inst('raw', []); i.text = text
        i.uses = set().union(*[regs_of(o) for o in uses]) if uses else set()
        i.defs = set().union(*[regs_of(o) for o in defs]) if defs else set()
        self.l.append(i); return i
    def waitvm(self, tag=None):
        i = Inst('waitvm', []); i.tag = tag; self.l.append(i)
    def waitlds(self, tag=None):
        i = Inst('waitlds', []); i.tag = tag; self.l.append(i)
    def cond_begin(self): self.l.append(Inst('cond_begin', []))
    def cond_end(self): self.l.append(Inst('cond_end', []))
    def __len__(self): return len(self.l)

def merge(main, fill, start=0, per=None, end_pad=0):
    out = Stream()
    nm = sum(1 for i in main.l if i.cls == 'mfma')
    slots = max(1, nm - start - end_pad)
    f = list(fill.l); nf = len(f); k = 0; seen = 0
    for i in main.l:
        out.l.append(i)
        if i.cls == 'mfma':
            seen += 1
            if seen > start:
                want = min(nf, -(-(nf * (seen - start)) // slots)) if per is None else min(nf, per * (seen - start))
                while k < want:
                    out.l.append(f[k]); k += 1
    out.l.extend(f[k:])
    return out

MFMA_PASS = {'v_mfma_f32_16x16x32_bf16': 4, 'v_mfma_f32_32x32x16_bf16': 8}
def mfma_lat(p, kind):
    return {'c_part': {4: 6, 8: 10}, 'ab': {4: 8, 8: 12}, 'other': {4: 8, 8: 12}, 'war_c': {4: 3, 8: 7}}[kind][p]

WAIT_AGE = 7
def insert_waits(lst):
    out = []; vmq = []; ldq = []; cond = None
    nmf = 0
    def do_wait(vm=None, lg=None, ext=False):
        nonlocal vmq, ldq
        if ext and lg is not None:
            while lg > 0 and nmf - ldq[len(ldq) - lg][3] >= WAIT_AGE: lg -= 1
        parts = []
        if vm is not None:
            vm = min(vm, 63)
            if len(vmq) > vm:
                parts.append('vmcnt(%d)' % vm); vmq = vmq[len(vmq) - vm:] if vm else []
        if lg is not None:
            if any(x[2] for x in ldq): lg = 0
            lg = min(lg, 15)
            if len(ldq) > lg:
                parts.append('lgkmcnt(%d)' % lg); ldq = ldq[len(ldq) - lg:] if lg else []
        if parts:
            w = Inst('s_waitcnt', [' '.join(parts)]); w.tag = 'auto'; out.append(w)
    for i in lst:
        if i.mn == 'cond_begin':
            cond = (list(vmq), list(ldq)); out.append(i); continue
        if i.mn == 'cond_end':
            vq0, lq0 = cond; cond = None
            ids0 = set(id(x) for x in vq0) | set(id(x) for x in lq0)
            for x in vmq + ldq:
                assert id(x) in ids0 or not x[0], 'load issued inside a conditional block still outstanding at its end'
            vmq = vq0; ldq = lq0; out.append(i); continue
        if i.mn == 'waitvm':
            if i.tag is None: do_wait(vm=0)
            else:
                idx = [k for k, x in enumerate(vmq) if x[1] == i.tag]
                if idx: do_wait(vm=len(vmq) - 1 - idx[-1])
            continue
        if i.mn == 'waitlds':
            if i.tag is None: do_wait(lg=0)
            else:
                idx = [k for k, x in enumerate(ldq) if x[1] == i.tag]
                if idx: do_wait(lg=len(ldq) - 1 - idx[-1])
            continue
        if i.mn == 's_waitcnt':
            t = i.ops[0]
            m = re.search(r'vmcnt\((\d+)\)', t)
            if m:
                n = int(m.group(1)); vmq = vmq[len(vmq) - n:] if n and len(vmq) > n else ([] if n == 0 else vmq)
            m = re.search(r'lgkmcnt\((\d+)\)', t)
            if m:
                n = int(m.group(1)); ldq = ldq[len(ldq) - n:] if n and len(ldq) > n else ([] if n == 0 else ldq)
            out.append(i); continue
        touched = i.uses | i.defs
        vm = lg = None
        for k, x in enumerate(vmq):
            if x[0] & touched: vm = len(vmq) - 1 - k
        for k, x in enumerate(ldq):
            if x[0] & touched: lg = len(ldq) - 1 - k
        if vm is not None or lg is not None: do_wait(vm, lg, i.cls == 'mfma')
        out.append(i)
        if i.cls == 'mfma': nmf += 1
        if not i.untracked:
            if i.cls in ('vload', 'vstore', 'dma'): vmq.append((i.defs, i.tag))
            elif i.cls in ('ldsr', 'ldsw'): ldq.append((i.defs, i.tag, False, nmf))
            elif i.cls == 'smem': ldq.append((i.defs, i.tag, True, nmf))
    return out

def hoist_waits(lst):
    out = list(lst)
    k = 1
    while k < len(out) - 1:
        w = out[k]
        if w.mn == 's_waitcnt' and w.tag == 'auto' and out[k + 1].cls == 'mfma' and 'vmcnt' not in w.ops[0]:
            n = int(re.search(r'lgkmcnt\((\d+)\)', w.ops[0]).group(1))
            j = k - 1; skipped = 0; ok = True; nvalu = 0
            while j >= 0 and out[j].cls != 'mfma':
                c = out[j].cls
                if c in ('ldsr', 'ldsw'): skipped += 1
                elif c == 'valu': nvalu += 1
                elif c in ('salu', 'vload', 'vstore', 'dma'): pass
                else: ok = False; break
                j -= 1
            if ok and j >= 0 and j < k - 1 and nvalu and n - skipped >= 0 and out[j + 1].cls == 'valu':
                del out[k]
                w2 = Inst('s_waitcnt', ['lgkmcnt(%d)' % (n - skipped)]); w2.tag = 'hoisted'
                out.insert(j + 1, w2)
        k += 1
    return out

def insert_nops(lst):
    out = []
    pos = 0
    last_valu_w = {}; last_trans_w = {}; last_mfma_w = {}; last_mfma_c = {}; last_store_data = {}; last_dot_w = {}
    last_salu_m0 = -100
    nnop = 0
    def emit(i):
        nonlocal pos
        out.append(i)
        if i.mn in ('label', 'comment'): return
        if i.mn == 's_nop': pos += int(i.ops[0]) + 1
        else: pos += 1
    cond = None
    for i in lst:
        if i.mn == 'cond_begin':
            cond = pos; continue
        if i.mn == 'cond_end':
            p0 = cond; cond = None
            delta = pos - p0
            for d in (last_valu_w, last_trans_w, last_store_data):
                for r in d:
                    if d[r] < p0: d[r] += delta
            for d in (last_mfma_w, last_mfma_c, last_dot_w):
                for r in d:
                    if d[r][0] < p0: d[r] = (d[r][0] + delta,) + tuple(d[r][1:])
            if last_salu_m0 < p0: last_salu_m0 += delta
            continue
        if i.mn in ('label', 'comment', 's_waitcnt'):
            emit(i); continue
        touched = i.uses | i.defs
        need = 0
        def req(p, n):
            nonlocal need
            need = max(need, p + n + 1 - pos)
        for r in touched:
            if r in last_dot_w:
                dp, dm = last_dot_w[r]
                if i.mn == dm and r not in (regs_of(i.ops[1]) | regs_of(i.ops[2])): pass
                else: req(dp, 3)
        is_valu = i.cls == 'valu'; is_mem = i.cls in ('ldsr', 'ldsw', 'vload', 'vstore', 'dma')
        raw_blk = i.mn == 'raw'
        if i.cls == 'mfma':
            cset = regs_of(i.ops[3]); ab = regs_of(i.ops[1]) | regs_of(i.ops[2]); p = MFMA_PASS[i.mn]
            for r in i.uses:
                if r in last_valu_w: req(last_valu_w[r], 2)
            for r in ab:
                if r in last_mfma_w: req(last_mfma_w[r][0], mfma_lat(last_mfma_w[r][1], 'ab'))
            for r in cset | i.defs:
                if r in last_mfma_w:
                    w = last_mfma_w[r]
                    if r in cset and w[2] == cset and w[1] == p: pass
                    else: req(w[0], mfma_lat(w[1], 'c_part'))
        else:
            for r in touched:
                if r in last_mfma_w and (is_valu or is_mem or raw_blk): req(last_mfma_w[r][0], mfma_lat(last_mfma_w[r][1], 'other'))
            if is_valu or raw_blk:
                for r in i.defs:
                    if r in last_mfma_c: req(last_mfma_c[r][0], mfma_lat(last_mfma_c[r][1], 'war_c'))
                    if r in last_store_data: req(last_store_data[r], 2)
                for r in i.uses:
                    if r in last_trans_w: req(last_trans_w[r], 1)
                    if r in last_valu_w:
                        if r[0] == 's': req(last_valu_w[r], 4 if 'lane' in i.mn else 2)
                        elif i.mn.startswith(('v_readfirstlane', 'v_readlane')): req(last_valu_w[r], 1)
                        elif i.mn.startswith('v_permlane') or '_dpp' in i.mn or raw_blk: req(last_valu_w[r], 2)
            if is_mem:
                for r in i.uses:
                    if r in last_trans_w: req(last_trans_w[r], 1)
                    if r[0] == 's' and r in last_valu_w: req(last_valu_w[r], 5)
                for r in i.defs:
                    if r in last_store_data: req(last_store_data[r], 1)
                if i.cls == 'dma': req(last_salu_m0, 1)
            if i.cls == 'salu':
                for r in i.uses:
                    if r in last_valu_w: req(last_valu_w[r], 1)
        while need > 0:
            n = min(need, 16); emit(Inst('s_nop', [n - 1])); need -= n; nnop += n
        p0 = pos
        emit(i)
        for r in i.defs: last_dot_w.pop(r, None)
        if i.mn.startswith('v_dot'):
            for r in i.defs: last_dot_w[r] = (p0, i.mn)
        if i.cls == 'mfma':
            p = MFMA_PASS[i.mn]
            for r in i.defs: last_mfma_w[r] = (p0, p, frozenset(i.defs)); last_valu_w.pop(r, None)
            for r in regs_of(i.ops[3]): last_mfma_c[r] = (p0, p)
        elif is_valu or raw_blk:
            for r in i.defs:
                last_valu_w[r] = p0; last_mfma_w.pop(r, None)
                if i.mn in TRANS: last_trans_w[r] = p0
                else: last_trans_w.pop(r, None)
        elif i.cls == 'salu':
            for r in i.defs:
                last_valu_w.pop(r, None)
                if r == ('s', 'm0'): last_salu_m0 = p0
        if i.cls in ('vstore', 'ldsw') and re.search(r'x3|x4|b96|b128', i.mn):
            dat = regs_of(i.ops[0]) if i.mn.startswith('buffer') else regs_of(i.ops[1])
            for r in dat: last_store_data[r] = p0
        if i.cls in ('vload', 'ldsr'):
            for r in i.defs: last_valu_w.pop(r, None); last_mfma_w.pop(r, None); last_trans_w.pop(r, None)
    return out, nnop

def finalize(stream, verbose=False):
    l = insert_waits(stream.l)
    l = hoist_waits(l)
    l, nnop = insert_nops(l)
    if verbose: print('finalize: %d insts, %d nop states, %d waits' % (len(l), nnop, sum(1 for i in l if i.mn == 's_waitcnt')))
    return l

def render(insts):
    return '\n'.join(('' if i.mn == 'label' else '    ') + str(i) for i in insts) + '\n'

HEADER = '''; @launch grid=({grid},1,1) block=(256,1,1) lds={lds}
.amdgcn_target "amdgcn-amd-amdhsa--gfx950"
.text
.globl {k}
.p2align 8
.type {k},@function
{k}:
'''
FOOTER = '''.section .rodata,"a"
.p2align 6
.amdhsa_kernel {k}
  .amdhsa_next_free_vgpr {nv}
  .amdhsa_next_free_sgpr 102
  .amdhsa_accum_offset {ao}
  .amdhsa_group_segment_fixed_size 0
  .amdhsa_kernarg_size 88
  .amdhsa_user_sgpr_count 2
  .amdhsa_user_sgpr_kernarg_segment_ptr 1
  .amdhsa_system_sgpr_workgroup_id_x 1
.end_amdhsa_kernel
'''
KNAME = "sequential_preLN__linear_kernel_hedgehog__glu_gated_geglu__prompt_kernel"

def groups_of(st, mode='single'):
    out = []; cur = []
    for i in st.l:
        cur.append(i)
        if mode in ('single', 'vmem1'):
            if i.cls != 'salu' and i.mn not in ('comment', 'waitvm', 'waitlds'): out.append(cur); cur = []
        else:
            if i.cls in ('vload', 'vstore', 'dma'): out.append(cur); cur = []
    if cur:
        if out: out[-1].extend(cur)
        else: out.append(cur)
    return out

def weave(main, fills, anchor='mfma'):
    isanch = (lambda i: i.cls == 'mfma') if anchor == 'mfma' else (lambda i: i.cls in ('valu', 'mfma', 'ldsr', 'ldsw'))
    na = sum(1 for i in main.l if isanch(i))
    at = {}
    tail = []
    for f in fills:
        st, lo, hi = f[0], f[1], f[2]
        mode = f[3] if len(f) > 3 else 'single'
        gs = groups_of(st, mode)
        if hi is None or hi > na: hi = na
        if lo < 0: lo = na + lo
        n = len(gs)
        for q, g in enumerate(gs):
            if hi <= lo: tail.append(g); continue
            idx = lo + (q * (hi - lo)) // n
            at.setdefault(idx, []).append(g)
    out = Stream(); seen = 0
    for i in main.l:
        out.l.append(i)
        if isanch(i):
            for g in at.get(seen, []): out.l.extend(g)
            seen += 1
    for g in tail: out.l.extend(g)
    return out


def icost(i):
    if i.mn in ('comment', 'label', 'cond_begin', 'cond_end'): return 0
    if i.cls == 'valu':
        if i.mn in TRANS or i.mn.startswith('v_permlane'): return 8
        return 4
    if i.cls == 'ldsr': return 8
    if i.cls == 'ldsw': return 52 if '128' in i.mn else 24
    if i.cls in ('vload', 'vstore', 'dma'): return 14
    if i.mn in ('raw', 's_barrier'): return 12
    return 4
def gap_time(insts):
    t = 4
    for i in insts:
        if i.cls == 'valu': t = max(t, 8)
        t += icost(i)
    return t

def pack(main, fills, early=2.0, late=3.0):
    marks = insert_waits(main.l)
    needw = []; prevw = False
    for i in marks:
        if i.cls == 'mfma': needw.append(prevw); prevw = False
        elif i.mn == 's_waitcnt': prevw = True
    pre = []; gaps = []
    for i in main.l:
        if i.cls == 'mfma': gaps.append([i, []])
        elif gaps: gaps[-1][1].append(i)
        else: pre.append(i)
    na = len(gaps)
    sts = []
    for f in fills:
        st, lo, hi = f[0], f[1], f[2]
        mode = f[3] if len(f) > 3 else 'single'
        gs = groups_of(st, mode)
        if hi is None or hi > na: hi = na
        n = len(gs)
        sts.append(dict(gs=gs, pos=[lo + q * (hi - lo) / max(n, 1) for q in range(n)], k=0, strict=(mode in ('vmem', 'vmem1')), lo=lo, hi=hi))
    out = Stream(); out.l.extend(pre)
    W = Inst('s_waitcnt', ['lgkmcnt(0)'])
    over = 0
    for g, (mf, pinned) in enumerate(gaps):
        budget = 16 if MFMA_PASS[mf.mn] == 4 else 32
        head = []; tail = []
        resv = [W] if (g + 1 < na and needw[g + 1] and not any(x.mn in ('waitlds', 'waitvm') for x in pinned)) else []
        valu_from = set()
        def total(h, t): return gap_time(resv + pinned + h + t)
        progress = True
        while progress:
            progress = False
            cands = sorted((st['pos'][st['k']], n_) for n_, st in enumerate(sts) if st['k'] < len(st['gs']))
            for p, n_ in cands:
                st = sts[n_]; grp = st['gs'][st['k']]
                if g < st['lo']: continue
                if st['strict']:
                    if p > g: continue
                    force = True
                else:
                    if p > g + early: continue
                    force = p <= g - late or g >= st['hi'] - 1 and p <= g
                isv = any(x.cls == 'valu' for x in grp)
                h2, t2 = (head, tail + grp) if (isv or n_ in valu_from) else (head + grp, tail)
                if force or total(h2, t2) <= budget:
                    head, tail = h2, t2
                    if isv: valu_from.add(n_)
                    st['k'] += 1; progress = True
                    break
        over += max(0, total(head, tail) - budget)
        out.l.append(mf); out.l.extend(pinned); out.l.extend(head); out.l.extend(tail)
    for st in sts:
        for grp in st['gs'][st['k']:]:
            out.l.extend(grp); over += sum(icost(x) for x in grp)
    out.est = na * (16 if MFMA_PASS[gaps[0][0].mn] == 4 else 32) + over
    return out

def vcost(i):
    if i.cls == 'valu': return 8 if (i.mn in TRANS or i.mn.startswith('v_permlane')) else 4
    if i.cls == 'ldsr': return 4
    if i.cls == 'ldsw': return 40 if '128' in i.mn else 12 if '64' in i.mn else 4
    if i.cls in ('vload', 'dma'): return 4 if i.mn.startswith('global') else 8
    if i.cls == 'vstore': return 12
    if i.cls == 'mfma': return 8
    return 4
def seq_time(mf, insts):
    t = 4; hist = [mf]
    for i in insts:
        if i.mn in ('comment', 'label'): continue
        need = 0
        vec = i.cls in ('valu', 'vstore', 'ldsw', 'vload', 'dma', 'ldsr', 'mfma')
        if vec:
            for d, p in enumerate(reversed(hist[-3:])):
                if p.cls != 'valu' or not (p.defs & i.uses): continue
                req = 0
                if p.mn in TRANS: req = 1
                if i.mn.startswith('v_permlane') or i.cls == 'mfma': req = 2
                if any(r[0] == 's' for r in p.defs & i.uses): req = 2
                need = max(need, req - d)
            if i.cls == 'dma' and hist[-1].cls == 'salu' and ('s', 'm0') in hist[-1].defs: need = max(need, 1)
        t += 4 * need
        if vec:
            t = max(t, 8)
            if i.cls not in ('valu', 'mfma'):
                if hist[-1].cls == 'valu' and not need: t += 8
                elif i.mn.startswith('buffer') and hist[-1].cls == 'salu': t += 4
            t += vcost(i)
        else: t += 12 if i.mn in ('raw', 's_barrier') else 4
        hist.append(i)
    return t

SPLIT_SALU = True
def pack2(main, fills, slack=2.5, beam=3000):
    marks = insert_waits(main.l)
    needw = []; prevw = False
    for i in marks:
        if i.cls == 'mfma': needw.append(prevw); prevw = False
        elif i.mn == 's_waitcnt': prevw = True
    pre = []; gaps = []
    for i in main.l:
        if i.cls == 'mfma': gaps.append([i, []])
        elif gaps: gaps[-1][1].append(i)
        else: pre.append(i)
    na = len(gaps)
    sts = []
    for f in fills:
        st, lo, hi = f[0], f[1], f[2]
        mode = f[3] if len(f) > 3 else 'single'
        gs = groups_of(st, mode)
        if not gs: continue
        if hi is None or hi > na: hi = na
        n = len(gs); strict = mode in ('vmem', 'vmem1')
        pos = [lo + q * (hi - lo) / n for q in range(n)]
        sl = min(slack, (hi - lo) / n / 2.0) if strict else None
        if strict: win = [(max(lo, p - sl), min(hi - 1, max(p + sl, lo))) for p in pos]
        else: win = [(lo, hi - 1)] * n
        win = [(int(-(-a // 1)) if a == int(a) else int(a), int(b + 0.999) if strict else b) for a, b in win]
        win = [(max(lo, a), max(min(hi - 1, b), max(lo, a))) for a, b in win]
        if mode == 'vmem' and SPLIT_SALU:
            g2 = []; w2 = []; prev = lo
            for g, w in zip(gs, win):
                n0 = 0
                while n0 < len(g) - 1 and g[n0].cls == 'salu' and not any(x.mn.startswith(('s_cmp', 's_sub_u32', 's_cselect')) for x in g[n0:n0 + 1]): n0 += 1
                if any(x.cls != 'salu' for x in g[:-1]): n0 = 0
                for x in g[:n0]:
                    if x.mn == 's_addc_u32': g2[-1].append(x)
                    else: g2.append([x]); w2.append((prev, w[1]))
                g2.append(g[n0:]); w2.append(w); prev = w[0]
            gs, win = g2, w2
        sts.append(dict(gs=gs, win=win, strict=strict, isv=[any(x.cls in ('valu', 'mfma') for x in g) for g in gs]))
    W = Inst('s_waitcnt', ['lgkmcnt(0)'])
    def build(g, take):
        head = []; tail = []
        for s_, (k0, k1) in enumerate(take):
            seen = False
            for q in range(k0, k1):
                if sts[s_]['isv'][q] or seen: tail += sts[s_]['gs'][q]; seen = True
                else: head += sts[s_]['gs'][q]
        sc = [x for x in head if False]
        return head + tail
    import itertools
    cur = {tuple([0] * len(sts)): (0, None)}
    layers = []
    for g, (mf, pinned) in enumerate(gaps):
        budget = 16 if MFMA_PASS[mf.mn] == 4 else 32
        resv = [W] if (g + 1 < na and needw[g + 1] and not any(x.mn in ('waitlds', 'waitvm') for x in pinned)) else []
        nxt = {}
        for key, (cost, _) in cur.items():
            opts = []
            for s_, st in enumerate(sts):
                k0 = key[s_]; n = len(st['gs']); lo_ = k0
                while lo_ < n and st['win'][lo_][1] <= g: lo_ += 1
                hi_ = lo_
                mx = k0 + (2 if st['strict'] else 3)
                while hi_ < n and hi_ < mx and st['win'][hi_][0] <= g: hi_ += 1
                opts.append(range(lo_, max(lo_, hi_) + 1))
            for comb in itertools.product(*opts):
                ins = build(g, list(zip(key, comb)))
                c = cost + max(budget, seq_time(mf, resv + pinned + ins))
                if comb not in nxt or c < nxt[comb][0]: nxt[comb] = (c, key)
        if len(nxt) > beam:
            def score(kv):
                rem = sum(sum(vcost(x) for grp in st['gs'][kv[0][s_]:] for x in grp) for s_, st in enumerate(sts))
                return kv[1][0] + max(0, rem - (na - g - 1) * 8)
            nxt = dict(sorted(nxt.items(), key=score)[:beam])
        layers.append(nxt); cur = nxt
    def left(key): return sum(sum(vcost(x) for grp in st['gs'][key[s_]:] for x in grp) for s_, st in enumerate(sts))
    key = min(cur, key=lambda q: cur[q][0] + left(q)); est = cur[key][0] + left(key)
    final = key; path = []
    for g in range(na - 1, -1, -1):
        prev = layers[g][key][1]; path.append((prev, key)); key = prev
    path.reverse()
    out = Stream(); out.l.extend(pre)
    for g, (mf, pinned) in enumerate(gaps):
        out.l.append(mf); out.l.extend(pinned); out.l.extend(build(g, list(zip(*path[g]))))
    for s_, st in enumerate(sts):
        for grp in st['gs'][final[s_]:]: out.l.extend(grp)
    out.est = est
    return out
pack_greedy = pack
pack = pack2
```

```python
import sys, math, struct
from asmgen import *

OPT = dict(stop=99, stamps=0, cqx=0, spin=100000, rot=1, par=0, w4m=8, w47=4, w4p=0, e3=0, e3o=0, w3q=16, w3qat=60, w3e=10, g2k=20, qin=0, qind=24, qinn=6, w2k=4, w2kat=110, w2p=4, w2d=0, mc=0, rot4=0, pack=0, tl2=0, stl=0, tlb=0, x3e=1, fin=0, h0=0, g2e=88, ql=0, qlat=0, nt=3, ipf0=1, pe=0, w3u=0, tagD=0, h3a=8, tagB=0, fx3=1, qe=4, pat=20, ost=1, asy=1, w3a2=6, w3c2=6, map=0, ipf=3, w2e=3, x0e=1, w1ck=3, ckat=8, qpost=36, psl=14, w2at=70, qpost2=80, w2q=18, qpl=90, qpn=90, w2s=4, w2u=3, w2uat=40, w2o=0, w3o=6, w3a=9, w3b=11, w3c=4, w3t=10, w40=4, w4a=0, e7end=26, p4post=56, cst=1, w4l=60, v4end=74, h2a=10, f2at=8, f2ck=30)
for a_ in sys.argv[2:]:
    kk, vv = a_.split('='); OPT[kk] = int(vv)

def f32(x): return '0x%08x' % struct.unpack('<I', struct.pack('<f', x))[0]
LOG2E = 1.4426950408889634
OOB = 0x40000000

WS_FLAGS = 4096
F_PREP, F_KV, F_O, F_H, F_HH, F_W1, F_PREP2, F_H0 = 0, 1, 2, 3, 4, 7, 8, 2 + 7
if OPT['pack']:
    F_W1, F_PREP2, F_H0 = 7, 8, 2
    WS_W1K = 0x4A000; WS_CS = 0x1E0000
    WS_W1Q = 0x200000; WS_PART = 0x2F0000; WS_XST = 0x3D0000; WS_HST = 0x3E0000
    WS_W2 = 0x400000; WS_CS3 = 0x4C8000; WS_W3 = 0x500000; WS_O = 0x8C0000; WS_H = 0xB40000
    WS_W4 = 0xDC0000; WS_HH = 0xFA0000; WS_STAMP = 0x1700000
else:
    WS_STAMP = 0x1700000
    WS_PART = 0x80000
    WS_O = 0x200000
    WS_H = 0x500000
    WS_HST = 0x780000
    WS_HH = 0x800000
    WS_W2 = 0x1000000
    WS_W3 = 0x1100000
    WS_W4 = 0x1500000
    WS_W1K = 0x1800000
    WS_W1Q = 0x1A00000
    WS_CS = 0x1B00000
    WS_CS3 = 0x1C00000
    WS_XST = 0x1D00000
WS_DBG = 0x2000000
WS_SIZE = 0x4000000

L_XST = 0; L_W1S = 118784
if OPT['e3']: L_PG = 143360; L_PU = 151552; L_P4 = 57344; L_P2 = 135168; L_PHI = 102400
else: L_PG = 40960; L_PU = 49152; L_P4 = 57344; L_P2 = 135168; L_PHI = 143360
L_KV = 0; L_Q = 102400; L_CSF = 153600 + 2048; L_FV = 65536
L_KVR = 102400; L_ZERO = 106624
L_XR = 114688
L_W2 = 0; L_RING = 102400; L_MX = 0
L_W4 = 2048; L_ST = 100352; L_RED = 0

S_X, S_W1, S_WS, S_WG, S_WU, S_WD, S_WO, S_OUT, S_PHI = 28, 32, 36, 40, 44, 48, 52, 56, 60
sR, sC, sCQ, sW, sM, sP = 64, 65, 66, 67, 68, 69
sN = 70
sT = 72
sXO = 80
sA, sB, sCc, sD = 88, 89, 90, 91
sONE_LO, sONE_HI, sONES = 92, 93, 94
sCNT = 95
sTM = 96
sXR = 98
sE, sF = 99, 100
sK = 4
sCH = 12
sV = 17
def srd(b): return s(b, 4)

vTID, vL16, vG, vJ, vSTAMP, vPOST, vFR, vFC, vNON, vXRO = 0, 1, 2, 3, 4, 5, 6, 7, 8, 10
t0, t1, t2 = 11, 12, 13
vR4, vCC, vLANE = 14, 15, 16

k = Stream()
STAMPS = []
OPT_DBG = ['w1s', 'w1post', 'prepiss', 'w1b', 'kvgo', 'kvgemm', 'kvst', 'qgemm', 'phiq', 'ost', 'oflag', 'hst', 'g3t0', 'g3end', 'end']
def stamp(st, name):
    if not OPT['stamps']: return
    if OPT['stamps'] == 3 and name not in ('start', 'kvst', 'opost', 'hst', 'g3end', 'end'): return
    if OPT['stamps'] == 4 and name in ('pre', 'w1s', 'prepiss', 'w1flag', 'kv0', 'kv1', 'kv2', 'kv3', 'q_a', 'q_b', 'q_c', 'q_d', 'w1a', 'w1b', 'w1st', 'w1w', 'w1d', 'colsum', 'q_e', 'q_f', 'g4t0'): return
    i = len(STAMPS); STAMPS.append(name)
    if OPT['stamps'] == 4:
        assert i < 32
        st.s_memtime(s(sTM, 2)); st.s_waitcnt('lgkmcnt(0)'); st.v_writelane_b32(v(vSTAMP), s(sTM), 32 + i)
    st.comment('stamp %d %s' % (i, name))
    (st.s_memrealtime if OPT['stamps'] >= 2 else st.s_memtime)(s(sTM, 2))
    st.s_waitcnt('lgkmcnt(0)')
    st.v_writelane_b32(v(vSTAMP), s(sTM), i)

def post(st, kind):
    st.s_lshl_b32(s(sT), s(sR), 11)
    st.s_lshl_b32(s(sT + 1), s(sC), 7)
    st.s_add_u32(s(sT), s(sT), s(sT + 1))
    st.s_add_u32(s(sT), s(sT), WS_FLAGS + kind * 32768)
    st.buffer_store_dwordx2(v(vNON, 2), v(vPOST), srd(S_WS), s(sT), mods='offen sc1')

npoll = [0]
def poll(st, voff, ssoff, tmp):
    n = npoll[0]; npoll[0] += 1
    t = '''s_cmp_lg_u32 s{w}, 0
    s_cbranch_scc1 L_pd{n}
    s_mov_b32 s{c}, {lim}
L_pl{n}:
    buffer_load_dwordx2 v[{t}:{t1}], v{vo}, s[{ws}:{ws3}], s{so} offen sc1
    s_waitcnt vmcnt(0)
    v_cmp_ne_u64 vcc, s[{n0}:{n1}], v[{t}:{t1}]
    s_cbranch_vccz L_pd{n}
    s_sub_u32 s{c}, s{c}, 1
    s_cbranch_scc0 L_pl{n}
L_pd{n}:'''.format(w=sW, n=n, c=sCNT, lim=OPT['spin'], t=tmp, t1=tmp + 1, vo=voff, ws=S_WS, ws3=S_WS + 3, so=ssoff, n0=sN, n1=sN + 1)
    st.raw(t, uses=[v(voff)], defs=[v(tmp, 2)])
def poll_row(st, kind, tmp):
    st.s_lshl_b32(s(sT), s(sR), 11); st.s_add_u32(s(sT), s(sT), WS_FLAGS + kind * 32768)
    poll(st, vFR, sT, tmp)

def gbase(st, pair, soff, const=0):
    if const: st.s_add_u32(s(pair), s(soff), const); soff = pair
    st.s_add_u32(s(pair), s(S_WS), s(soff)); st.s_addc_u32(s(pair + 1), s(S_WS + 1), 0)
def allreduce_groups(st, x, t, op):
    st.v_mov_b32(v(t), v(x))
    st.v_permlane32_swap_b32(v(x), v(t))
    getattr(st, op)(v(x), v(x), v(t))
    st.v_mov_b32(v(t), v(x))
    st.v_permlane16_swap_b32(v(x), v(t))
    getattr(st, op)(v(x), v(x), v(t))

MF = 'v_mfma_f32_16x16x32_bf16'
def mfma(st, d, A, B, first=False):
    getattr(st, MF)(d, A, B, '0' if first else d)

def wg_slot(st, mul, base):
    st.s_lshl_b32(s(sT), s(sR), 4); st.s_add_u32(s(sT), s(sT), s(sC))
    st.s_lshl_b32(s(sT), s(sT), 2); st.s_add_u32(s(sT), s(sT), s(sW))
    st.s_mul_i32(s(sT), s(sT), mul)
    st.s_add_u32(s(sT), s(sT), base)

def dump(st, regs):
    st.waitvm(); st.waitlds()
    wg_slot(st, 32768, WS_DBG)
    for q, r in enumerate(regs):
        st.buffer_store_dwordx4(r, v(vL16), srd(S_WS), s(sT), mods='offen')
        st.s_add_u32(s(sT), s(sT), 1024)

def finish(st):
    if OPT['stamps']:
        st.waitvm()
        stamp(st, 'end')
        wg_slot(st, 256, WS_STAMP)
        st.v_lshlrev_b32(v(t1), 2, v(vLANE))
        st.buffer_store_dword(v(vSTAMP), v(t1), srd(S_WS), s(sT), mods='offen')
    if OPT.get('dbg'):
        st.s_load_dwordx2(s(sT + 2, 2), s(0, 2), 72)
        st.s_memrealtime(s(sTM, 2))
        st.s_waitcnt('lgkmcnt(0)')
        st.s_sub_u32(s(sTM), s(sTM), s(101))
        st.v_writelane_b32(v(vSTAMP), s(sTM), 63)
        st.v_readlane_b32(s(sT), v(vSTAMP), 0)
        st.s_nop(1)
        st.v_subrev_u32(v(t0), s(sT), v(vSTAMP))
        st.v_writelane_b32(v(t0), s(sTM), 0)
        sel = [0] + [STAMPS.index(n) for n in OPT_DBG]
        st.v_mov_b32(v(t1), OOB)
        for q, i in enumerate(sel): st.v_writelane_b32(v(t1), 4 * q, i)
        st.s_lshl_b32(s(sT), s(sR), 4); st.s_add_u32(s(sT), s(sT), s(sC)); st.s_lshl_b32(s(sT), s(sT), 2); st.s_add_u32(s(sT), s(sT), s(sW))
        st.s_mov_b32(s(S_PHI), s(sT + 2)); st.s_mov_b32(s(S_PHI + 1), s(sT + 3)); st.s_mov_b32(s(S_PHI + 2), 64); st.s_mov_b32(s(S_PHI + 3), 0x20000)
        st.s_cmp_lg_u32(s(sT), (5 * 16 + 3) * 4)
        st.s_cbranch_scc1('L_nodbg')
        st.buffer_store_dword(v(t0), v(t1), srd(S_PHI), 0, mods='offen')
        st.label('L_nodbg')
    st.s_or_b32(s(sT), s(sR), s(sC))
    st.s_cmp_lg_u32(s(sT), 0)
    st.s_cbranch_scc1('L_end')
    st.buffer_store_dwordx2(v(vNON, 2), v(vPOST), srd(S_WS), 0, mods='offen')
    st.label('L_end')
    st.s_endpgm()
    ins = finalize(st, True)
    hdr = open('sequential_preLN__linear_kernel_hedgehog__glu_gated_geglu__prompt.s.ref').read().split('\n')
    hdr = [l for l in hdr if l.startswith(';') and '@launch' not in l]
    txt = '\n'.join(hdr) + '\n' + HEADER.format(grid=256, lds=163840, k=KNAME) + render(ins) + FOOTER.format(k=KNAME, nv=512, ao=256)
    open(sys.argv[1], 'w').write(txt)
    open(sys.argv[1] + '.stamps', 'w').write('\n'.join(STAMPS))
    sys.exit(0)

def div_small(st, q, x, d):
    mul, sh = {10: (205, 11), 80: (205, 14), 5: (205, 10), 6: (171, 10), 12: (171, 11), 48: (171, 13), 3: (171, 9)}[d]
    st.v_mul_u32_u24(v(q), mul, v(x)); st.v_lshrrev_b32(v(q), sh, v(q))
for d_, lim in ((10, 512), (80, 320), (5, 256), (6, 192), (12, 512), (48, 192), (3, 8)):
    mul, sh = {10: (205, 11), 80: (205, 14), 5: (205, 10), 6: (171, 10), 12: (171, 11), 48: (171, 13), 3: (171, 9)}[d_]
    assert all((x * mul) >> sh == x // d_ for x in range(lim)), d_

vW1D = 18; vW1A = 21; vP3D = 26; vP4D = 28; vXW = 30; vXRd = 34; vKV2 = 38; vL16b = 17
vWP = 56; vWA = 58; vONE = 60; vAF = 64; vACC = 104; vGR = 164
vST = 180
vE = 184
vEA = 248
aPHI = 160; aCSQ = 240
sRHO = 3
def acc(X, col): return vACC + (X * 3 + col) * 4
def xf(ks, tt): return a(32 * (ks >> 2) + 16 * tt + 4 * (ks & 3), 4)

k.s_load_dwordx16(s(4, 16), s(0, 2), 0)
k.s_load_dwordx4(s(20, 4), s(0, 2), 64)
k.s_load_dwordx2(s(24, 2), s(0, 2), 80)
k.s_cmp_ge_u32(s(2), 256)
k.s_cbranch_scc1('L_end')
if OPT['stamps']: k.v_mov_b32(v(vSTAMP), 0)
if OPT['map'] == 0:
    k.s_bfe_u32(s(sT), s(2), 0x20001)
    k.s_lshl_b32(s(sT), s(sT), 2)
    k.s_bfe_u32(s(sT + 1), s(2), 0x20003)
    k.s_add_u32(s(sR), s(sT), s(sT + 1))
    k.s_and_b32(s(sT), s(2), 1)
    k.s_lshl_b32(s(sT), s(sT), 3)
    k.s_lshr_b32(s(sT + 2), s(2), 5)
    k.s_add_u32(s(sC), s(sT), s(sT + 2))
else:
    k.s_and_b32(s(sT), s(2), 7)
    k.s_lshl_b32(s(sT), s(sT), 1)
    k.s_bfe_u32(s(sT + 1), s(2), 0x10003)
    k.s_add_u32(s(sR), s(sT), s(sT + 1))
    k.s_lshr_b32(s(sC), s(2), 4)
    k.s_and_b32(s(sT + 2), s(sC), 7)
k.s_mov_b32(s(sCQ), s(sC))
if OPT['par']:
    k.s_and_b32(s(sM), s(sC), 7); k.s_lshr_b32(s(sP), s(sC), 3)
else:
    k.s_lshr_b32(s(sM), s(sC), 1); k.s_and_b32(s(sP), s(sC), 1)
if OPT['rot']:
    k.s_sub_u32(s(sT), s(sT + 2), 5)
    k.s_cselect_b32(s(sRHO), s(sT + 2), s(sT))
else:
    k.s_mov_b32(s(sRHO), 0)
def chunk(st, slot, dst, tmp):
    st.s_add_u32(s(dst), s(sRHO), slot)
    st.s_sub_u32(s(tmp), s(dst), 5)
    st.s_cselect_b32(s(dst), s(dst), s(tmp))
k.v_lshrrev_b32(v(t0), 6, v(vTID))
k.v_readfirstlane_b32(s(sW), v(t0))
k.v_and_b32(v(vLANE), 63, v(vTID))
k.v_lshlrev_b32(v(vL16), 4, v(vLANE))
k.v_lshrrev_b32(v(vG), 4, v(vLANE))
k.v_and_b32(v(vJ), 15, v(vLANE))
if OPT['ipf0']:
    if OPT['ipf']:
        k.raw('''s_getpc_b64 s[%d:%d]
L_pc:
        s_sub_u32 s%d, s%d, L_pc-%s
        s_subb_u32 s%d, s%d, 0''' % (sT + 4, sT + 5, sT + 4, sT + 4, KNAME, sT + 5, sT + 5))
        k.s_lshr_b32(s(sT + 6), s(2), 3)
        k.s_lshl_b32(s(sT + 6), s(sT + 6), 2); k.s_add_u32(s(sT + 6), s(sT + 6), s(sW)); k.s_mul_i32(s(sT + 6), s(sT + 6), OPT['ipf'] * 128)
        k.v_min_u32(v(t0), OPT['ipf'] - 1, v(vLANE))
        k.v_lshlrev_b32(v(t0), 7, v(t0))
        k.v_add_u32(v(t0), s(sT + 6), v(t0))
        k.v_min_u32(v(t0), 'L_end-%s' % KNAME, v(t0))
        k.v_mov_b32(v(vAF + 31), s(sT + 5))
        k.v_add_co_u32(v(vAF + 30), 'vcc', s(sT + 4), v(t0))
        k.v_addc_co_u32(v(vAF + 31), 'vcc', 0, v(vAF + 31), 'vcc')
        k.global_load_dword(v(vAF + 29), v(vAF + 30, 2), 'off')
k.s_mul_i32(s(sT), s(sW), 192)
k.s_movk_i32(s(sT + 1), 3840); k.s_movk_i32(s(sT + 4), 1200)
for e in range(3):
    k.v_add_u32(v(t0), s(sT), v(vLANE))
    if e: k.v_add_u32(v(t0), 64 * e, v(t0))
    k.v_mul_u32_u24(v(t1), 4370, v(t0)); k.v_lshrrev_b32(v(t1), 16, v(t1))
    k.v_mul_u32_u24(v(t2), 15, v(t1)); k.v_sub_u32(v(t0), v(t0), v(t2))
    k.v_lshlrev_b32(v(t2), 4, v(t0))
    k.v_mad_u32_u24(v(vW1D + e), v(t1), s(sT + 1), v(t2))
    k.v_mul_u32_u24(v(t0), 52, v(t0)); k.v_lshrrev_b32(v(t0), 8, v(t0))
    k.v_mad_u32_u24(v(vW1D + e), v(t0), s(sT + 4), v(vW1D + e))
    if e: k.v_subrev_u32(v(vW1D + e), 1024 * e, v(vW1D + e))
assert all((x * 4370) >> 16 == x // 15 for x in range(768)) and all((x * 52) >> 8 == x // 5 for x in range(15))
k.v_xor_b32(v(t0), v(vJ), v(vG))
k.v_lshlrev_b32(v(t0), 4, v(t0))
k.v_mul_u32_u24(v(t1), 1280, v(vG))
for n in range(4):
    k.v_xor_b32(v(vXW + n), 64 * n, v(t0))
    k.v_add_u32(v(vXW + n), v(vXW + n), v(t1))
    if n: k.v_add_u32(v(vXW + n), n * 4096, v(vXW + n))
k.s_lshl_b32(s(sT), s(sR), 7)
k.s_lshl_b32(s(sT + 1), s(sW), 5)
k.s_add_u32(s(sT), s(sT), s(sT + 1))
k.s_mul_i32(s(sXO), s(sT), 1280)
k.s_lshl_b32(s(sXO + 1), s(sW), 13)
k.s_mul_i32(s(sA), s(sR), 40 * 3840)
k.s_mul_i32(s(sT), s(sC), 80)
k.s_add_u32(s(sA), s(sA), s(sT))
k.s_mul_i32(s(sB), s(sW), 3072)
k.s_add_u32('m0', s(sB), L_W1S)
k.s_mul_i32(s(sT + 2), s(sC), 1600)
k.s_waitcnt('lgkmcnt(0)')
def mksrd(st, b, p, size):
    st.s_mov_b32(s(b), s(p)); st.s_mov_b32(s(b + 1), s(p + 1)); st.s_mov_b32(s(b + 2), size); st.s_mov_b32(s(b + 3), 0x20000)
mksrd(k, S_W1, 6, 2457600)
if OPT.get('dbg'):
    k.s_memrealtime(s(sTM, 2)); k.s_waitcnt('lgkmcnt(0)'); k.s_mov_b32(s(101), s(sTM))
stamp(k, 'start')
for e in range(3): k.buffer_load_dwordx4(v(vW1D + e), srd(S_W1), s(sA), mods='offen offset:%d%s lds' % (e * 1024, ' nt' if OPT['nt'] & 1 else ''), tag='W1S')
if not OPT['ipf0']:
    if OPT['ipf']:
        k.raw('''s_getpc_b64 s[%d:%d]
L_pc:
        s_sub_u32 s%d, s%d, L_pc-%s
        s_subb_u32 s%d, s%d, 0''' % (sT + 4, sT + 5, sT + 4, sT + 4, KNAME, sT + 5, sT + 5))
        k.s_lshr_b32(s(sT + 6), s(2), 3)
        k.s_lshl_b32(s(sT + 6), s(sT + 6), 2); k.s_add_u32(s(sT + 6), s(sT + 6), s(sW)); k.s_mul_i32(s(sT + 6), s(sT + 6), OPT['ipf'] * 128)
        k.v_min_u32(v(t0), OPT['ipf'] - 1, v(vLANE))
        k.v_lshlrev_b32(v(t0), 7, v(t0))
        k.v_add_u32(v(t0), s(sT + 6), v(t0))
        k.v_min_u32(v(t0), 'L_end-%s' % KNAME, v(t0))
        k.v_mov_b32(v(vAF + 31), s(sT + 5))
        k.v_add_co_u32(v(vAF + 30), 'vcc', s(sT + 4), v(t0))
        k.v_addc_co_u32(v(vAF + 31), 'vcc', 0, v(vAF + 31), 'vcc')
        k.global_load_dword(v(vAF + 29), v(vAF + 30, 2), 'off')
mksrd(k, S_X, 4, 2621440)
XSLOT = [0, 32768, 65536, 102400, 0]
KVPOS = [40960, 61440, 81920, 0, 20480]
def issue_x(st, sg, tts=(0, 1)):
    chunk(st, sg, sE, sF)
    st.s_lshl_b32(s(sE), s(sE), 8)
    st.s_add_u32(s(sE), s(sE), s(sXO))
    for tt in tts:
        if tt: st.s_add_u32(s(sE), s(sE), 16 * 1280)
        st.s_add_u32('m0', s(sXO + 1), L_XST + XSLOT[sg] + tt * 4096)
        for n in range(4):
            st.buffer_load_dwordx4(v(vXW + n), srd(S_X), s(sE), mods='offen offset:%d%s lds' % (n * 1024, ' nt' if (OPT['nt'] & 4 and sg == 0) else ''), tag='x%d' % sg)
k.s_load_dwordx2(s(sN, 2), s(24, 2), 0)
if OPT['stl']:
    k.s_lshl_b32(s(sT + 4), s(sW), 21)
    for i in range(4):
        if i: k.s_add_u32(s(sT + 4 + i), s(sT + 4), i << 23)
        k.s_load_dword(s(101), s(24, 2), s(sT + 4 + i), untracked=True)
    if OPT['stl'] > 1:
        for p in (10, 14, 16, 18, 20): k.s_load_dword(s(101), s(p, 2), 0, untracked=True)
mksrd(k, S_PHI, 8, 25600)
k.v_lshlrev_b32(v(vWA), 3, v(vTID))
k.v_cmp_gt_u32('vcc', 200, v(vTID))
k.v_mov_b32(v(t1), OOB)
k.v_cndmask_b32(v(vWA), v(t1), v(vWA), 'vcc')
k.buffer_load_dwordx2(v(vWP, 2), v(vWA), srd(S_PHI), s(sT + 2), mods='offen')
mksrd(k, S_WS, 24, WS_SIZE)
mksrd(k, S_WG, 14, 1966080); mksrd(k, S_WU, 16, 1966080); mksrd(k, S_WD, 18, 1966080); mksrd(k, S_WO, 10, 819200); mksrd(k, S_OUT, 20, 2621440)
for i in range(4): k.v_mov_b32(v(vAF + i), 0)
k.v_lshlrev_b32(v(t0), 4, v(vTID))
k.v_add_u32(v(t0), L_PHI, v(t0))
for i in range(2): k.ds_write_b128(v(t0), v(vAF, 4), mods='offset:%d' % (i * 4096))
k.v_cmp_gt_u32('vcc', 128, v(vTID))
k.s_and_saveexec_b64(s(sT, 2), 'vcc')
k.ds_write_b128(v(t0), v(vAF, 4), mods='offset:8192')
k.s_mov_b64('exec', s(sT, 2))
k.v_bfe_u32(v(vR4), v(vLANE), 2, 2)
k.v_and_b32(v(vCC), 3, v(vLANE))
k.s_mov_b32(s(sONE_LO), 0x00003f80); k.s_mov_b32(s(sONE_HI), 0x3f800000); k.s_mov_b32(s(sONES), 0x3f803f80)
oE, oO, sE_, sO_, mE, bE, bO, pE, pO = [sV + i for i in range(9)]
k.s_lshl_b32(s(sT), s(sW), 3)
k.s_lshr_b32(s(oE), 0x20C87850, s(sT)); k.s_and_b32(s(oE), s(oE), 0xff)
k.s_lshr_b32(s(oO), 0x2800A070, s(sT)); k.s_and_b32(s(oO), s(oO), 0xff)
k.s_lshr_b32(s(sE_), 0x28080808, s(sT)); k.s_and_b32(s(sE_), s(sE_), 0xff)
k.s_lshr_b32(s(sO_), 0x08080828, s(sT)); k.s_and_b32(s(sO_), s(sO_), 0xff)
k.s_lshr_b32(s(mE), 0x01030303, s(sT)); k.s_and_b32(s(mE), s(mE), 0xff)
k.s_mul_i32(s(sT + 1), s(sC), 102400); k.s_add_u32(s(sT + 1), s(sT + 1), WS_W1K)
k.s_mul_i32(s(sT + 2), s(sC), 61440); k.s_add_u32(s(sT + 2), s(sT + 2), WS_W1Q - 5120)
k.s_lshl_b32(s(sT + 3), s(sW), 11)
k.s_movk_i32(s(sT + 4), 3072)
k.s_cmp_lt_u32(s(sW), 3)
k.s_cselect_b32(s(bE), s(sT + 1), s(sT + 2)); k.s_cselect_b32(s(pE), 5120, s(sT + 4))
k.s_cmp_lt_u32(s(sW), 2)
k.s_cselect_b32(s(bO), s(sT + 1), s(sT + 2)); k.s_cselect_b32(s(pO), 5120, s(sT + 4))
k.s_add_u32(s(bE), s(bE), s(sT + 3)); k.s_add_u32(s(bO), s(bO), s(sT + 3)); k.s_add_u32(s(bO), s(bO), 1024)
y0, y1, y2 = vAF + 4, vAF + 5, vAF + 6
k.v_and_b32(v(y0), s(mE), v(vCC)); k.v_mul_u32_u24(v(y0), s(sE_), v(y0)); k.v_add_u32(v(y0), s(oE), v(y0))
k.v_mul_u32_u24(v(y1), s(sO_), v(vCC)); k.v_add_u32(v(y1), s(oO), v(y1))
k.v_lshl_add_u32(v(t0), v(vG), 3, v(vR4)); k.v_mul_u32_u24(v(t0), 240, v(t0)); k.v_add_u32(v(t0), L_W1S, v(t0))
k.v_add_u32(v(vW1A), v(t0), v(y0)); k.v_add_u32(v(vW1A + 1), v(t0), v(y1))
k.v_and_b32(v(t1), 1, v(vG))
k.v_cmp_eq_u32('vcc', 1, v(t1))
k.v_mul_u32_u24(v(t0), 240, v(vR4)); k.v_add_u32(v(t0), L_W1S + 32 * 240, v(t0))
k.v_cndmask_b32(v(y0), v(y0), v(y1), 'vcc')
k.v_add_u32(v(vW1A + 2), v(t0), v(y0))
vW1O = 40
k.s_mul_i32(s(sT), s(sR), 5)
k.v_add_u32(v(t0), s(sT), v(vG))
k.v_lshrrev_b32(v(t2), 2, v(t0)); k.v_and_b32(v(t0), 3, v(t0)); k.v_lshlrev_b32(v(t0), 8, v(t0)); k.v_lshl_add_u32(v(t0), v(vJ), 4, v(t0))
k.v_mad_u32_u24(v(vW1O), v(t2), s(pE), v(t0)); k.v_mad_u32_u24(v(vW1O + 1), v(t2), s(pO), v(t0))
k.s_add_u32(s(sT), s(sT), 4); k.s_lshr_b32(s(sT + 1), s(sT), 2); k.s_and_b32(s(sT), s(sT), 3); k.s_lshl_b32(s(sT), s(sT), 8)
k.s_mul_i32(s(sT + 2), s(sT + 1), s(pE)); k.s_add_u32(s(sT + 2), s(sT + 2), s(bE)); k.s_add_u32(s(sT + 2), s(sT + 2), s(sT))
k.s_mul_i32(s(sT + 3), s(sT + 1), s(pO)); k.s_add_u32(s(sT + 3), s(sT + 3), s(bO)); k.s_add_u32(s(sT + 3), s(sT + 3), s(sT))
k.v_mov_b32(v(t0), s(sT + 2)); k.v_mov_b32(v(t2), s(sT + 3))
k.v_cndmask_b32(v(t0), v(t0), v(t2), 'vcc')
k.v_lshl_add_u32(v(t0), v(vJ), 4, v(t0))
k.v_mov_b32(v(t2), OOB)
k.v_cmp_gt_u32('vcc', 2, v(vG))
k.v_cndmask_b32(v(vW1O + 2), v(t2), v(t0), 'vcc')
k.v_lshrrev_b32(v(t0), 1, v(vG)); k.v_lshlrev_b32(v(t0), 10, v(t0)); k.v_lshl_add_u32(v(t0), v(vJ), 4, v(t0))
k.v_cmp_eq_u32('vcc', 0, v(t1))
k.v_cndmask_b32(v(vW1O + 3), v(t2), v(t0), 'vcc')
k.s_lshl_b32(s(sD), s(sC), 13); k.s_lshl_b32(s(sT), s(sW), 11); k.s_add_u32(s(sD), s(sD), s(sT))
k.s_lshr_b32(s(sT), s(sR), 2); k.s_lshl_b32(s(sT), s(sT), 8); k.s_add_u32(s(sD), s(sD), s(sT))
k.s_and_b32(s(sT), s(sR), 3); k.s_lshl_b32(s(sT), s(sT), 2); k.s_add_u32(s(sD), s(sD), s(sT)); k.s_add_u32(s(sD), s(sD), WS_CS)
x0, x1 = vAF + 4, vAF + 5
div_small(k, t0, vTID, 5)
k.v_mul_u32_u24(v(t1), 5, v(t0)); k.v_sub_u32(v(t1), v(vTID), v(t1))
k.v_lshlrev_b32(v(vWA), 11, v(t1))
k.v_cmp_lt_u32('vcc', 19, v(t0))
k.v_cndmask_b32(v(t1), 0, 1, 'vcc')
k.v_mul_u32_u24(v(t2), 20, v(t1)); k.v_sub_u32(v(t0), v(t0), v(t2))
k.v_lshl_add_u32(v(vWA), v(t1), 6, v(vWA))
k.v_lshrrev_b32(v(x0), 2, v(t0)); k.v_lshlrev_b32(v(x0), 8, v(x0))
k.v_and_b32(v(x1), 3, v(t0)); k.v_lshl_add_u32(v(x0), v(x1), 1, v(x0))
k.v_mul_u32_u24(v(t2), 1032, v(t1)); k.v_add_u32(v(x0), v(x0), v(t2))
k.v_lshlrev_b32(v(x1), 1, v(x1)); k.v_lshl_add_u32(v(x1), v(t1), 8, v(x1)); k.v_add_u32(v(x1), 8, v(x1))
k.v_cmp_lt_u32('vcc', 15, v(t0))
k.v_cndmask_b32(v(x0), v(x0), v(x1), 'vcc')
k.v_add_u32(v(vWA), v(vWA), v(x0))
k.v_add_u32(v(vWA), L_PHI, v(vWA))

k.v_cmp_ne_u32('vcc', 0, v(vTID))
k.v_mov_b32(v(t1), OOB)
k.v_cndmask_b32(v(vPOST), 0, v(t1), 'vcc')
def wphi_scatter(st, d):
    st.v_cmp_gt_u32('vcc', 200, v(vTID))
    st.s_and_saveexec_b64(s(sT, 2), 'vcc')
    st.ds_write_b16(v(vWA), v(d))
    st.ds_write_b16_d16_hi(v(vWA), v(d), mods='offset:16')
    st.ds_write_b16(v(vWA), v(d + 1), mods='offset:32')
    st.ds_write_b16_d16_hi(v(vWA), v(d + 1), mods='offset:48')
    st.s_mov_b64('exec', s(sT, 2))
def wphi_read(st):
    st.v_add_u32(v(t0), L_PHI, v(vL16))
    st.v_xor_b32(v(t1), 128, v(t0))
    for p in range(2):
        for i in range(10):
            st.ds_read_b128(a(aPHI + (p * 10 + i) * 4, 4), v(t0 + p), mods='offset:%d' % (i * 1024))
def prep_offsets(st):
    for e in range(2):
        st.s_lshl_b32(s(sT), s(sW), 7)
        st.v_add_u32(v(t0), s(sT), v(vLANE))
        if e: st.v_add_u32(v(t0), 64, v(t0))
        div_small(st, t1, t0, 12)
        st.v_mul_u32_u24(v(t2), 12, v(t1)); st.v_sub_u32(v(t2), v(t0), v(t2))
        st.v_mul_u32_u24(v(vP3D + e), 3072, v(t1))
        st.v_lshl_add_u32(v(vP3D + e), v(t2), 4, v(vP3D + e))
        div_small(st, t1, t0, 10)
        st.v_mul_u32_u24(v(t2), 10, v(t1)); st.v_sub_u32(v(t2), v(t0), v(t2))
        st.v_mul_u32_u24(v(vP4D + e), 1280, v(t1))
        st.v_lshl_add_u32(v(vP4D + e), v(t2), 4, v(vP4D + e))
def issue_prep(st, i, es=(0, 1)):
    a0, a1, a2 = sE, sF, sCc
    st.s_lshl_b32(s(a2), s(sW), 11)
    if i < 2:
        st.s_mul_i32(s(a0), s(sR), 40 * 3072); st.s_mul_i32(s(a1), s(sC), 192)
    else:
        if i == 2: st.s_mul_i32(s(a0), s(sR), 40 * 1280)
        else: st.s_lshl_b32(s(a0), s(sR), 1); st.s_add_u32(s(a0), s(a0), s(sP)); st.s_mul_i32(s(a0), s(a0), 48 * 1280)
        st.s_mul_i32(s(a1), s(sM), 160)
    st.s_add_u32(s(a0), s(a0), s(a1))
    S_, L_, vo = [(S_WG, L_PG, vP3D), (S_WU, L_PU, vP3D), (S_WO, L_P2, vP4D), (S_WD, L_P4, vP4D)][i]
    for e in es:
        st.s_add_u32('m0', s(a2), L_ + e * 1024)
        st.buffer_load_dwordx4(v(vo + e), srd(S_), s(a0), mods='offen%s lds' % (' nt' if OPT['nt'] & 2 else ''), tag='prep%d' % i)
def gram(st, sg):
    for tt in range(2):
        for q in range(4):
            ks = 4 * sg + q
            mfma(st, v(vGR + 4 * tt, 4), xf(ks, tt), xf(ks, tt), ks == 0)
            mfma(st, v(vGR + 8 + 4 * tt, 4), v(vONE, 4), xf(ks, tt), ks == 0)
def ln_stats(st):
    for tt in range(2):
        q_, m_, u_ = vE, vE + 1, vE + 2
        G = vGR + 4 * tt
        st.v_cmp_eq_u32('vcc', 1, v(vCC)); st.v_mul_f32(v(m_), s(sINV640), v(vGR + 8 + 4 * tt)); st.v_cndmask_b32(v(q_), v(G), v(G + 1), 'vcc')
        st.v_cmp_eq_u32('vcc', 2, v(vCC)); st.v_sub_f32(v(vST + 2 * tt), 0, v(m_)); st.v_cndmask_b32(v(q_), v(q_), v(G + 2), 'vcc')
        st.v_cmp_eq_u32('vcc', 3, v(vCC)); st.v_cndmask_b32(v(q_), v(q_), v(G + 3), 'vcc')
        st.v_cmp_eq_u32('vcc', v(vR4), v(vG)); st.v_cndmask_b32(v(q_), 0, v(q_), 'vcc')
        allreduce_groups(st, q_, u_, 'v_add_f32')
        st.v_mul_f32(v(q_), s(sINV640), v(q_))
        st.v_fma_f32(v(q_), '-' + v(m_), v(m_), v(q_))
        st.v_max_f32(v(q_), 0, v(q_))
        st.v_add_f32(v(q_), s(sEPS), v(q_))
        st.v_rsq_f32(v(vST + 2 * tt + 1), v(q_))

vVA, vK1A, vFA, vKA, vKB, vPS = vEA, vEA + 1, vEA + 2, vEA + 3, vEA + 4, vEA + 6
def epi_addrs(st):
    b0, b1, b2, b3, b4, b5 = sT + 2, sT + 3, sT + 4, sT + 5, sT + 6, sT + 7
    st.s_mul_i32(s(b0), s(sW), 9216)
    st.s_add_u32(s(b0), s(b0), L_FV)
    st.v_mul_u32_u24(v(t0), 288, v(vJ))
    st.v_add_u32(v(t0), s(b0), v(t0))
    st.v_lshl_add_u32(v(vVA), v(vG), 3, v(t0))
    st.v_and_b32(v(t1), 1, v(vG)); st.v_mul_u32_u24(v(t1), 48, v(t1))
    st.v_lshrrev_b32(v(t2), 1, v(vG)); st.v_lshlrev_b32(v(t2), 3, v(t2))
    st.v_sub_u32(v(t1), v(t1), v(t2))
    st.v_add_u32(v(vK1A), v(t0), v(t1))
    st.v_lshrrev_b32(v(t1), 1, v(vG)); st.v_mul_u32_u24(v(t1), 16 * 288, v(t1))
    st.v_and_b32(v(t2), 1, v(vG)); st.v_mul_u32_u24(v(t2), 80, v(t2))
    st.v_add3_u32(v(vFA), v(t0), v(t1), v(t2))
    st.s_lshr_b32(s(b0), s(sW), 1)
    st.s_and_b32(s(b1), s(sW), 1)
    st.v_lshl_add_u32(v(t0), v(vG), 2, v(vR4))
    st.v_mul_u32_u24(v(t0), 288, v(t0))
    st.s_mul_i32(s(b2), s(b0), 80); st.s_add_u32(s(b2), s(b2), L_FV)
    st.v_lshl_add_u32(v(vKA), v(vCC), 3, v(t0))
    st.v_add_u32(v(vKA), s(b2), v(vKA))
    st.s_mul_i32(s(b2), s(b0), 48); st.s_lshl_b32(s(b3), s(b1), 5)
    st.s_add_u32(s(b2), s(b2), s(b3)); st.s_add_u32(s(b2), s(b2), L_FV + 160)
    st.s_mul_i32(s(b3), s(b1), -2); st.s_add_u32(s(b3), s(b3), 3)
    st.v_min_u32(v(t1), s(b3), v(vCC))
    st.v_lshl_add_u32(v(vKB), v(t1), 3, v(t0))
    st.v_add_u32(v(vKB), s(b2), v(vKB))
    st.s_mul_i32(s(b2), s(b1), -176); st.s_add_u32(s(b2), s(b2), 256)
    st.s_mul_i32(s(b3), s(b1), -11); st.s_add_u32(s(b3), s(b3), 16)
    st.s_mul_i32(s(b4), s(b1), 1280)
    st.s_mul_i32(s(b5), s(b0), 1792)
    st.s_add_u32(s(b4), s(b4), s(b5))
    st.v_mul_u32_u24(v(t0), s(b2), v(vG))
    st.v_lshlrev_b32(v(t1), 4, v(vJ))
    st.v_add3_u32(v(vPS), v(t0), v(t1), s(b4))
    st.s_lshl_b32(s(b2), s(b2), 2); st.s_add_u32(s(b4), s(b4), s(b2))
    st.v_lshl_add_u32(v(t0), v(vG), 3, v(t1))
    st.v_add_u32(v(vPS + 1), s(b4), v(t0))
    st.v_mov_b32(v(t2), OOB)
    st.v_cmp_gt_u32('vcc', s(b3), v(vJ))
    st.v_cndmask_b32(v(vPS), v(t2), v(vPS), 'vcc')
    st.v_cndmask_b32(v(vPS + 1), v(t2), v(vPS + 1), 'vcc')
    st.v_cmp_gt_u32('vcc', 2, v(vG))
    st.v_cndmask_b32(v(vPS + 1), v(t2), v(vPS + 1), 'vcc')

vPD = 124
PA = list(range(vE + 36, vE + 50))
def prep_addrs3(pr):
    pr.v_and_b32(v(t0), 1, v(vCC)); pr.v_lshlrev_b32(v(t0), 13, v(t0))
    pr.v_lshrrev_b32(v(t1), 1, v(vCC)); pr.v_lshl_add_u32(v(t0), v(t1), 3, v(t0))
    pr.s_mul_i32(s(sT), s(sW), 48); pr.s_add_u32(s(sT), s(sT), L_PG)
    pr.v_add_u32(v(t0), s(sT), v(t0))
    pr.v_lshrrev_b32(v(t1), 1, v(vG)); pr.v_mul_u32_u24(v(t1), 20, v(t1))
    pr.v_and_b32(v(t2), 1, v(vG)); pr.v_lshl_add_u32(v(t1), v(t2), 3, v(t1))
    pr.v_add_u32(v(t1), v(t1), v(vR4))
    pr.v_mul_u32_u24(v(t1), 192, v(t1))
    pr.v_add_u32(v(PA[0]), v(t0), v(t1))
    pr.v_mul_u32_u24(v(t1), 192, v(vR4))
    pr.v_min_u32(v(t2), 2, v(vG))
    pr.v_lshl_add_u32(v(t1), v(t2), 4, v(t1))
    pr.v_add_u32(v(PA[1]), v(t0), v(t1))
    pr.v_lshrrev_b32(v(t0), 1, v(vR4)); pr.v_lshlrev_b32(v(t0), 3, v(t0))
    pr.v_lshrrev_b32(v(t1), 1, v(vCC)); pr.v_lshl_add_u32(v(t0), v(t1), 2, v(t0))
    pr.v_and_b32(v(t1), 1, v(vR4)); pr.v_lshl_add_u32(v(t0), v(t1), 1, v(t0))
    pr.v_and_b32(v(t1), 1, v(vCC)); pr.v_add_u32(v(t0), v(t0), v(t1))
    pr.v_lshlrev_b32(v(t0), 4, v(t0))
    pr.v_lshl_add_u32(v(PA[2]), v(vG), 8, v(t0))
    pr.v_mul_u32_u24(v(t1), 20480, v(vG))
    pr.v_add_u32(v(t1), v(t1), v(t0))
    pr.v_mov_b32(v(t2), OOB)
    pr.v_cmp_gt_u32('vcc', 3, v(vG))
    pr.v_cndmask_b32(v(PA[3]), v(t2), v(t1), 'vcc')
def piece_addrs(pr, which, e, base):
    y0, y1, y2, y3 = PA[base], PA[base + 1], PA[base + 2], PA[13]
    if which == 4:
        pr.s_lshl_b32(s(sT), s(sW), 3); pr.s_add_u32(s(sT), s(sT), 4 * e); lim = 30
    else:
        pr.s_lshl_b32(s(sT), s(sW), 2); pr.s_lshl_b32(s(sT + 1), s(sP), 4); pr.s_add_u32(s(sT), s(sT), s(sT + 1)); lim = 25
    pr.v_add_u32(v(t0), s(sT), v(vG))
    pr.v_cmp_gt_u32('vcc', lim, v(t0))
    pr.v_min_u32(v(t0), lim - 1, v(t0))
    div_small(pr, t1, t0, 5)
    pr.v_mul_u32_u24(v(t2), 5, v(t1)); pr.v_sub_u32(v(t2), v(t0), v(t2))
    pr.v_mul_u32_u24(v(y2), 40, v(vCC)); pr.v_lshl_add_u32(v(y2), v(t2), 3, v(y2))
    if which == 4:
        div_small(pr, y0, t1, 3)
        pr.v_mul_u32_u24(v(y1), 3, v(y0)); pr.v_sub_u32(v(y1), v(t1), v(y1))
        pr.v_mul_u32_u24(v(y0), 24, v(y0))
        pr.v_and_b32(v(y3), 1, v(vR4)); pr.v_add_u32(v(y0), v(y0), v(y3))
        pr.v_lshrrev_b32(v(y3), 1, v(vR4))
        pr.v_lshlrev_b32(v(y3), 2, v(y3))
        pr.v_cmp_eq_u32(s(sT + 2, 2), 2, v(y1))
        pr.v_lshlrev_b32(v(y1), 1, v(y1))
        pr.v_cndmask_b32(v(y1), v(y1), -8, s(sT + 2, 2))
        pr.v_add3_u32(v(y0), v(y0), v(y1), 12)
        pr.v_cndmask_b32(v(y1), 4, -2, s(sT + 2, 2))
        pr.v_add3_u32(v(y1), v(y1), v(y0), v(y3))
        pr.v_sub_u32(v(y0), v(y0), v(y3))
        L_ = L_P4
    else:
        pr.v_lshrrev_b32(v(y0), 1, v(t1)); pr.v_mul_u32_u24(v(y0), 20, v(y0))
        pr.v_and_b32(v(y1), 1, v(t1)); pr.v_lshl_add_u32(v(y0), v(y1), 3, v(y0))
        pr.v_cmp_eq_u32(s(sT + 2, 2), 4, v(t1))
        pr.v_cndmask_b32(v(y0), v(y0), 16, s(sT + 2, 2))
        pr.v_cndmask_b32(v(y1), 4, 20, s(sT + 2, 2))
        pr.v_add_u32(v(y0), v(y0), v(vR4))
        pr.v_add_u32(v(y1), v(y1), v(y0))
        L_ = L_P2
    pr.v_add_u32(v(y2), L_, v(y2))
    pr.s_movk_i32(s(sT + 4), 160)
    pr.v_mad_u32_u24(v(y0), v(y0), s(sT + 4), v(y2))
    pr.v_mad_u32_u24(v(y1), v(y1), s(sT + 4), v(y2))
    if which == 4:
        pr.s_lshl_b32(s(sT), s(sR), 1); pr.s_add_u32(s(sT), s(sT), s(sP)); pr.s_mul_i32(s(sT), s(sT), 6)
    else:
        pr.s_mul_i32(s(sT), s(sR), 5)
    pr.v_add_u32(v(t1), s(sT), v(t1))
    pr.v_lshrrev_b32(v(y2), 2, v(t1)); pr.v_mul_u32_u24(v(y2), 5120, v(y2))
    pr.v_and_b32(v(t1), 3, v(t1)); pr.v_lshl_add_u32(v(y2), v(t1), 8, v(y2))
    pr.v_lshl_add_u32(v(y2), v(t2), 10, v(y2))
    pr.v_lshl_add_u32(v(y2), v(vJ), 4, v(y2))
    pr.v_mov_b32(v(t0), OOB)
    pr.v_cndmask_b32(v(y2), v(t0), v(y2), 'vcc')
def prep_reads(pr, part, D):
    if part == 0:
        for t in range(3):
            for i in range(2): pr.ds_read_b64_tr_b16(v(D + 4 * t + 2 * i, 2), v(PA[0]), mods='offset:%d' % (768 * i + 16 * t))
        for i in range(2): pr.ds_read_b64_tr_b16(v(D + 12 + 2 * i, 2), v(PA[1]), mods='offset:%d' % (16 * 192 + 3840 * i))
    elif part == 2:
        for i in range(2): pr.ds_read_b64_tr_b16(v(D + 2 * i, 2), v(PA[10 + i]))
    else:
        for p in range(2):
            for i in range(2): pr.ds_read_b64_tr_b16(v(D + 4 * p + 2 * i, 2), v(PA[4 + 3 * p + i]))
def prep_stores(pr, part, D):
    b0, b1 = sE, sF
    if part == 0:
        pr.s_mul_i32(s(b0), s(sC), 245760); pr.s_mul_i32(s(b1), s(sW), 61440); pr.s_add_u32(s(b0), s(b0), s(b1))
        pr.s_mul_i32(s(b1), s(sR), 1280); pr.s_add_u32(s(b0), s(b0), s(b1)); pr.s_add_u32(s(b0), s(b0), WS_W3)
        pr.buffer_store_dwordx4(v(D + 12, 4), v(PA[3]), srd(S_WS), s(b0), mods='offen offset:1024 sc1')
        for t in range(3):
            if t: pr.s_add_u32(s(b0), s(b0), 20480)
            pr.buffer_store_dwordx4(v(D + 4 * t, 4), v(PA[2]), srd(S_WS), s(b0), mods='offen sc1', tag='prepstW3')
    elif part == 2:
        pr.s_mul_i32(s(b1), s(sM), 102400); pr.s_add_u32(s(b1), s(b1), WS_W2)
        pr.buffer_store_dwordx4(v(D, 4), v(PA[12]), srd(S_WS), s(b1), mods='offen sc1', tag='prepstW2')
    else:
        pr.s_mul_i32(s(b1), s(sM), 245760); pr.s_add_u32(s(b1), s(b1), WS_W4)
        for p in range(2): pr.buffer_store_dwordx4(v(D + 4 * p, 4), v(PA[6 + 3 * p]), srd(S_WS), s(b1), mods='offen sc1', tag='prepst2')


def flag_issue(st, dst, voff, ssoff):
    st.buffer_load_dwordx2(v(dst, 2), v(voff), srd(S_WS), s(ssoff), mods='offen sc1')
def flag_check(st, dst, voff, ssoff):
    q = npoll[0]; npoll[0] += 1
    t = '''v_cmp_ne_u64 vcc, s[{n0}:{n1}], v[{t}:{t1}]
    s_cbranch_vccz L_pd{n}
    s_mov_b32 s{c}, {lim}
L_pl{n}:
    buffer_load_dwordx2 v[{t}:{t1}], v{vo}, s[{ws}:{ws3}], s{so} offen sc1
    s_waitcnt vmcnt(0)
    v_cmp_ne_u64 vcc, s[{n0}:{n1}], v[{t}:{t1}]
    s_cbranch_vccz L_pd{n}
    s_sub_u32 s{c}, s{c}, 1
    s_cbranch_scc0 L_pl{n}
L_pd{n}:'''.format(n=q, c=sCNT, lim=OPT['spin'], t=dst, t1=dst + 1, vo=voff, ws=S_WS, ws3=S_WS + 3, so=ssoff, n0=sN, n1=sN + 1)
    st.raw(t, uses=[v(voff), v(dst, 2)], defs=[v(dst, 2)])
sL2E, sINV640, sEPS, sK1, sK3, sEPS6 = sK, sK + 1, sK + 2, sK + 3, sK + 4, sK + 5
vSX = vACC
def stats_load(st):
    st.s_lshl_b32(s(sV + 9), s(sR), 7); st.s_lshl_b32(s(sV + 10), s(sC), 3); st.s_add_u32(s(sV + 9), s(sV + 9), s(sV + 10))
    st.s_lshl_b32(s(sV + 10), s(sW), 1); st.s_add_u32(s(sSTK), s(sV + 9), s(sV + 10))
    st.s_mul_i32(s(sV + 9), s(sSTK), 1280)
    st.v_mov_b32(v(vSX + 20), OOB)
    st.v_cmp_gt_u32(s(sV + 7, 2), 32, v(vLANE))
    st.v_cndmask_b32(v(vSX + 20), v(vSX + 20), v(vL16), s(sV + 7, 2))
    for e in range(3): st.buffer_load_dwordx4(v(vSX + 4 * e, 4), v(vL16 if e < 2 else vSX + 20), srd(S_X), s(sV + 9), mods='offen offset:%d' % (e * 1024))
def stats_compute(st):
    A = vSX + 12
    for i in range(6): st.v_mov_b32(v(A + i), 0)
    for i in range(4):
        for e in range(3):
            st.v_dot2_f32_bf16(v(A + 2 * e), v(vSX + 4 * e + i), s(sONES), v(A + 2 * e))
            st.v_dot2_f32_bf16(v(A + 2 * e + 1), v(vSX + 4 * e + i), v(vSX + 4 * e + i), v(A + 2 * e + 1))
    st.v_cmp_eq_u32('vcc', 0, v(vG))
    for i in range(2):
        st.v_cndmask_b32(v(A + 6 + i), 0, v(A + 2 + i), 'vcc')
        st.v_cndmask_b32(v(A + 2 + i), v(A + 2 + i), 0, 'vcc')
    for i in range(2):
        st.v_add_f32(v(A + i), v(A + i), v(A + 6 + i))
        st.v_add_f32(v(A + 4 + i), v(A + 4 + i), v(A + 2 + i))
    for i in range(2): st.v_permlane32_swap_b32(v(A + i), v(A + 4 + i))
    for i in range(2): st.v_add_f32(v(A + i), v(A + i), v(A + 4 + i))
    for i in range(2): st.v_mov_b32(v(A + 2 + i), v(A + i))
    for i in range(2): st.v_permlane16_swap_b32(v(A + i), v(A + 2 + i))
    for i in range(2): st.v_add_f32(v(A + i), v(A + i), v(A + 2 + i))
    for sh in (8, 4, 2, 1):
        for i in range(2): st.v_add_f32_dpp(v(A + i), v(A + i), v(A + i), mods='row_ror:%d row_mask:0xf bank_mask:0xf' % sh)
    st.v_mul_f32(v(A), s(sINV640), v(A))
    st.v_mul_f32(v(A + 1), s(sINV640), v(A + 1))
    st.v_fma_f32(v(A + 1), '-' + v(A), v(A), v(A + 1))
    st.v_max_f32(v(A + 1), 0, v(A + 1))
    st.v_add_f32(v(A + 1), s(sEPS), v(A + 1))
    st.v_sub_f32(v(A), 0, v(A))
    st.v_rsq_f32(v(A + 2), v(A + 1))
    st.v_mov_b32(v(A + 1), s(sN)); st.v_mov_b32(v(A + 3), s(sTG))
    st.v_lshrrev_b32(v(vSX + 20), 1, v(vLANE))
    st.v_and_b32(v(vSX + 21), 31, v(vLANE))
    st.v_mov_b32(v(vSX + 22), OOB)
    st.v_cmp_eq_u32('vcc', 0, v(vSX + 21))
    st.s_lshl_b32(s(sV + 9), s(sSTK), 4); st.s_add_u32(s(sV + 9), s(sV + 9), WS_XST)
    st.v_cndmask_b32(v(vSX + 20), v(vSX + 22), v(vSX + 20), 'vcc')
    st.buffer_store_dwordx4(v(A, 4), v(vSX + 20), srd(S_WS), s(sV + 9), mods='offen sc1', tag='xst')
sSTK = sXO + 2; sTG = sXO + 6
vOAd = 44; vPOI = 48; sOS = sXO + 7
def o_addrs(st):
    if OPT['tagB']:
        for i in range(4): st.v_mov_b32(v(vPOI + i), -1)
    st.v_lshrrev_b32(v(vOAd), 1, v(vG)); st.v_mul_u32_u24(v(vOAd), 20480, v(vOAd))
    st.v_lshl_add_u32(v(vOAd), v(vJ), 4, v(vOAd))
    st.v_and_b32(v(vOAd + 2), 1, v(vG))
    st.v_lshl_add_u32(v(vOAd + 1), v(vOAd + 2), 3, v(vOAd))
    st.s_mul_i32(s(sOS), s(sR), 163840); st.s_mul_i32(s(sT + 6), s(sW), 40960); st.s_add_u32(s(sOS), s(sOS), s(sT + 6))
    st.s_mul_i32(s(sT + 6), s(sCQ), 1280); st.s_add_u32(s(sOS), s(sOS), s(sT + 6)); st.s_add_u32(s(sOS), s(sOS), WS_O)
    st.v_lshl_add_u32(v(vOAd), v(vOAd + 2), 9, v(vOAd))
def o_store(st, A, B, C, tag):
    st.buffer_store_dwordx4(v(A, 4), v(vOAd), srd(S_WS), s(sOS), mods='offen sc1')
    st.buffer_store_dwordx4(v(B, 4), v(vOAd), srd(S_WS), s(sOS), mods='offen offset:256 sc1')
    st.buffer_store_dwordx2(v(C, 2), v(vOAd + 1), srd(S_WS), s(sOS), mods='offen offset:1024 sc1', tag=tag)
def cs3_partial(fc, D, vCA, vCD):
    for t in range(4):
        fc.v_cmp_eq_u32(s(sT + 4, 2), t if t < 3 else v(vG), v(vR4))
        for i in range(4): fc.v_cndmask_b32(v(vCA + i), 0, v(vONE), s(sT + 4, 2))
        mfma(fc, v(vCD, 4), v(vCA, 4), v(D + 4 * t, 4), t == 0)
    fc.v_lshlrev_b32(v(t0), 8, v(vG)); fc.v_mul_u32_u24(v(t0), 3, v(t0)); fc.v_add_u32(v(t0), v(t0), v(PA[2]))
    fc.v_mov_b32(v(t1), OOB)
    fc.v_cmp_gt_u32(s(sT + 4, 2), 3, v(vG))
    fc.s_mul_i32(s(sE), s(sC), 12288); fc.s_mul_i32(s(sF), s(sW), 3072); fc.s_add_u32(s(sE), s(sE), s(sF))
    fc.v_cndmask_b32(v(t0), v(t1), v(t0), s(sT + 4, 2))
    fc.s_lshr_b32(s(sF), s(sR), 2); fc.s_lshl_b32(s(sF), s(sF), 8); fc.s_add_u32(s(sE), s(sE), s(sF))
    fc.v_cvt_pk_bf16_f32(v(vCD + 1), v(vCD), v(vCD))
    fc.s_and_b32(s(sF), s(sR), 3); fc.s_lshl_b32(s(sF), s(sF), 2); fc.s_add_u32(s(sE), s(sE), s(sF))
    fc.v_lshlrev_b32(v(vCD + 1), 16, v(vCD + 1))
    fc.v_sub_f32(v(vCD + 1), v(vCD), v(vCD + 1))
    fc.v_cvt_pk_bf16_f32(v(vCD + 1), v(vCD), v(vCD + 1))
    fc.s_add_u32(s(sE), s(sE), WS_CS3)
    fc.buffer_store_dword(v(vCD + 1), v(t0), srd(S_WS), s(sE), mods='offen sc1', tag='prepst3')
def x_read(st, sg):
    for tt in range(2):
        for n in range(4):
            off = XSLOT[sg] + tt * 4096
            ad = vXRd + n
            if off > 65535: st.v_add_u32(v(vE + n), 65536, v(ad)); ad = vE + n; off -= 65536
            st.ds_read_b128(a(32 * sg + 16 * tt + 4 * n, 4), v(ad), mods='offset:%d' % off, tag='xr%d' % sg)
if OPT['tlb']:
    k.v_lshlrev_b32(v(t0), OPT['tlb'], v(vLANE))
    k.v_mov_b32(v(t1), OOB)
    k.v_cmp_gt_u32('vcc', min(64, (30 << 20) >> OPT['tlb']), v(vLANE))
    k.v_cndmask_b32(v(t0), v(t1), v(t0), 'vcc')
    for i, S_ in enumerate((S_WS, S_WG, S_WU, S_WD, S_WO, S_OUT)):
        k.buffer_load_dword(v(vAF + 24 + i), v(t0), srd(S_), 0, mods='offen nt')
prep_offsets(k)
stamp(k, 'pre')
if OPT['x0e']: issue_x(k, 0, (0,) if OPT['x0e'] >= 3 else (0, 1))
if OPT['w2e'] == 2: issue_prep(k, 2)
k.waitvm('W1S')
k.waitlds()
k.s_add_u32(s(sN), s(sN), 1); k.s_addc_u32(s(sN + 1), s(sN + 1), 0)
k.v_mov_b32(v(vNON), s(sN)); k.v_mov_b32(v(vNON + 1), s(sN + 1))
k.s_mul_i32(s(sTG), s(sN), 0x9E3779B1); k.s_add_u32(s(sTG), s(sTG), s(sN + 1))
k.s_barrier()
stamp(k, 'w1s')
vW1V = vAF + 8
for p in range(3):
    for i in range(2): k.ds_read_b64_tr_b16(v(vW1V + 4 * p + 2 * i, 2), v(vW1A + p), mods='offset:%d' % (960 * i))
k.buffer_store_dwordx4(v(vW1V, 4), v(vW1O), srd(S_WS), s(bE), mods='offen sc1')
k.buffer_store_dwordx4(v(vW1V + 4, 4), v(vW1O + 1), srd(S_WS), s(bO), mods='offen sc1')
k.buffer_store_dwordx4(v(vW1V + 8, 4), v(vW1O + 2), srd(S_WS), 0, mods='offen sc1')
cE, cO, c2 = vAF + 20, vAF + 21, vAF + 22
for p, d in enumerate((cE, cO, c2)): k.v_mov_b32(v(d), 0)
for i in range(4):
    for p, d in enumerate((cE, cO, c2)): k.v_dot2_f32_bf16(v(d), v(vW1V + 4 * p + i), s(sONES), v(d))
k.v_cmp_eq_u32('vcc', 0, v(vG)); k.v_cmp_eq_u32(s(sT, 2), 1, v(vG))
k.v_cndmask_b32(v(t0), 0, v(c2), 'vcc'); k.v_cndmask_b32(v(t1), 0, v(c2), s(sT, 2))
k.v_add_f32(v(cE), v(cE), v(t0)); k.v_add_f32(v(cO), v(cO), v(t1))
k.v_permlane32_swap_b32(v(cE), v(cO))
k.v_add_f32(v(cE), v(cE), v(cO))
k.v_mov_b32(v(cO), v(cE))
k.v_permlane16_swap_b32(v(cE), v(cO))
k.v_add_f32(v(cE), v(cE), v(cO))
k.v_cvt_pk_bf16_f32(v(cO), v(cE), v(cE))
k.v_lshlrev_b32(v(cO), 16, v(cO))
k.v_sub_f32(v(cO), v(cE), v(cO))
k.v_cvt_pk_bf16_f32(v(cO), v(cE), v(cO))
k.buffer_store_dword(v(cO), v(vW1O + 3), srd(S_WS), s(sD), mods='offen sc1', tag='w1st')
stamp(k, 'w1st')
wphi_scatter(k, vWP)
u = Stream()
for i in range(4): u.v_mov_b32(v(vONE + i), 0x3f803f80)
u.v_lshlrev_b32(v(vFR), 7, v(vJ))
u.v_lshlrev_b32(v(vFC), 11, v(vJ))
u.v_mul_u32_u24(v(vXRO), 1280, v(vJ))
u.v_mul_u32_u24(v(t0), 40, v(vG))
u.v_add_u32(v(vXRO), v(vXRO), v(t0))
u.s_add_u32(s(sT), s(sXO + 1), L_XST)
u.v_xor_b32(v(t0), v(vJ), v(vG))
u.v_lshlrev_b32(v(t0), 4, v(t0))
u.v_lshl_add_u32(v(t2), v(vJ), 8, v(t0))
for n in range(4):
    u.v_xor_b32(v(vXRd + n), 64 * n, v(t2))
    u.v_add_u32(v(vXRd + n), s(sT), v(vXRd + n))
u.v_add_u32(v(vL16b), 4096, v(vL16))
u.v_add_u32(v(vKV2), 61440, v(vL16))
u.v_add_u32(v(vKV2 + 1), L_Q, v(vL16))
sL2E, sINV640, sEPS, sK1, sK3, sEPS6 = sK, sK + 1, sK + 2, sK + 3, sK + 4, sK + 5
sL2Ep = 10
u.s_mov_b32(s(sL2E), f32(LOG2E)); u.s_mov_b32(s(sINV640), f32(1.0 / 640)); u.s_mov_b32(s(sEPS), f32(1e-5))
GK1 = -2.0 * math.sqrt(2.0 / math.pi) * LOG2E
u.s_mov_b32(s(sK1), f32(GK1)); u.s_mov_b32(s(sK3), f32(GK1 * 0.044715)); u.s_mov_b32(s(sEPS6), f32(1e-6))
u.s_mov_b32(s(sL2Ep), f32(LOG2E)); u.s_mov_b32(s(sL2Ep + 1), f32(-LOG2E))
f_ = Stream()
if OPT['e3'] and OPT['e3o'] == 0: issue_prep(f_, 0); issue_prep(f_, 1)
elif OPT['x0e'] == 3: issue_x(f_, 0, (1,))
elif OPT['x0e'] == 4: issue_x(f_, 0, (1,)); issue_x(f_, 1, (0,))
elif OPT['x0e'] != 2: issue_x(f_, 1 if OPT['x0e'] else 0)
k.add(weave(u, [(f_, 0, None, 'vmem')], anchor='any'))
stamp(k, 'w1w')
k.waitvm('w1st')
stamp(k, 'w1d')
k.waitlds()
k.s_barrier()
post(k, F_W1)
stamp(k, 'w1post')
if OPT['e3']:
    wphi_read(k); k.waitlds(); k.s_barrier()

u = Stream()
o_addrs(u)
prep_addrs3(u); piece_addrs(u, 2, 0, 10); piece_addrs(u, 4, 0, 4); piece_addrs(u, 4, 1, 7); epi_addrs(u)
f_ = Stream()
if OPT['w2e'] == 1: issue_prep(f_, 2)
if OPT['e3'] and OPT['e3o'] == 0: issue_x(f_, 1)
if OPT['e3'] and OPT['e3o'] == 1: issue_prep(f_, 0); issue_prep(f_, 1)
if OPT['x0e'] == 4: issue_x(f_, 1, (1,))
elif OPT['x0e'] != 1: issue_x(f_, 1)
issue_x(f_, 2); stats_load(f_)
if OPT['w2e'] == 3: issue_prep(f_, 2)
if OPT['x3e']: issue_x(f_, 3)
k.add(weave(u, [(f_, 0, None, 'vmem')], anchor='any'))
stamp(k, 'prepiss')
sKV, sKVt, sQs, sQt, sFW = sV, sV + 1, sV + 2, sV + 3, sV + 8
k.s_mul_i32(s(sB), s(sW), 5120); k.s_mul_i32(s(sA), s(sW), 3072)
k.s_mul_i32(s(sKV), s(sC), 102400); k.s_add_u32(s(sKV), s(sKV), s(sB)); k.s_add_u32(s(sKV), s(sKV), WS_W1K)
k.s_mul_i32(s(sQs), s(sC), 61440); k.s_add_u32(s(sQs), s(sQs), s(sA)); k.s_add_u32(s(sQs), s(sQs), WS_W1Q)
k.s_lshl_b32(s(sD), s(sC), 13); k.s_lshl_b32(s(sCc), s(sW), 11); k.s_add_u32(s(sD), s(sD), s(sCc)); k.s_add_u32(s(sD), s(sD), WS_CS)
k.s_lshl_b32(s(sFW), s(sC), 7); k.s_add_u32(s(sFW), s(sFW), WS_FLAGS + F_W1 * 32768)
vF0 = 18
gKV, gQ, gW2, gW3 = 32, 34, 60, 62
def issue_kv(st, sg, lo=0, hi=5):
    if lo == 0:
        chunk(st, sg, sKVt, sT + 7)
        st.s_mul_i32(s(sKVt), s(sKVt), 20480); st.s_add_u32(s(sKVt), s(sKVt), s(sKV)); gbase(st, gKV, sKVt)
    for n in range(lo, hi):
        if n % 4 == 0 or n == lo: st.s_add_u32('m0', s(sB), KVPOS[sg] + (n & 4) * 1024)
        st.global_load_lds_dwordx4(v(vL16 if n < 4 else vL16b), s(gKV, 2), mods='offset:%d sc1' % ((n & 3) * 1024), tag='W%d' % sg)
def issue_q(st, lo, hi):
    for ch in range(lo, hi):
        chunk(st, ch, sQt, sT + 7)
        st.s_mul_i32(s(sQt), s(sQt), 12288); st.s_add_u32(s(sQt), s(sQt), s(sQs)); gbase(st, gQ, sQt)
        st.s_add_u32('m0', s(sA), L_Q + ch * 12288)
        for n in range(3):
            st.global_load_lds_dwordx4(v(vL16), s(gQ, 2), mods='offset:%d sc1' % (n * 1024), tag='Q%d' % ch)
flag_issue(k, vF0, vFC, sFW)
if OPT['tagB'] == 3: o_store(k, vPOI, vPOI, vPOI, 'poiO')
for sg in range(3): k.waitvm('x%d' % sg); x_read(k, sg)
k.waitlds(); k.s_barrier()
stamp(k, 'w1a'); flag_check(k, vF0, vFC, sFW); stamp(k, 'w1b')
issue_kv(k, 0)
issue_kv(k, 1)
stats_compute(k)
if not OPT['e3']: wphi_read(k)
else: prep_reads(k, 0, vE + 4); cs3_partial(k, vE + 4, vE + 28, vE + 52)
if OPT['tagB'] == 1: o_store(k, vPOI, vPOI, vPOI, 'poiO')
issue_x(k, 4 if OPT['x3e'] else 3)
if OPT['tagB'] == 2: o_store(k, vPOI, vPOI, vPOI, 'poiO')
k.waitvm('W0')
k.s_barrier()
stamp(k, 'kvgo')

vF1, vF2, vFA1, vF3, vPLO, vT16, vKR = 18, 20, 22, 24, 30, 31, 32
sW2s, sW2l, sW2t, sW3, sW3t, sPL, sFP, sFK = sV + 4, sV + 5, sV + 6, sV + 7, sXO + 3, sXO + 4, sV + 9, sV + 10
def q_setup(st):
    st.v_bfe_u32(v(vFA1), v(vLANE), 4, 1)
    st.v_lshl_add_u32(v(vFA1), v(vFA1), 10 if OPT['par'] else 7, v(vFC))
    st.s_lshl_b32(s(sFP), s(sM), 7 if OPT['par'] else 8); st.s_add_u32(s(sFP), s(sFP), WS_FLAGS + F_PREP * 32768)
    st.s_lshl_b32(s(sFK), s(sCQ), 7); st.s_add_u32(s(sFK), s(sFK), WS_FLAGS + F_KV * 32768)
    st.v_and_b32(v(vKR), 1, v(vG)); st.v_mul_u32_u24(v(vKR), 1856, v(vKR))
    st.s_lshl_b32(s(sW2l), s(sW), 12)
    st.s_mul_i32(s(sW2s), s(sM), 102400); st.s_add_u32(s(sW2s), s(sW2s), WS_W2)
    st.v_lshl_add_u32(v(vKR), v(vCC), 4, v(vKR))
    st.s_mul_i32(s(sW3), s(sC), 245760); st.s_mul_i32(s(sW3t), s(sW), 61440); st.s_add_u32(s(sW3), s(sW3), s(sW3t))
    st.v_mov_b32(v(t1), L_ZERO - L_KVR)
    st.s_add_u32(s(sW3), s(sW3), WS_W3)
    st.v_cmp_eq_u32('vcc', v(vR4), v(vG))
    st.s_mul_i32(s(sPL), s(sCQ), 16 * 3584); st.s_add_u32(s(sPL), s(sPL), WS_PART)
    st.v_lshlrev_b32(v(vT16), 4, v(vTID))
    st.v_cndmask_b32(v(vKR), v(t1), v(vKR), 'vcc')
    st.v_mov_b32(v(t1), OOB)
    st.v_cmp_gt_u32('vcc', 224, v(vTID))
    st.v_add_u32(v(vKR), L_KVR, v(vKR))
    st.v_cndmask_b32(v(vPLO), v(t1), v(vT16), 'vcc')
    st.v_cmp_lt_u32('vcc', 111, v(vTID))
    st.v_add_u32(v(vT16), L_KVR, v(vT16))
    st.v_add_u32(v(t1), 64, v(vT16))
    st.v_cndmask_b32(v(vT16), v(vT16), v(t1), 'vcc')
W2ORD = list(range(8)) + list(range(16, 25)) + list(range(8, 16))
def issue_w2(st, lo, hi):
    last = None
    for i in W2ORD[lo:hi]:
        if (i >> 2) != last:
            last = i >> 2
            if i < 24: st.s_add_u32(s(sW2t), s(sW2l), last * 16384)
            else: st.s_lshl_b32(s(sW2t), s(sW), 10); st.s_add_u32(s(sW2t), s(sW2t), 98304)
            st.s_add_u32('m0', s(sW2t), L_W2)
            st.s_add_u32(s(sW2t), s(sW2t), s(sW2s)); gbase(st, gW2, sW2t)
        st.global_load_lds_dwordx4(v(vL16), s(gW2, 2), mods='offset:%d sc1' % ((i & 3) * 1024), tag='W2')
def issue_w3(st, lst):
    last = None
    for i in lst:
        if (i >> 2) != last:
            last = i >> 2; gbase(st, gW3, sW3, last * 4096)
        st.global_load_dwordx4(a(4 * i, 4), v(vL16), s(gW3, 2), mods='offset:%d sc1' % ((i & 3) * 1024))
vSL = vGR; vSA = vGR + 8
def stats_check(st):
    t = '''s_mov_b32 s{c}, {lim}
L_sc:
    v_cmp_ne_u32 vcc, s{n}, v{a1}
    v_cmp_ne_u32 s[{p}:{p1}], s{n}, v{b1}
    s_or_b64 vcc, vcc, s[{p}:{p1}]
    v_cmp_ne_u32 s[{p}:{p1}], s{g}, v{a3}
    s_or_b64 vcc, vcc, s[{p}:{p1}]
    v_cmp_ne_u32 s[{p}:{p1}], s{g}, v{b3}
    s_or_b64 vcc, vcc, s[{p}:{p1}]
    s_cbranch_scc0 L_sd
    buffer_load_dwordx4 v[{a0}:{a3}], v{ad}, s[{ws}:{ws3}], s{so} offen sc1
    buffer_load_dwordx4 v[{b0}:{b3}], v{ad}, s[{ws}:{ws3}], s{so} offen offset:256 sc1
    s_waitcnt vmcnt(0)
    s_sub_u32 s{c}, s{c}, 1
    s_cbranch_scc0 L_sc
L_sd:'''.format(c=sCNT, lim=OPT['spin'], n=sN, g=sTG, p=sT + 4, p1=sT + 5, a0=vSL, a1=vSL + 1, a3=vSL + 3, b0=vSL + 4, b1=vSL + 5, b3=vSL + 7,
               ad=vSA, ws=S_WS, ws3=S_WS + 3, so=sV + 8)
    st.raw(t, uses=[v(vSL, 8), v(vSA)], defs=[v(vSL, 8)])
    for tt in range(2):
        st.v_mov_b32(v(vST + 2 * tt), v(vSL + 4 * tt)); st.v_mov_b32(v(vST + 2 * tt + 1), v(vSL + 4 * tt + 2))
def sent_issue(st, dst, voff, ssoff):
    st.buffer_load_dwordx4(v(dst, 4), v(voff), srd(S_WS), s(ssoff), mods='offen sc1')
def sent_check(st, dst, voff, ssoff):
    q = npoll[0]; npoll[0] += 1
    t = '''s_mov_b32 s{c}, {lim}
L_pl{n}:
    v_max_u32 v{t}, v{t}, v{t2}
    v_cmp_eq_u32 vcc, -1, v{t}
    s_cbranch_vccz L_pd{n}
    buffer_load_dwordx4 v[{t}:{t3}], v{vo}, s[{ws}:{ws3}], s{so} offen sc1
    s_waitcnt vmcnt(0)
    s_sub_u32 s{c}, s{c}, 1
    s_cbranch_scc0 L_pl{n}
L_pd{n}:'''.format(n=q, c=sCNT, lim=OPT['spin'], t=dst, t2=dst + 2, t3=dst + 3, vo=voff, ws=S_WS, ws3=S_WS + 3, so=ssoff)
    st.raw(t, uses=[v(voff), v(dst, 4)], defs=[v(dst, 4)])
def redo_check(st, vm, label):
    q = npoll[0]; npoll[0] += 1
    t = '''v_cmp_eq_u32 vcc, -1, v{m}
    s_cbranch_vccz L_pd{n}
    s_sub_u32 s{c}, s{c}, 1
    s_cbranch_scc1 L_pd{n}
    s_waitcnt vmcnt(0) lgkmcnt(0)
    s_nop 15
    s_branch {l}
L_pd{n}:'''.format(n=q, m=vm, c=sRC, l=label)
    st.raw(t, uses=[v(vm)])
sRC = 101
def kv_reads(st, ks):
    for X in range(5):
        off = KVPOS[ks >> 2] + (ks & 3) * 5120 + X * 1024
        st.ds_read_b128(v(vAF + (ks & 1) * 20 + X * 4, 4), v(vL16 if off < 61440 else vKV2), mods='offset:%d' % (L_KV + (off if off < 61440 else off - 61440)))
kv_reads(k, 0)
for sg in range(5):
    m_ = Stream()
    for q in range(4):
        ks = 4 * sg + q
        mm = Stream()
        for X in range(5):
            A = v(vAF + (q & 1) * 20 + X * 4, 4)
            mfma(mm, v(acc(X, 0), 4), A, xf(ks, 0), ks == 0)
            mfma(mm, v(acc(X, 1), 4), A, xf(ks, 1), ks == 0)
        ff = Stream()
        if ks < 19: kv_reads(ff, ks + 1)
        mm = weave(mm, [(ff, 0, 10)])
        if q == 2 and sg < 4:
            mm.waitvm('W%d' % (sg + 1))
            if sg == 2: mm.waitvm('CSF')
            if sg == 1: mm.waitvm('prepstW2'); mm.waitvm('prepstW3')
            mm.waitlds()
            mm.s_barrier()
            if sg == 1: post(mm, F_PREP2)
        m_.add(mm)
    fills = []
    f1 = Stream()
    if sg == 0 and OPT['x3e']:
        issue_kv(f1, 2)
        f6 = Stream(); x_read(f6, 3); f6.waitvm('x4'); x_read(f6, 4); fills.append((f6, 0, 29))
        f7 = Stream(); issue_kv(f7, 3, 0, 3); fills.append((f7, 31, None, 'vmem'))
    if sg == 1 and OPT['x3e']:
        f1.s_add_u32('m0', s(sCc), L_CSF)
        for n in range(2): f1.buffer_load_dwordx4(v(vL16), srd(S_WS), s(sD), mods='offen offset:%d sc1 lds' % (n * 1024), tag='CSF')
        issue_kv(f1, 3, 3, 5)
        issue_kv(f1, 4)
    if sg == 2 and OPT['x3e']: issue_q(f1, 0, 3)
    if sg == 0 and not OPT['x3e']:
        issue_x(f1, 4)
        f6 = Stream(); f6.waitvm('x3'); x_read(f6, 3); fills.append((f6, 12, 28))
        f7 = Stream(); issue_kv(f7, 2, 0, 3); fills.append((f7, 29, None, 'vmem'))
    if sg == 1 and not OPT['x3e']:
        issue_kv(f1, 2, 3, 5)
        f1.s_add_u32('m0', s(sCc), L_CSF)
        for n in range(2): f1.buffer_load_dwordx4(v(vL16), srd(S_WS), s(sD), mods='offen offset:%d sc1 lds' % (n * 1024), tag='CSF')
        if not OPT['ql']: issue_q(f1, 0, 1)
        f6 = Stream(); f6.waitvm('x4'); x_read(f6, 4); fills.append((f6, 4, 20))
        f7 = Stream(); issue_kv(f7, 3, 0, 4); fills.append((f7, 31, None, 'vmem'))
    if sg == 2 and not OPT['x3e']:
        issue_kv(f1, 3, 4, 5); issue_kv(f1, 4)
        if not OPT['ql']: issue_q(f1, 1, 2)
    if sg == 3:
        if not OPT['ql']: issue_q(f1, 3 if OPT['x3e'] else 2, OPT['qe'])
        f7 = Stream()
        if not OPT['e3']: issue_prep(f7, 0); issue_prep(f7, 1)
        else: issue_q(f7, 4, 5); issue_prep(f7, 3)
        if OPT['ql']: issue_prep(f7, 3)
        fills.append((f7, 31 if OPT['e3'] else OPT['pat'], None, 'vmem'))
    if sg == 4 and not OPT['ql'] and not OPT['e3']: issue_prep(f1, 3)
    if sg == 4 and OPT['tl2']:
        f1.v_lshlrev_b32(v(54), 20, v(vLANE)); f1.v_min_u32(v(54), 23 << 20, v(54))
        f1.buffer_load_dword(v(55), v(54), srd(S_WS), 0, mods='offen sc1')
        f1.buffer_load_dword(v(55), v(54), srd(S_OUT), 0, mods='offen sc1')
    fills.append((f1, 0, (28 if (sg == 0 or (sg == 1 and not OPT['x3e'])) else OPT['pat'] - 9 if sg == 3 else 10 if sg == 4 else None), 'vmem'))
    if sg == 3:
        f4 = Stream()
        f4.v_add_u32(v(t0), L_CSF, v(vL16))
        for X in range(5): f4.ds_read_b128(v(vE + 4 + 4 * X, 4), v(t0), mods='offset:%d' % (X * 1024))
        for X in range(3): f4.ds_read_b128(a(aCSQ + 4 * X, 4), v(t0), mods='offset:%d' % ((5 + X) * 1024))
        fills.append((f4, 0, 28))
    if sg == 0:
        f5 = Stream(); prep_reads(f5, 2, vE + 24); fills.append((f5, 0, 4))
        f5 = Stream(); prep_stores(f5, 2, vE + 24)
        if OPT['e3']: prep_stores(f5, 0, vE + 4)
        fills.append((f5, 5, 30 if OPT['e3'] else 6, 'vmem'))
    if OPT['tagB'] >= 4 and sg == OPT['tagB'] - 4:
        f8 = Stream(); o_store(f8, vPOI, vPOI, vPOI, 'poiO'); fills.append((f8, 6, 36, 'vmem'))
    if sg == 2:
        f4 = Stream(); q_setup(f4); fills.append((f4, 0, None))
    if sg == 3:
        f4 = Stream(); f4.s_add_u32(s(sD), s(sFP), (F_PREP2 - F_PREP) * 32768); flag_issue(f4, vF3, vFA1, sD)
        f4.s_lshl_b32(s(sV + 8), s(sR), 11); f4.s_lshl_b32(s(sT + 3), s(sW), 9); f4.s_add_u32(s(sV + 8), s(sV + 8), s(sT + 3)); f4.s_add_u32(s(sV + 8), s(sV + 8), WS_XST)
        f4.v_lshlrev_b32(v(vSA), 4, v(vJ))
        for tt in range(2): f4.buffer_load_dwordx4(v(vSL + 4 * tt, 4), v(vSA), srd(S_WS), s(sV + 8), mods='offen offset:%d sc1' % (256 * tt))
        fills.append((f4, OPT['pat'] - 8, OPT['pat'] - 1, 'vmem'))
    if sg == 4:
        f4 = Stream(); stats_check(f4); fills.append((f4, 20, None))
    if sg == 4:
        for X in range(5): mfma(m_, v(acc(X, 2), 4), v(vE + 4 + 4 * X, 4), v(vONE, 4), True)
    m_ = pack(m_, fills); print('kv stage', sg, 'est', m_.est)
    k.add(m_)
    if sg < 4: stamp(k, 'kv%d' % sg)
stamp(k, 'kvgemm')

def ln_pack(st, X, tt, dst, pk=True):
    A = acc(X, tt); C = acc(X, 2); S = v(vST + 2 * tt, 2)
    if pk:
        for h in range(2):
            st.v_pk_fma_f32(v(A + 2 * h, 2), v(C + 2 * h, 2), S, v(A + 2 * h, 2), mods='op_sel_hi:[1,0,1]')
        for h in range(2):
            st.v_pk_mul_f32(v(A + 2 * h, 2), v(A + 2 * h, 2), S, mods='op_sel:[0,1] op_sel_hi:[1,1]')
    else:
        for i in range(4): st.v_fmac_f32(v(A + i), v(C + i), v(vST + 2 * tt))
        for i in range(4): st.v_mul_f32(v(A + i), v(A + i), v(vST + 2 * tt + 1))
    for h in range(2):
        st.v_cvt_pk_bf16_f32(v(dst + h), v(A + 2 * h), v(A + 2 * h + 1))

vBK = vE + 4
vP = vE + 16
vEP = vACC
vMX = vE + 56
vPK = vAF
def feature_map(st):
    for tt in range(2):
        for ks in range(2):
            for ft in range(5):
                mfma(st, v(vP + 4 * ft, 4), a(aPHI + (tt * 10 + ft * 2 + ks) * 4, 4), v(vBK + 6 * tt + 2 * ks, 4), tt == 0 and ks == 0)
def softmax2(st, order, write=False):
    mx, mn, sp, sn = vMX, vMX + 1, vMX + 2, vMX + 4
    st.v_max3_f32(v(mx), v(vP), v(vP + 1), v(vP + 2))
    st.v_min3_f32(v(mn), v(vP), v(vP + 1), v(vP + 2))
    for i in range(3, 19, 2):
        st.v_max3_f32(v(mx), v(mx), v(vP + i), v(vP + i + 1))
        st.v_min3_f32(v(mn), v(mn), v(vP + i), v(vP + i + 1))
    st.v_max_f32(v(mx), v(mx), v(vP + 19))
    st.v_min_f32(v(mn), v(mn), v(vP + 19))
    st.v_mul_f32(v(mx), s(sL2Ep + 1), v(mx))
    st.v_mul_f32(v(mn), s(sL2Ep), v(mn))
    for i in range(0, 20, 2):
        st.v_pk_fma_f32(v(vEP + i, 2), v(vP + i, 2), s(sL2Ep, 2), v(mx, 2), mods='op_sel_hi:[1,0,0]')
        st.v_pk_fma_f32(v(vP + i, 2), v(vP + i, 2), s(sL2Ep, 2), v(mx, 2), mods='op_sel:[0,1,1] op_sel_hi:[1,1,1]')
    for i in range(20):
        st.v_exp_f32(v(vEP + i), v(vEP + i))
        st.v_exp_f32(v(vP + i), v(vP + i))
    st.v_pk_add_f32(v(sp, 2), v(vEP, 2), v(vEP + 2, 2))
    st.v_pk_add_f32(v(sn, 2), v(vP, 2), v(vP + 2, 2))
    for i in range(4, 20, 2):
        st.v_pk_add_f32(v(sp, 2), v(sp, 2), v(vEP + i, 2))
        st.v_pk_add_f32(v(sn, 2), v(sn, 2), v(vP + i, 2))
    st.v_add_f32(v(sp), v(sp), v(sp + 1))
    st.v_add_f32(v(sn), v(sn), v(sn + 1))
    st.v_rcp_f32(v(sp), v(sp))
    st.v_rcp_f32(v(sn), v(sn))
    def wr(q):
        if write: st.ds_write_b128(v(vFA), v(vPK + 4 * q, 4), mods='offset:%d' % (16 * q))
    for i in range(0, 20, 2): st.v_pk_mul_f32(v(vEP + i, 2), v(vEP + i, 2), v(sp, 2), mods='op_sel_hi:[1,0]')
    for i in range(10):
        st.v_cvt_pk_bf16_f32(v(vPK + order[i]), v(vEP + 2 * i), v(vEP + 2 * i + 1))
        if i == 3: wr(0)
    for i in range(0, 20, 2):
        st.v_pk_mul_f32(v(vP + i, 2), v(vP + i, 2), v(sn, 2), mods='op_sel_hi:[1,0]')
        if i == 6: wr(1)
    for i in range(10):
        st.v_cvt_pk_bf16_f32(v(vPK + order[10 + i]), v(vP + 2 * i), v(vP + 2 * i + 1))
        if i == 2: wr(2)
    wr(3); wr(4)

m_ = Stream()
for tt in range(2):
    for X in range(3): ln_pack(m_, X, tt, vBK + 6 * tt + 2 * X)
k.add(m_)
vVP = vAF + 20; vK1 = vAF + 30
m_ = Stream(); feature_map(m_)
f_ = Stream()
f_.v_cmp_lt_u32('vcc', 1, v(vG))
f_.v_mov_b32(v(t1), 0x3f80)
for tt in range(2):
    f_.v_cndmask_b32(v(vK1 + 2 * tt), v(t1), v(vBK + 6 * tt + 2), 'vcc')
    f_.v_cndmask_b32(v(vK1 + 2 * tt + 1), 0, v(vBK + 6 * tt + 3), 'vcc')
    f_.ds_write_b64(v(vK1A), v(vK1 + 2 * tt, 2), mods='offset:%d' % (200 + tt * 16 * 288))
for tt in range(2):
    for h in range(2):
        ln_pack(f_, 3 + h, tt, vVP + 4 * tt + 2 * h, pk=False)
        f_.ds_write_b64(v(vVA), v(vVP + 4 * tt + 2 * h, 2), mods='offset:%d' % (160 + 48 * h + tt * 16 * 288))
k.add(pack(m_, [(f_, 0, None)]))
m_ = Stream(); softmax2(m_, list(range(20)), True)
f_ = Stream()
if OPT['ql']: issue_q(f_, 0, OPT['qe'])
f2 = Stream()
if OPT['w2k']: flag_check(f2, vF3, vFA1, sD); issue_w2(f2, 0, OPT['w2k'])
k.add(weave(m_, [(f_, OPT['qlat'], 165, 'vmem'), (f2, OPT['w2kat'], 170, 'vmem')], anchor='any'))
if OPT['stop'] == 1:
    dump(k, [v(vBK, 4), v(vBK + 4, 4), v(vBK + 8, 4), v(vVP, 4), v(vVP + 4, 4), v(vST, 4)] + [v(vPK + 4 * i, 4) for i in range(5)])
    finish(k)
k.waitvm('Q4' if OPT['e3'] else 'Q%d' % (min(OPT['qe'], 2) - 1 if OPT['ql'] else OPT['qe'] - 1))
if OPT['pe']: k.waitvm('prep3')
k.waitlds()
k.s_barrier()
stamp(k, 'phik')
vKVA = vACC; vKVB = vACC + 48; vKVD = vE + 4
def kvm_reads(st, ks):
    off = 32 * ks * 288
    for i in range(2):
        st.ds_read_b64_tr_b16(v(vKVB + 4 * ks + 2 * i, 2), v(vKB), mods='offset:%d' % (off + 16 * i * 288))
    for ft in range(3):
        for i in range(2):
            st.ds_read_b64_tr_b16(v(vKVA + (ks * 3 + ft) * 4 + 2 * i, 2), v(vKA), mods='offset:%d' % (off + 16 * i * 288 + 32 * ft))
kvm_reads(k, 0); kvm_reads(k, 1)
k.s_lshl_b32(s(sT), s(sC), 4); k.s_add_u32(s(sT), s(sT), s(sR)); k.s_mul_i32(s(sT), s(sT), 3584)
k.s_add_u32(s(sT), s(sT), WS_PART)
m_ = Stream()
for ks in range(4):
    for ft in range(3):
        mfma(m_, v(vKVD + 4 * ft, 4), v(vKVA + (ks * 3 + ft) * 4, 4), v(vKVB + 4 * ks, 4), ks == 0)
f_ = Stream(); kvm_reads(f_, 2); kvm_reads(f_, 3)
k.add(weave(m_, [(f_, 0, 6)]))
vKVP = vE + 16
for i in range(6): k.v_cvt_pk_bf16_f32(v(vKVP + i), v(vKVD + 2 * i), v(vKVD + 2 * i + 1))
k.buffer_store_dwordx4(v(vKVP, 4), v(vPS), srd(S_WS), s(sT), mods='offen sc1')
k.buffer_store_dwordx2(v(vKVP + 4, 2), v(vPS + 1), srd(S_WS), s(sT), mods='offen sc1', tag='part')
stamp(k, 'kvst')

def qbuf(b, X): return vAF + b * 12 + X * 4
def q_reads(st, ks):
    for X in range(3): st.ds_read_b128(v(qbuf(ks & 1, X), 4), v(vKV2 + 1), mods='offset:%d' % (ks * 3072 + X * 1024))
PLQ = [88 + 4 * i for i in range(4)] + [140 + 4 * i for i in range(10)] + [248, 252]
def issue_part(st, lo=0, hi=16):
    for r_ in range(lo, hi):
        if r_: st.s_add_u32(s(sPL), s(sPL), 3584)
        st.buffer_load_dwordx4(v(PLQ[r_], 4), v(vPLO), srd(S_WS), s(sPL), mods='offen sc1')
q_reads(k, 0)
m_ = Stream()
for X in range(3): mfma(m_, v(acc(X, 2), 4), a(aCSQ + 4 * X, 4), v(vONE, 4), True)
for ks in range(20):
    mm = Stream()
    for X in range(3):
        A = v(qbuf(ks & 1, X), 4)
        mfma(mm, v(acc(X, 0), 4), A, xf(ks, 0), ks == 0)
        mfma(mm, v(acc(X, 1), 4), A, xf(ks, 1), ks == 0)
    ff = Stream()
    if ks < 19: q_reads(ff, ks + 1)
    m_.add(weave(mm, [(ff, 0, 6)]))
QP = OPT['qpost']
assert QP >= 3 + 6 * 4
fp = Stream(); stamp(fp, 'q_a'); fp.waitvm('part' if OPT['qe'] > 2 else 'Q2'); stamp(fp, 'q_b'); fp.s_barrier(); post(fp, F_KV)
NW3 = 0
W3ORD = [t * 20 + 4 * b_ + j_ for b_ in range(5) for t in range(3) for j_ in range(4)]
if OPT['e3']:
    W3ORD = list(range(OPT['w3q'])) + [i for i in range(OPT['w3q'], 40)][:OPT['w3e']]
    W3ORD += [i for i in [t * 20 + 4 * b_ + j_ for b_ in range(5) for t in range(3) for j_ in range(4)] if i not in W3ORD]
QP2 = OPT['qpost2']
fr = Stream(); fs = Stream()
if not OPT['e3']: prep_reads(fr, 0, vE + 4); prep_stores(fs, 0, vE + 4)
prep_reads(fr, 1, vE + 24); prep_stores(fs, 1, vE + 24)
fc = Stream()
if not OPT['e3']: cs3_partial(fc, vE + 4, vE + 32, vE + 52)
fq = Stream(); stamp(fq, 'q_c'); fq.waitvm('prepst2' if OPT['e3'] else 'prepst3'); stamp(fq, 'q_d'); fq.s_barrier(); post(fq, F_PREP)
f2 = Stream(); f2a = Stream()
W20 = OPT['w2k'] + OPT['w2p']
assert OPT['w2k'] <= 4 and W20 <= 8
if not OPT['w2k']: flag_check(f2a if OPT['w2p'] else f2, vF3, vFA1, sD)
issue_w2(f2a, OPT['w2k'], W20)
issue_w2(f2, W20, OPT['w2q'])
f4 = Stream(); flag_issue(f4, vF2, vFC, sFK)
fqq = Stream()
if not OPT['e3']: issue_q(fqq, OPT['qe'], 5)
fb3 = Stream(); fb4 = Stream()
if not OPT['e3']:
    if OPT['qe'] < 4: fb3.waitvm('Q3'); fb3.s_barrier()
    fb4.waitvm('Q4'); fb4.s_barrier()
fz = Stream()
for i in range(2): fz.v_mov_b32(v(52 + i), 0)
for i in range(2): fz.ds_write_b64(v(vT16), v(52, 2), mods='offset:%d' % (L_ZERO - L_KVR + 8 * i))
PB = 0 if OPT['pe'] else QP + 1
fl = [(fqq, 0, 14 if OPT['w2p'] else 34, 'vmem'), (f2a, 15, 34, 'vmem'), (fb3, 67, 68, 'vmem'), (fb4, 91, 92, 'vmem'), (fp, QP, QP + 1, 'vmem'), (fr, PB, PB + 9), (fs, PB + 10, PB + 10 + OPT['psl'], 'vmem'),
      (fc, PB + 11 + OPT['psl'], PB + 33 + OPT['psl']), (f2, OPT['w2at'], OPT['w3qat'] if OPT['e3'] else OPT['qin'] - OPT['qind'] if OPT['qin'] else 122, 'vmem'), (fz, 100, 120)]
if OPT['pe']: fl.append((fq, OPT['pe'], OPT['pe'] + 1, 'vmem')); fq = Stream()
if OPT['e3']:
    f3 = Stream(); issue_w3(f3, W3ORD[:OPT['w3q']]); NW3 = OPT['w3q']
    n_ = OPT['w3q']; lo_ = OPT['w3qat']
    for q in range(n_): assert lo_ + q * (122 - lo_) / n_ - 2.5 >= 3 + 6 * (4 * (q >> 3) + (q & 3) + 1), q
    fl.append((f3, lo_, 122, 'vmem'))
if OPT['qin']:
    f5 = Stream(); flag_check(f5, vF2, vFC, sFK); issue_part(f5, 0, OPT['qinn'])
    fl += [(f4, OPT['qin'] - OPT['qind'], OPT['qin'] - OPT['qind'] + 1, 'vmem'), (f5, OPT['qin'], 123, 'vmem')]
    f4 = Stream()
m_ = pack(m_, fl)
f4b = f4
print('q gemm est', m_.est)
k.add(m_)
stamp(k, 'qgemm')
m_ = Stream()
for tt in range(2):
    for X in range(3): ln_pack(m_, X, tt, vBK + 6 * tt + 2 * X)
feature_map(m_)
order = [0] * 20
for s_ in range(4):
    order[2 * s_] = 4 * s_; order[2 * s_ + 1] = 4 * s_ + 1; order[8 + 2 * s_] = 4 * s_ + 2; order[9 + 2 * s_] = 4 * s_ + 3
for i in range(16, 20): order[i] = i
softmax2(m_, order)
f5 = Stream()
if OPT['qin']: issue_part(f5, OPT['qinn'], 16)
else: stamp(f5, 'q_e'); flag_check(f5, vF2, vFC, sFK); stamp(f5, 'q_f'); issue_part(f5)
N2 = min(25, OPT['w2q'] + OPT['w2s'])
f6 = Stream(); issue_w2(f6, OPT['w2q'], N2)
f7 = Stream()
if OPT['e3']: issue_w3(f7, W3ORD[NW3:NW3 + OPT['w3e']]); NW3 += OPT['w3e']
if OPT['w3u'] and not OPT['e3']: flag_issue(f6, vF1, vFA1, sFP)
k.add(weave(m_, [(f5, OPT['qpl'], OPT['qpl'] + OPT['qpn'], 'vmem'), (f6, OPT['qpl'] + OPT['qpn'] + 2, None, 'vmem'), (f4b, OPT['qpl'] - 60, OPT['qpl'] - 59, 'vmem'), (fq, QP2, QP2 + 1, 'vmem'), (f7, 0, OPT['qpl'] - 62, 'vmem')], anchor='any'))
stamp(k, 'phiq')
if OPT['stop'] == 2:
    k.waitvm(); k.s_barrier()
    dump(k, [v(vPK + 4 * i, 4) for i in range(5)])
    finish(k)

vSUM = vE
m_ = Stream()
for r_ in range(16):
    for i in range(4):
        if r_ == 0:
            m_.v_lshlrev_b32(v(vSUM + 2 * i), 16, v(PLQ[0] + i))
            m_.v_and_b32(v(vSUM + 2 * i + 1), 0xffff0000, v(PLQ[0] + i))
        else:
            m_.v_dot2_f32_bf16(v(vSUM + 2 * i), v(PLQ[r_] + i), s(sONE_LO), v(vSUM + 2 * i))
            m_.v_dot2_f32_bf16(v(vSUM + 2 * i + 1), v(PLQ[r_] + i), s(sONE_HI), v(vSUM + 2 * i + 1))
N3 = min(25, N2 + OPT['w2u'])
f_ = Stream(); issue_w2(f_, N2, N3); N2 = N3
if OPT['e3']: issue_w3(f_, W3ORD[NW3:NW3 + OPT['w3u']]); NW3 += OPT['w3u']
elif OPT['w3u']: flag_check(f_, vF1, vFA1, sFP); issue_w3(f_, W3ORD[:OPT['w3u']]); NW3 = OPT['w3u']
else: flag_issue(f_, vF1, vFA1, sFP)
if OPT['tagB']:
    f_.s_lshl_b32(s(sD), s(sR), 11); f_.s_add_u32(s(sD), s(sD), WS_FLAGS + F_KV * 32768); flag_issue(f_, vF3, vFR, sD)
k.add(weave(m_, [(f_, OPT['w2uat'], None, 'vmem')], anchor='any'))
vOA = 104
for i in range(4): k.v_cvt_pk_bf16_f32(v(vSUM + 8 + i), v(vSUM + 2 * i), v(vSUM + 2 * i + 1))
k.ds_write_b128(v(vT16), v(vSUM + 8, 4))
k.waitlds()
k.s_barrier()
stamp(k, 'kvsum')
vOD = 224
vOP = 84
TORD = (5, 0, 1, 2, 3, 4)
def oread(st, n):
    s_, t = n // 6, TORD[n % 6]
    off = 256 * s_ + 64 * t if t < 4 else 1280 + 64 * (t - 4) + 80 * s_
    st.ds_read_b128(v(vOA + n * 4, 4), v(vKR), mods='offset:%d' % off)
for n in range(8): oread(k, n)
m_ = Stream()
for n in range(30):
    mfma(m_, v(vOD + 4 * TORD[n % 6], 4), v(vOA + n * 4, 4), v(vPK + 4 * (n // 6), 4), n < 6)
    if n + 8 < 30: oread(m_, n + 8)
N3 = min(25, N2 + OPT['w2o'])
f_ = Stream(); issue_w2(f_, N2, N3); N2 = N3
if OPT['w3o']:
    if not OPT['w3u'] and not OPT['e3']: flag_check(f_, vF1, vFA1, sFP)
    issue_w3(f_, W3ORD[NW3:NW3 + OPT['w3o']]); NW3 += OPT['w3o']
k.add(pack(m_, [(f_, 0, 26, 'vmem')]))
k.v_add_f32(v(vOD + 20), s(sEPS6), v(vOD + 20))
k.v_rcp_f32(v(vOD + 20), v(vOD + 20))
for i in range(10): k.v_pk_mul_f32(v(vOD + 2 * i, 2), v(vOD + 2 * i, 2), v(vOD + 20, 2), mods='op_sel_hi:[1,0]')
for i in range(10): k.v_cvt_pk_bf16_f32(v(vOP + i), v(vOD + 2 * i), v(vOD + 2 * i + 1))
if OPT['tagB']:
    for i in range(0, 10, 2): k.v_min_u32(v(vOP + i), -2, v(vOP + i))
o_store(k, vOP, vOP + 4, vOP + 8, 'ost')
stamp(k, 'ost')
vH = 18
vXRES = 252 - 10 * 0 - 0 if False else 28
vOF = 40
vA2 = 120
vD2 = 152
vA2P = 172
k.s_lshl_b32(s(sE), s(sW), 1); k.s_add_u32(s(sE), s(sE), s(sP))
k.s_lshl_b32(s(sT), s(sR), 3); k.s_add_u32(s(sF), s(sT), s(sE))
k.s_mul_i32(s(sXR), s(sF), 16 * 1280)
k.s_mul_i32(s(sT), s(sM), 160); k.s_add_u32(s(sXR), s(sXR), s(sT))
vXD = vD2 + 16
for e in range(3):
    k.v_add_u32(v(t0), 64 * e, v(vLANE)); div_small(k, t1, t0, 10)
    k.v_mul_u32_u24(v(t2), 10, v(t1)); k.v_sub_u32(v(t2), v(t0), v(t2))
    k.v_mul_u32_u24(v(vXD + e), 1280, v(t1)); k.v_lshl_add_u32(v(vXD + e), v(t2), 4, v(vXD + e))
    if e: k.v_subrev_u32(v(vXD + e), 1024 * e, v(vXD + e))
N3 = min(25, N2 + OPT['w2d']); issue_w2(k, N2, N3); N2 = N3
if OPT['tagB']: flag_check(k, vF3, vFR, sD)
else:
    k.waitvm('ost')
    k.s_barrier()
    post(k, F_O)
issue_w2(k, N2, 25)
k.s_mul_i32(s(sT + 2), s(sW), 3072)
k.s_add_u32('m0', s(sT + 2), L_XR)
for e in range(3): k.buffer_load_dwordx4(v(vXD + e), srd(S_X), s(sXR), mods='offen offset:%d lds' % (e * 1024), tag='xr')
k.v_mul_u32_u24(v(vXD), 160, v(vJ)); k.v_mul_u32_u24(v(t0), 40, v(vG)); k.v_add3_u32(v(vXD), v(vXD), v(t0), s(sT + 2))
k.v_add_u32(v(vXD), L_XR, v(vXD))
if OPT['tagD']:
    for i in range(4): k.v_mov_b32(v(vD2 + 8 + i), -1)
    k.v_mov_b32(v(t2), OOB)
    k.v_cmp_gt_u32('vcc', 3, v(vG))
    k.v_cndmask_b32(v(vD2 + 12), v(t2), v(vL16), 'vcc')
    k.s_mul_i32(s(sT + 4), s(sR), 8 * 49152); k.s_mul_i32(s(sT + 5), s(sC), 3072); k.s_add_u32(s(sT + 4), s(sT + 4), s(sT + 5))
    k.s_mul_i32(s(sT + 5), s(sW), 768); k.s_add_u32(s(sT + 4), s(sT + 4), s(sT + 5)); k.s_add_u32(s(sT + 4), s(sT + 4), WS_HH + 6 * 49152)
    k.buffer_store_dwordx4(v(vD2 + 8, 4), v(vD2 + 12), srd(S_WS), s(sT + 4), mods='offen sc1')
    k.s_add_u32(s(sT + 4), s(sT + 4), 49152)
    k.buffer_store_dwordx4(v(vD2 + 8, 4), v(vD2 + 12), srd(S_WS), s(sT + 4), mods='offen sc1')
stamp(k, 'opost')
if OPT['stop'] == 3: finish(k)

W3A = min(60, NW3 + OPT['w3a']); W3B = min(60, W3A + OPT['w3b'])
k.v_add_u32(v(t0), L_W2, v(vL16))
k.v_add_u32(v(t1), L_W2 + 61440, v(vL16))
k.v_mov_b32(v(38), v(vXD))
A2S = [vA2P + 4 * i for i in range(21)] + [vA2 + 4 * i for i in range(8)]
KT = OPT['g2k']
G2ORD = [(ks, t) for ks in range(KT) for t in range(5)] + [(ks, t) for t in range(5) for ks in range(KT, 20)]
def a2read(st, i):
    f = G2ORD[i][0] * 5 + G2ORD[i][1]
    st.ds_read_b128(v(A2S[i % 29], 4), v(t0 if f < 60 else t1), mods='offset:%d' % ((f if f < 60 else f - 60) * 1024))
if OPT['e3']: flag_issue(k, vD2 + 12, vFA1, sFP)
elif not OPT['w3o']: flag_check(k, vF1, vFA1, sFP)
k.s_mul_i32(s(sV), s(sF), 20480); k.s_add_u32(s(sV), s(sV), WS_O)
if OPT['asy']:
    k.s_lshl_b32(s(sV + 1), s(sR), 11); k.s_add_u32(s(sV + 1), s(sV + 1), WS_FLAGS + F_O * 32768)
    issue_w3(k, W3ORD[NW3:NW3 + 4])
    k.waitvm('xr'); k.s_barrier()
    if OPT['e3']: flag_check(k, vD2 + 12, vFA1, sFP)
    issue_w3(k, W3ORD[NW3 + 4:W3A])
    if OPT['tagB']:
        k.v_mul_u32_u24(v(vD2 + 4), 1280, v(vJ)); k.v_lshl_add_u32(v(vD2 + 4), v(vG), 6, v(vD2 + 4)); k.v_add_u32(v(vD2 + 4), 1024, v(vD2 + 4))
        sent_issue(k, vD2, vD2 + 4, sV)
    else: flag_issue(k, vD2, vFR, sV + 1)
    issue_w3(k, W3ORD[W3A:W3A + OPT['w3a2']]); W3A += OPT['w3a2']; W3B = min(60, W3A + OPT['w3b'])
    for q in range(5): k.ds_read_b64(v(vXRES + 2 * q, 2), v(38), mods='offset:%d' % (8 * q))
    if OPT['tagB']:
        k.s_mov_b32(s(sRC), 64)
        sent_check(k, vD2, vD2 + 4, sV)
    else:
        for i in range(29): a2read(k, i)
        flag_check(k, vD2, vFR, sV + 1)
else:
    issue_w3(k, W3ORD[NW3:W3A])
    k.waitvm('xr')
    poll_row(k, F_O, vD2)
    k.s_barrier()
stamp(k, 'oflag')
def issue_o(st, lo, hi):
    for i in range(lo, hi):
        if i % 8 == 0 or i == lo: gbase(st, gKV, sV, (i & ~7) * 1024 + 4096)
        st.global_load_dwordx4(v(vOF + 4 * i, 4), v(vL16), s(gKV, 2), mods='offset:%d sc1' % ((i % 8) * 1024 - 4096))
if OPT['tagB']: k.label('L_g2')
issue_o(k, 0, 10)
if OPT['tagB']:
    for i in range(29): a2read(k, i)
if not OPT['asy']:
    for i in range(29): a2read(k, i)
    for q in range(5): k.ds_read_b64(v(vXRES + 2 * q, 2), v(38), mods='offset:%d' % (8 * q))
vHA = 36
for i in range(10):
    k.v_lshlrev_b32(v(vD2 + 2 * i), 16, v(vXRES + i)); k.v_and_b32(v(vD2 + 2 * i + 1), 0xffff0000, v(vXRES + i))
k.v_lshrrev_b32(v(vHA), 1, v(vG)); k.v_mul_u32_u24(v(vHA), 1280, v(vHA))
k.v_lshl_add_u32(v(vHA), v(vJ), 4, v(vHA))
k.v_and_b32(v(vHA + 2), 1, v(vG))
k.v_lshl_add_u32(v(vHA + 1), v(vHA + 2), 3, v(vHA))
k.v_lshl_add_u32(v(vHA), v(vHA + 2), 9, v(vHA))
k.v_lshrrev_b32(v(vHA - 1), 1, v(vG)); k.v_lshlrev_b32(v(vHA - 1), 2, v(vHA - 1))
k.v_lshl_add_u32(v(vHA - 1), v(vJ), 3, v(vHA - 1))
k.v_cmp_eq_u32('vcc', 0, v(vHA + 2))
k.v_mov_b32(v(vHA + 2), OOB)
k.v_cndmask_b32(v(vHA - 1), v(vHA + 2), v(vHA - 1), 'vcc')
k.s_mul_i32(s(sT + 2), s(sF), 20480); k.s_mul_i32(s(sT + 1), s(sM), 2560); k.s_add_u32(s(sT + 2), s(sT + 2), s(sT + 1))
k.s_add_u32(s(sT + 2), s(sT + 2), WS_H)
k.s_lshl_b32(s(sT + 3), s(sF), 10); k.s_lshl_b32(s(sT + 1), s(sM), 7); k.s_add_u32(s(sT + 3), s(sT + 3), s(sT + 1))
k.s_add_u32(s(sT + 3), s(sT + 3), WS_HST)
m_ = Stream()
nxt = 29
for i in range(100):
    ks, t = G2ORD[i]
    mfma(m_, v(vD2 + 4 * t, 4), v(A2S[i % 29], 4), v(vOF + 4 * ks, 4), False)
    if OPT['tagB'] and i % 4 == 1 and i // 4 < 20 and False: pass
    if nxt < 100 and i % 4 != 3 - 0 and nxt - 29 <= i: a2read(m_, nxt); nxt += 1
    elif nxt < 100 and nxt - i <= 10: a2read(m_, nxt); nxt += 1
assert nxt == 100
if OPT['tagB']:
    mk = Stream(); cnt = 0
    for x in m_.l:
        mk.l.append(x)
        if x.cls == 'mfma':
            if cnt % 5 == 1:
                q = cnt // 5
                if q == 0: mk.v_max_u32(v(39), v(vOF), v(vOF + 2))
                else: mk.v_max3_u32(v(39), v(39), v(vOF + 4 * q), v(vOF + 4 * q + 2))
            cnt += 1
    for n in range(len(mk.l) - 1):
        if mk.l[n].cls == 'valu' and mk.l[n + 1].cls == 'ldsr': mk.l[n], mk.l[n + 1] = mk.l[n + 1], mk.l[n]
    m_ = mk
f1 = Stream(); issue_o(f1, 10, 20)
f2 = Stream(); issue_w3(f2, W3ORD[W3A:W3B])
fl = [(f1, 0, 40, 'vmem'), (f2, 44, OPT['g2e'], 'vmem')]
HE = 0
if KT < 20:
    n_ = 20 - KT
    fA = Stream()
    for i in range(4): fA.v_cvt_pk_bf16_f32(v(vH + i), v(vD2 + 2 * i), v(vD2 + 2 * i + 1))
    fA.buffer_store_dwordx4(v(vH, 4), v(vHA), srd(S_WS), s(sT + 2), mods='offen sc1')
    fl.append((fA, 100 - 3 * n_ + 2, 100 - 3 * n_ + 8)); HE = 1
    if n_ >= 6:
        fB = Stream()
        for i in range(4, 8): fB.v_cvt_pk_bf16_f32(v(vH + i), v(vD2 + 2 * i), v(vD2 + 2 * i + 1))
        fB.buffer_store_dwordx4(v(vH + 4, 4), v(vHA), srd(S_WS), s(sT + 2), mods='offen offset:256 sc1')
        fl.append((fB, 100 - n_ + 2, 100)); HE = 2
m_ = pack(m_, fl); print('gemm2 est', m_.est)
k.add(m_)
if OPT['tagB']: redo_check(k, 39, 'L_g2')
stamp(k, 'gemm2')
for i in range(4 * HE, 10): k.v_cvt_pk_bf16_f32(v(vH + i), v(vD2 + 2 * i), v(vD2 + 2 * i + 1))
def h_store(st, unt):
    if HE < 1: st.buffer_store_dwordx4(v(vH, 4), v(vHA), srd(S_WS), s(sT + 2), mods='offen sc1', untracked=unt)
    if HE < 2: st.buffer_store_dwordx4(v(vH + 4, 4), v(vHA), srd(S_WS), s(sT + 2), mods='offen offset:256 sc1', untracked=unt)
    st.buffer_store_dwordx2(v(vH + 8, 2), v(vHA + 1), srd(S_WS), s(sT + 2), mods='offen offset:1024 sc1', tag='hdat', untracked=unt)
if OPT['h0'] == 2:
    k.s_cmp_lg_u32(s(sW), 0); k.s_cbranch_scc1('L_h1'); k.cond_begin(); h_store(k, True); k.cond_end(); k.label('L_h1')
else: h_store(k, False)
sS, sQ, sY = vD2, vD2 + 1, vD2 + 2
k.v_mov_b32(v(sS), 0); k.v_mov_b32(v(sQ), 0)
for i in range(10):
    k.v_dot2_f32_bf16(v(sS), v(vH + i), s(sONES), v(sS))
    k.v_dot2_f32_bf16(v(sQ), v(vH + i), v(vH + i), v(sQ))
k.v_permlane32_swap_b32(v(sS), v(sQ))
k.v_add_f32(v(sS), v(sS), v(sQ))
k.v_mov_b32(v(sY), v(sS))
k.v_permlane16_swap_b32(v(sS), v(sY))
k.v_add_f32(v(sS), v(sS), v(sY))
if OPT['h0'] == 2:
    k.s_cmp_eq_u32(s(sW), 0); k.s_cbranch_scc1('L_h2'); h_store(k, False); k.label('L_h2'); k.s_nop(1)
k.buffer_store_dword(v(sS), v(vHA - 1), srd(S_WS), s(sT + 3), mods='offen sc1', tag='hst')
stamp(k, 'hst')

vL8 = 111
vCS = 28
vD3 = 40
vB3 = 64
vS3 = 88
vG3 = 92
vFL = 104
vRA = 108
vW4 = 112
sW4, sW4t, sW4l, sHs, sHl, sHt, sHS, sHH, sHHt, sHL, sHLt, sFH, sFHt = sB, sV, sXO, sXO + 1, sXO + 2, sV + 1, sV + 2, sD, sV + 4, sXO + 5, sV + 5, sXO + 4, sV + 6
k.s_mul_i32(s(sW4), s(sM), 245760); k.s_mul_i32(s(sT + 1), s(sW), 61440); k.s_add_u32(s(sW4), s(sW4), s(sT + 1))
k.s_add_u32(s(sW4), s(sW4), WS_W4)
k.s_mul_i32(s(sW4l), s(sW), 24576)
gW4, gH, gHH = 32, 34, 60
def issue_w4(st, lo, hi):
    for i in range(lo, hi):
        if i < 36:
            if i % 8 == 0 or i == lo: gbase(st, gW4, sW4, (i & ~7) * 1024 + 4096)
            st.global_load_dwordx4(v(vW4 + 4 * i, 4), v(vL16), s(gW4, 2), mods='offset:%d sc1' % ((i & 7) * 1024 - 4096))
        else:
            if i % 4 == 0 or i == lo:
                gbase(st, gW4, sW4, (i & ~3) * 1024); st.s_add_u32('m0', s(sW4l), L_W4 + ((i - 36) & ~3) * 1024)
            st.global_load_lds_dwordx4(v(vL16), s(gW4, 2), mods='offset:%d sc1' % ((i & 3) * 1024), tag='W4')
W3C = min(60, W3B + OPT['w3c']); W3E = 60 - OPT['w3t']
k.s_mul_i32(s(sT + 2), s(sC), 12288); k.s_mul_i32(s(sT + 3), s(sW), 3072); k.s_add_u32(s(sT + 2), s(sT + 2), s(sT + 3))
k.s_add_u32(s(sT + 2), s(sT + 2), WS_CS3)
issue_w3(k, W3ORD[W3B:W3C])
for i in range(4): k.v_mov_b32(v(vB3 + i), 0x3f803f80)
if OPT['h0']: k.waitvm('hdat'); post(k, F_H0)
k.waitvm('hst'); k.waitlds(); k.s_barrier(); post(k, F_H)
W4A = OPT['w4a']
stamp(k, 'hpost')
for t in range(3): k.buffer_load_dwordx4(v(vD3 + 4 * t, 4), v(vL16), srd(S_WS), s(sT + 2), mods='offen offset:%d sc1' % (t * 1024))
W3E = max(W3E, W3C)
W3D = max(W3C, W3E - OPT['w3c2']) if OPT['asy'] else W3E
issue_w3(k, W3ORD[W3C:W3D])
issue_w4(k, 0, OPT['w4p'])
vBX = 100
if OPT['mc']:
    for t in range(3): mfma(k, v(vD3 + 12 + 4 * t, 4), v(vB3, 4), v(vD3 + 4 * t, 4), True)
    k.v_cmp_eq_u32('vcc', 0, v(vG))
    k.v_mov_b32(v(vBX + 2), 0); k.v_mov_b32(v(vBX + 3), 0)
    for t in range(3):
        c_, d_ = vD3 + 12 + 4 * t, vCS + 4 * t
        k.v_cvt_pk_bf16_f32(v(d_ + 1), v(c_), 0)
        k.v_lshlrev_b32(v(d_), 16, v(d_ + 1))
        k.v_sub_f32(v(d_), v(c_), v(d_))
        k.v_cvt_pk_bf16_f32(v(d_), v(c_), v(d_))
        k.v_cndmask_b32(v(d_), 0, v(d_), 'vcc'); k.v_cndmask_b32(v(d_ + 1), 0, v(d_ + 1), 'vcc')
        k.v_mov_b32(v(d_ + 2), 0); k.v_mov_b32(v(d_ + 3), 0)
else:
    for t in range(3): mfma(k, v(vCS + 4 * t, 4), v(vD3 + 4 * t, 4), v(vB3, 4), True)
stamp(k, 'colsum')
if OPT['stop'] == 4: finish(k)
k.s_mul_i32(s(sHl), s(sW), 5120)
k.s_mul_i32(s(sHs), s(sR), 163840); k.s_add_u32(s(sHs), s(sHs), s(sHl))
k.s_add_u32(s(sHs), s(sHs), WS_H)
k.v_lshlrev_b32(v(t0), 9, v(vG))
k.v_lshl_add_u32(v(t0), v(vJ), 3, v(t0))
k.s_lshl_b32(s(sHS), s(sR), 13); k.s_lshl_b32(s(sT + 1), s(sW), 11); k.s_add_u32(s(sHS), s(sHS), s(sT + 1))
k.s_add_u32(s(sHS), s(sHS), WS_HST)
k.v_add_u32(v(vRA), L_RING, v(vL16))
k.v_lshrrev_b32(v(vL8), 1, v(vL16))
vMA = 98
k.v_lshlrev_b32(v(vMA), 3, v(vJ)); k.v_add_u32(v(vMA), L_MX, v(vMA))
k.v_lshlrev_b32(v(vRA + 1), 4, v(vJ)); k.v_add_u32(v(vRA + 1), L_ST, v(vRA + 1))
k.v_mov_b32(v(t2), OOB)
k.v_cmp_gt_u32('vcc', 3, v(vG))
k.v_cndmask_b32(v(vRA + 2), v(t2), v(vL16), 'vcc')
k.s_mul_i32(s(sHH), s(sR), 8 * 49152); k.s_mul_i32(s(sT), s(sC), 3072); k.s_add_u32(s(sHH), s(sHH), s(sT))
k.s_mul_i32(s(sT), s(sW), 768); k.s_add_u32(s(sHH), s(sHH), s(sT)); k.s_add_u32(s(sHH), s(sHH), WS_HH)
k.s_lshl_b32(s(sT), s(sR), 3); k.s_add_u32(s(sT), s(sT), s(sP)); k.s_mul_i32(s(sHL), s(sT), 49152)
k.s_mul_i32(s(sT), s(sW), 12288); k.s_add_u32(s(sHL), s(sHL), s(sT)); k.s_add_u32(s(sHL), s(sHL), WS_HH)
k.s_lshl_b32(s(sFH), s(sR), 11); k.s_add_u32(s(sFH), s(sFH), WS_FLAGS + F_HH * 32768)
if OPT['asy']:
    k.s_lshl_b32(s(sV + 6), s(sR), 11); k.s_add_u32(s(sV + 6), s(sV + 6), WS_FLAGS + (F_H0 if OPT['h0'] else F_H) * 32768)
    flag_issue(k, vG3, vFR, sV + 6)
    issue_w3(k, W3ORD[W3D:W3E])
    issue_w4(k, OPT['w4p'], W4A)
    flag_check(k, vG3, vFR, sV + 6)
else:
    issue_w4(k, 0, W4A)
    poll_row(k, F_H, vG3)
    k.s_barrier()
if OPT.get('slp'): k.s_sleep(OPT['slp'])
stamp(k, 'hflag')
def issue_h(st, T):
    gbase(st, gH, sHs, T * 20480)
    for i in range(5):
        if i % 4 == 0: st.s_add_u32('m0', s(sHl), L_RING + (T % 3) * 20480 + (i & 4) * 1024)
        st.global_load_lds_dwordx4(v(vL16 if i < 4 else vL16b), s(gH, 2), mods='offset:%d sc1' % ((i & 3) * 1024), tag='h%d' % T)
issue_h(k, 0)
issue_w3(k, W3ORD[W3E:W3E + 4])
issue_h(k, 1)
def stats3_load(st):
    for i in range(4): st.buffer_load_dwordx2(v(vG3 + 2 * i, 2), v(t0), srd(S_WS), s(sHS), mods='offen offset:%d sc1' % (128 * i))
if OPT['h0']:
    k.s_add_u32(s(sV + 6), s(sV + 6), (F_H - F_H0) * 32768); flag_issue(k, vFL, vFR, sV + 6)
else: stats3_load(k)
def stats3(st):
    st.v_add_f32(v(vG3), v(vG3), v(vG3 + 2)); st.v_add_f32(v(vG3 + 1), v(vG3 + 1), v(vG3 + 3))
    st.v_add_f32(v(vG3 + 4), v(vG3 + 4), v(vG3 + 6)); st.v_add_f32(v(vG3 + 5), v(vG3 + 5), v(vG3 + 7))
    st.v_add_f32(v(vG3), v(vG3), v(vG3 + 4)); st.v_add_f32(v(vG3 + 1), v(vG3 + 1), v(vG3 + 5))
    st.v_mov_b32(v(vG3 + 2), v(vG3)); st.v_mov_b32(v(vG3 + 3), v(vG3 + 1))
    st.v_lshrrev_b32(v(t0), 1, v(vG)); st.v_lshlrev_b32(v(t0), 8, v(t0))
    for i in range(2): st.v_permlane16_swap_b32(v(vG3 + i), v(vG3 + 2 + i))
    for i in range(2): st.v_add_f32(v(vG3 + i), v(vG3 + i), v(vG3 + 2 + i))
    st.v_mul_f32(v(vG3), s(sINV640), v(vG3))
    st.v_mul_f32(v(vG3 + 1), s(sINV640), v(vG3 + 1))
    st.v_fma_f32(v(vG3 + 1), '-' + v(vG3), v(vG3), v(vG3 + 1))
    st.v_max_f32(v(vG3 + 1), 0, v(vG3 + 1))
    st.v_add_f32(v(vG3 + 7), s(sEPS), v(vG3 + 1))
    st.v_sub_f32(v(vG3 + 4), 0, v(vG3))
    st.v_rsq_f32(v(vG3 + 2), v(vG3 + 7))
    st.v_lshl_add_u32(v(t0), v(vJ), 4, v(t0))
    st.v_mul_f32(v(vG3 + 5), s(sK1), v(vG3 + 2))
    st.v_mul_f32(v(vG3 + 3), v(vG3 + 2), v(vG3 + 2))
    st.v_mul_f32(v(vG3 + 6), s(sK3), v(vG3 + 2))
    st.v_mul_f32(v(vG3 + 6), v(vG3 + 6), v(vG3 + 3))
    st.s_lshl_b32(s(sT), s(sW), 9); st.s_add_u32(s(sT), s(sT), L_ST)
    st.v_add_u32(v(t0), s(sT), v(t0))
    st.ds_write_b128(v(t0), v(vG3 + 4, 4))
    if OPT['mc']:
        st.v_cvt_pk_bf16_f32(v(vG3), v(vG3 + 4), v(vG3 + 4))
        st.v_lshlrev_b32(v(vG3 + 1), 16, v(vG3))
        st.v_sub_f32(v(vG3 + 1), v(vG3 + 4), v(vG3 + 1))
        st.v_lshrrev_b32(v(t0), 1, v(t0))
        st.v_cvt_pk_bf16_f32(v(vG3 + 1), v(vG3 + 1), 0)
        st.v_subrev_u32(v(t0), L_ST // 2, v(t0))
        st.ds_write_b64(v(t0), v(vG3, 2), mods='offset:%d' % L_MX)
def epi3(st, T):
    D = vD3 + 12 * (T & 1)
    nm, c1, c3, vr = v(vS3), v(vS3 + 1), v(vS3 + 2), v(vS3 + 3)
    for t in range(3):
        for e in range(2):
            g_, u_ = D + 4 * t + e, D + 4 * t + 2 + e
            x = vG3 + 4 + e
            if not OPT['mc']:
                st.v_fmac_f32(v(g_), nm, v(vCS + 4 * t + e))
                st.v_fmac_f32(v(u_), nm, v(vCS + 4 * t + 2 + e))
            st.v_mul_f32(v(x), v(g_), v(g_))
            st.v_mul_f32(v(u_), v(g_), v(u_))
            st.v_fma_f32(v(x), v(x), c3, c1)
            st.v_mul_f32(v(x), v(x), v(g_))
            st.v_exp_f32(v(x), v(x))
        for e in range(2):
            x = vG3 + 4 + e
            st.v_fma_f32(v(x), v(x), vr, vr)
            st.v_rcp_f32(v(x), v(x))
        for e in range(2):
            u_ = D + 4 * t + 2 + e
            st.v_mul_f32(v(u_), v(u_), v(vG3 + 4 + e))
        st.v_cvt_pk_bf16_f32(v(vG3 + t), v(D + 4 * t + 2), v(D + 4 * t + 3))
        if t == 0: st.v_permlane16_swap_b32(v(vG3), v(vG3 + 3))
        if t == 1: st.v_permlane32_swap_b32(v(vG3 + 1), v(vG3))
    st.s_add_u32(s(sHHt), s(sHH), T * 49152)
    st.v_permlane32_swap_b32(v(vG3 + 2), v(vG3 + 3))
    st.buffer_store_dwordx4(v(vG3, 4), v(vRA + 2), srd(S_WS), s(sHHt), mods='offen sc1', tag='hh%d' % T)
def hhbuf(i, q): return a(80 * (i % 3) + 4 * q, 4)
def issue_hh(st, i, lo=0, hi=12):
    for q in range(lo, hi):
        if q % 8 == 0 or q == lo: gbase(st, gHH, sHL, i * 2 * 49152 + (q & ~7) * 1024 + 4096)
        st.global_load_dwordx4(hhbuf(i, q), v(vL16), s(gHH, 2), mods='offset:%d sc1' % ((q & 7) * 1024 - 4096))
def hflag_issue(st, n):
    st.s_add_u32(s(sFHt), s(sFH), n * 32768); flag_issue(st, vFL + 2 * (n & 1), vFR, sFHt)
def hflag_check(st, n):
    st.s_add_u32(s(sFHt), s(sFH), n * 32768); flag_check(st, vFL + 2 * (n & 1), vFR, sFHt)

W4L = OPT['w4l']
rem = W4L - W4A
cnt_ = [OPT['w40']] + [OPT['w4m']] * 5 + [0, OPT['w47']]
cnt_[6] = rem - sum(cnt_)
assert cnt_[6] >= 0
w4sched = [W4A]
for c_ in cnt_: w4sched.append(w4sched[-1] + c_)
NB = 6
def b3read(st, T, ks):
    n = T * 20 + ks
    st.ds_read_b128(v(vB3 + 4 * (n % NB), 4), v(vRA), mods='offset:%d' % ((T % 3) * 20480 + ks * 1024), tag='b%d' % n)
k.waitvm('h0')
k.s_barrier()
for ks in range(4): b3read(k, 0, ks)
if OPT['h0']: flag_check(k, vFL, vFR, sV + 6); stats3_load(k)
for T in range(8):
    stamp(k, 'g3t%d' % T)
    m_ = Stream()
    if T > 0: m_.ds_read_b128(v(vS3, 4), v(vRA + 1), mods='offset:%d' % ((T - 1) * 256))
    for ks in range(20):
        n = T * 20 + ks
        if ks == 14 and T < 7:
            m_.waitvm('h%d' % (T + 1))
            if T == 5: m_.waitvm('hh3')
            if T == 0: m_.waitlds()
            m_.s_barrier()
            if T == 5: post(m_, F_HH)
        for t in range(3):
            mfma(m_, v(vD3 + 12 * (T & 1) + 4 * t, 4), a((t * 20 + ks) * 4, 4), v(vB3 + 4 * (n % NB), 4), ks == 0)
            if t == 0 and n + 4 < 160: b3read(m_, (n + 4) // 20, (n + 4) % 20)
            if t == 2 and ks % 2 == 1 and n + 2 < 160: m_.waitlds('b%d' % (n + 2))
        if OPT['mc'] and ks == 15: m_.ds_read_b64(v(vBX, 2), v(vMA), mods='offset:%d' % (T * 128))
        if OPT['mc'] and ks == 19:
            for t in range(3): mfma(m_, v(vD3 + 12 * (T & 1) + 4 * t, 4), v(vCS + 4 * t, 4), v(vBX, 4), False)
        if ks == 8 and T == 7:
            m_.waitvm('hh5'); m_.s_barrier(); post(m_, F_HH + 1)
    fh = Stream()
    if T <= 5: issue_h(fh, T + 2)
    fv = Stream()
    if T == 0: issue_w3(fv, W3ORD[W3E + 4:60])
    if not OPT.get('now4'): issue_w4(fv, w4sched[T], w4sched[T + 1])
    fe = Stream()
    if T > 0 and OPT.get('noe'):
        fe.s_add_u32(s(sHHt), s(sHH), (T - 1) * 49152); fe.buffer_store_dwordx4(v(vG3, 4), v(vRA + 2), srd(S_WS), s(sHHt), mods='offen sc1', tag='hh%d' % (T - 1))
    elif T > 0: epi3(fe, T - 1)
    else: stats3(fe)
    fills = [(fv, 0, (40 if T < 6 else 58 if T == 6 else 24), 'vmem'), (fh, 43, None, 'vmem'), (fe, 2 if T else (24 if OPT['h0'] else 12), (59 if OPT['mc'] else 56) if T else 41)]
    if T == 7:
        f1 = Stream(); hflag_issue(f1, 0); fills.append((f1, 0, 1, 'vmem'))
        f2 = Stream(); hflag_check(f2, 0); issue_hh(f2, 0, 0, 9); fills.append((f2, 28, 60, 'vmem'))
    m_ = pack(m_, fills); print('g3 tile', T, 'est', m_.est)
    k.add(m_)
stamp(k, 'g3end')
def w4a(i): return a(80 * ((i - 36) // 8) + 48 + 4 * ((i - 36) % 8), 4)
k.ds_read_b128(v(vS3, 4), v(vRA + 1), mods='offset:%d' % (7 * 256))
k.v_add_u32(v(t0), s(sW4l), v(vL16))
k.waitvm('W4')
if OPT['stop'] == 5:
    epi3(k, 7); k.waitvm('hh7'); k.waitlds(); k.s_barrier(); post(k, F_HH + 2); finish(k)

vD4 = [64, 40]
def w4frag(i): return v(vW4 + 4 * i, 4) if i < 36 else w4a(i)
vRW = 84; vRR = 85; vOW = 86; vOR = 87; vOS = 88
QS = W4L // 5
def seg4(st, i, lo, hi):
    for q in range(lo, hi):
        for t in range(5): mfma(st, v(vD4[i & 1] + 4 * t, 4), w4frag(q * 5 + t), hhbuf(i, q), q == 0)
def red_write(st, i):
    for t in range(10): st.ds_write_b64(v(vRW), v(vD4[i & 1] + 2 * t, 2), mods='offset:%d' % (L_RED + i * 20480 + t * 512))
def issue_w4r(st, lo, hi):
    for i in range(lo, hi):
        if i % 4 == 0 or i == lo: st.s_add_u32(s(sW4t), s(sW4), (i & ~3) * 1024)
        st.buffer_load_dwordx4(w4a(i), v(vL16), srd(S_WS), s(sW4t), mods='offen offset:%d sc1' % ((i & 3) * 1024))
m_ = Stream(); seg4(m_, 0, 0, QS); seg4(m_, 1, 0, QS); seg4(m_, 0, QS, 12); seg4(m_, 1, QS, 12)
fe = Stream(); epi3(fe, 7)
fw = Stream()
for n in range(36, W4L): fw.ds_read_b128(w4a(n), v(t0), mods='offset:%d' % (L_W4 + (n - 36) * 1024))
fw.s_mul_i32(s(sT + 2), s(sW), 5120)
fw.v_add_u32(v(vRW), s(sT + 2), v(vL8))
fw.s_mul_i32(s(sT + 2), s(sW), 20480)
fw.v_add_u32(v(vRR), s(sT + 2), v(vL8))
fv = Stream()
if QS <= 9:
    issue_hh(fv, 1, 0, QS); issue_w4r(fv, W4L, W4L + 5); hflag_issue(fv, 1); issue_hh(fv, 0, 9, 12); issue_w4r(fv, W4L + 5, 60); issue_hh(fv, 1, QS, 12)
else:
    issue_hh(fv, 0, 9, 12); issue_hh(fv, 1, 0, 6); hflag_issue(fv, 1); issue_hh(fv, 1, 6, QS); issue_w4r(fv, W4L, 60); issue_hh(fv, 1, QS, 12)
fv2 = Stream(); hflag_check(fv2, 1); issue_hh(fv2, 2, 0, OPT['h2a'])
fp = Stream()
if OPT['tagD']: fp.waitlds(); fp.s_barrier()
else: fp.waitvm('hh7'); fp.waitlds(); fp.s_barrier(); post(fp, F_HH + 2)
fr0 = Stream(); red_write(fr0, 0)
e1 = OPT['v4end']
m_ = pack(m_, [(fe, 0, OPT['e7end']), (fw, 8, 34 + (W4L - 45) // 2), (fv, 0, e1, 'vmem'), (fp, OPT['p4post'], OPT['p4post'] + 1, 'vmem'), (fv2, e1, 120, 'vmem'),
               (fr0, 120 - 5 * (12 - QS) + 2 if QS < 12 else 64, 120 if QS < 12 else 110, 'vmem1')])
print('g4 tiles 0,1 est', m_.est)
stamp(k, 'g4t0'); k.add(m_)
if OPT['fin']:
    L_HS = L_RING; L_OI = L_RING + 10240
    vFR_, vFH, vFW, vFW2, vFS, vFO, vFD = 85, 86, 87, 88, 89, 90, 28
    sOB = sXO + 1
    fa = Stream()
    fa.s_mul_i32(s(sT + 2), s(sW), 2560); fa.s_add_u32(s(sT + 2), s(sT + 2), L_HS)
    fa.v_lshrrev_b32(v(t0), 1, v(vL8)); fa.v_add_u32(v(t1), s(sT + 2), v(t0))
    for q in range(10): fa.ds_write_b32(v(t1), v(vH + q), mods='offset:%d' % (q * 256))
    fa.s_lshl_b32(s(sT + 2), s(sW), 9)
    fa.v_add_u32(v(vFR_), s(sT + 2), v(vL8))
    fa.s_lshl_b32(s(sT + 2), s(sW), 8); fa.s_add_u32(s(sT + 2), s(sT + 2), L_HS)
    fa.v_add_u32(v(vFH), s(sT + 2), v(t0))
    fa.s_lshl_b32(s(sT + 2), s(sW), 2); fa.s_add_u32(s(sT + 2), s(sT + 2), L_OI)
    fa.v_mul_u32_u24(v(vFW), 160, v(vJ)); fa.v_mul_u32_u24(v(t0), 40, v(vG)); fa.v_add3_u32(v(vFW), v(vFW), v(t0), s(sT + 2))
    fa.s_cmp_lt_u32(s(sW), 2); fa.s_cselect_b32(s(sT + 2), 0, 16384)
    fa.v_add_u32(v(vFW2), s(sT + 2), v(vFW))
    fa.s_lshl_b32(s(sT + 2), s(sW), 6)
    fa.v_add_u32(v(t0), s(sT + 2), v(vLANE)); div_small(fa, t1, t0, 10)
    fa.v_lshlrev_b32(v(vFS), 4, v(t0)); fa.v_add_u32(v(vFS), L_OI, v(vFS))
    fa.v_mul_u32_u24(v(t2), 10, v(t1)); fa.v_sub_u32(v(t2), v(t0), v(t2))
    fa.v_mul_u32_u24(v(vFO), 1280, v(t1)); fa.v_lshl_add_u32(v(vFO), v(t2), 4, v(vFO))
    fa.v_mov_b32(v(t1), OOB); fa.s_movk_i32(s(sT + 2), 160)
    fa.v_cmp_gt_u32(s(sT + 4, 2), s(sT + 2), v(t0))
    fa.s_mul_i32(s(sT + 2), s(sW), 2 * 16 * 1280); fa.s_sub_u32(s(sOB), s(sXR), s(sT + 2))
    fa.v_cndmask_b32(v(vFO), v(t1), v(vFO), s(sT + 4, 2))
    FD = list(range(28, 40)) + list(range(92, 104))
    def fin_tile(st, i, pk=False):
        hi = i * 20480 > 40000
        for q in range(3):
            for sl in range(4):
                off = L_RED + i * 20480 + sl * 5120 + q * 2048
                r = FD[8 * q + 2 * sl]
                if off > 65535: st.ds_read_b64(v(r, 2), v(vFR2), mods='offset:%d' % (off - 61440))
                else: st.ds_read_b64(v(r, 2), v(vFR_), mods='offset:%d' % off)
            st.ds_read_b32(v(60 + q), v(vFH), mods='offset:%d' % (i * 2560 + q * 1024))
        for q in range(3):
            r = FD[8 * q:8 * q + 8:2]
            for e in range(2): st.v_add_f32(v(r[0] + e), v(r[0] + e), v(r[1] + e))
            for e in range(2): st.v_add_f32(v(r[2] + e), v(r[2] + e), v(r[3] + e))
            st.v_lshlrev_b32(v(r[1]), 16, v(60 + q)); st.v_and_b32(v(r[1] + 1), 0xffff0000, v(60 + q))
            for e in range(2): st.v_add_f32(v(r[0] + e), v(r[0] + e), v(r[2] + e))
            for e in range(2): st.v_add_f32(v(r[0] + e), v(r[0] + e), v(r[1] + e))
            st.v_cvt_pk_bf16_f32(v(r[0]), v(r[0]), v(r[0] + 1))
            st.ds_write_b32(v(vFW if q < 2 else vFW2), v(r[0]), mods='offset:%d' % (i * 2560 + q * 16))
    vFR2 = 91
    def out_tile(st, i, d):
        st.ds_read_b128(v(d, 4), v(vFS), mods='offset:%d' % (i * 2560))
        st.s_add_u32(s(sT + 3), s(sOB), i * 2 * 16 * 1280)
        st.buffer_store_dwordx4(v(d, 4), v(vFO), srd(S_OUT), s(sT + 3), mods='offen sc1')
    def bar():
        x = Stream(); x.waitlds(); x.s_barrier(); return x
    m_ = Stream(); seg4(m_, 2, 0, 12)
    fv = Stream(); issue_hh(fv, 2, OPT['h2a'], 12); hflag_issue(fv, 2)
    fv2 = Stream(); hflag_check(fv2, 2); issue_hh(fv2, 3, 0, OPT['h3a'])
    fr1 = Stream(); red_write(fr1, 1)
    ff = Stream(); fin_tile(ff, 0)
    fa.v_add_u32(v(vFR2), 61440, v(vFR_))
    m_ = pack(m_, [(fv, 0, OPT['f2at'], 'vmem'), (fv2, OPT['f2ck'], 60, 'vmem'), (fr1, 3, 26, 'vmem1'), (fa, 0, 26), (bar(), 27, 28, 'vmem'), (ff, 28, 60)])
    print('g4 tile 2 est', m_.est)
    stamp(k, 'g4t2'); k.add(m_)
    m_ = Stream(); seg4(m_, 3, 0, 12)
    fv = Stream(); issue_hh(fv, 3, OPT['h3a'], 12)
    fr2 = Stream(); red_write(fr2, 2)
    ff = Stream(); fin_tile(ff, 1)
    fg = Stream(); fin_tile(fg, 2)
    fo = Stream(); out_tile(fo, 0, 108); out_tile(fo, 1, 108)
    m_ = pack(m_, [(fv, 0, 4 * (12 - OPT['h3a']), 'vmem'), (fr2, 3, 28, 'vmem1'), (ff, 0, 28), (bar(), 29, 30, 'vmem'), (fg, 30, 60), (fo, 32, 56, 'vmem')])
    print('g4 tile 3 est', m_.est)
    stamp(k, 'g4t3'); k.add(m_)
    k.v_add_u32(v(vRW), 3 * 20480, v(vRW))
    for t in range(10): k.ds_write_b64(v(vRW), v(vD4[1] + 2 * t, 2), mods='offset:%d' % (L_RED + t * 512))
    k.waitlds()
    k.s_barrier()
    stamp(k, 'g4end')
    f_ = Stream(); fin_tile(f_, 3)
    o_ = Stream(); out_tile(o_, 2, 108)
    k.add(weave(f_, [(o_, 14, 15, 'vmem')], anchor='any'))
    k.waitlds()
    k.s_barrier()
    out_tile(k, 3, 108)
    finish(k)
m_ = Stream(); seg4(m_, 2, 0, 12)
fv = Stream(); issue_hh(fv, 2, OPT['h2a'], 12)
fv2 = Stream()
vSN = 92; vMX4 = 97
if OPT['tagD']:
    k.v_mul_u32_u24(v(vSN + 4), 768, v(vJ)); k.v_mul_u32_u24(v(t0), 192, v(vG)); k.v_add_u32(v(vSN + 4), v(vSN + 4), v(t0))
    k.s_add_u32(s(sFHt), s(sHL), 6 * 49152)
    k.s_mov_b32(s(sRC), 64)
    sent_issue(fv, vSN, vSN + 4, sFHt); sent_check(fv2, vSN, vSN + 4, sFHt)
else:
    hflag_issue(fv, 2); hflag_check(fv2, 2)
issue_hh(fv2, 3, 0, OPT['h3a'])
fr1 = Stream(); red_write(fr1, 1)
fa = Stream()
fa.s_mul_i32(s(sT + 2), s(sW), 3072); fa.s_add_u32(s(sT + 2), s(sT + 2), L_RING)
fa.v_mul_u32_u24(v(vOW), 160, v(vJ)); fa.v_mul_u32_u24(v(t0), 40, v(vG)); fa.v_add3_u32(v(vOW), v(vOW), v(t0), s(sT + 2))
fa.v_add_u32(v(vOR), s(sT + 2), v(vL16))
for e in range(3):
    fa.v_add_u32(v(t0), 64 * e, v(vLANE)); div_small(fa, t1, t0, 10)
    fa.v_mul_u32_u24(v(t2), 10, v(t1)); fa.v_sub_u32(v(t2), v(t0), v(t2))
    fa.v_mul_u32_u24(v(vOS + e), 1280, v(t1)); fa.v_lshl_add_u32(v(vOS + e), v(t2), 4, v(vOS + e))
fa.v_mov_b32(v(t0), OOB)
fa.v_cmp_gt_u32(s(sT + 4, 2), 32, v(vLANE))
fa.v_cndmask_b32(v(vOS + 2), v(t0), v(vOS + 2), s(sT + 4, 2))
m_ = pack(m_, [(fv, 0, OPT['f2at'], 'vmem'), (fv2, OPT['f2ck'], 60, 'vmem'), (fr1, 4, 50, 'vmem1'), (fa, 0, None)])
stamp(k, 'g4t2'); k.add(m_)
m_ = Stream(); seg4(m_, 3, 0, 12)
fv = Stream(); issue_hh(fv, 3, OPT['h3a'], 12)
fr2 = Stream(); red_write(fr2, 2)
def hh_verify(st):
    for q in range(12):
        r0 = 80 * (3 % 3) + 4 * q
        st.v_accvgpr_read_b32(v(vSN), a(r0)); st.v_accvgpr_read_b32(v(vSN + 1), a(r0 + 2))
        if q == 0: st.v_max_u32(v(vMX4), v(vSN), v(vSN + 1))
        else: st.v_max3_u32(v(vMX4), v(vMX4), v(vSN), v(vSN + 1))
if OPT['tagD']:
    mk = Stream(); cnt = 0; hv = Stream(); hh_verify(hv)
    for x in m_.l:
        mk.l.append(x); cnt += 1
        if cnt % 5 in (1, 2, 3): mk.l.append(hv.l[3 * (cnt // 5) + cnt % 5 - 1])
    m_ = mk
m_ = pack(m_, [(fv, 0, 4 * (12 - OPT['h3a']), 'vmem'), (fr2, 4, 50, 'vmem1')])
stamp(k, 'g4t3'); k.add(m_)
if OPT['tagD']:
    redo_check(k, vMX4, 'L_r3')
    k.s_branch('L_r3d')
    k.label('L_r3')
    k.cond_begin()
    issue_hh(k, 3); k.waitvm(); seg4(k, 3, 0, 12); hh_verify(k); redo_check(k, vMX4, 'L_r3')
    k.s_nop(7)
    k.cond_end()
    k.label('L_r3d')
k.v_add_u32(v(vRW), 3 * 20480, v(vRW))
for t in range(10): k.ds_write_b64(v(vRW), v(vD4[1] + 2 * t, 2), mods='offset:%d' % (L_RED + t * 512))
k.waitlds()
k.s_barrier()
stamp(k, 'g4end')
vR2 = 112
for sl in range(4):
    for t in range(10): k.ds_read_b64(v(vR2 + 20 * sl + 2 * t, 2), v(vRR), mods='offset:%d' % (L_RED + sl * 5120 + t * 512))
for q in range(10):
    k.v_pk_add_f32(v(vR2 + 2 * q, 2), v(vR2 + 2 * q, 2), v(vR2 + 20 + 2 * q, 2))
for q in range(10):
    k.v_dot2_f32_bf16(v(vR2 + 2 * q), v(vH + q), s(sONE_LO), v(vR2 + 2 * q))
    k.v_dot2_f32_bf16(v(vR2 + 2 * q + 1), v(vH + q), s(sONE_HI), v(vR2 + 2 * q + 1))
for q in range(10):
    k.v_pk_add_f32(v(vR2 + 40 + 2 * q, 2), v(vR2 + 40 + 2 * q, 2), v(vR2 + 60 + 2 * q, 2))
for q in range(10):
    k.v_pk_add_f32(v(vR2 + 2 * q, 2), v(vR2 + 2 * q, 2), v(vR2 + 40 + 2 * q, 2))
for q in range(10): k.v_cvt_pk_bf16_f32(v(40 + q), v(vR2 + 2 * q), v(vR2 + 2 * q + 1))
if OPT['cst']:
    for q in range(5): k.ds_write_b64(v(vOW), v(40 + 2 * q, 2), mods='offset:%d' % (8 * q))
    for e in range(3): k.ds_read_b128(v(52 + 4 * e, 4), v(vOR), mods='offset:%d' % (1024 * e))
    for e in range(3): k.buffer_store_dwordx4(v(52 + 4 * e, 4), v(vOS + e), srd(S_OUT), s(sXR), mods='offen' + ['', ' sc1', ' nt', ' sc0 sc1', ' sc1 nt'][OPT['ost']])
else:
    k.buffer_store_dwordx4(v(40, 4), v(vXRO), srd(S_OUT), s(sXR), mods='offen')
    k.buffer_store_dwordx4(v(44, 4), v(vXRO), srd(S_OUT), s(sXR), mods='offen offset:16')
    k.buffer_store_dwordx2(v(48, 2), v(vXRO), srd(S_OUT), s(sXR), mods='offen offset:32')
finish(k)
```
